```python
import torch

def _softmax(x, axis=-1):
    return torch.softmax(x, dim=axis)
def _gelu(x):
    return torch.nn.functional.gelu(x, approximate="tanh")
def _silu(x):
    return torch.nn.functional.silu(x)
def _sigmoid(x):
    return torch.sigmoid(x)
def _layernorm(x, axis=-1, eps=1e-5):
    m = x.mean(dim=axis, keepdim=True)
    v = x.var(dim=axis, keepdim=True, unbiased=False)
    return (x - m) / torch.sqrt(v + eps)
def _scatter_add(tgt, idx, src, axis=0):
    return tgt.clone().index_add_(axis, idx, src)
def _segment_sum(src, seg, n):
    out = torch.zeros((n,) + src.shape[1:], dtype=src.dtype)
    return out.index_add_(0, seg, src)
def _pad(x, pw):
    flat = tuple(v for pair in reversed(pw) for v in pair)
    return torch.nn.functional.pad(x, flat)

kernel_name = 'parallel_sum__mha_block_cached__dense_activation_silu__decode'

def setup_inputs():

    _w = (lambda a: (lambda t: t.to(torch.bfloat16) if t.is_floating_point() else t)(torch.as_tensor(a)))
    def _A_setup():
        B, Sq, D = 8, 1, 448
        H, Sk, Dh = 16, 4096, 256
        return {
            "x": _w((lambda *s: torch.randn(*s, dtype=torch.bfloat16) * 0.05)(B, Sq, D)),
            "k_cache": _w((lambda *s: torch.randn(*s, dtype=torch.bfloat16) * 3.2)(B, H, Sk, Dh)),
            "v_cache": _w((lambda *s: torch.randn(*s, dtype=torch.bfloat16) * 0.8)(B, H, Sk, Dh)),
            "wq": _w((lambda *s: torch.randn(*s, dtype=torch.bfloat16) * 3.2)(D, H * Dh) * (D ** -0.5)),
            "wo": _w((lambda *s: torch.randn(*s, dtype=torch.bfloat16) * 0.8)(H * Dh, D) * ((H * Dh) ** -0.5)),
        }
    _A_in = _A_setup()

    def _B_setup():
        B, S, D, F = 8, 1, 448, 1792
        return {
            "x": _w((lambda *s: torch.randn(*s, dtype=torch.bfloat16) * 0.05)(B, S, D)),
            "w1": _w((lambda *s: torch.randn(*s, dtype=torch.bfloat16) * 3.2)(D, F) * (D ** -0.5)),
            "w2": _w((lambda *s: torch.randn(*s, dtype=torch.bfloat16) * 0.4)(F, D) * (F ** -0.5)),
        }
    _B_in = _B_setup()

    return {
        "A_x": _A_in["x"],
        "A_k_cache": _A_in["k_cache"],
        "A_v_cache": _A_in["v_cache"],
        "A_wq": _A_in["wq"],
        "A_wo": _A_in["wo"],
        "B_x": _B_in["x"],
        "B_w1": _B_in["w1"],
        "B_w2": _B_in["w2"],
    }

def reference(A_x, A_k_cache, A_v_cache, A_wq, A_wo, B_x, B_w1, B_w2):
    def _A_ref(x, k_cache, v_cache, wq, wo):
        B, Sq, D = x.shape
        H, Dh = 16, 256
        q = (lambda x, *d: x.permute(*d))((x @ wq).reshape(B, Sq, H, Dh), 0, 2, 1, 3)
        scores = torch.einsum("bhqd,bhkd->bhqk", q, k_cache) * (Dh ** -0.5)
        p = _softmax(scores, axis=-1)
        o = torch.einsum("bhqk,bhkd->bhqd", p, v_cache)
        return (lambda x, *d: x.permute(*d))(o, 0, 2, 1, 3).reshape(B, Sq, H * Dh) @ wo

    def _B_ref(x, w1, w2):
        h = torch.einsum("bsd,df->bsf", x, w1)
        h = _silu(h)
        out = torch.einsum("bsf,fd->bsd", h, w2)
        return out

    x = A_x
    xn = _layernorm(x, axis=-1)
    return x + _A_ref(xn, A_k_cache, A_v_cache, A_wq, A_wo) + _B_ref(xn, B_w1, B_w2)
```

```python
import sys, math
from common import *

NAME="parallel_sum__mha_block_cached__dense_activation_silu__decode_kernel"
HEADER=open("parallel_sum__mha_block_cached__dense_activation_silu__decode.s.ref").read().split("; Override launch")[0]

L_Q=0; L_MX=512; L_SC=576; L_S=1024; S_STR=1040; L_O=L_S+8*S_STR; O_STR=144
L_X=L_O+8*O_STR; X_STR=272; X_SZ=8*X_STR; L_H=L_X+5*X_SZ; H_STR=48; L_END=L_H+8*H_STR
CEXP=math.log2(math.e)/16.0
import struct
def f2u(f): return struct.unpack("<I",struct.pack("<f",f))[0]

def gen(N=22, N0=8, R=48, NF=4, NW=2, stamp=False, catchup=True, SC="sc1", lds=None):
    L=[]; A=L.append
    def C(s): A("    ; "+s)
    A('.amdgcn_target "amdgcn-amd-amdhsa--gfx950"'); A(".text"); A(f".globl {NAME}"); A(".p2align 8"); A(f".type {NAME},@function"); A(f"{NAME}:")
    nst=[0]
    def STAMP(i):
        if stamp: A(f"s_memrealtime s[{70+2*i}:{71+2*i}]")
    A("s_cmp_ge_u32 s2, 256"); A("s_cbranch_scc1 L_end")
    STAMP(0)
    A("s_load_dwordx16 s[4:19], s[0:1], 0")
    A("s_load_dwordx4 s[20:23], s[0:1], 64")
    A("s_load_dwordx2 s[24:25], s[0:1], 80")
    A("v_lshrrev_b32 v1, 6, v0"); A("v_and_b32 v0, 63, v0"); A("v_readfirstlane_b32 s3, v1")
    A("s_and_b32 s26, s2, 7"); A("s_lshr_b32 s27, s2, 3"); A("s_and_b32 s28, s27, 1"); A("s_bfe_u32 s29, s27, 0x10001"); A("s_lshr_b32 s30, s27, 2")
    A("s_lshl_b32 s29, s29, 3"); A("s_add_u32 s31, s26, s29"); A("s_lshl_b32 s32, s31, 1"); A("s_add_u32 s32, s32, s28")
    A("s_lshl_b32 s33, s30, 5"); A("s_add_u32 s33, s33, s32")
    C("s30=b s31=h s32=pidx s33=gidx ; v2=g v3=e")
    A("v_lshrrev_b32 v2, 3, v0"); A("v_and_b32 v3, 7, v0")
    A(f"s_mov_b32 s34, {f2u(CEXP):#x}")
    A("s_mov_b32 s60, 0x00ff00ff"); A("s_mov_b32 s61, 0x00ff00ff")
    A("s_cmp_eq_u32 s3, 0"); A("s_cbranch_scc1 L_stream")
    A("s_cmp_ge_u32 s3, 6"); A("s_cbranch_scc1 L_buf")
    A("s_branch L_help")

    def srd(d, lo, hi, off_sgpr, size):
        if off_sgpr is None:
            A(f"s_mov_b32 s{d}, s{lo}"); A(f"s_mov_b32 s{d+1}, s{hi}")
        else:
            A(f"s_add_u32 s{d}, s{lo}, {off_sgpr}"); A(f"s_addc_u32 s{d+1}, s{hi}, 0")
        A(f"s_mov_b32 s{d+2}, {size}"); A(f"s_mov_b32 s{d+3}, 0x20000")
    def masks(base,t0,t1):
        A(f"v_and_b32 v{t0}, 1, v3"); A(f"v_lshlrev_b32 v{t0}, 4, v{t0}"); A(f"v_mov_b32 v{t1}, 0xffff"); A(f"v_lshlrev_b32 v{t0}, v{t0}, v{t1}")
        A(f"v_lshrrev_b32 v{t1}, 1, v3")
        for r in range(4):
            A(f"v_cmp_eq_u32 vcc, {r}, v{t1}"); A("s_nop 1"); A(f"v_cndmask_b32 v{base+r}, 0, v{t0}, vcc")
    def stamp_out(tmp=4):
        if not stamp: return
        A("s_waitcnt lgkmcnt(0)")
        A("s_mov_b64 exec, 1")
        srd(64,24,25,None,0x40000000)
        A("s_lshl_b32 s68, s2, 3"); A("s_add_u32 s68, s68, s3"); A("s_lshl_b32 s68, s68, 5"); A("s_add_u32 s68, s68, 0x20000000")
        A("s_getreg_b32 s69, hwreg(HW_REG_XCC_ID)")
        for i in range(7): A(f"v_mov_b32 v{tmp+i}, s{70+2*i}")
        A(f"v_mov_b32 v{tmp+7}, s69")
        A(f"buffer_store_dwordx4 v[{tmp}:{tmp+3}], off, s[64:67], s68")
        A(f"buffer_store_dwordx4 v[{tmp+4}:{tmp+7}], off, s[64:67], s68 offset:16")
        A("s_waitcnt vmcnt(0)")

    RING=256-4*R
    vK=4; vV=5; vSW=6; vSR=7; vMX=8; vR=9; vR2=10; vA=[11,12]; vB=[13,14]; vQ=16
    def slot(i): return RING+4*(i%R)
    def k_consume(c, dsoff):
        p=c%8; m=p%4; acc=vA if p<4 else vB; r=slot(c)
        for k in range(4):
            src2 = "0" if (m==0 and k<2) else f"v{acc[k%2]}"
            A(f"v_dot2_f32_bf16 v{acc[k%2]}, v{r+k}, v{vQ+4*m+k}, {src2}")
        k_post(p, dsoff)
    def k_post(p, dsoff):
        prev = dsoff is not None
        if p==0 and prev: A(f"v_add_f32 v{vB[0]}, v{vB[0]}, v{vB[1]}")
        if p==1 and prev: A(f"v_add_f32_dpp v{vR}, v{vB[0]}, v{vB[0]} row_half_mirror row_mask:0xf bank_mask:0xa")
        if p==2 and prev: A(f"v_add_f32_dpp v{vR}, v{vR}, v{vR} quad_perm:[1,0,3,2] row_mask:0xf bank_mask:0xf")
        if p==3 and prev: A(f"v_add_f32_dpp v{vR}, v{vR}, v{vR} quad_perm:[2,3,0,1] row_mask:0xf bank_mask:0xf")
        if p==4:
            if prev: A(f"v_cvt_pk_bf16_f32 v{vR2}, 0, v{vR}")
            A(f"v_add_f32 v{vA[0]}, v{vA[0]}, v{vA[1]}")
        if p==5:
            if prev:
                A(f"v_max_f32 v{vMX}, v{vMX}, v{vR2}"); A(f"ds_write_b32 v{vSW}, v{vR2} offset:{dsoff}")
            A(f"v_add_f32_dpp v{vR}, v{vA[0]}, v{vA[0]} row_half_mirror row_mask:0xf bank_mask:0x5")
    def k_flush(dsoff):
        A("s_nop 2"); A(f"v_add_f32 v{vB[0]}, v{vB[0]}, v{vB[1]}"); A("s_nop 1")
        A(f"v_add_f32_dpp v{vR}, v{vB[0]}, v{vB[0]} row_half_mirror row_mask:0xf bank_mask:0xa"); A("s_nop 1")
        A(f"v_add_f32_dpp v{vR}, v{vR}, v{vR} quad_perm:[1,0,3,2] row_mask:0xf bank_mask:0xf"); A("s_nop 1")
        A(f"v_add_f32_dpp v{vR}, v{vR}, v{vR} quad_perm:[2,3,0,1] row_mask:0xf bank_mask:0xf")
        A(f"v_cvt_pk_bf16_f32 v{vR2}, 0, v{vR}")
        A(f"v_max_f32 v{vMX}, v{vMX}, v{vR2}"); A(f"ds_write_b32 v{vSW}, v{vR2} offset:{dsoff}")
    def mx_publish(w, tmp):
        A("s_nop 1")
        A(f"v_max_f32_dpp v{vMX}, v{vMX}, v{vMX} row_ror:4 row_mask:0xf bank_mask:0xf"); A("s_nop 1")
        A(f"v_max_f32_dpp v{vMX}, v{vMX}, v{vMX} row_ror:8 row_mask:0xf bank_mask:0xf")
        A(f"v_lshrrev_b32 v{tmp}, 4, v0"); A(f"v_lshlrev_b32 v{tmp}, 2, v{tmp}")
        if isinstance(w,int): A(f"ds_write_b32 v{tmp}, v{vMX} offset:{L_MX+16*w}")
        else:
            A(f"v_add_u32 v{tmp}, {w}, v{tmp}"); A(f"ds_write_b32 v{tmp}, v{vMX} offset:{L_MX}")
    def k_setup():
        A(f"v_lshlrev_b32 v{vK}, 9, v2"); A(f"v_lshl_add_u32 v{vK}, v3, 4, v{vK}")
        A(f"v_mul_u32_u24 v{vSW}, {S_STR}, v2"); A(f"v_lshrrev_b32 v{vSR}, 2, v3"); A(f"v_lshl_add_u32 v{vSW}, v{vSR}, 2, v{vSW}")
        A(f"v_mov_b32 v{vMX}, 0xff800000")
        A("s_lshl_b32 s35, s33, 20")
    def q_read():
        A(f"v_lshlrev_b32 v{vR}, 4, v3")
        for m in range(4): A(f"ds_read_b128 v[{vQ+4*m}:{vQ+4*m+3}], v{vR} offset:{L_Q+128*m}")
        A("s_waitcnt lgkmcnt(0)")
    NP0=R//8
    assert R%8==0
    NKS=1024-2*R
    NTOT=NKS+1024

    A("L_stream:")
    A("s_setprio 3")
    k_setup()
    A(f"v_lshrrev_b32 v{vV}, 4, v0"); A(f"v_lshlrev_b32 v{vV}, 10, v{vV}"); A(f"v_and_b32 v{vSR}, 15, v0"); A(f"v_lshl_add_u32 v{vV}, v{vSR}, 4, v{vV}")
    A("s_waitcnt lgkmcnt(0)")
    srd(36,6,7,"s35",1<<20); srd(40,8,9,"s35",1<<20)
    A("s_mov_b32 s44, 0"); A("s_mov_b32 s45, 0")
    def issue(i):
        r=slot(i)
        if i<NKS:
            A(f"buffer_load_dwordx4 v[{r}:{r+3}], v{vK}, s[36:39], s44 offen offset:{128*(i%4)} nt")
            if i%4==3:
                inc=4096
                if i<R and i%8==7: inc=4096+2*8192 if i<R-1 else 4096+2*8192
                A(f"s_add_u32 s44, s44, {inc}")
        elif i<NTOT:
            u=i-NKS
            A(f"buffer_load_dwordx4 v[{r}:{r+3}], v{vV}, s[40:43], s45 offen offset:{256*(u%4)} nt")
            if u%4==3: A("s_add_u32 s45, s45, 4096")
    DK=R-1
    for i in range(DK):
        if i>=N0: A(f"s_waitcnt vmcnt({N0-1})")
        issue(i)
    STAMP(1)
    A("s_barrier")
    STAMP(2)
    q_read()
    def pair_T(pi):
        return 2*(3*pi) if pi<NP0 else 2*(3*NP0+(pi-NP0))
    def kstep(c, dsbase):
        I=c+DK
        A(f"s_waitcnt vmcnt({min(N-1,I-c-1)})")
        issue(I)
        pi=c//8
        k_consume(c, None if pi==0 else L_S+4*pair_T(pi-1)-dsbase)
    for c in range(0,2*R): kstep(c,0)
    nK=(NKS-DK-2*R)//R
    A(f"s_mov_b32 s46, {nK}")
    A("L_kloop:")
    for c in range(2*R,3*R): kstep(c,0)
    A(f"v_add_u32 v{vSW}, {R}, v{vSW}")
    A("s_sub_u32 s46, s46, 1"); A("s_cmp_lg_u32 s46, 0"); A("s_cbranch_scc1 L_kloop")
    dsb=nK*R
    for c in range((2+nK)*R,NKS): kstep(c,dsb)
    k_flush(L_S+4*pair_T(NKS//8-1)-dsb)
    mx_publish(0, vR)
    vM=[12,13,14,15]; vNM=11; vT=9; vP=10; vACC=16; vBB=[32,36]; vSS=[40,44,48]; vTM=52
    assert vTM+12<=RING
    masks(vM[0], vTM, vTM+1)
    A(f"v_mul_u32_u24 v{vSR}, {S_STR}, v2")
    A(f"v_mov_b32 v{vT}, 0")
    A("s_waitcnt lgkmcnt(0)")
    STAMP(3)
    A("s_barrier")
    for w in range(3): A(f"ds_read_b128 v[{vTM+4*w}:{vTM+4*w+3}], v{vT} offset:{L_MX+16*w}")
    A(f"ds_read_b128 v[{vSS[0]}:{vSS[0]+3}], v{vSR} offset:{L_S}")
    inext=[NKS+DK]
    A(f"s_waitcnt vmcnt({N-1})")
    issue(inext[0]); inext[0]+=1
    for r in range(16): A(f"v_mov_b32 v{vACC+r}, 0")
    A("s_waitcnt lgkmcnt(0)")
    def max12(dst,b):
        A(f"v_max3_f32 v{dst}, v{b}, v{b+1}, v{b+2}")
        for k in range(3,11,2): A(f"v_max3_f32 v{dst}, v{dst}, v{b+k}, v{b+k+1}")
        A(f"v_max_f32 v{dst}, v{dst}, v{b+11}")
    max12(vNM,vTM)
    A(f"v_mul_f32 v{vNM}, s34, v{vNM}"); A(f"v_sub_f32 v{vNM}, 0, v{vNM}")
    def bprep(tile, part):
        s=vSS[(tile//4)%3]+tile%4; b=vBB[tile%2]
        if part==0: A(f"v_fma_f32 v{vT}, v{s}, s34, v{vNM}")
        if part==1: A(f"v_exp_f32 v{vT}, v{vT}")
        if part==2: A(f"v_cvt_pk_bf16_f32 v{vP}, v{vT}, v{vT}"); A(f"v_and_b32 v{b}, v{vP}, v{vM[0]}")
        if part==3:
            for r in range(1,4): A(f"v_and_b32 v{b+r}, v{vP}, v{vM[r]}")
    bprep(0,0); bprep(0,1); A("s_nop 0"); bprep(0,2); bprep(0,3); A("s_nop 1")
    def vconsume(u, srbase, mark):
        tile=u//4; q=u%4; r=slot(NKS+u); b=vBB[tile%2]
        if q==0 and tile%4==0 and tile+4<256:
            nb=vSS[(tile//4+1)%3]
            A(f"ds_read_b128 v[{nb}:{nb+3}], v{vSR} offset:{L_S+4*(tile+4)-srbase}")
        if q==0 and tile%4==3 and tile+1<256: A("s_waitcnt lgkmcnt(0)")
        a=vACC+4*q
        if q==0 and len(L)-mark<2: A(f"s_nop {1-(len(L)-mark)}")
        A(f"v_mfma_f32_16x16x32_bf16 v[{a}:{a+3}], v[{r}:{r+3}], v[{b}:{b+3}], v[{a}:{a+3}]")
        if tile+1<256: bprep(tile+1,q)
    def vstep(u, srbase, do_issue=True):
        c=NKS+u; I=inext[0]; mark=len(L)
        if do_issue and I<NTOT:
            A(f"s_waitcnt vmcnt({min(N-1,I-c-1)})")
            assert I-R < c
            issue(I); inext[0]+=1
        else:
            k=I-c-1
            if k<N: A(f"s_waitcnt vmcnt({k})")
        vconsume(u,srbase,mark)
    u=0
    DV=N if catchup else R-1
    first=True
    while True:
        D=inext[0]-(NKS+u)
        if D<=DV and u%R==0: break
        if D>DV:
            vstep(u,0,do_issue=False); u+=1
            D=inext[0]-(NKS+u)
            if D>DV or u%R!=0:
                if D>=DV: vstep(u,0,True); u+=1
        else:
            vstep(u,0,True); u+=1
    D=inext[0]-(NKS+u)
    assert D==DV and u%R==0 and (R//16)%3==0 and R%16==0, (D,DV,u)
    u0=u
    nV=(1024-DV-u0)//R
    while u0+nV*R+16>1024: nV-=1
    A(f"s_mov_b32 s46, {nV}")
    A("L_vloop:")
    for uu in range(u0,u0+R): vstep(uu,0,True)
    A(f"v_add_u32 v{vSR}, {R}, v{vSR}")
    A("s_sub_u32 s46, s46, 1"); A("s_cmp_lg_u32 s46, 0"); A("s_cbranch_scc1 L_vloop")
    inext[0]+=(nV-1)*R
    for uu in range(u0+nV*R,1024): vstep(uu,nV*R,True)
    STAMP(4)
    A(f"v_lshrrev_b32 v{vT}, 4, v0"); A(f"v_lshlrev_b32 v{vT}, 4, v{vT}"); A(f"v_mul_u32_u24 v{vP}, {O_STR}, v3"); A(f"v_add_u32 v{vT}, v{vT}, v{vP}")
    A("s_nop 3")
    for hf in range(2):
        for r in range(4):
            A(f"v_add_f32_dpp v{vTM+4*hf+r}, v{vACC+8+4*hf+r}, v{vACC+4*hf+r} row_ror:8 row_mask:0xf bank_mask:0xf")
    for k in range(8): A(f"v_cvt_pk_bf16_f32 v{vTM+k}, v{vTM+k}, v{vTM+k}")
    A("s_mov_b64 exec, s[60:61]")
    A(f"ds_write_b128 v{vT}, v[{vTM}:{vTM+3}] offset:{L_O}")
    A(f"ds_write_b128 v{vT}, v[{vTM+4}:{vTM+7}] offset:{L_O+64}")
    A("s_waitcnt lgkmcnt(0)")
    A("s_barrier")
    STAMP(5)
    stamp_out()
    A("s_endpgm")

    hM=20
    hACC=24
    hAD=28; hLD=29
    WO=128
    def wo_issue():
        C("wo block loads, c = wave-1")
        A("s_mul_i32 s47, s31, 229376"); A("s_sub_u32 s48, s3, 1"); A("s_lshl_b32 s48, s48, 7"); A("s_add_u32 s47, s47, s48")
        A(f"s_sub_u32 s48, {4096*896}, s47")
        srd(52,12,13,"s47","s48")
        A(f"v_mul_u32_u24 v{hAD}, 896, v2"); A(f"v_lshl_add_u32 v{hAD}, v3, 4, v{hAD}")
        A("s_mov_b32 s47, 0")
        for t in range(32):
            if t>=NW: A(f"s_waitcnt vmcnt({NW-1})")
            A(f"buffer_load_dwordx4 v[{WO+4*t}:{WO+4*t+3}], v{hAD}, s[52:55], s47 offen")
            A("s_add_u32 s47, s47, 7168")
    def combine(acc, dst):
        A(f"v_permlane32_swap_b32 v{acc}, v{acc+1}"); A(f"v_permlane32_swap_b32 v{acc+2}, v{acc+3}")
        A("s_nop 1")
        A(f"v_add_f32_dpp v{dst}, v{acc+1}, v{acc} row_ror:8 row_mask:0xf bank_mask:0xf")
        A(f"v_add_f32_dpp v{dst+1}, v{acc+3}, v{acc+2} row_ror:8 row_mask:0xf bank_mask:0xf")
    def wave_sum(v,t,op="add"):
        for pat in ["quad_perm:[1,0,3,2]","quad_perm:[2,3,0,1]","row_half_mirror","row_mirror"]:
            A("s_nop 1"); A(f"v_{op}_f32_dpp v{v}, v{v}, v{v} {pat} row_mask:0xf bank_mask:0xf")
        for sw in ["16","32"]:
            A(f"v_mov_b32 v{t}, v{v}"); A("s_nop 1"); A(f"v_permlane{sw}_swap_b32 v{v}, v{t}"); A(f"v_{op}_f32 v{v}, v{v}, v{t}")
    def srd_slots():
        A("s_lshl_b32 s47, s33, 12"); srd(36,24,25,"s47",4096)
        A("s_lshl_b32 s47, s30, 17"); srd(40,24,25,"s47",131072)
        srd(56,22,23,None,256)
    lbl=[0]
    def cnt_wait(t):
        lbl[0]+=1; n=lbl[0]
        A("s_lshl_b32 s47, s30, 4"); A("s_mov_b32 s49, 400000")
        A(f"L_cw{n}:")
        A(f"buffer_load_dword v{t}, off, s[56:59], s47 {SC}"); A("s_waitcnt vmcnt(0)")
        A(f"v_cmp_ne_u32 vcc, 32, v{t}"); A("s_sub_u32 s49, s49, 1"); A("s_cbranch_scc1 L_cwx%d"%n)
        A(f"s_cbranch_vccz L_cwx{n}"); A("s_sleep 8"); A(f"s_branch L_cw{n}")
        A(f"L_cwx{n}:")
    def gather(off, b, vad, sleep):
        lbl[0]+=1; n=lbl[0]
        A("s_mov_b32 s49, 400000"); A("s_mov_b32 s47, 65536")
        A(f"L_g{n}:")
        A(f"buffer_load_dwordx4 v[{b}:{b+3}], v{vad}, s[40:43], 0 offen offset:{off} {SC}")
        A(f"buffer_load_dwordx4 v[{b+4}:{b+7}], v{vad}, s[40:43], s47 offen offset:{off} {SC}")
        A("s_waitcnt vmcnt(0)")
        A(f"v_max3_u32 v{b+8}, v{b}, v{b+1}, v{b+2}"); A(f"v_max3_u32 v{b+9}, v{b+3}, v{b+4}, v{b+5}")
        A(f"v_max3_u32 v{b+8}, v{b+8}, v{b+6}, v{b+7}"); A(f"v_max_u32 v{b+8}, v{b+8}, v{b+9}")
        A(f"v_cmp_eq_u32 vcc, -1, v{b+8}"); A("s_sub_u32 s49, s49, 1"); A(f"s_cbranch_scc1 L_gx{n}")
        A(f"s_cbranch_vccz L_gx{n}")
        if sleep: A(f"s_sleep {sleep}")
        A(f"s_branch L_g{n}")
        A(f"L_gx{n}:")
        for r in range(4): A(f"v_add_f32 v{b+r}, v{b+r}, v{b+4+r}")
        for pat in ["row_ror:4","row_ror:8"]:
            if pat=="row_ror:4": pass
            for r in range(4): A(f"v_add_f32_dpp v{b+r}, v{b+r}, v{b+r} {pat} row_mask:0xf bank_mask:0xf")
        for r in range(1,4): A(f"v_mov_b32_dpp v{b}, v{b+r} quad_perm:[0,1,2,3] row_mask:0xf bank_mask:{1<<r:#x}")
        for sw in ["16","32"]:
            A(f"v_mov_b32 v{b+1}, v{b}"); A("s_nop 1"); A(f"v_permlane{sw}_swap_b32 v{b}, v{b+1}"); A(f"v_add_f32 v{b}, v{b}, v{b+1}")
    def tail_gemv():
        P=32
        A(f"v_mul_u32_u24 v{hLD}, {O_STR}, v2"); A("v_mov_b32 v30, 0")
        A(f"v_lshrrev_b32 v{hAD}, 4, v0"); A(f"v_lshl_add_u32 v{hAD}, v{hAD}, 3, v3"); A(f"v_lshlrev_b32 v{hAD}, 3, v{hAD}")
        A("s_sub_u32 s48, s3, 1"); A("s_lshl_b32 s48, s48, 8")
        A("s_waitcnt vmcnt(0) lgkmcnt(0)")
        STAMP(4)
        A("s_barrier")
        STAMP(5)
        for n in range(8): A(f"ds_read_b128 v[{P+4*n}:{P+4*n+3}], v{hLD} offset:{L_O+16*n}")
        A(f"ds_read_b32 v31, v30 offset:{L_SC}")
        BB=[12,16]
        def bp(t):
            if t%4==0: A(f"s_waitcnt lgkmcnt({8-t//4})")
            for r in range(4): A(f"v_and_b32 v{BB[t%2]+r}, v{P+t}, v{hM+r}")
        bp(0)
        for t in range(32):
            if t+1<32: bp(t+1)
            else: A("s_nop 0")
            A(f"v_mfma_f32_16x16x32_bf16 v[{hACC}:{hACC+3}], v[{WO+4*t}:{WO+4*t+3}], v[{BB[t%2]}:{BB[t%2]+3}], {'0' if t==0 else f'v[{hACC}:{hACC+3}]'}")
        A("s_waitcnt lgkmcnt(0)"); A("s_nop 6")
        combine(hACC,12)
        A("v_mul_f32 v12, v31, v12"); A("v_mul_f32 v13, v31, v13")
        A("v_min_u32 v12, -2, v12"); A("v_min_u32 v13, -2, v13")
        A("s_mov_b64 exec, s[60:61]")
        A(f"buffer_store_dwordx2 v[12:13], v{hAD}, s[36:39], s48 offen {SC}")
        A("s_mov_b64 exec, -1")

    A("L_buf:")
    k_setup()
    A("s_waitcnt lgkmcnt(0)")
    srd(36,6,7,"s35",1<<20)
    A("s_sub_u32 s47, s3, 5"); A("s_lshl_b32 s44, s47, 13")
    A("s_lshl_b32 s47, s47, 3"); A(f"v_add_u32 v{vSW}, s47, v{vSW}")
    for i in range(R):
        if i>=N0: A(f"s_waitcnt vmcnt({N0-1})")
        r=slot(i)
        A(f"buffer_load_dwordx4 v[{r}:{r+3}], v{vK}, s[36:39], s44 offen offset:{128*(i%4)} nt")
        if i%4==3: A(f"s_add_u32 s44, s44, {4096 if i%8==3 else 4096+2*8192}")
    STAMP(1)
    A("s_barrier")
    STAMP(2)
    q_read()
    for c in range(R):
        A(f"s_waitcnt vmcnt({R-1-c})")
        pi=c//8
        k_consume(c, None if pi==0 else L_S+4*2*3*(pi-1))
    k_flush(L_S+4*2*3*(NP0-1))
    A("s_sub_u32 s47, s3, 5"); A("s_lshl_b32 s47, s47, 4")
    mx_publish("s47", vR)
    masks(hM,12,13)
    wo_issue()
    srd_slots()
    A("s_waitcnt lgkmcnt(0)")
    STAMP(3)
    A("s_barrier")
    A("s_cmp_eq_u32 s3, 7"); A("s_cbranch_scc1 L_tail")
    C("wave 6: softmax denominator, exchange (m,l) with partner, scale")
    A("v_mov_b32 v4, 0")
    for w in range(3): A(f"ds_read_b128 v[{64+4*w}:{64+4*w+3}], v4 offset:{L_MX+16*w}")
    A(f"v_mul_u32_u24 v5, {S_STR}, v2"); A("v_lshl_add_u32 v5, v3, 7, v5")
    for n in range(8): A(f"ds_read_b128 v[{32+4*n}:{32+4*n+3}], v5 offset:{L_S+16*n}")
    A("s_waitcnt lgkmcnt(8)")
    max12(6,64)
    A("v_mul_f32 v7, s34, v6"); A("v_sub_f32 v7, 0, v7")
    A("s_waitcnt lgkmcnt(0)")
    for k in range(32): A(f"v_fma_f32 v{32+k}, v{32+k}, s34, v7")
    for k in range(32): A(f"v_exp_f32 v{32+k}, v{32+k}")
    for st in (16,8,4,2,1):
        for k in range(st): A(f"v_add_f32 v{32+k}, v{32+k}, v{32+k+st}")
    wave_sum(32,33)
    C("v6=M v32=l")
    A("v_min_u32 v8, -2, v6"); A("v_min_u32 v9, -2, v32")
    A("s_mov_b64 exec, 1")
    A(f"buffer_store_dwordx2 v[8:9], off, s[36:39], 0 offset:3840 {SC}")
    A("s_mov_b64 exec, -1")
    cnt_wait(10)
    A("s_xor_b32 s47, s32, 1"); A("s_lshl_b32 s47, s47, 12"); A("s_mov_b32 s49, 400000")
    A("L_mlp:")
    A(f"buffer_load_dwordx2 v[10:11], off, s[40:43], s47 offset:3840 {SC}"); A("s_waitcnt vmcnt(0)")
    A("v_max_u32 v12, v10, v11"); A("v_cmp_eq_u32 vcc, -1, v12"); A("s_sub_u32 s49, s49, 1"); A("s_cbranch_scc1 L_mlx")
    A("s_cbranch_vccz L_mlx"); A("s_sleep 8"); A("s_branch L_mlp")
    A("L_mlx:")
    A("v_max_f32 v12, v6, v10")
    A("v_sub_f32 v13, v6, v12"); A("v_sub_f32 v14, v10, v12")
    A("v_mul_f32 v13, s34, v13"); A("v_mul_f32 v14, s34, v14")
    A("v_exp_f32 v13, v13"); A("v_exp_f32 v14, v14"); A("s_nop 0")
    A("v_mul_f32 v15, v13, v32"); A("v_fma_f32 v15, v14, v11, v15")
    A("v_rcp_f32 v15, v15"); A("s_nop 0"); A("v_mul_f32 v15, v15, v13")
    A(f"ds_write_b32 v4, v15 offset:{L_SC}")
    A("s_branch L_tail")

    A("L_help:")
    D0=32
    masks(hM,12,13)
    A("v_lshlrev_b32 v1, 4, v0")
    A("s_waitcnt lgkmcnt(0)")
    A("s_mul_i32 s47, s30, 896"); srd(88,4,5,"s47",896)
    A("buffer_load_dwordx4 v[4:7], v1, s[88:91], 0 offen")
    A("s_cmp_eq_u32 s3, 5"); A("s_cbranch_scc1 L_ffn0")
    C("wq block loads")
    A("s_lshl_b32 s48, s31, 9"); A("s_sub_u32 s49, s3, 1"); A("s_lshl_b32 s49, s49, 7"); A("s_add_u32 s48, s48, s49"); A(f"s_sub_u32 s49, {448*8192}, s48")
    srd(52,10,11,"s48","s49")
    A(f"v_lshlrev_b32 v{hAD}, 13, v2"); A(f"v_lshl_add_u32 v{hAD}, v3, 4, v{hAD}")
    A("s_mov_b32 s48, 0")
    for t in range(56):
        A(f"buffer_load_dwordx4 v[{D0+4*t}:{D0+4*t+3}], v{hAD}, s[52:55], s48 offen")
        A("s_add_u32 s48, s48, 65536")
    A("s_waitcnt vmcnt(56)")
    A("s_branch L_ln")
    A("L_ffn0:")
    C("wave 5: clear own slot with the sentinel, count the clear")
    srd_slots()
    A("s_cmp_ge_u32 s32, 28"); A("s_cselect_b32 s47, 0, -1")
    for k in range(4): A(f"v_mov_b32 v{32+k}, -1")
    for k in range(4): A(f"v_mov_b32 v{36+k}, s47")
    A(f"buffer_store_dwordx4 v[32:35], v1, s[36:39], 0 offen {SC}")
    A(f"buffer_store_dwordx4 v[32:35], v1, s[36:39], 0 offen offset:1024 {SC}")
    A(f"buffer_store_dwordx4 v[36:39], v1, s[36:39], 0 offen offset:2048 {SC}")
    C("last KB: 768 B of the B part, then the (m,l) words")
    A("v_cmp_lt_u32 vcc, 47, v0"); A("s_nop 1")
    for k in range(4): A(f"v_cndmask_b32 v{40+k}, v36, v32, vcc")
    A(f"buffer_store_dwordx4 v[40:43], v1, s[36:39], 0 offen offset:3072 {SC}")
    A("s_waitcnt vmcnt(0)")
    A("v_mov_b32 v8, 1"); A("s_lshl_b32 s47, s30, 4")
    A("s_mov_b64 exec, 1")
    A(f"buffer_atomic_add v8, off, s[56:59], s47 {SC}")
    A("s_mov_b64 exec, -1")
    A("L_ln:")
    C("layernorm: lane t<56 holds x[8t..8t+7] in v4..v7")
    for k in range(4):
        A(f"v_lshlrev_b32 v{8+2*k}, 16, v{4+k}"); A(f"v_and_b32 v{9+2*k}, 0xffff0000, v{4+k}")
    A("v_add_f32 v16, v8, v9"); A("v_add_f32 v17, v10, v11"); A("v_add_f32 v18, v12, v13"); A("v_add_f32 v19, v14, v15")
    A("v_add_f32 v16, v16, v17"); A("v_add_f32 v18, v18, v19"); A("v_add_f32 v16, v16, v18")
    wave_sum(16,17)
    A(f"v_mul_f32 v16, {f2u(1.0/448):#x}, v16")
    A("v_cmp_gt_u32 vcc, 56, v0"); A("v_cvt_pk_bf16_f32 v17, 0, v16"); A("s_nop 0")
    A("v_cndmask_b32 v16, 0, v16, vcc")
    A("v_sub_f32 v4, v8, v16"); A("v_mul_f32 v18, v4, v4")
    for k in range(1,8):
        A(f"v_sub_f32 v4, v{8+k}, v16"); A("v_fmac_f32 v18, v4, v4")
    wave_sum(18,19)
    A(f"v_mul_f32 v18, {f2u(1.0/448):#x}, v18")
    A("v_cvt_pk_bf16_f32 v18, 0, v18")
    A(f"v_add_f32 v18, {f2u(1e-5):#x}, v18")
    A("v_cvt_pk_bf16_f32 v18, 0, v18")
    A("v_sqrt_f32 v18, v18"); A("s_nop 0")
    A("v_cvt_pk_bf16_f32 v18, 0, v18")
    A("v_rcp_f32 v19, v18")
    A("s_sub_u32 s47, s3, 1"); A(f"s_mul_i32 s47, s47, {X_SZ}"); A(f"s_add_u32 s47, s47, {L_X}")
    A("v_lshl_add_u32 v5, v0, 2, s47")
    for k in range(8):
        A(f"v_sub_f32 v{8+k}, v{8+k}, v17"); A(f"v_cvt_pk_bf16_f32 v{8+k}, 0, v{8+k}")
        A(f"v_mul_f32 v4, v{8+k}, v19"); A(f"v_fma_f32 v6, -v4, v18, v{8+k}"); A("v_fma_f32 v4, v6, v19, v4")
        A(f"v_cvt_pk_bf16_f32 v{8+k}, v4, v4")
        A(f"ds_write_b32 v5, v{8+k} offset:{k*X_STR}")
    A(f"v_mul_u32_u24 v{hLD}, {X_STR}, v2"); A(f"v_add_u32 v{hLD}, s47, v{hLD}")
    A("s_cmp_eq_u32 s3, 5"); A("s_cbranch_scc1 L_ffn1")
    def gemv56(waits):
        XX=[4,8]; BB=[12,16]
        A("s_waitcnt lgkmcnt(0)")
        A(f"ds_read_b128 v[4:7], v{hLD}"); A(f"ds_read_b128 v[8:11], v{hLD} offset:16")
        def bp(t):
            if t%4==0: A(f"s_waitcnt lgkmcnt({1 if t//4+1<14 else 0})")
            for r in range(4): A(f"v_and_b32 v{BB[t%2]+r}, v{XX[(t//4)%2]+t%4}, v{hM+r}")
            if t%4==3 and t//4+2<14:
                x=XX[(t//4)%2]; A(f"ds_read_b128 v[{x}:{x+3}], v{hLD} offset:{16*(t//4+2)}")
        bp(0)
        for t in range(56):
            if t+1<56: bp(t+1)
            else: A("s_nop 0")
            if waits: A(f"s_waitcnt vmcnt({55-t})")
            A(f"v_mfma_f32_16x16x32_bf16 v[{hACC}:{hACC+3}], v[{D0+4*t}:{D0+4*t+3}], v[{BB[t%2]}:{BB[t%2]+3}], {'0' if t==0 else f'v[{hACC}:{hACC+3}]'}")
        A("s_nop 7")
        combine(hACC,12)
    gemv56(True)
    C("q -> bf16 -> LDS: addr = m*128 + (4*rowq+hi)*16 + j*2 (+32 for the second register)")
    A("v_cvt_pk_bf16_f32 v12, v12, v13")
    A("v_bfe_u32 v4, v0, 4, 1"); A("v_lshrrev_b32 v5, 5, v0"); A("v_lshl_add_u32 v4, v4, 2, v5"); A("v_lshlrev_b32 v4, 4, v4"); A("v_lshl_add_u32 v4, v3, 1, v4")
    A("s_sub_u32 s47, s3, 1"); A("s_lshl_b32 s47, s47, 7"); A("v_add_u32 v4, s47, v4")
    A("s_mov_b64 exec, s[60:61]")
    A(f"ds_write_b16 v4, v12 offset:{L_Q}"); A(f"ds_write_b16_d16_hi v4, v12 offset:{L_Q+32}")
    A("s_mov_b64 exec, -1")
    A("s_waitcnt lgkmcnt(0)")
    STAMP(1)
    A("s_barrier")
    STAMP(2)
    wo_issue()
    srd_slots()
    STAMP(3)
    A("s_barrier")
    A("L_tail:")
    tail_gemv()
    STAMP(6)
    stamp_out()
    A("s_endpgm")

    A("L_ffn1:")
    A("s_waitcnt vmcnt(0)")
    STAMP(1)
    A("s_barrier")
    A("s_cmp_ge_u32 s32, 28"); A("s_cbranch_scc1 L_noffn")
    A("s_lshl_b32 s48, s32, 7"); A(f"s_sub_u32 s49, {448*3584}, s48"); srd(52,16,17,"s48","s49")
    A(f"v_mul_u32_u24 v{hAD}, 3584, v2"); A(f"v_lshl_add_u32 v{hAD}, v3, 4, v{hAD}")
    A("s_mov_b32 s48, 0")
    for t in range(56):
        if t>=NF: A(f"s_waitcnt vmcnt({NF-1})")
        A(f"buffer_load_dwordx4 v[{D0+4*t}:{D0+4*t+3}], v{hAD}, s[52:55], s48 offen")
        A(f"s_add_u32 s48, s48, {8*3584}")
    A("s_waitcnt vmcnt(0)")
    gemv56(False)
    C("w2 loads (tile t, block beta) -> D0 + 4*(7t+beta)")
    A(f"s_mul_i32 s48, s32, {64*896}"); A(f"s_sub_u32 s49, {1792*896}, s48"); srd(52,18,19,"s48","s49")
    A(f"v_mul_u32_u24 v{hAD}, 896, v2"); A(f"v_lshl_add_u32 v{hAD}, v3, 4, v{hAD}")
    A("s_mov_b32 s48, 0")
    for t in range(8):
        for be in range(7):
            i=7*t+be
            if i>=NF: A(f"s_waitcnt vmcnt({NF-1})")
            A(f"buffer_load_dwordx4 v[{D0+4*i}:{D0+4*i+3}], v{hAD}, s[52:55], s48 offen offset:{128*be}")
        A("s_add_u32 s48, s48, 7168")
    C("h -> bf16 -> silu -> bf16 (dup) -> LDS H[g=j][T=4*rowq+hi+2s]")
    for k in (12,13):
        A(f"v_cvt_pk_bf16_f32 v{k}, 0, v{k}")
        A(f"v_mul_f32 v4, {f2u(-math.log2(math.e)):#x}, v{k}"); A("v_exp_f32 v4, v4"); A("s_nop 0")
        A("v_add_f32 v4, 1.0, v4"); A("v_rcp_f32 v4, v4"); A("s_nop 0")
        A(f"v_mul_f32 v{k}, v{k}, v4"); A(f"v_cvt_pk_bf16_f32 v{k}, v{k}, v{k}")
    A("v_bfe_u32 v4, v0, 4, 1"); A("v_lshrrev_b32 v5, 5, v0"); A("v_lshl_add_u32 v4, v4, 2, v5"); A("v_lshlrev_b32 v4, 2, v4")
    A(f"v_mul_u32_u24 v5, {H_STR}, v3"); A("v_add_u32 v4, v4, v5")
    A("s_mov_b64 exec, s[60:61]")
    A(f"ds_write_b32 v4, v12 offset:{L_H}"); A(f"ds_write_b32 v4, v13 offset:{L_H+8}")
    A("s_mov_b64 exec, -1")
    A(f"v_mul_u32_u24 v5, {H_STR}, v2")
    A("s_waitcnt lgkmcnt(0)")
    A(f"ds_read_b128 v[4:7], v5 offset:{L_H}"); A(f"ds_read_b128 v[8:11], v5 offset:{L_H+16}")
    A("s_waitcnt vmcnt(0) lgkmcnt(0)")
    A(f"v_lshrrev_b32 v{hAD}, 4, v0"); A(f"v_lshl_add_u32 v{hAD}, v{hAD}, 3, v3"); A(f"v_lshlrev_b32 v{hAD}, 3, v{hAD}")
    for be in range(7):
        BB=[12,16]
        for t in range(8):
            for r in range(4): A(f"v_and_b32 v{BB[t%2]+r}, v{4+t}, v{hM+r}")
            A("s_nop 1")
            i=7*t+be
            A(f"v_mfma_f32_16x16x32_bf16 v[{hACC}:{hACC+3}], v[{D0+4*i}:{D0+4*i+3}], v[{BB[t%2]}:{BB[t%2]+3}], {'0' if t==0 else f'v[{hACC}:{hACC+3}]'}")
        A("s_nop 7")
        combine(hACC,30)
        A("v_min_u32 v30, -2, v30"); A("v_min_u32 v31, -2, v31")
        A("s_mov_b64 exec, s[60:61]")
        A(f"buffer_store_dwordx2 v[30:31], v{hAD}, s[36:39], 0 offen offset:{2048+256*be} {SC}")
        A("s_mov_b64 exec, -1")
    A("L_noffn:")
    STAMP(2)
    A("s_barrier")
    wo_issue()
    A("s_cmp_ge_u32 s32, 28"); A("s_cbranch_scc1 L_tail")
    C("consumer setup: gather address v64, column byte offset v65, x value v66, FFN value v67")
    A("v_lshrrev_b32 v64, 2, v0"); A("v_lshlrev_b32 v64, 12, v64"); A("v_and_b32 v4, 3, v0"); A("v_lshl_add_u32 v64, v4, 4, v64")
    A("s_lshl_b32 s47, s32, 6"); A("v_add_u32 v64, s47, v64")
    C("col = 64*(k>>2) + 32*(k&1) + 8*((k>>1)&1) + 16*(rho&1) + 2*qd + (rho>>1), rho=(l>>2)&3, qd=l&3")
    A("s_lshr_b32 s47, s32, 2"); A("s_lshl_b32 s47, s47, 6"); A("s_and_b32 s48, s32, 1"); A("s_lshl_b32 s48, s48, 5"); A("s_add_u32 s47, s47, s48")
    A("s_bfe_u32 s48, s32, 0x10001"); A("s_lshl_b32 s48, s48, 3"); A("s_add_u32 s47, s47, s48")
    A("v_bfe_u32 v5, v0, 2, 1"); A("v_lshlrev_b32 v5, 4, v5"); A("v_lshl_add_u32 v5, v4, 1, v5"); A("v_bfe_u32 v6, v0, 3, 1"); A("v_add3_u32 v65, v5, v6, s47")
    A("v_lshlrev_b32 v65, 1, v65")
    A("buffer_load_ushort v66, v65, s[88:91], 0 offen")
    cnt_wait(4)
    STAMP(3)
    gather(2048, 68, 64, 8)
    A("v_cvt_pk_bf16_f32 v67, 0, v68"); A("v_lshlrev_b32 v66, 16, v66")
    A("s_mul_i32 s47, s30, 896"); srd(92,20,21,"s47",896)
    tail_gemv()
    gather(0, 68, 64, 0)
    A("v_cvt_pk_bf16_f32 v68, 0, v68"); A("v_add_f32 v68, v66, v68"); A("v_cvt_pk_bf16_f32 v68, 0, v68"); A("v_add_f32 v68, v68, v67")
    A("v_cvt_pk_bf16_f32 v68, v68, v68")
    A("s_mov_b64 exec, 0xffff")
    A("buffer_store_short v68, v65, s[92:95], 0 offen")
    A("s_mov_b64 exec, -1")
    STAMP(6)
    stamp_out()
    A("L_end:")
    A("s_endpgm")
    body="\n".join(("" if (l.endswith(":") or l.startswith(".")) else "    ")+l for l in L)+"\n"
    ldsz=lds if lds else L_END
    head=HEADER+f"; @launch grid=(256,1,1) block=(512,1,1) lds={ldsz}\n"
    return head+body+kd(NAME,256,102,256), ldsz

if __name__=="__main__":
    kw=eval("dict(%s)"%(sys.argv[2] if len(sys.argv)>2 else ""))
    t,ldsz=gen(**kw)
    out=sys.argv[1]
    if out.endswith(".s"): open(out,"w").write(t)
    else:
        assemble(t+meta([(NAME,256,102,512)]), out); print(f"work/{out}:{NAME},256,512,{ldsz}")
```

```python
import sys, math
from common import *

NAME="parallel_sum__mha_block_cached__dense_activation_silu__decode_kernel"
HEADER=open("parallel_sum__mha_block_cached__dense_activation_silu__decode.s.ref").read().split("; Override launch")[0]

L_Q=0; L_MX=512; L_SC=576; L_S=1024; S_STR=1040; L_O=L_S+8*S_STR; O_STR=144
L_X=L_O+8*O_STR; X_STR=272; X_SZ=8*X_STR; L_H=L_X+X_SZ; H_STR=48; L_X2=L_H+8*H_STR; X2_STR=80; X2_SZ=8*X2_STR; L_CNT=580; L_END=L_X2+8*X2_SZ
CEXP=math.log2(math.e)/16.0
import struct
def f2u(f): return struct.unpack("<I",struct.pack("<f",f))[0]

def gen(N=22, N0=8, R=48, NF=4, NW=2, stamp=False, catchup=True, SC="sc1", lds=None, wol=0, noffn=0, HF="nt", QF="nt", ch=2, bprio=3, qprio=0, dbg=0, calib=0, SF="nt", HB=0):
    L=[]; A=L.append
    def C(s): A("    ; "+s)
    A('.amdgcn_target "amdgcn-amd-amdhsa--gfx950"'); A(".text"); A(f".globl {NAME}"); A(".p2align 8"); A(f".type {NAME},@function"); A(f"{NAME}:")
    nst=[0]
    def STAMP(i):
        if stamp or dbg or (calib and i==0): A(f"s_memrealtime s[{70+2*i}:{71+2*i}]")
    A("s_cmp_ge_u32 s2, 256"); A("s_cbranch_scc1 L_end")
    STAMP(0)
    A("s_load_dwordx16 s[4:19], s[0:1], 0")
    A("s_load_dwordx4 s[20:23], s[0:1], 64")
    A("s_load_dwordx2 s[24:25], s[0:1], 80")
    A("v_lshrrev_b32 v1, 6, v0"); A("v_and_b32 v0, 63, v0"); A("v_readfirstlane_b32 s3, v1")
    A("s_and_b32 s26, s2, 7"); A("s_lshr_b32 s27, s2, 3"); A("s_and_b32 s28, s27, 1")
    if HB==0:
        A("s_bfe_u32 s29, s27, 0x10001"); A("s_lshr_b32 s30, s27, 2")
        A("s_lshl_b32 s29, s29, 3"); A("s_add_u32 s31, s26, s29")
    else:
        A(f"s_bfe_u32 s29, s27, {(HB<<16)|1:#x}")
        A(f"s_lshr_b32 s30, s27, {1+HB}")
        A(f"s_and_b32 s31, s26, {(1<<(4-HB))-1}"); A(f"s_lshl_b32 s31, s31, {HB}"); A("s_add_u32 s31, s31, s29")
        A(f"s_lshr_b32 s29, s26, {4-HB}"); A(f"s_lshl_b32 s29, s29, {4-HB}"); A("s_add_u32 s30, s30, s29")
    A("s_lshl_b32 s32, s31, 1"); A("s_add_u32 s32, s32, s28")
    A("s_lshl_b32 s33, s30, 5"); A("s_add_u32 s33, s33, s32")
    C("s30=b s31=h s32=pidx s33=gidx ; v2=g v3=e")
    A("v_lshrrev_b32 v2, 3, v0"); A("v_and_b32 v3, 7, v0")
    A(f"s_mov_b32 s34, {f2u(CEXP):#x}")
    A("s_mov_b32 s60, 0x00ff00ff"); A("s_mov_b32 s61, 0x00ff00ff")
    A("s_cmp_eq_u32 s3, 0"); A("s_cbranch_scc1 L_stream")
    A("s_cmp_ge_u32 s3, 6"); A("s_cbranch_scc1 L_buf")
    A("s_branch L_help")

    def srd(d, lo, hi, off_sgpr, size):
        if off_sgpr is None:
            A(f"s_mov_b32 s{d}, s{lo}"); A(f"s_mov_b32 s{d+1}, s{hi}")
        else:
            A(f"s_add_u32 s{d}, s{lo}, {off_sgpr}"); A(f"s_addc_u32 s{d+1}, s{hi}, 0")
        A(f"s_mov_b32 s{d+2}, {size}"); A(f"s_mov_b32 s{d+3}, 0x20000")
    def masks(base,t0,t1):
        A(f"v_and_b32 v{t0}, 1, v3"); A(f"v_lshlrev_b32 v{t0}, 4, v{t0}"); A(f"v_mov_b32 v{t1}, 0xffff"); A(f"v_lshlrev_b32 v{t0}, v{t0}, v{t1}")
        A(f"v_lshrrev_b32 v{t1}, 1, v3")
        for r in range(4):
            A(f"v_cmp_eq_u32 vcc, {r}, v{t1}"); A("s_nop 1"); A(f"v_cndmask_b32 v{base+r}, 0, v{t0}, vcc")
    def stamp_out(tmp=4, role=""):
        if dbg:
            A("s_waitcnt vmcnt(0) lgkmcnt(0)")
            A("s_memrealtime s[82:83]")
            A("s_mov_b64 exec, 1")
            srd(64,22,23,None,256)
            A("s_waitcnt lgkmcnt(0)")
            def um(word, sreg, inv=False):
                if inv: A(f"s_not_b32 s68, s{sreg}"); A(f"v_mov_b32 v{tmp}, s68")
                else: A(f"v_mov_b32 v{tmp}, s{sreg}")
                A(f"buffer_atomic_umax v{tmp}, off, s[64:67], 0 offset:{4*word} sc1"); A("s_waitcnt vmcnt(0)")
            if role=="s":
                um(1,70,True); um(7,70); um(3,78); um(5,74); um(6,76); um(9,78,True); um(10,74,True)
            if role=="f":
                um(2,82)
            return
        if not stamp: return
        A("s_waitcnt lgkmcnt(0)")
        A("s_mov_b64 exec, 1")
        srd(64,24,25,None,0x40000000)
        A("s_lshl_b32 s68, s2, 3"); A("s_add_u32 s68, s68, s3"); A("s_lshl_b32 s68, s68, 5"); A("s_add_u32 s68, s68, 0x20000000")
        A("s_getreg_b32 s69, hwreg(HW_REG_XCC_ID)")
        for i in range(7): A(f"v_mov_b32 v{tmp+i}, s{70+2*i}")
        A(f"v_mov_b32 v{tmp+7}, s69")
        A(f"buffer_store_dwordx4 v[{tmp}:{tmp+3}], off, s[64:67], s68")
        A(f"buffer_store_dwordx4 v[{tmp+4}:{tmp+7}], off, s[64:67], s68 offset:16")
        A("s_waitcnt vmcnt(0)")

    RING=256-4*R
    vK=4; vV=5; vSW=6; vSR=7; vMX=8; vR=9; vR2=10; vA=[11,12]; vB=[13,14]; vQ=16
    def slot(i): return RING+4*(i%R)
    def k_consume(c, dsoff):
        p=c%8; m=p%4; acc=vA if p<4 else vB; r=slot(c)
        for k in range(4):
            if ch==2:
                src2 = "0" if (m==0 and k<2) else f"v{acc[k%2]}"
                A(f"v_dot2_f32_bf16 v{acc[k%2]}, v{r+k}, v{vQ+4*m+k}, {src2}")
            elif ch==4:
                a4=(acc+([32,33] if p<4 else [34,35]))[k]
                if m==0: A(f"v_dot2_f32_bf16 v{a4}, v{r+k}, v{vQ+4*m+k}, 0")
                else: A(f"v_dot2c_f32_bf16 v{a4}, v{r+k}, v{vQ+4*m+k}")
        k_post(p, dsoff)
    def k_post(p, dsoff):
        prev = dsoff is not None
        if p==0 and prev:
            if ch==4: A(f"v_add_f32 v{vB[0]}, v{vB[0]}, v34"); A(f"v_add_f32 v{vB[1]}, v{vB[1]}, v35")
            A(f"v_add_f32 v{vB[0]}, v{vB[0]}, v{vB[1]}")
        if p==1 and prev: A(f"v_add_f32_dpp v{vR}, v{vB[0]}, v{vB[0]} row_half_mirror row_mask:0xf bank_mask:0xa")
        if p==2 and prev: A(f"v_add_f32_dpp v{vR}, v{vR}, v{vR} quad_perm:[1,0,3,2] row_mask:0xf bank_mask:0xf")
        if p==3 and prev: A(f"v_add_f32_dpp v{vR}, v{vR}, v{vR} quad_perm:[2,3,0,1] row_mask:0xf bank_mask:0xf")
        if p==4:
            if prev: A(f"v_cvt_pk_bf16_f32 v{vR2}, 0, v{vR}")
            if ch==4: A(f"v_add_f32 v{vA[0]}, v{vA[0]}, v32"); A(f"v_add_f32 v{vA[1]}, v{vA[1]}, v33")
            A(f"v_add_f32 v{vA[0]}, v{vA[0]}, v{vA[1]}")
        if p==5:
            if prev:
                A(f"v_max_f32 v{vMX}, v{vMX}, v{vR2}"); A(f"ds_write_b32 v{vSW}, v{vR2} offset:{dsoff}")
            A(f"v_add_f32_dpp v{vR}, v{vA[0]}, v{vA[0]} row_half_mirror row_mask:0xf bank_mask:0x5")
    def k_flush(dsoff):
        A("s_nop 2")
        if ch==4: A(f"v_add_f32 v{vB[0]}, v{vB[0]}, v34"); A(f"v_add_f32 v{vB[1]}, v{vB[1]}, v35")
        A(f"v_add_f32 v{vB[0]}, v{vB[0]}, v{vB[1]}"); A("s_nop 1")
        A(f"v_add_f32_dpp v{vR}, v{vB[0]}, v{vB[0]} row_half_mirror row_mask:0xf bank_mask:0xa"); A("s_nop 1")
        A(f"v_add_f32_dpp v{vR}, v{vR}, v{vR} quad_perm:[1,0,3,2] row_mask:0xf bank_mask:0xf"); A("s_nop 1")
        A(f"v_add_f32_dpp v{vR}, v{vR}, v{vR} quad_perm:[2,3,0,1] row_mask:0xf bank_mask:0xf")
        A(f"v_cvt_pk_bf16_f32 v{vR2}, 0, v{vR}")
        A(f"v_max_f32 v{vMX}, v{vMX}, v{vR2}"); A(f"ds_write_b32 v{vSW}, v{vR2} offset:{dsoff}")
    def mx_publish(w, tmp):
        A("s_nop 1")
        A(f"v_max_f32_dpp v{vMX}, v{vMX}, v{vMX} row_ror:4 row_mask:0xf bank_mask:0xf"); A("s_nop 1")
        A(f"v_max_f32_dpp v{vMX}, v{vMX}, v{vMX} row_ror:8 row_mask:0xf bank_mask:0xf")
        A(f"v_lshrrev_b32 v{tmp}, 4, v0"); A(f"v_lshlrev_b32 v{tmp}, 2, v{tmp}")
        if isinstance(w,int): A(f"ds_write_b32 v{tmp}, v{vMX} offset:{L_MX+16*w}")
        else:
            A(f"v_add_u32 v{tmp}, {w}, v{tmp}"); A(f"ds_write_b32 v{tmp}, v{vMX} offset:{L_MX}")
    def k_setup():
        A(f"v_lshlrev_b32 v{vK}, 9, v2"); A(f"v_lshl_add_u32 v{vK}, v3, 4, v{vK}")
        A(f"v_mul_u32_u24 v{vSW}, {S_STR}, v2"); A(f"v_lshrrev_b32 v{vSR}, 2, v3"); A(f"v_lshl_add_u32 v{vSW}, v{vSR}, 2, v{vSW}")
        A(f"v_mov_b32 v{vMX}, 0xff800000")
        A("s_lshl_b32 s35, s33, 20")
    def q_read():
        A(f"v_lshlrev_b32 v{vR}, 4, v3")
        for m in range(4): A(f"ds_read_b128 v[{vQ+4*m}:{vQ+4*m+3}], v{vR} offset:{L_Q+128*m}")
        A("s_waitcnt lgkmcnt(0)")
    NP0=R//8
    assert R%8==0
    NKS=1024-2*R
    NTOT=NKS+1024

    A("L_stream:")
    A("s_setprio 3")
    k_setup()
    A(f"v_lshrrev_b32 v{vV}, 4, v0"); A(f"v_lshlrev_b32 v{vV}, 10, v{vV}"); A(f"v_and_b32 v{vSR}, 15, v0"); A(f"v_lshl_add_u32 v{vV}, v{vSR}, 4, v{vV}")
    A("s_waitcnt lgkmcnt(0)")
    srd(36,6,7,"s35",1<<20); srd(40,8,9,"s35",1<<20)
    A("s_mov_b32 s44, 0"); A("s_mov_b32 s45, 0")
    def issue(i):
        r=slot(i)
        if i<NKS:
            A(f"buffer_load_dwordx4 v[{r}:{r+3}], v{vK}, s[36:39], s44 offen offset:{128*(i%4)} {SF}")
            if i%4==3:
                inc=4096
                if i<R and i%8==7: inc=4096+2*8192 if i<R-1 else 4096+2*8192
                A(f"s_add_u32 s44, s44, {inc}")
        elif i<NTOT:
            u=i-NKS
            A(f"buffer_load_dwordx4 v[{r}:{r+3}], v{vV}, s[40:43], s45 offen offset:{256*(u%4)} {SF}")
            if u%4==3: A("s_add_u32 s45, s45, 4096")
    DK=R-1
    for i in range(DK):
        if i==N0: A("s_barrier")
        if i>=N0: A(f"s_waitcnt vmcnt({N0-1})")
        issue(i)
    STAMP(1)
    A("s_barrier")
    STAMP(2)
    q_read()
    def pair_T(pi):
        return 2*(3*pi) if pi<NP0 else 2*(3*NP0+(pi-NP0))
    def kstep(c, dsbase):
        I=c+DK
        A(f"s_waitcnt vmcnt({min(N-1,I-c-1)})")
        issue(I)
        pi=c//8
        k_consume(c, None if pi==0 else L_S+4*pair_T(pi-1)-dsbase)
    for c in range(0,2*R): kstep(c,0)
    nK=(NKS-DK-2*R)//R
    A(f"s_mov_b32 s46, {nK}")
    A("L_kloop:")
    for c in range(2*R,3*R): kstep(c,0)
    A(f"v_add_u32 v{vSW}, {R}, v{vSW}")
    A("s_sub_u32 s46, s46, 1"); A("s_cmp_lg_u32 s46, 0"); A("s_cbranch_scc1 L_kloop")
    dsb=nK*R
    for c in range((2+nK)*R,NKS): kstep(c,dsb)
    k_flush(L_S+4*pair_T(NKS//8-1)-dsb)
    mx_publish(0, vR)
    vM=[12,13,14,15]; vNM=11; vT=9; vP=10; vACC=16; vBB=[32,36]; vSS=[40,44,48]; vTM=52
    assert vTM+12<=RING
    masks(vM[0], vTM, vTM+1)
    A(f"v_mul_u32_u24 v{vSR}, {S_STR}, v2")
    A(f"v_mov_b32 v{vT}, 0")
    A("s_waitcnt lgkmcnt(0)")
    STAMP(3)
    A("s_barrier")
    for w in range(3): A(f"ds_read_b128 v[{vTM+4*w}:{vTM+4*w+3}], v{vT} offset:{L_MX+16*w}")
    A(f"ds_read_b128 v[{vSS[0]}:{vSS[0]+3}], v{vSR} offset:{L_S}")
    inext=[NKS+DK]
    A(f"s_waitcnt vmcnt({N-1})")
    issue(inext[0]); inext[0]+=1
    for r in range(16): A(f"v_mov_b32 v{vACC+r}, 0")
    A("s_waitcnt lgkmcnt(0)")
    def max12(dst,b):
        A(f"v_max3_f32 v{dst}, v{b}, v{b+1}, v{b+2}")
        for k in range(3,11,2): A(f"v_max3_f32 v{dst}, v{dst}, v{b+k}, v{b+k+1}")
        A(f"v_max_f32 v{dst}, v{dst}, v{b+11}")
    max12(vNM,vTM)
    A(f"v_mul_f32 v{vNM}, s34, v{vNM}"); A(f"v_sub_f32 v{vNM}, 0, v{vNM}")
    def bprep(tile, part):
        s=vSS[(tile//4)%3]+tile%4; b=vBB[tile%2]
        if part==0: A(f"v_fma_f32 v{vT}, v{s}, s34, v{vNM}")
        if part==1: A(f"v_exp_f32 v{vT}, v{vT}")
        if part==2: A(f"v_cvt_pk_bf16_f32 v{vP}, v{vT}, v{vT}"); A(f"v_and_b32 v{b}, v{vP}, v{vM[0]}")
        if part==3:
            for r in range(1,4): A(f"v_and_b32 v{b+r}, v{vP}, v{vM[r]}")
    bprep(0,0); bprep(0,1); A("s_nop 0"); bprep(0,2); bprep(0,3); A("s_nop 1")
    def vconsume(u, srbase, mark):
        tile=u//4; q=u%4; r=slot(NKS+u); b=vBB[tile%2]
        if q==0 and tile%4==0 and tile+4<256:
            nb=vSS[(tile//4+1)%3]
            A(f"ds_read_b128 v[{nb}:{nb+3}], v{vSR} offset:{L_S+4*(tile+4)-srbase}")
        if q==0 and tile%4==3 and tile+1<256: A("s_waitcnt lgkmcnt(0)")
        a=vACC+4*q
        if q==0 and len(L)-mark<2: A(f"s_nop {1-(len(L)-mark)}")
        A(f"v_mfma_f32_16x16x32_bf16 v[{a}:{a+3}], v[{r}:{r+3}], v[{b}:{b+3}], v[{a}:{a+3}]")
        if tile+1<256: bprep(tile+1,q)
    def vstep(u, srbase, do_issue=True):
        c=NKS+u; I=inext[0]; mark=len(L)
        if do_issue and I<NTOT:
            A(f"s_waitcnt vmcnt({min(N-1,I-c-1)})")
            assert I-R < c
            issue(I); inext[0]+=1
        else:
            k=I-c-1
            if k<N: A(f"s_waitcnt vmcnt({k})")
        vconsume(u,srbase,mark)
    u=0
    DV=N if catchup else R-1
    first=True
    while True:
        D=inext[0]-(NKS+u)
        if D<=DV and u%R==0: break
        if D>DV:
            vstep(u,0,do_issue=False); u+=1
            D=inext[0]-(NKS+u)
            if D>DV or u%R!=0:
                if D>=DV: vstep(u,0,True); u+=1
        else:
            vstep(u,0,True); u+=1
    D=inext[0]-(NKS+u)
    assert D==DV and u%R==0 and (R//16)%3==0 and R%16==0, (D,DV,u)
    u0=u
    nV=(1024-DV-u0)//R
    while u0+nV*R+16>1024: nV-=1
    A(f"s_mov_b32 s46, {nV}")
    A("L_vloop:")
    for uu in range(u0,u0+R): vstep(uu,0,True)
    A(f"v_add_u32 v{vSR}, {R}, v{vSR}")
    A("s_sub_u32 s46, s46, 1"); A("s_cmp_lg_u32 s46, 0"); A("s_cbranch_scc1 L_vloop")
    inext[0]+=(nV-1)*R
    for uu in range(u0+nV*R,1024): vstep(uu,nV*R,True)
    STAMP(4)
    A(f"v_lshrrev_b32 v{vT}, 4, v0"); A(f"v_lshlrev_b32 v{vT}, 4, v{vT}"); A(f"v_mul_u32_u24 v{vP}, {O_STR}, v3"); A(f"v_add_u32 v{vT}, v{vT}, v{vP}")
    A("s_nop 3")
    for hf in range(2):
        for r in range(4):
            A(f"v_add_f32_dpp v{vTM+4*hf+r}, v{vACC+8+4*hf+r}, v{vACC+4*hf+r} row_ror:8 row_mask:0xf bank_mask:0xf")
    for k in range(8): A(f"v_cvt_pk_bf16_f32 v{vTM+k}, v{vTM+k}, v{vTM+k}")
    A("s_mov_b64 exec, s[60:61]")
    A(f"ds_write_b128 v{vT}, v[{vTM}:{vTM+3}] offset:{L_O}")
    A(f"ds_write_b128 v{vT}, v[{vTM+4}:{vTM+7}] offset:{L_O+64}")
    A("s_waitcnt lgkmcnt(0)")
    A("s_barrier")
    STAMP(5)
    if calib:
        A("L_cal:"); A("s_memrealtime s[72:73]"); A("s_waitcnt lgkmcnt(0)"); A("s_sub_u32 s72, s72, s70"); A(f"s_cmp_lt_u32 s72, {calib}"); A("s_cbranch_scc1 L_cal")
    stamp_out(role="s")
    A("s_endpgm")

    hM=20
    hACC=24
    hAD=28; hLD=29
    WO=128
    def wo_issue():
        C("wo block loads, c = wave-1")
        A("s_mul_i32 s47, s31, 229376"); A("s_sub_u32 s48, s3, 1"); A("s_lshl_b32 s48, s48, 7"); A("s_add_u32 s47, s47, s48")
        A(f"s_sub_u32 s48, {4096*896}, s47")
        srd(52,12,13,"s47","s48")
        A(f"v_mul_u32_u24 v{hAD}, 896, v2"); A(f"v_lshl_add_u32 v{hAD}, v3, 4, v{hAD}")
        A("s_mov_b32 s47, 0")
        for t in range(32):
            if t>=NW: A(f"s_waitcnt vmcnt({NW-1})")
            A(f"buffer_load_dwordx4 v[{WO+4*t}:{WO+4*t+3}], v{hAD}, s[52:55], s47 offen {HF}")
            A("s_add_u32 s47, s47, 7168")
    def combine(acc, dst):
        A(f"v_permlane32_swap_b32 v{acc}, v{acc+1}"); A(f"v_permlane32_swap_b32 v{acc+2}, v{acc+3}")
        A("s_nop 1")
        A(f"v_add_f32_dpp v{dst}, v{acc+1}, v{acc} row_ror:8 row_mask:0xf bank_mask:0xf")
        A(f"v_add_f32_dpp v{dst+1}, v{acc+3}, v{acc+2} row_ror:8 row_mask:0xf bank_mask:0xf")
    def wave_sum(v,t,op="add"):
        for pat in ["quad_perm:[1,0,3,2]","quad_perm:[2,3,0,1]","row_half_mirror","row_mirror"]:
            A("s_nop 1"); A(f"v_{op}_f32_dpp v{v}, v{v}, v{v} {pat} row_mask:0xf bank_mask:0xf")
        for sw in ["16","32"]:
            A(f"v_mov_b32 v{t}, v{v}"); A("s_nop 1"); A(f"v_permlane{sw}_swap_b32 v{v}, v{t}"); A(f"v_{op}_f32 v{v}, v{v}, v{t}")
    def srd_slots():
        A("s_lshl_b32 s47, s33, 12"); srd(36,24,25,"s47",4096)
        A("s_lshl_b32 s47, s30, 17"); srd(40,24,25,"s47",131072)
        srd(56,22,23,None,256)
    lbl=[0]
    def cnt_wait(t):
        lbl[0]+=1; n=lbl[0]
        A("s_lshl_b32 s47, s30, 1"); A("s_mov_b32 s49, 400000"); A("s_movk_i32 s50, 0x101")
        A(f"v_and_b32 v{t+1}, 15, v0"); A(f"v_lshlrev_b32 v{t+1}, 4, v{t+1}")
        A(f"L_cw{n}:")
        A(f"buffer_load_ushort v{t}, v{t+1}, s[56:59], s47 offen {SC}"); A("s_waitcnt vmcnt(0)")
        A(f"v_cmp_ne_u32 vcc, s50, v{t}"); A("s_sub_u32 s49, s49, 1"); A("s_cbranch_scc1 L_cwx%d"%n)
        A(f"s_cbranch_vccz L_cwx{n}"); A("s_sleep 8"); A(f"s_branch L_cw{n}")
        A(f"L_cwx{n}:")
    def arrive(t):
        lbl[0]+=1; n=lbl[0]
        A(f"v_mov_b32 v{t}, 0"); A(f"v_mov_b32 v{t+1}, 1")
        A("s_mov_b64 exec, 1")
        A("s_waitcnt vmcnt(0)")
        A(f"ds_add_rtn_u32 v{t}, v{t}, v{t+1} offset:{L_CNT}")
        A("s_lshl_b32 s47, s31, 4"); A("s_add_u32 s47, s47, s51")
        A("s_waitcnt lgkmcnt(0)")
        A(f"v_cmp_eq_u32 vcc, 4, v{t}"); A("s_nop 1")
        A(f"s_cbranch_vccz L_ar{n}")
        A(f"buffer_store_byte v{t+1}, off, s[56:59], s47 {SC}")
        A(f"L_ar{n}:")
        A("s_mov_b64 exec, -1")
    def gather(off, b, vad, sleep):
        lbl[0]+=1; n=lbl[0]
        A("s_mov_b32 s49, 400000"); A("s_mov_b32 s47, 65536")
        A(f"L_g{n}:")
        A(f"buffer_load_dwordx4 v[{b}:{b+3}], v{vad}, s[40:43], 0 offen offset:{off} {SC}")
        A(f"buffer_load_dwordx4 v[{b+4}:{b+7}], v{vad}, s[40:43], s47 offen offset:{off} {SC}")
        A("s_waitcnt vmcnt(0)")
        A(f"v_max3_u32 v{b+8}, v{b}, v{b+1}, v{b+2}"); A(f"v_max3_u32 v{b+9}, v{b+3}, v{b+4}, v{b+5}")
        A(f"v_max3_u32 v{b+8}, v{b+8}, v{b+6}, v{b+7}"); A(f"v_max_u32 v{b+8}, v{b+8}, v{b+9}")
        A(f"v_cmp_eq_u32 vcc, -1, v{b+8}"); A("s_sub_u32 s49, s49, 1"); A(f"s_cbranch_scc1 L_gx{n}")
        A(f"s_cbranch_vccz L_gx{n}")
        if sleep: A(f"s_sleep {sleep}")
        A(f"s_branch L_g{n}")
        A(f"L_gx{n}:")
        for r in range(4): A(f"v_add_f32 v{b+r}, v{b+r}, v{b+4+r}")
        for pat in ["row_ror:4","row_ror:8"]:
            if pat=="row_ror:4": pass
            for r in range(4): A(f"v_add_f32_dpp v{b+r}, v{b+r}, v{b+r} {pat} row_mask:0xf bank_mask:0xf")
        for r in range(1,4): A(f"v_mov_b32_dpp v{b}, v{b+r} quad_perm:[0,1,2,3] row_mask:0xf bank_mask:{1<<r:#x}")
        for sw in ["16","32"]:
            A(f"v_mov_b32 v{b+1}, v{b}"); A("s_nop 1"); A(f"v_permlane{sw}_swap_b32 v{b}, v{b+1}"); A(f"v_add_f32 v{b}, v{b}, v{b+1}")
    def tail_gemv():
        P=32
        A(f"v_mul_u32_u24 v{hLD}, {O_STR}, v2"); A("v_mov_b32 v30, 0")
        A(f"v_lshrrev_b32 v{hAD}, 4, v0"); A(f"v_lshl_add_u32 v{hAD}, v{hAD}, 3, v3"); A(f"v_lshlrev_b32 v{hAD}, 3, v{hAD}")
        A("s_sub_u32 s48, s3, 1"); A("s_lshl_b32 s48, s48, 8")
        A("s_waitcnt vmcnt(0) lgkmcnt(0)")
        STAMP(4)
        A("s_barrier")
        STAMP(5)
        for n in range(8): A(f"ds_read_b128 v[{P+4*n}:{P+4*n+3}], v{hLD} offset:{L_O+16*n}")
        A(f"ds_read_b32 v31, v30 offset:{L_SC}")
        BB=[12,16]
        def bp(t):
            if t%4==0: A(f"s_waitcnt lgkmcnt({8-t//4})")
            for r in range(4): A(f"v_and_b32 v{BB[t%2]+r}, v{P+t}, v{hM+r}")
        bp(0)
        for t in range(32):
            if t+1<32: bp(t+1)
            else: A("s_nop 0")
            A(f"v_mfma_f32_16x16x32_bf16 v[{hACC}:{hACC+3}], v[{WO+4*t}:{WO+4*t+3}], v[{BB[t%2]}:{BB[t%2]+3}], {'0' if t==0 else f'v[{hACC}:{hACC+3}]'}")
        A("s_waitcnt lgkmcnt(0)"); A("s_nop 6")
        combine(hACC,12)
        A("v_mul_f32 v12, v31, v12"); A("v_mul_f32 v13, v31, v13")
        A("v_min_u32 v12, -2, v12"); A("v_min_u32 v13, -2, v13")
        A("s_mov_b64 exec, s[60:61]")
        A(f"buffer_store_dwordx2 v[12:13], v{hAD}, s[36:39], s48 offen {SC}")
        A("s_mov_b64 exec, -1")

    A("L_buf:")
    if bprio: A(f"s_setprio {bprio}")
    k_setup()
    A("s_waitcnt lgkmcnt(0)")
    srd(36,6,7,"s35",1<<20)
    A("s_sub_u32 s47, s3, 5"); A("s_lshl_b32 s44, s47, 13")
    A("s_lshl_b32 s47, s47, 3"); A(f"v_add_u32 v{vSW}, s47, v{vSW}")
    for i in range(R):
        if i==N0: A("s_barrier")
        if i>=N0: A(f"s_waitcnt vmcnt({N0-1})")
        r=slot(i)
        A(f"buffer_load_dwordx4 v[{r}:{r+3}], v{vK}, s[36:39], s44 offen offset:{128*(i%4)} {SF}")
        if i%4==3: A(f"s_add_u32 s44, s44, {4096 if i%8==3 else 4096+2*8192}")
    STAMP(1)
    A("s_barrier")
    STAMP(2)
    if bprio: A("s_setprio 0")
    q_read()
    for c in range(R):
        A(f"s_waitcnt vmcnt({R-1-c})")
        pi=c//8
        k_consume(c, None if pi==0 else L_S+4*2*3*(pi-1))
    k_flush(L_S+4*2*3*(NP0-1))
    A("s_sub_u32 s47, s3, 5"); A("s_lshl_b32 s47, s47, 4")
    mx_publish("s47", vR)
    masks(hM,12,13)
    if not wol: wo_issue()
    srd_slots()
    A("s_waitcnt lgkmcnt(0)")
    STAMP(3)
    A("s_barrier")
    if wol: wo_issue()
    A("s_cmp_eq_u32 s3, 7"); A("s_cbranch_scc1 L_tail")
    C("wave 6: softmax denominator, exchange (m,l) with partner, scale")
    A("v_mov_b32 v4, 0")
    for w in range(3): A(f"ds_read_b128 v[{64+4*w}:{64+4*w+3}], v4 offset:{L_MX+16*w}")
    A(f"v_mul_u32_u24 v5, {S_STR}, v2"); A("v_lshl_add_u32 v5, v3, 7, v5")
    for n in range(8): A(f"ds_read_b128 v[{32+4*n}:{32+4*n+3}], v5 offset:{L_S+16*n}")
    A("s_waitcnt lgkmcnt(8)")
    max12(6,64)
    A("v_mul_f32 v7, s34, v6"); A("v_sub_f32 v7, 0, v7")
    A("s_waitcnt lgkmcnt(0)")
    for k in range(32): A(f"v_fma_f32 v{32+k}, v{32+k}, s34, v7")
    for k in range(32): A(f"v_exp_f32 v{32+k}, v{32+k}")
    for st in (16,8,4,2,1):
        for k in range(st): A(f"v_add_f32 v{32+k}, v{32+k}, v{32+k+st}")
    wave_sum(32,33)
    C("v6=M v32=l")
    A("v_min_u32 v8, -2, v6"); A("v_min_u32 v9, -2, v32")
    A("s_mov_b64 exec, 1")
    A(f"buffer_store_dwordx2 v[8:9], off, s[36:39], 0 offset:3840 {SC}")
    A("s_mov_b64 exec, -1")
    cnt_wait(10)
    A("s_xor_b32 s47, s32, 1"); A("s_lshl_b32 s47, s47, 12"); A("s_mov_b32 s49, 400000")
    A("L_mlp:")
    A(f"buffer_load_dwordx2 v[10:11], off, s[40:43], s47 offset:3840 {SC}"); A("s_waitcnt vmcnt(0)")
    A("v_max_u32 v12, v10, v11"); A("v_cmp_eq_u32 vcc, -1, v12"); A("s_sub_u32 s49, s49, 1"); A("s_cbranch_scc1 L_mlx")
    A("s_cbranch_vccz L_mlx"); A("s_sleep 8"); A("s_branch L_mlp")
    A("L_mlx:")
    A("v_max_f32 v12, v6, v10")
    A("v_sub_f32 v13, v6, v12"); A("v_sub_f32 v14, v10, v12")
    A("v_mul_f32 v13, s34, v13"); A("v_mul_f32 v14, s34, v14")
    A("v_exp_f32 v13, v13"); A("v_exp_f32 v14, v14"); A("s_nop 0")
    A("v_mul_f32 v15, v13, v32"); A("v_fma_f32 v15, v14, v11, v15")
    A("v_rcp_f32 v15, v15"); A("s_nop 0"); A("v_mul_f32 v15, v15, v13")
    A(f"ds_write_b32 v4, v15 offset:{L_SC}")
    A("s_branch L_tail")

    A("L_help:")
    D0=32
    def layernorm(xr):
        for k in range(4):
            A(f"v_lshlrev_b32 v{8+2*k}, 16, v{xr+k}"); A(f"v_and_b32 v{9+2*k}, 0xffff0000, v{xr+k}")
        A("v_add_f32 v16, v8, v9"); A("v_add_f32 v17, v10, v11"); A("v_add_f32 v18, v12, v13"); A("v_add_f32 v19, v14, v15")
        A("v_add_f32 v16, v16, v17"); A("v_add_f32 v18, v18, v19"); A("v_add_f32 v16, v16, v18")
        wave_sum(16,17)
        A(f"v_mul_f32 v16, {f2u(1.0/448):#x}, v16")
        A("v_cmp_gt_u32 vcc, 56, v0"); A("v_cvt_pk_bf16_f32 v17, 0, v16"); A("s_nop 0")
        A("v_cndmask_b32 v16, 0, v16, vcc")
        A("v_sub_f32 v4, v8, v16"); A("v_mul_f32 v18, v4, v4")
        for k in range(1,8):
            A(f"v_sub_f32 v4, v{8+k}, v16"); A("v_fmac_f32 v18, v4, v4")
        wave_sum(18,19)
        A(f"v_mul_f32 v18, {f2u(1.0/448):#x}, v18")
        A("v_cvt_pk_bf16_f32 v18, 0, v18")
        A(f"v_add_f32 v18, {f2u(1e-5):#x}, v18")
        A("v_cvt_pk_bf16_f32 v18, 0, v18")
        A("v_sqrt_f32 v18, v18"); A("s_nop 0")
        A("v_cvt_pk_bf16_f32 v18, 0, v18")
        A("v_rcp_f32 v19, v18")
        for k in range(8):
            A(f"v_sub_f32 v{8+k}, v{8+k}, v17"); A(f"v_cvt_pk_bf16_f32 v{8+k}, 0, v{8+k}")
            A(f"v_mul_f32 v4, v{8+k}, v19"); A(f"v_fma_f32 v6, -v4, v18, v{8+k}"); A("v_fma_f32 v4, v6, v19, v4")
            A(f"v_cvt_pk_bf16_f32 v{8+k}, v4, v4")
    A("s_lshl_b32 s51, s30, 1"); A("s_add_u32 s51, s51, s28")
    A("s_cmp_eq_u32 s3, 5"); A("s_cbranch_scc1 L_ffn0")
    C("waves 1..4: partial q for batches 2(w-1), 2(w-1)+1; column block rho&3, rows 112*(rho>>2)..+112")
    A("v_lshlrev_b32 v1, 4, v0")
    A(f"v_lshlrev_b32 v{hAD}, 13, v2"); A(f"v_lshl_add_u32 v{hAD}, v3, 4, v{hAD}")
    A("s_sub_u32 s47, s3, 1"); A("s_mul_i32 s47, s47, 1792")
    A("s_lshl_b32 s48, s31, 9"); A("s_and_b32 s49, s51, 3"); A("s_lshl_b32 s49, s49, 7"); A("s_add_u32 s48, s48, s49")
    A("s_lshr_b32 s50, s51, 2"); A(f"s_mul_i32 s49, s50, {112*8192}"); A("s_add_u32 s48, s48, s49"); A(f"s_sub_u32 s49, {448*8192}, s48")
    A("s_waitcnt lgkmcnt(0)")
    srd(88,4,5,"s47",896); A("s_add_u32 s47, s47, 896"); srd(92,4,5,"s47",896)
    srd(52,10,11,"s48","s49")
    A("buffer_load_dwordx4 v[96:99], v1, s[88:91], 0 offen")
    A("buffer_load_dwordx4 v[100:103], v1, s[92:95], 0 offen")
    A("s_mov_b32 s48, 0")
    for t in range(14):
        A(f"buffer_load_dwordx4 v[{D0+4*t}:{D0+4*t+3}], v{hAD}, s[52:55], s48 offen {QF}")
        if t<13: A("s_add_u32 s48, s48, 65536")
    A("s_barrier")
    masks(hM,12,13)
    srd(56,22,23,None,256)
    C("publish SRD: ws + 1MB + (h*16+rho)*2048 + first batch*256")
    A("s_lshl_b32 s47, s31, 4"); A("s_add_u32 s47, s47, s51"); A("s_lshl_b32 s47, s47, 11"); A("s_sub_u32 s48, s3, 1"); A("s_lshl_b32 s48, s48, 9")
    A("s_add_u32 s47, s47, s48"); A("s_add_u32 s47, s47, 0x100000"); srd(36,24,25,"s47",512)
    A("s_mul_i32 s50, s50, 14"); A("v_subrev_u32 v30, s50, v0")
    A("s_sub_u32 s47, s3, 1"); A(f"s_mul_i32 s47, s47, {2*X2_SZ}"); A(f"s_add_u32 s47, s47, {L_X2}")
    A("v_cmp_gt_u32 s[62:63], 16, v30"); A("v_lshl_add_u32 v30, v30, 2, s47")
    A(f"v_mul_u32_u24 v{hLD}, {X2_STR}, v2"); A(f"v_add_u32 v{hLD}, s47, v{hLD}")
    A("v_lshrrev_b32 v31, 4, v0"); A("v_lshl_add_u32 v31, v31, 3, v3"); A("v_lshlrev_b32 v31, 3, v31")
    for bb in range(2):
        A(f"s_waitcnt vmcnt({15-bb})")
        layernorm(96+4*bb)
        A("s_mov_b64 exec, s[62:63]")
        for k in range(8): A(f"ds_write_b32 v30, v{8+k} offset:{bb*X2_SZ+k*X2_STR}")
        A("s_mov_b64 exec, -1")
    A("s_waitcnt lgkmcnt(0)")
    for bb in range(2):
        for n in range(4): A(f"ds_read_b128 v[{96+16*bb+4*n}:{96+16*bb+4*n+3}], v{hLD} offset:{bb*X2_SZ+16*n}")
    BB=[12,16]; seq=[(t,bb) for t in range(14) for bb in range(2)]
    def bp2(i):
        t,bb=seq[i]
        for r in range(4): A(f"v_and_b32 v{BB[i%2]+r}, v{96+16*bb+t}, v{hM+r}")
    A("s_waitcnt lgkmcnt(0)")
    bp2(0)
    for i,(t,bb) in enumerate(seq):
        if i+1<len(seq): bp2(i+1)
        else: A("s_nop 0")
        if bb==0: A(f"s_waitcnt vmcnt({13-t})")
        acc=[hACC,4][bb]
        A(f"v_mfma_f32_16x16x32_bf16 v[{acc}:{acc+3}], v[{D0+4*t}:{D0+4*t+3}], v[{BB[i%2]}:{BB[i%2]+3}], {'0' if t==0 else f'v[{acc}:{acc+3}]'}")
    A("s_nop 6")
    combine(hACC,12); combine(4,14)
    A("s_mov_b64 exec, s[60:61]")
    A(f"buffer_store_dwordx2 v[12:13], v31, s[36:39], 0 offen {SC}")
    A(f"buffer_store_dwordx2 v[14:15], v31, s[36:39], 0 offen offset:256 {SC}")
    A("s_mov_b64 exec, -1")
    arrive(16)
    STAMP(6)
    A("s_cmp_lg_u32 s3, 1"); A("s_cbranch_scc1 L_qdone")
    C("wave 1: wait for the 16 flags of this head, gather and sum the partials of batch b")
    A("s_lshl_b32 s47, s31, 15"); A("s_lshl_b32 s48, s30, 8"); A("s_add_u32 s47, s47, s48"); A("s_add_u32 s47, s47, 0x100000"); srd(52,24,25,"s47",32768)
    A("v_lshrrev_b32 v4, 4, v0"); A("v_lshlrev_b32 v5, 11, v4"); A("v_and_b32 v6, 15, v0"); A("v_lshl_add_u32 v5, v6, 4, v5")
    C("Q address: m*128 + (4*rowq+hi)*16 + (a&3)*4, rowq=(a>>2)&1, hi=a>>3")
    A("v_lshlrev_b32 v4, 7, v4"); A("v_bfe_u32 v7, v0, 2, 1"); A("v_lshl_add_u32 v4, v7, 6, v4"); A("v_bfe_u32 v7, v0, 3, 1"); A("v_lshl_add_u32 v4, v7, 4, v4")
    A("v_and_b32 v7, 3, v0"); A("v_lshl_add_u32 v4, v7, 2, v4")
    A("s_lshl_b32 s47, s31, 4"); A("s_mov_b32 s49, 400000"); A("s_mov_b32 s50, 0x01010101")
    A("L_qp:")
    A(f"buffer_load_dwordx4 v[8:11], off, s[56:59], s47 {SC}"); A("s_waitcnt vmcnt(0)")
    A("v_and_b32 v8, v8, v9"); A("v_and_b32 v10, v10, v11"); A("v_and_b32 v8, v8, v10")
    A("v_cmp_ne_u32 vcc, s50, v8"); A("s_sub_u32 s49, s49, 1"); A("s_cbranch_scc1 L_qpx")
    A("s_cbranch_vccnz L_qp")
    A("L_qpx:")
    A("s_movk_i32 s47, 0x2000"); A("s_movk_i32 s48, 0x4000"); A("s_movk_i32 s49, 0x6000")
    for g,so in enumerate(["0","s47","s48","s49"]): A(f"buffer_load_dwordx4 v[{32+4*g}:{32+4*g+3}], v5, s[52:55], {so} offen {SC}")
    A("s_waitcnt vmcnt(2)")
    for r in range(4): A(f"v_add_f32 v{32+r}, v{32+r}, v{36+r}")
    A("s_waitcnt vmcnt(0)")
    for r in range(4): A(f"v_add_f32 v{40+r}, v{40+r}, v{44+r}")
    for r in range(4): A(f"v_add_f32 v{32+r}, v{32+r}, v{40+r}")
    A("v_cvt_pk_bf16_f32 v36, v32, v34"); A("v_cvt_pk_bf16_f32 v37, v33, v35")
    A(f"ds_write_b32 v4, v36 offset:{L_Q}"); A(f"ds_write_b32 v4, v37 offset:{L_Q+32}")
    A("s_waitcnt lgkmcnt(0)")
    A("L_qdone:")
    STAMP(1)
    A("s_barrier")
    STAMP(2)
    if not wol: wo_issue()
    srd_slots()
    STAMP(3)
    A("s_barrier")
    if wol: wo_issue()
    A("L_tail:")
    tail_gemv()
    if not stamp: STAMP(6)
    stamp_out()
    A("s_endpgm")

    A("L_ffn0:")
    C("wave 5: LDS counter init, clear own slot with the sentinel")
    A("v_mov_b32 v4, 0"); A(f"ds_write_b32 v4, v4 offset:{L_CNT}"); A("s_waitcnt lgkmcnt(0)")
    A("s_barrier")
    masks(hM,12,13)
    A("v_lshlrev_b32 v1, 4, v0")
    A("s_mul_i32 s47, s30, 896"); srd(88,4,5,"s47",896)
    A("buffer_load_dwordx4 v[96:99], v1, s[88:91], 0 offen")
    srd_slots()
    A("s_cmp_ge_u32 s32, 28"); A("s_cselect_b32 s47, 0, -1")
    for k in range(4): A(f"v_mov_b32 v{32+k}, -1")
    for k in range(4): A(f"v_mov_b32 v{36+k}, s47")
    A(f"buffer_store_dwordx4 v[32:35], v1, s[36:39], 0 offen {SC}")
    A(f"buffer_store_dwordx4 v[32:35], v1, s[36:39], 0 offen offset:1024 {SC}")
    A(f"buffer_store_dwordx4 v[36:39], v1, s[36:39], 0 offen offset:2048 {SC}")
    C("last KB: 768 B of the B part, then the (m,l) words")
    A("v_cmp_lt_u32 vcc, 47, v0"); A("s_nop 1")
    for k in range(4): A(f"v_cndmask_b32 v{40+k}, v36, v32, vcc")
    A(f"buffer_store_dwordx4 v[40:43], v1, s[36:39], 0 offen offset:3072 {SC}")
    arrive(16)
    layernorm(96)
    A(f"v_lshlrev_b32 v5, 2, v0")
    for k in range(8): A(f"ds_write_b32 v5, v{8+k} offset:{L_X+k*X_STR}")
    A(f"v_mul_u32_u24 v{hLD}, {X_STR}, v2"); A(f"v_add_u32 v{hLD}, {L_X}, v{hLD}")
    def gemv56(waits):
        XX=[4,8]; BB=[12,16]
        A("s_waitcnt lgkmcnt(0)")
        A(f"ds_read_b128 v[4:7], v{hLD}"); A(f"ds_read_b128 v[8:11], v{hLD} offset:16")
        def bp(t):
            if t%4==0: A(f"s_waitcnt lgkmcnt({1 if t//4+1<14 else 0})")
            for r in range(4): A(f"v_and_b32 v{BB[t%2]+r}, v{XX[(t//4)%2]+t%4}, v{hM+r}")
            if t%4==3 and t//4+2<14:
                x=XX[(t//4)%2]; A(f"ds_read_b128 v[{x}:{x+3}], v{hLD} offset:{16*(t//4+2)}")
        bp(0)
        for t in range(56):
            if t+1<56: bp(t+1)
            else: A("s_nop 0")
            if waits: A(f"s_waitcnt vmcnt({55-t})")
            A(f"v_mfma_f32_16x16x32_bf16 v[{hACC}:{hACC+3}], v[{D0+4*t}:{D0+4*t+3}], v[{BB[t%2]}:{BB[t%2]+3}], {'0' if t==0 else f'v[{hACC}:{hACC+3}]'}")
        A("s_nop 7")
        combine(hACC,12)

    A("s_waitcnt vmcnt(0)")
    STAMP(1)
    A("s_barrier")
    if noffn: A("s_barrier")
    A("s_cmp_ge_u32 s32, 28"); A("s_cbranch_scc1 L_noffn")
    A("s_lshl_b32 s48, s32, 7"); A(f"s_sub_u32 s49, {448*3584}, s48"); srd(52,16,17,"s48","s49")
    A(f"v_mul_u32_u24 v{hAD}, 3584, v2"); A(f"v_lshl_add_u32 v{hAD}, v3, 4, v{hAD}")
    A("s_mov_b32 s48, 0")
    for t in range(56):
        if t>=NF: A(f"s_waitcnt vmcnt({NF-1})")
        A(f"buffer_load_dwordx4 v[{D0+4*t}:{D0+4*t+3}], v{hAD}, s[52:55], s48 offen {HF}")
        A(f"s_add_u32 s48, s48, {8*3584}")
    A("s_waitcnt vmcnt(0)")
    gemv56(False)
    C("w2 loads (tile t, block beta) -> D0 + 4*(7t+beta)")
    A(f"s_mul_i32 s48, s32, {64*896}"); A(f"s_sub_u32 s49, {1792*896}, s48"); srd(52,18,19,"s48","s49")
    A(f"v_mul_u32_u24 v{hAD}, 896, v2"); A(f"v_lshl_add_u32 v{hAD}, v3, 4, v{hAD}")
    A("s_mov_b32 s48, 0")
    for t in range(8):
        for be in range(7):
            i=7*t+be
            if i>=NF: A(f"s_waitcnt vmcnt({NF-1})")
            A(f"buffer_load_dwordx4 v[{D0+4*i}:{D0+4*i+3}], v{hAD}, s[52:55], s48 offen offset:{128*be} {HF}")
        A("s_add_u32 s48, s48, 7168")
    C("h -> bf16 -> silu -> bf16 (dup) -> LDS H[g=j][T=4*rowq+hi+2s]")
    for k in (12,13):
        A(f"v_cvt_pk_bf16_f32 v{k}, 0, v{k}")
        A(f"v_mul_f32 v4, {f2u(-math.log2(math.e)):#x}, v{k}"); A("v_exp_f32 v4, v4"); A("s_nop 0")
        A("v_add_f32 v4, 1.0, v4"); A("v_rcp_f32 v4, v4"); A("s_nop 0")
        A(f"v_mul_f32 v{k}, v{k}, v4"); A(f"v_cvt_pk_bf16_f32 v{k}, v{k}, v{k}")
    A("v_bfe_u32 v4, v0, 4, 1"); A("v_lshrrev_b32 v5, 5, v0"); A("v_lshl_add_u32 v4, v4, 2, v5"); A("v_lshlrev_b32 v4, 2, v4")
    A(f"v_mul_u32_u24 v5, {H_STR}, v3"); A("v_add_u32 v4, v4, v5")
    A("s_mov_b64 exec, s[60:61]")
    A(f"ds_write_b32 v4, v12 offset:{L_H}"); A(f"ds_write_b32 v4, v13 offset:{L_H+8}")
    A("s_mov_b64 exec, -1")
    A(f"v_mul_u32_u24 v5, {H_STR}, v2")
    A("s_waitcnt lgkmcnt(0)")
    A(f"ds_read_b128 v[4:7], v5 offset:{L_H}"); A(f"ds_read_b128 v[8:11], v5 offset:{L_H+16}")
    A("s_waitcnt vmcnt(0) lgkmcnt(0)")
    A(f"v_lshrrev_b32 v{hAD}, 4, v0"); A(f"v_lshl_add_u32 v{hAD}, v{hAD}, 3, v3"); A(f"v_lshlrev_b32 v{hAD}, 3, v{hAD}")
    for be in range(7):
        BB=[12,16]
        for t in range(8):
            for r in range(4): A(f"v_and_b32 v{BB[t%2]+r}, v{4+t}, v{hM+r}")
            A("s_nop 1")
            i=7*t+be
            A(f"v_mfma_f32_16x16x32_bf16 v[{hACC}:{hACC+3}], v[{D0+4*i}:{D0+4*i+3}], v[{BB[t%2]}:{BB[t%2]+3}], {'0' if t==0 else f'v[{hACC}:{hACC+3}]'}")
        A("s_nop 7")
        combine(hACC,30)
        A("v_min_u32 v30, -2, v30"); A("v_min_u32 v31, -2, v31")
        A("s_mov_b64 exec, s[60:61]")
        A(f"buffer_store_dwordx2 v[30:31], v{hAD}, s[36:39], 0 offen offset:{2048+256*be} {SC}")
        A("s_mov_b64 exec, -1")
    A("L_noffn:")
    STAMP(2)
    if not noffn: A("s_barrier")
    wo_issue()
    A("s_cmp_ge_u32 s32, 28"); A("s_cbranch_scc1 L_tail")
    C("consumer setup: gather address v64, column byte offset v65, x value v66, FFN value v67")
    A("v_lshrrev_b32 v64, 2, v0"); A("v_lshlrev_b32 v64, 12, v64"); A("v_and_b32 v4, 3, v0"); A("v_lshl_add_u32 v64, v4, 4, v64")
    A("s_lshl_b32 s47, s32, 6"); A("v_add_u32 v64, s47, v64")
    C("col = 64*(k>>2) + 32*(k&1) + 8*((k>>1)&1) + 16*(rho&1) + 2*qd + (rho>>1), rho=(l>>2)&3, qd=l&3")
    A("s_lshr_b32 s47, s32, 2"); A("s_lshl_b32 s47, s47, 6"); A("s_and_b32 s48, s32, 1"); A("s_lshl_b32 s48, s48, 5"); A("s_add_u32 s47, s47, s48")
    A("s_bfe_u32 s48, s32, 0x10001"); A("s_lshl_b32 s48, s48, 3"); A("s_add_u32 s47, s47, s48")
    A("v_bfe_u32 v5, v0, 2, 1"); A("v_lshlrev_b32 v5, 4, v5"); A("v_lshl_add_u32 v5, v4, 1, v5"); A("v_bfe_u32 v6, v0, 3, 1"); A("v_add3_u32 v65, v5, v6, s47")
    A("v_lshlrev_b32 v65, 1, v65")
    A("buffer_load_ushort v66, v65, s[88:91], 0 offen")
    cnt_wait(4)
    STAMP(3)
    gather(2048, 68, 64, 8)
    A("v_cvt_pk_bf16_f32 v67, 0, v68"); A("v_lshlrev_b32 v66, 16, v66")
    A("s_mul_i32 s47, s30, 896"); srd(92,20,21,"s47",896)
    tail_gemv()
    gather(0, 68, 64, 0)
    A("v_cvt_pk_bf16_f32 v68, 0, v68"); A("v_add_f32 v68, v66, v68"); A("v_cvt_pk_bf16_f32 v68, 0, v68"); A("v_add_f32 v68, v68, v67")
    A("v_cvt_pk_bf16_f32 v68, v68, v68")
    A("s_mov_b64 exec, 0xffff")
    A("buffer_store_short v68, v65, s[92:95], 0 offen")
    A("s_mov_b64 exec, -1")
    STAMP(6)
    stamp_out(role="f")
    A("L_end:")
    A("s_endpgm")
    body="\n".join(("" if (l.endswith(":") or l.startswith(".")) else "    ")+l for l in L)+"\n"
    ldsz=lds if lds else L_END
    head=HEADER+f"; @launch grid=(256,1,1) block=(512,1,1) lds={ldsz}\n"
    return head+body+kd(NAME,256,102,256), ldsz

if __name__=="__main__":
    kw=eval("dict(%s)"%(sys.argv[2] if len(sys.argv)>2 else ""))
    t,ldsz=gen(**kw)
    out=sys.argv[1]
    if out.endswith(".s"): open(out,"w").write(t)
    else:
        assemble(t+meta([(NAME,256,102,512)]), out); print(f"work/{out}:{NAME},256,512,{ldsz}")
```

```python
import sys, math
from common import *

NAME="parallel_sum__mha_block_cached__dense_activation_silu__decode_kernel"
HEADER=open("parallel_sum__mha_block_cached__dense_activation_silu__decode.s.ref").read().split("; Override launch")[0]

L_Q=0; L_MX=512; L_SC=576; L_S=1024; S_STR=1040; L_O=L_S+8*S_STR; O_STR=144
L_X=L_O+8*O_STR; X_STR=272; X_SZ=8*X_STR; L_H=L_X+X_SZ; H_STR=48; L_X2=L_H+8*H_STR; X2_STR=80; X2_SZ=8*X2_STR; L_CNT=580; L_END=L_X2+8*X2_SZ
CEXP=math.log2(math.e)/16.0
import struct
def f2u(f): return struct.unpack("<I",struct.pack("<f",f))[0]

def gen(N=22, N0=8, R=48, NF=4, NW=2, stamp=False, catchup=True, SC="sc1", lds=None, wol=0, noffn=0, HF="nt", QF="nt", ch=2, bprio=3, qprio=0, dbg=0, calib=0, SF="nt", HB=0):
    L=[]; A=L.append
    def C(s): A("    ; "+s)
    A('.amdgcn_target "amdgcn-amd-amdhsa--gfx950"'); A(".text"); A(f".globl {NAME}"); A(".p2align 8"); A(f".type {NAME},@function"); A(f"{NAME}:")
    nst=[0]
    def STAMP(i):
        if stamp or dbg or (calib and i==0): A(f"s_memrealtime s[{70+2*i}:{71+2*i}]")
    A("s_cmp_ge_u32 s2, 256"); A("s_cbranch_scc1 L_end")
    STAMP(0)
    A("s_load_dwordx16 s[4:19], s[0:1], 0")
    A("s_load_dwordx4 s[20:23], s[0:1], 64")
    A("s_load_dwordx2 s[24:25], s[0:1], 80")
    A("v_lshrrev_b32 v1, 6, v0"); A("v_and_b32 v0, 63, v0"); A("v_readfirstlane_b32 s3, v1")
    A("s_and_b32 s26, s2, 7"); A("s_lshr_b32 s27, s2, 3"); A("s_and_b32 s28, s27, 1")
    if HB==0:
        A("s_bfe_u32 s29, s27, 0x10001"); A("s_lshr_b32 s30, s27, 2")
        A("s_lshl_b32 s29, s29, 3"); A("s_add_u32 s31, s26, s29")
    else:
        A(f"s_bfe_u32 s29, s27, {(HB<<16)|1:#x}")
        A(f"s_lshr_b32 s30, s27, {1+HB}")
        A(f"s_and_b32 s31, s26, {(1<<(4-HB))-1}"); A(f"s_lshl_b32 s31, s31, {HB}"); A("s_add_u32 s31, s31, s29")
        A(f"s_lshr_b32 s29, s26, {4-HB}"); A(f"s_lshl_b32 s29, s29, {4-HB}"); A("s_add_u32 s30, s30, s29")
    A("s_lshl_b32 s32, s31, 1"); A("s_add_u32 s32, s32, s28")
    A("s_lshl_b32 s33, s30, 5"); A("s_add_u32 s33, s33, s32")
    C("s30=b s31=h s32=pidx s33=gidx ; v2=g v3=e")
    A("v_lshrrev_b32 v2, 3, v0"); A("v_and_b32 v3, 7, v0")
    A(f"s_mov_b32 s34, {f2u(CEXP):#x}")
    A("s_mov_b32 s60, 0x00ff00ff"); A("s_mov_b32 s61, 0x00ff00ff")
    A("s_cmp_eq_u32 s3, 0"); A("s_cbranch_scc1 L_stream")
    A("s_cmp_ge_u32 s3, 5"); A("s_cbranch_scc1 L_buf")
    A("s_branch L_help")

    def srd(d, lo, hi, off_sgpr, size):
        if off_sgpr is None:
            A(f"s_mov_b32 s{d}, s{lo}"); A(f"s_mov_b32 s{d+1}, s{hi}")
        else:
            A(f"s_add_u32 s{d}, s{lo}, {off_sgpr}"); A(f"s_addc_u32 s{d+1}, s{hi}, 0")
        A(f"s_mov_b32 s{d+2}, {size}"); A(f"s_mov_b32 s{d+3}, 0x20000")
    def masks(base,t0,t1):
        A(f"v_and_b32 v{t0}, 1, v3"); A(f"v_lshlrev_b32 v{t0}, 4, v{t0}"); A(f"v_mov_b32 v{t1}, 0xffff"); A(f"v_lshlrev_b32 v{t0}, v{t0}, v{t1}")
        A(f"v_lshrrev_b32 v{t1}, 1, v3")
        for r in range(4):
            A(f"v_cmp_eq_u32 vcc, {r}, v{t1}"); A("s_nop 1"); A(f"v_cndmask_b32 v{base+r}, 0, v{t0}, vcc")
    def stamp_out(tmp=4, role=""):
        if dbg:
            A("s_waitcnt vmcnt(0) lgkmcnt(0)")
            A("s_memrealtime s[82:83]")
            A("s_mov_b64 exec, 1")
            srd(64,22,23,None,256)
            A("s_waitcnt lgkmcnt(0)")
            def um(word, sreg, inv=False):
                if inv: A(f"s_not_b32 s68, s{sreg}"); A(f"v_mov_b32 v{tmp}, s68")
                else: A(f"v_mov_b32 v{tmp}, s{sreg}")
                A(f"buffer_atomic_umax v{tmp}, off, s[64:67], 0 offset:{4*word} sc1"); A("s_waitcnt vmcnt(0)")
            if role=="s":
                um(1,70,True); um(7,70); um(3,78); um(5,74); um(6,76); um(9,78,True); um(10,74,True)
            if role=="f":
                um(2,82)
            return
        if not stamp: return
        A("s_waitcnt lgkmcnt(0)")
        A("s_mov_b64 exec, 1")
        srd(64,24,25,None,0x40000000)
        A("s_lshl_b32 s68, s2, 3"); A("s_add_u32 s68, s68, s3"); A("s_lshl_b32 s68, s68, 5"); A("s_add_u32 s68, s68, 0x20000000")
        A("s_getreg_b32 s69, hwreg(HW_REG_XCC_ID)")
        for i in range(7): A(f"v_mov_b32 v{tmp+i}, s{70+2*i}")
        A(f"v_mov_b32 v{tmp+7}, s69")
        A(f"buffer_store_dwordx4 v[{tmp}:{tmp+3}], off, s[64:67], s68")
        A(f"buffer_store_dwordx4 v[{tmp+4}:{tmp+7}], off, s[64:67], s68 offset:16")
        A("s_waitcnt vmcnt(0)")

    RING=256-4*R
    vK=4; vV=5; vSW=6; vSR=7; vMX=8; vR=9; vR2=10; vA=[11,12]; vB=[13,14]; vQ=16
    def slot(i): return RING+4*(i%R)
    def k_consume(c, dsoff):
        p=c%8; m=p%4; acc=vA if p<4 else vB; r=slot(c)
        for k in range(4):
            if ch==2:
                src2 = "0" if (m==0 and k<2) else f"v{acc[k%2]}"
                A(f"v_dot2_f32_bf16 v{acc[k%2]}, v{r+k}, v{vQ+4*m+k}, {src2}")
            elif ch==4:
                a4=(acc+([32,33] if p<4 else [34,35]))[k]
                if m==0: A(f"v_dot2_f32_bf16 v{a4}, v{r+k}, v{vQ+4*m+k}, 0")
                else: A(f"v_dot2c_f32_bf16 v{a4}, v{r+k}, v{vQ+4*m+k}")
        k_post(p, dsoff)
    def k_post(p, dsoff):
        prev = dsoff is not None
        if p==0 and prev:
            if ch==4: A(f"v_add_f32 v{vB[0]}, v{vB[0]}, v34"); A(f"v_add_f32 v{vB[1]}, v{vB[1]}, v35")
            A(f"v_add_f32 v{vB[0]}, v{vB[0]}, v{vB[1]}")
        if p==1 and prev: A(f"v_add_f32_dpp v{vR}, v{vB[0]}, v{vB[0]} row_half_mirror row_mask:0xf bank_mask:0xa")
        if p==2 and prev: A(f"v_add_f32_dpp v{vR}, v{vR}, v{vR} quad_perm:[1,0,3,2] row_mask:0xf bank_mask:0xf")
        if p==3 and prev: A(f"v_add_f32_dpp v{vR}, v{vR}, v{vR} quad_perm:[2,3,0,1] row_mask:0xf bank_mask:0xf")
        if p==4:
            if prev: A(f"v_cvt_pk_bf16_f32 v{vR2}, 0, v{vR}")
            if ch==4: A(f"v_add_f32 v{vA[0]}, v{vA[0]}, v32"); A(f"v_add_f32 v{vA[1]}, v{vA[1]}, v33")
            A(f"v_add_f32 v{vA[0]}, v{vA[0]}, v{vA[1]}")
        if p==5:
            if prev:
                A(f"v_max_f32 v{vMX}, v{vMX}, v{vR2}"); A(f"ds_write_b32 v{vSW}, v{vR2} offset:{dsoff}")
            A(f"v_add_f32_dpp v{vR}, v{vA[0]}, v{vA[0]} row_half_mirror row_mask:0xf bank_mask:0x5")
    def k_flush(dsoff):
        A("s_nop 2")
        if ch==4: A(f"v_add_f32 v{vB[0]}, v{vB[0]}, v34"); A(f"v_add_f32 v{vB[1]}, v{vB[1]}, v35")
        A(f"v_add_f32 v{vB[0]}, v{vB[0]}, v{vB[1]}"); A("s_nop 1")
        A(f"v_add_f32_dpp v{vR}, v{vB[0]}, v{vB[0]} row_half_mirror row_mask:0xf bank_mask:0xa"); A("s_nop 1")
        A(f"v_add_f32_dpp v{vR}, v{vR}, v{vR} quad_perm:[1,0,3,2] row_mask:0xf bank_mask:0xf"); A("s_nop 1")
        A(f"v_add_f32_dpp v{vR}, v{vR}, v{vR} quad_perm:[2,3,0,1] row_mask:0xf bank_mask:0xf")
        A(f"v_cvt_pk_bf16_f32 v{vR2}, 0, v{vR}")
        A(f"v_max_f32 v{vMX}, v{vMX}, v{vR2}"); A(f"ds_write_b32 v{vSW}, v{vR2} offset:{dsoff}")
    def mx_publish(w, tmp):
        A("s_nop 1")
        A(f"v_max_f32_dpp v{vMX}, v{vMX}, v{vMX} row_ror:4 row_mask:0xf bank_mask:0xf"); A("s_nop 1")
        A(f"v_max_f32_dpp v{vMX}, v{vMX}, v{vMX} row_ror:8 row_mask:0xf bank_mask:0xf")
        A(f"v_lshrrev_b32 v{tmp}, 4, v0"); A(f"v_lshlrev_b32 v{tmp}, 2, v{tmp}")
        if isinstance(w,int): A(f"ds_write_b32 v{tmp}, v{vMX} offset:{L_MX+16*w}")
        else:
            A(f"v_add_u32 v{tmp}, {w}, v{tmp}"); A(f"ds_write_b32 v{tmp}, v{vMX} offset:{L_MX}")
    def k_setup():
        A(f"v_lshlrev_b32 v{vK}, 9, v2"); A(f"v_lshl_add_u32 v{vK}, v3, 4, v{vK}")
        A(f"v_mul_u32_u24 v{vSW}, {S_STR}, v2"); A(f"v_lshrrev_b32 v{vSR}, 2, v3"); A(f"v_lshl_add_u32 v{vSW}, v{vSR}, 2, v{vSW}")
        A(f"v_mov_b32 v{vMX}, 0xff800000")
        A("s_lshl_b32 s35, s33, 20")
    def q_read():
        A(f"v_lshlrev_b32 v{vR}, 4, v3")
        for m in range(4): A(f"ds_read_b128 v[{vQ+4*m}:{vQ+4*m+3}], v{vR} offset:{L_Q+128*m}")
        A("s_waitcnt lgkmcnt(0)")
    NP0=R//8
    assert R%8==0
    NB=3
    NKS=1024-NB*R
    NTOT=NKS+1024

    A("L_stream:")
    A("s_setprio 3")
    k_setup()
    A(f"v_lshrrev_b32 v{vV}, 4, v0"); A(f"v_lshlrev_b32 v{vV}, 10, v{vV}"); A(f"v_and_b32 v{vSR}, 15, v0"); A(f"v_lshl_add_u32 v{vV}, v{vSR}, 4, v{vV}")
    A("s_waitcnt lgkmcnt(0)")
    srd(36,6,7,"s35",1<<20); srd(40,8,9,"s35",1<<20)
    A("s_mov_b32 s44, 0"); A("s_mov_b32 s45, 0")
    def issue(i):
        r=slot(i)
        if i<NKS:
            A(f"buffer_load_dwordx4 v[{r}:{r+3}], v{vK}, s[36:39], s44 offen offset:{128*(i%4)} {SF}")
            if i%4==3:
                inc=4096
                if i<R and i%8==7: inc=4096+NB*8192
                A(f"s_add_u32 s44, s44, {inc}")
        elif i<NTOT:
            u=i-NKS
            A(f"buffer_load_dwordx4 v[{r}:{r+3}], v{vV}, s[40:43], s45 offen offset:{256*(u%4)} {SF}")
            if u%4==3: A("s_add_u32 s45, s45, 4096")
    DK=R-1
    for i in range(DK):
        if i==N0: A("s_barrier")
        if i>=N0: A(f"s_waitcnt vmcnt({N0-1})")
        issue(i)
    STAMP(1)
    A("s_barrier")
    STAMP(2)
    q_read()
    def pair_T(pi):
        return 2*((NB+1)*pi) if pi<NP0 else 2*((NB+1)*NP0+(pi-NP0))
    def kstep(c, dsbase):
        I=c+DK
        A(f"s_waitcnt vmcnt({min(N-1,I-c-1)})")
        issue(I)
        pi=c//8
        k_consume(c, None if pi==0 else L_S+4*pair_T(pi-1)-dsbase)
    for c in range(0,2*R): kstep(c,0)
    nK=(NKS-DK-2*R)//R
    A(f"s_mov_b32 s46, {nK}")
    A("L_kloop:")
    for c in range(2*R,3*R): kstep(c,0)
    A(f"v_add_u32 v{vSW}, {R}, v{vSW}")
    A("s_sub_u32 s46, s46, 1"); A("s_cmp_lg_u32 s46, 0"); A("s_cbranch_scc1 L_kloop")
    dsb=nK*R
    for c in range((2+nK)*R,NKS): kstep(c,dsb)
    k_flush(L_S+4*pair_T(NKS//8-1)-dsb)
    mx_publish(0, vR)
    vM=[12,13,14,15]; vNM=11; vT=9; vP=10; vACC=16; vBB=[32,36]; vSS=[40,44,48]; vTM=52
    assert vTM+12<=RING
    masks(vM[0], vTM, vTM+1)
    A(f"v_mul_u32_u24 v{vSR}, {S_STR}, v2")
    A(f"v_mov_b32 v{vT}, 0")
    A("s_waitcnt lgkmcnt(0)")
    STAMP(3)
    A("s_barrier")
    for w in range(4): A(f"ds_read_b128 v[{48+4*w}:{48+4*w+3}], v{vT} offset:{L_MX+16*w}")
    A(f"ds_read_b128 v[{vSS[0]}:{vSS[0]+3}], v{vSR} offset:{L_S}")
    inext=[NKS+DK]
    A(f"s_waitcnt vmcnt({N-1})")
    issue(inext[0]); inext[0]+=1
    for r in range(16): A(f"v_mov_b32 v{vACC+r}, 0")
    A("s_waitcnt lgkmcnt(0)")
    def max12(dst,b):
        A(f"v_max3_f32 v{dst}, v{b}, v{b+1}, v{b+2}")
        for k in range(3,15,2): A(f"v_max3_f32 v{dst}, v{dst}, v{b+k}, v{b+k+1}")
        A(f"v_max_f32 v{dst}, v{dst}, v{b+15}")
    max12(vNM,48)
    A(f"v_mul_f32 v{vNM}, s34, v{vNM}"); A(f"v_sub_f32 v{vNM}, 0, v{vNM}")
    def bprep(tile, part):
        s=vSS[(tile//4)%3]+tile%4; b=vBB[tile%2]
        if part==0: A(f"v_fma_f32 v{vT}, v{s}, s34, v{vNM}")
        if part==1: A(f"v_exp_f32 v{vT}, v{vT}")
        if part==2: A(f"v_cvt_pk_bf16_f32 v{vP}, v{vT}, v{vT}"); A(f"v_and_b32 v{b}, v{vP}, v{vM[0]}")
        if part==3:
            for r in range(1,4): A(f"v_and_b32 v{b+r}, v{vP}, v{vM[r]}")
    bprep(0,0); bprep(0,1); A("s_nop 0"); bprep(0,2); bprep(0,3); A("s_nop 1")
    def vconsume(u, srbase, mark):
        tile=u//4; q=u%4; r=slot(NKS+u); b=vBB[tile%2]
        if q==0 and tile%4==0 and tile+4<256:
            nb=vSS[(tile//4+1)%3]
            A(f"ds_read_b128 v[{nb}:{nb+3}], v{vSR} offset:{L_S+4*(tile+4)-srbase}")
        if q==0 and tile%4==3 and tile+1<256: A("s_waitcnt lgkmcnt(0)")
        a=vACC+4*q
        if q==0 and len(L)-mark<2: A(f"s_nop {1-(len(L)-mark)}")
        A(f"v_mfma_f32_16x16x32_bf16 v[{a}:{a+3}], v[{r}:{r+3}], v[{b}:{b+3}], v[{a}:{a+3}]")
        if tile+1<256: bprep(tile+1,q)
    def vstep(u, srbase, do_issue=True):
        c=NKS+u; I=inext[0]; mark=len(L)
        if do_issue and I<NTOT:
            A(f"s_waitcnt vmcnt({min(N-1,I-c-1)})")
            assert I-R < c
            issue(I); inext[0]+=1
        else:
            k=I-c-1
            if k<N: A(f"s_waitcnt vmcnt({k})")
        vconsume(u,srbase,mark)
    u=0
    DV=N if catchup else R-1
    first=True
    while True:
        D=inext[0]-(NKS+u)
        if D<=DV and u%R==0: break
        if D>DV:
            vstep(u,0,do_issue=False); u+=1
            D=inext[0]-(NKS+u)
            if D>DV or u%R!=0:
                if D>=DV: vstep(u,0,True); u+=1
        else:
            vstep(u,0,True); u+=1
    D=inext[0]-(NKS+u)
    assert D==DV and u%R==0 and (R//16)%3==0 and R%16==0, (D,DV,u)
    u0=u
    nV=(1024-DV-u0)//R
    while u0+nV*R+16>1024: nV-=1
    A(f"s_mov_b32 s46, {nV}")
    A("L_vloop:")
    for uu in range(u0,u0+R): vstep(uu,0,True)
    A(f"v_add_u32 v{vSR}, {R}, v{vSR}")
    A("s_sub_u32 s46, s46, 1"); A("s_cmp_lg_u32 s46, 0"); A("s_cbranch_scc1 L_vloop")
    inext[0]+=(nV-1)*R
    for uu in range(u0+nV*R,1024): vstep(uu,nV*R,True)
    STAMP(4)
    A(f"v_lshrrev_b32 v{vT}, 4, v0"); A(f"v_lshlrev_b32 v{vT}, 4, v{vT}"); A(f"v_mul_u32_u24 v{vP}, {O_STR}, v3"); A(f"v_add_u32 v{vT}, v{vT}, v{vP}")
    A("s_nop 3")
    for hf in range(2):
        for r in range(4):
            A(f"v_add_f32_dpp v{vTM+4*hf+r}, v{vACC+8+4*hf+r}, v{vACC+4*hf+r} row_ror:8 row_mask:0xf bank_mask:0xf")
    for k in range(8): A(f"v_cvt_pk_bf16_f32 v{vTM+k}, v{vTM+k}, v{vTM+k}")
    A("s_mov_b64 exec, s[60:61]")
    A(f"ds_write_b128 v{vT}, v[{vTM}:{vTM+3}] offset:{L_O}")
    A(f"ds_write_b128 v{vT}, v[{vTM+4}:{vTM+7}] offset:{L_O+64}")
    A("s_waitcnt lgkmcnt(0)")
    A("s_barrier")
    STAMP(5)
    if calib:
        A("L_cal:"); A("s_memrealtime s[72:73]"); A("s_waitcnt lgkmcnt(0)"); A("s_sub_u32 s72, s72, s70"); A(f"s_cmp_lt_u32 s72, {calib}"); A("s_cbranch_scc1 L_cal")
    stamp_out(role="s")
    A("s_endpgm")

    hM=20
    hACC=24
    hAD=28; hLD=29
    WO=128
    def wo_issue():
        C("wo block loads, c = wave-1")
        A("s_mul_i32 s47, s31, 229376"); A("s_sub_u32 s48, s3, 1"); A("s_lshl_b32 s48, s48, 7"); A("s_add_u32 s47, s47, s48")
        A(f"s_sub_u32 s48, {4096*896}, s47")
        srd(52,12,13,"s47","s48")
        A(f"v_mul_u32_u24 v{hAD}, 896, v2"); A(f"v_lshl_add_u32 v{hAD}, v3, 4, v{hAD}")
        A("s_mov_b32 s47, 0")
        for t in range(32):
            if t>=NW: A(f"s_waitcnt vmcnt({NW-1})")
            A(f"buffer_load_dwordx4 v[{WO+4*t}:{WO+4*t+3}], v{hAD}, s[52:55], s47 offen {HF}")
            A("s_add_u32 s47, s47, 7168")
    def combine(acc, dst):
        A(f"v_permlane32_swap_b32 v{acc}, v{acc+1}"); A(f"v_permlane32_swap_b32 v{acc+2}, v{acc+3}")
        A("s_nop 1")
        A(f"v_add_f32_dpp v{dst}, v{acc+1}, v{acc} row_ror:8 row_mask:0xf bank_mask:0xf")
        A(f"v_add_f32_dpp v{dst+1}, v{acc+3}, v{acc+2} row_ror:8 row_mask:0xf bank_mask:0xf")
    def wave_sum(v,t,op="add"):
        for pat in ["quad_perm:[1,0,3,2]","quad_perm:[2,3,0,1]","row_half_mirror","row_mirror"]:
            A("s_nop 1"); A(f"v_{op}_f32_dpp v{v}, v{v}, v{v} {pat} row_mask:0xf bank_mask:0xf")
        for sw in ["16","32"]:
            A(f"v_mov_b32 v{t}, v{v}"); A("s_nop 1"); A(f"v_permlane{sw}_swap_b32 v{v}, v{t}"); A(f"v_{op}_f32 v{v}, v{v}, v{t}")
    def srd_slots():
        A("s_lshl_b32 s47, s33, 12"); srd(36,24,25,"s47",4096)
        A("s_lshl_b32 s47, s30, 17"); srd(40,24,25,"s47",131072)
        srd(56,22,23,None,256)
    lbl=[0]
    def cnt_wait(t):
        lbl[0]+=1; n=lbl[0]
        A("s_lshl_b32 s47, s30, 2"); A("s_mov_b32 s49, 400000")
        A(f"L_cw{n}:")
        A(f"buffer_load_dword v{t}, off, s[56:59], s47 {SC}"); A("s_waitcnt vmcnt(0)")
        A(f"v_cmp_gt_u32 vcc, 32, v{t}"); A("s_sub_u32 s49, s49, 1"); A("s_cbranch_scc1 L_cwx%d"%n)
        A(f"s_cbranch_vccz L_cwx{n}"); A("s_sleep 8"); A(f"s_branch L_cw{n}")
        A(f"L_cwx{n}:")
    def arrive(t):
        lbl[0]+=1; n=lbl[0]
        A(f"v_mov_b32 v{t}, 0"); A(f"v_mov_b32 v{t+1}, 1")
        A("s_mov_b64 exec, 1")
        A("s_waitcnt vmcnt(0)")
        A(f"ds_add_rtn_u32 v{t}, v{t}, v{t+1} offset:{L_CNT}")
        A("s_lshl_b32 s47, s31, 2")
        A("s_waitcnt lgkmcnt(0)")
        A(f"v_cmp_eq_u32 vcc, 3, v{t}"); A("s_nop 1")
        A(f"s_cbranch_vccz L_ar{n}")
        A(f"buffer_atomic_add v{t+1}, off, s[56:59], s47 offset:128 {SC}")
        A(f"L_ar{n}:")
        A("s_mov_b64 exec, -1")
    def gather(off, b, vad, sleep):
        lbl[0]+=1; n=lbl[0]
        A("s_mov_b32 s49, 400000"); A("s_mov_b32 s47, 65536")
        A(f"L_g{n}:")
        A(f"buffer_load_dwordx4 v[{b}:{b+3}], v{vad}, s[40:43], 0 offen offset:{off} {SC}")
        A(f"buffer_load_dwordx4 v[{b+4}:{b+7}], v{vad}, s[40:43], s47 offen offset:{off} {SC}")
        A("s_waitcnt vmcnt(0)")
        A(f"v_max3_u32 v{b+8}, v{b}, v{b+1}, v{b+2}"); A(f"v_max3_u32 v{b+9}, v{b+3}, v{b+4}, v{b+5}")
        A(f"v_max3_u32 v{b+8}, v{b+8}, v{b+6}, v{b+7}"); A(f"v_max_u32 v{b+8}, v{b+8}, v{b+9}")
        A(f"v_cmp_eq_u32 vcc, -1, v{b+8}"); A("s_sub_u32 s49, s49, 1"); A(f"s_cbranch_scc1 L_gx{n}")
        A(f"s_cbranch_vccz L_gx{n}")
        if sleep: A(f"s_sleep {sleep}")
        A(f"s_branch L_g{n}")
        A(f"L_gx{n}:")
        for r in range(4): A(f"v_add_f32 v{b+r}, v{b+r}, v{b+4+r}")
        for pat in ["row_ror:4","row_ror:8"]:
            if pat=="row_ror:4": pass
            for r in range(4): A(f"v_add_f32_dpp v{b+r}, v{b+r}, v{b+r} {pat} row_mask:0xf bank_mask:0xf")
        for r in range(1,4): A(f"v_mov_b32_dpp v{b}, v{b+r} quad_perm:[0,1,2,3] row_mask:0xf bank_mask:{1<<r:#x}")
        for sw in ["16","32"]:
            A(f"v_mov_b32 v{b+1}, v{b}"); A("s_nop 1"); A(f"v_permlane{sw}_swap_b32 v{b}, v{b+1}"); A(f"v_add_f32 v{b}, v{b}, v{b+1}")
    def tail_gemv():
        P=32
        A(f"v_mul_u32_u24 v{hLD}, {O_STR}, v2"); A("v_mov_b32 v30, 0")
        A(f"v_lshrrev_b32 v{hAD}, 4, v0"); A(f"v_lshl_add_u32 v{hAD}, v{hAD}, 3, v3"); A(f"v_lshlrev_b32 v{hAD}, 3, v{hAD}")
        A("s_sub_u32 s48, s3, 1"); A("s_lshl_b32 s48, s48, 8")
        A("s_waitcnt vmcnt(0) lgkmcnt(0)")
        STAMP(4)
        A("s_barrier")
        STAMP(5)
        for n in range(8): A(f"ds_read_b128 v[{P+4*n}:{P+4*n+3}], v{hLD} offset:{L_O+16*n}")
        A(f"ds_read_b32 v31, v30 offset:{L_SC}")
        BB=[12,16]
        def bp(t):
            if t%4==0: A(f"s_waitcnt lgkmcnt({8-t//4})")
            for r in range(4): A(f"v_and_b32 v{BB[t%2]+r}, v{P+t}, v{hM+r}")
        bp(0)
        for t in range(32):
            if t+1<32: bp(t+1)
            else: A("s_nop 0")
            A(f"v_mfma_f32_16x16x32_bf16 v[{hACC}:{hACC+3}], v[{WO+4*t}:{WO+4*t+3}], v[{BB[t%2]}:{BB[t%2]+3}], {'0' if t==0 else f'v[{hACC}:{hACC+3}]'}")
        A("s_waitcnt lgkmcnt(0)"); A("s_nop 6")
        combine(hACC,12)
        A("v_mul_f32 v12, v31, v12"); A("v_mul_f32 v13, v31, v13")
        A("v_min_u32 v12, -2, v12"); A("v_min_u32 v13, -2, v13")
        A("s_mov_b64 exec, s[60:61]")
        A(f"buffer_store_dwordx2 v[12:13], v{hAD}, s[36:39], s48 offen {SC}")
        A("s_mov_b64 exec, -1")

    A("L_buf:")
    if bprio: A(f"s_setprio {bprio}")
    k_setup()
    A("v_mov_b32 v32, 0"); A(f"ds_write_b32 v32, v32 offset:{L_CNT}")
    A("s_waitcnt lgkmcnt(0)")
    srd(84,6,7,"s35",1<<20)
    A("s_sub_u32 s47, s3, 4"); A("s_lshl_b32 s44, s47, 13")
    A("s_lshl_b32 s47, s47, 3"); A(f"v_add_u32 v{vSW}, s47, v{vSW}")
    for i in range(R):
        if i==N0:
            A("s_barrier")
            srd_slots()
            A("s_cmp_lg_u32 s3, 5"); A("s_cbranch_scc1 L_noclr")
            C("wave 5: clear own slot with the sentinel")
            A("v_lshlrev_b32 v1, 4, v0")
            A("s_cmp_ge_u32 s32, 28"); A("s_cselect_b32 s47, 0, -1")
            for k in range(4): A(f"v_mov_b32 v{32+k}, -1")
            for k in range(4): A(f"v_mov_b32 v{36+k}, s47")
            A("v_cmp_lt_u32 vcc, 47, v0"); A("s_nop 1")
            for k in range(4): A(f"v_cndmask_b32 v{40+k}, v36, v32, vcc")
            A(f"buffer_store_dwordx4 v[32:35], v1, s[36:39], 0 offen {SC}")
            A(f"buffer_store_dwordx4 v[32:35], v1, s[36:39], 0 offen offset:1024 {SC}")
            A(f"buffer_store_dwordx4 v[36:39], v1, s[36:39], 0 offen offset:2048 {SC}")
            A(f"buffer_store_dwordx4 v[40:43], v1, s[36:39], 0 offen offset:3072 {SC}")
            A("L_noclr:")
        if i>=N0: A(f"s_waitcnt vmcnt({N0-1})")
        r=slot(i)
        A(f"buffer_load_dwordx4 v[{r}:{r+3}], v{vK}, s[84:87], s44 offen offset:{128*(i%4)} {SF}")
        if i%4==3: A(f"s_add_u32 s44, s44, {4096 if i%8==3 else 4096+NB*8192}")
    STAMP(1)
    A("s_barrier")
    STAMP(2)
    if bprio: A("s_setprio 0")
    q_read()
    for c in range(R):
        A(f"s_waitcnt vmcnt({R-1-c})")
        pi=c//8
        k_consume(c, None if pi==0 else L_S+8*(NB+1)*(pi-1))
    k_flush(L_S+8*(NB+1)*(NP0-1))
    A("s_sub_u32 s47, s3, 4"); A("s_lshl_b32 s47, s47, 4")
    mx_publish("s47", vR)
    masks(hM,12,13)
    A("s_cmp_eq_u32 s3, 5"); A("s_cbranch_scc1 L_ffn0")
    if not wol: wo_issue()
    A("s_waitcnt lgkmcnt(0)")
    STAMP(3)
    A("s_barrier")
    if wol: wo_issue()
    A("s_cmp_eq_u32 s3, 7"); A("s_cbranch_scc1 L_tail")
    C("wave 6: softmax denominator, exchange (m,l) with partner, scale")
    A("v_mov_b32 v4, 0")
    for w in range(4): A(f"ds_read_b128 v[{64+4*w}:{64+4*w+3}], v4 offset:{L_MX+16*w}")
    A(f"v_mul_u32_u24 v5, {S_STR}, v2"); A("v_lshl_add_u32 v5, v3, 7, v5")
    for n in range(8): A(f"ds_read_b128 v[{32+4*n}:{32+4*n+3}], v5 offset:{L_S+16*n}")
    A("s_waitcnt lgkmcnt(8)")
    max12(6,64)
    A("v_mul_f32 v7, s34, v6"); A("v_sub_f32 v7, 0, v7")
    A("s_waitcnt lgkmcnt(0)")
    for k in range(32): A(f"v_fma_f32 v{32+k}, v{32+k}, s34, v7")
    for k in range(32): A(f"v_exp_f32 v{32+k}, v{32+k}")
    for st in (16,8,4,2,1):
        for k in range(st): A(f"v_add_f32 v{32+k}, v{32+k}, v{32+k+st}")
    wave_sum(32,33)
    C("v6=M v32=l")
    A("v_min_u32 v8, -2, v6"); A("v_min_u32 v9, -2, v32")
    A("s_mov_b64 exec, 1")
    A(f"buffer_store_dwordx2 v[8:9], off, s[36:39], 0 offset:3840 {SC}")
    A("s_mov_b64 exec, -1")
    cnt_wait(10)
    A("s_xor_b32 s47, s32, 1"); A("s_lshl_b32 s47, s47, 12"); A("s_mov_b32 s49, 400000")
    A("L_mlp:")
    A(f"buffer_load_dwordx2 v[10:11], off, s[40:43], s47 offset:3840 {SC}"); A("s_waitcnt vmcnt(0)")
    A("v_max_u32 v12, v10, v11"); A("v_cmp_eq_u32 vcc, -1, v12"); A("s_sub_u32 s49, s49, 1"); A("s_cbranch_scc1 L_mlx")
    A("s_cbranch_vccz L_mlx"); A("s_sleep 8"); A("s_branch L_mlp")
    A("L_mlx:")
    A("v_max_f32 v12, v6, v10")
    A("v_sub_f32 v13, v6, v12"); A("v_sub_f32 v14, v10, v12")
    A("v_mul_f32 v13, s34, v13"); A("v_mul_f32 v14, s34, v14")
    A("v_exp_f32 v13, v13"); A("v_exp_f32 v14, v14"); A("s_nop 0")
    A("v_mul_f32 v15, v13, v32"); A("v_fma_f32 v15, v14, v11, v15")
    A("v_rcp_f32 v15, v15"); A("s_nop 0"); A("v_mul_f32 v15, v15, v13")
    A(f"ds_write_b32 v4, v15 offset:{L_SC}")
    A("s_branch L_tail")

    A("L_help:")
    D0=32
    def layernorm(xr):
        for k in range(4):
            A(f"v_lshlrev_b32 v{8+2*k}, 16, v{xr+k}"); A(f"v_and_b32 v{9+2*k}, 0xffff0000, v{xr+k}")
        A("v_add_f32 v16, v8, v9"); A("v_add_f32 v17, v10, v11"); A("v_add_f32 v18, v12, v13"); A("v_add_f32 v19, v14, v15")
        A("v_add_f32 v16, v16, v17"); A("v_add_f32 v18, v18, v19"); A("v_add_f32 v16, v16, v18")
        wave_sum(16,17)
        A(f"v_mul_f32 v16, {f2u(1.0/448):#x}, v16")
        A("v_cmp_gt_u32 vcc, 56, v0"); A("v_cvt_pk_bf16_f32 v17, 0, v16"); A("s_nop 0")
        A("v_cndmask_b32 v16, 0, v16, vcc")
        A("v_sub_f32 v4, v8, v16"); A("v_mul_f32 v18, v4, v4")
        for k in range(1,8):
            A(f"v_sub_f32 v4, v{8+k}, v16"); A("v_fmac_f32 v18, v4, v4")
        wave_sum(18,19)
        A(f"v_mul_f32 v18, {f2u(1.0/448):#x}, v18")
        A("v_cvt_pk_bf16_f32 v18, 0, v18")
        A(f"v_add_f32 v18, {f2u(1e-5):#x}, v18")
        A("v_cvt_pk_bf16_f32 v18, 0, v18")
        A("v_sqrt_f32 v18, v18"); A("s_nop 0")
        A("v_cvt_pk_bf16_f32 v18, 0, v18")
        A("v_rcp_f32 v19, v18")
        for k in range(8):
            A(f"v_sub_f32 v{8+k}, v{8+k}, v17"); A(f"v_cvt_pk_bf16_f32 v{8+k}, 0, v{8+k}")
            A(f"v_mul_f32 v4, v{8+k}, v19"); A(f"v_fma_f32 v6, -v4, v18, v{8+k}"); A("v_fma_f32 v4, v6, v19, v4")
            A(f"v_cvt_pk_bf16_f32 v{8+k}, v4, v4")
    A("s_lshl_b32 s51, s30, 1"); A("s_add_u32 s51, s51, s28")
    C("waves 1..4: partial q for batches 2(w-1), 2(w-1)+1; column block rho&3, rows 112*(rho>>2)..+112")
    A("v_lshlrev_b32 v1, 4, v0")
    A(f"v_lshlrev_b32 v{hAD}, 13, v2"); A(f"v_lshl_add_u32 v{hAD}, v3, 4, v{hAD}")
    A("s_sub_u32 s47, s3, 1"); A("s_mul_i32 s47, s47, 1792")
    A("s_lshl_b32 s48, s31, 9"); A("s_and_b32 s49, s51, 3"); A("s_lshl_b32 s49, s49, 7"); A("s_add_u32 s48, s48, s49")
    A("s_lshr_b32 s50, s51, 2"); A(f"s_mul_i32 s49, s50, {112*8192}"); A("s_add_u32 s48, s48, s49"); A(f"s_sub_u32 s49, {448*8192}, s48")
    A("s_waitcnt lgkmcnt(0)")
    srd(88,4,5,"s47",896); A("s_add_u32 s47, s47, 896"); srd(92,4,5,"s47",896)
    srd(52,10,11,"s48","s49")
    A("buffer_load_dwordx4 v[96:99], v1, s[88:91], 0 offen")
    A("buffer_load_dwordx4 v[100:103], v1, s[92:95], 0 offen")
    A("s_mov_b32 s48, 0")
    for t in range(14):
        A(f"buffer_load_dwordx4 v[{D0+4*t}:{D0+4*t+3}], v{hAD}, s[52:55], s48 offen {QF}")
        if t<13: A("s_add_u32 s48, s48, 65536")
    A("s_barrier")
    masks(hM,12,13)
    srd(56,22,23,None,256)
    C("publish SRD: ws + 1MB + (h*16+rho)*2048 + first batch*256")
    A("s_lshl_b32 s47, s31, 4"); A("s_add_u32 s47, s47, s51"); A("s_lshl_b32 s47, s47, 11"); A("s_sub_u32 s48, s3, 1"); A("s_lshl_b32 s48, s48, 9")
    A("s_add_u32 s47, s47, s48"); A("s_add_u32 s47, s47, 0x100000"); srd(36,24,25,"s47",512)
    A("s_mul_i32 s50, s50, 14"); A("v_subrev_u32 v30, s50, v0")
    A("s_sub_u32 s47, s3, 1"); A(f"s_mul_i32 s47, s47, {2*X2_SZ}"); A(f"s_add_u32 s47, s47, {L_X2}")
    A("v_cmp_gt_u32 s[62:63], 16, v30"); A("v_lshl_add_u32 v30, v30, 2, s47")
    A(f"v_mul_u32_u24 v{hLD}, {X2_STR}, v2"); A(f"v_add_u32 v{hLD}, s47, v{hLD}")
    A("v_lshrrev_b32 v31, 4, v0"); A("v_lshl_add_u32 v31, v31, 3, v3"); A("v_lshlrev_b32 v31, 3, v31")
    for bb in range(2):
        A(f"s_waitcnt vmcnt({15-bb})")
        layernorm(96+4*bb)
        A("s_mov_b64 exec, s[62:63]")
        for k in range(8): A(f"ds_write_b32 v30, v{8+k} offset:{bb*X2_SZ+k*X2_STR}")
        A("s_mov_b64 exec, -1")
    A("s_waitcnt lgkmcnt(0)")
    for bb in range(2):
        for n in range(4): A(f"ds_read_b128 v[{96+16*bb+4*n}:{96+16*bb+4*n+3}], v{hLD} offset:{bb*X2_SZ+16*n}")
    BB=[12,16]; seq=[(t,bb) for t in range(14) for bb in range(2)]
    def bp2(i):
        t,bb=seq[i]
        for r in range(4): A(f"v_and_b32 v{BB[i%2]+r}, v{96+16*bb+t}, v{hM+r}")
    A("s_waitcnt lgkmcnt(0)")
    bp2(0)
    for i,(t,bb) in enumerate(seq):
        if i+1<len(seq): bp2(i+1)
        else: A("s_nop 0")
        if bb==0: A(f"s_waitcnt vmcnt({13-t})")
        acc=[hACC,4][bb]
        A(f"v_mfma_f32_16x16x32_bf16 v[{acc}:{acc+3}], v[{D0+4*t}:{D0+4*t+3}], v[{BB[i%2]}:{BB[i%2]+3}], {'0' if t==0 else f'v[{acc}:{acc+3}]'}")
    A("s_nop 6")
    combine(hACC,12); combine(4,14)
    A("s_mov_b64 exec, s[60:61]")
    A(f"buffer_store_dwordx2 v[12:13], v31, s[36:39], 0 offen {SC}")
    A(f"buffer_store_dwordx2 v[14:15], v31, s[36:39], 0 offen offset:256 {SC}")
    A("s_mov_b64 exec, -1")
    arrive(16)
    STAMP(6)
    A("s_cmp_lg_u32 s3, 1"); A("s_cbranch_scc1 L_qdone")
    C("wave 1: wait for the 16 flags of this head, gather and sum the partials of batch b")
    A("s_lshl_b32 s47, s31, 15"); A("s_lshl_b32 s48, s30, 8"); A("s_add_u32 s47, s47, s48"); A("s_add_u32 s47, s47, 0x100000"); srd(52,24,25,"s47",32768)
    A("v_lshrrev_b32 v4, 4, v0"); A("v_lshlrev_b32 v5, 11, v4"); A("v_and_b32 v6, 15, v0"); A("v_lshl_add_u32 v5, v6, 4, v5")
    C("Q address: m*128 + (4*rowq+hi)*16 + (a&3)*4, rowq=(a>>2)&1, hi=a>>3")
    A("v_lshlrev_b32 v4, 7, v4"); A("v_bfe_u32 v7, v0, 2, 1"); A("v_lshl_add_u32 v4, v7, 6, v4"); A("v_bfe_u32 v7, v0, 3, 1"); A("v_lshl_add_u32 v4, v7, 4, v4")
    A("v_and_b32 v7, 3, v0"); A("v_lshl_add_u32 v4, v7, 2, v4")
    A("s_lshl_b32 s47, s31, 2"); A("s_mov_b32 s49, 400000")
    A("L_qp:")
    A(f"buffer_load_dword v8, off, s[56:59], s47 offset:128 {SC}"); A("s_waitcnt vmcnt(0)")
    A("v_cmp_gt_u32 vcc, 16, v8"); A("s_sub_u32 s49, s49, 1"); A("s_cbranch_scc1 L_qpx")
    A("s_cbranch_vccnz L_qp")
    A("L_qpx:")
    A("s_movk_i32 s47, 0x2000"); A("s_movk_i32 s48, 0x4000"); A("s_movk_i32 s49, 0x6000")
    for g,so in enumerate(["0","s47","s48","s49"]): A(f"buffer_load_dwordx4 v[{32+4*g}:{32+4*g+3}], v5, s[52:55], {so} offen {SC}")
    A("s_waitcnt vmcnt(2)")
    for r in range(4): A(f"v_add_f32 v{32+r}, v{32+r}, v{36+r}")
    A("s_waitcnt vmcnt(0)")
    for r in range(4): A(f"v_add_f32 v{40+r}, v{40+r}, v{44+r}")
    for r in range(4): A(f"v_add_f32 v{32+r}, v{32+r}, v{40+r}")
    A("v_cvt_pk_bf16_f32 v36, v32, v34"); A("v_cvt_pk_bf16_f32 v37, v33, v35")
    A(f"ds_write_b32 v4, v36 offset:{L_Q}"); A(f"ds_write_b32 v4, v37 offset:{L_Q+32}")
    A("s_waitcnt lgkmcnt(0)")
    A("L_qdone:")
    STAMP(1)
    A("s_barrier")
    STAMP(2)
    if not wol: wo_issue()
    srd_slots()
    STAMP(3)
    A("s_barrier")
    if wol: wo_issue()
    A("L_tail:")
    tail_gemv()
    if not stamp: STAMP(6)
    stamp_out()
    A("s_endpgm")

    A("L_ffn0:")
    C("wave 5: the clear stores completed long ago (vmcnt(0) above): count them; then the FFN slice")
    A("v_mov_b32 v8, 1"); A("s_lshl_b32 s47, s30, 2")
    A("s_mov_b64 exec, 1")
    A(f"buffer_atomic_add v8, off, s[56:59], s47 {SC}")
    A("s_mov_b64 exec, -1")
    A("s_mul_i32 s47, s30, 896"); srd(88,4,5,"s47",896)
    A("buffer_load_dwordx4 v[96:99], v1, s[88:91], 0 offen")
    A("s_waitcnt vmcnt(0)")
    layernorm(96)
    A(f"v_lshlrev_b32 v5, 2, v0")
    for k in range(8): A(f"ds_write_b32 v5, v{8+k} offset:{L_X+k*X_STR}")
    A(f"v_mul_u32_u24 v{hLD}, {X_STR}, v2"); A(f"v_add_u32 v{hLD}, {L_X}, v{hLD}")
    def gemv56(waits):
        XX=[4,8]; BB=[12,16]
        A("s_waitcnt lgkmcnt(0)")
        A(f"ds_read_b128 v[4:7], v{hLD}"); A(f"ds_read_b128 v[8:11], v{hLD} offset:16")
        def bp(t):
            if t%4==0: A(f"s_waitcnt lgkmcnt({1 if t//4+1<14 else 0})")
            for r in range(4): A(f"v_and_b32 v{BB[t%2]+r}, v{XX[(t//4)%2]+t%4}, v{hM+r}")
            if t%4==3 and t//4+2<14:
                x=XX[(t//4)%2]; A(f"ds_read_b128 v[{x}:{x+3}], v{hLD} offset:{16*(t//4+2)}")
        bp(0)
        for t in range(56):
            if t+1<56: bp(t+1)
            else: A("s_nop 0")
            if waits: A(f"s_waitcnt vmcnt({55-t})")
            A(f"v_mfma_f32_16x16x32_bf16 v[{hACC}:{hACC+3}], v[{D0+4*t}:{D0+4*t+3}], v[{BB[t%2]}:{BB[t%2]+3}], {'0' if t==0 else f'v[{hACC}:{hACC+3}]'}")
        A("s_nop 7")
        combine(hACC,12)

    if noffn: A("s_barrier")
    A("s_cmp_ge_u32 s32, 28"); A("s_cbranch_scc1 L_noffn")
    A("s_lshl_b32 s48, s32, 7"); A(f"s_sub_u32 s49, {448*3584}, s48"); srd(52,16,17,"s48","s49")
    A(f"v_mul_u32_u24 v{hAD}, 3584, v2"); A(f"v_lshl_add_u32 v{hAD}, v3, 4, v{hAD}")
    A("s_mov_b32 s48, 0")
    for t in range(56):
        if t>=NF: A(f"s_waitcnt vmcnt({NF-1})")
        A(f"buffer_load_dwordx4 v[{D0+4*t}:{D0+4*t+3}], v{hAD}, s[52:55], s48 offen {HF}")
        A(f"s_add_u32 s48, s48, {8*3584}")
    A("s_waitcnt vmcnt(0)")
    gemv56(False)
    C("w2 loads (tile t, block beta) -> D0 + 4*(7t+beta)")
    A(f"s_mul_i32 s48, s32, {64*896}"); A(f"s_sub_u32 s49, {1792*896}, s48"); srd(52,18,19,"s48","s49")
    A(f"v_mul_u32_u24 v{hAD}, 896, v2"); A(f"v_lshl_add_u32 v{hAD}, v3, 4, v{hAD}")
    A("s_mov_b32 s48, 0")
    for t in range(8):
        for be in range(7):
            i=7*t+be
            if i>=NF: A(f"s_waitcnt vmcnt({NF-1})")
            A(f"buffer_load_dwordx4 v[{D0+4*i}:{D0+4*i+3}], v{hAD}, s[52:55], s48 offen offset:{128*be} {HF}")
        A("s_add_u32 s48, s48, 7168")
    C("h -> bf16 -> silu -> bf16 (dup) -> LDS H[g=j][T=4*rowq+hi+2s]")
    for k in (12,13):
        A(f"v_cvt_pk_bf16_f32 v{k}, 0, v{k}")
        A(f"v_mul_f32 v4, {f2u(-math.log2(math.e)):#x}, v{k}"); A("v_exp_f32 v4, v4"); A("s_nop 0")
        A("v_add_f32 v4, 1.0, v4"); A("v_rcp_f32 v4, v4"); A("s_nop 0")
        A(f"v_mul_f32 v{k}, v{k}, v4"); A(f"v_cvt_pk_bf16_f32 v{k}, v{k}, v{k}")
    A("v_bfe_u32 v4, v0, 4, 1"); A("v_lshrrev_b32 v5, 5, v0"); A("v_lshl_add_u32 v4, v4, 2, v5"); A("v_lshlrev_b32 v4, 2, v4")
    A(f"v_mul_u32_u24 v5, {H_STR}, v3"); A("v_add_u32 v4, v4, v5")
    A("s_mov_b64 exec, s[60:61]")
    A(f"ds_write_b32 v4, v12 offset:{L_H}"); A(f"ds_write_b32 v4, v13 offset:{L_H+8}")
    A("s_mov_b64 exec, -1")
    A(f"v_mul_u32_u24 v5, {H_STR}, v2")
    A("s_waitcnt lgkmcnt(0)")
    A(f"ds_read_b128 v[4:7], v5 offset:{L_H}"); A(f"ds_read_b128 v[8:11], v5 offset:{L_H+16}")
    A("s_waitcnt vmcnt(0) lgkmcnt(0)")
    A(f"v_lshrrev_b32 v{hAD}, 4, v0"); A(f"v_lshl_add_u32 v{hAD}, v{hAD}, 3, v3"); A(f"v_lshlrev_b32 v{hAD}, 3, v{hAD}")
    for be in range(7):
        BB=[12,16]
        for t in range(8):
            for r in range(4): A(f"v_and_b32 v{BB[t%2]+r}, v{4+t}, v{hM+r}")
            A("s_nop 1")
            i=7*t+be
            A(f"v_mfma_f32_16x16x32_bf16 v[{hACC}:{hACC+3}], v[{D0+4*i}:{D0+4*i+3}], v[{BB[t%2]}:{BB[t%2]+3}], {'0' if t==0 else f'v[{hACC}:{hACC+3}]'}")
        A("s_nop 7")
        combine(hACC,30)
        A("v_min_u32 v30, -2, v30"); A("v_min_u32 v31, -2, v31")
        A("s_mov_b64 exec, s[60:61]")
        A(f"buffer_store_dwordx2 v[30:31], v{hAD}, s[36:39], 0 offen offset:{2048+256*be} {SC}")
        A("s_mov_b64 exec, -1")
    A("L_noffn:")
    STAMP(3)
    A("s_waitcnt lgkmcnt(0)")
    if not noffn: A("s_barrier")
    wo_issue()
    A("s_cmp_ge_u32 s32, 28"); A("s_cbranch_scc1 L_tail")
    C("consumer setup: gather address v64, column byte offset v65, x value v66, FFN value v67")
    A("v_lshrrev_b32 v64, 2, v0"); A("v_lshlrev_b32 v64, 12, v64"); A("v_and_b32 v4, 3, v0"); A("v_lshl_add_u32 v64, v4, 4, v64")
    A("s_lshl_b32 s47, s32, 6"); A("v_add_u32 v64, s47, v64")
    C("col = 64*(k>>2) + 32*(k&1) + 8*((k>>1)&1) + 16*(rho&1) + 2*qd + (rho>>1), rho=(l>>2)&3, qd=l&3")
    A("s_lshr_b32 s47, s32, 2"); A("s_lshl_b32 s47, s47, 6"); A("s_and_b32 s48, s32, 1"); A("s_lshl_b32 s48, s48, 5"); A("s_add_u32 s47, s47, s48")
    A("s_bfe_u32 s48, s32, 0x10001"); A("s_lshl_b32 s48, s48, 3"); A("s_add_u32 s47, s47, s48")
    A("v_bfe_u32 v5, v0, 2, 1"); A("v_lshlrev_b32 v5, 4, v5"); A("v_lshl_add_u32 v5, v4, 1, v5"); A("v_bfe_u32 v6, v0, 3, 1"); A("v_add3_u32 v65, v5, v6, s47")
    A("v_lshlrev_b32 v65, 1, v65")
    A("buffer_load_ushort v66, v65, s[88:91], 0 offen")
    cnt_wait(4)
    gather(2048, 68, 64, 8)
    A("v_cvt_pk_bf16_f32 v67, 0, v68"); A("v_lshlrev_b32 v66, 16, v66")
    A("s_mul_i32 s47, s30, 896"); srd(92,20,21,"s47",896)
    tail_gemv()
    gather(0, 68, 64, 0)
    A("v_cvt_pk_bf16_f32 v68, 0, v68"); A("v_add_f32 v68, v66, v68"); A("v_cvt_pk_bf16_f32 v68, 0, v68"); A("v_add_f32 v68, v68, v67")
    A("v_cvt_pk_bf16_f32 v68, v68, v68")
    A("s_mov_b64 exec, 0xffff")
    A("buffer_store_short v68, v65, s[92:95], 0 offen")
    A("s_mov_b64 exec, -1")
    STAMP(6)
    stamp_out(role="f")
    A("L_end:")
    A("s_endpgm")
    body="\n".join(("" if (l.endswith(":") or l.startswith(".")) else "    ")+l for l in L)+"\n"
    ldsz=lds if lds else L_END
    head=HEADER+f"; @launch grid=(256,1,1) block=(512,1,1) lds={ldsz}\n"
    return head+body+kd(NAME,256,102,256), ldsz

if __name__=="__main__":
    kw=eval("dict(%s)"%(sys.argv[2] if len(sys.argv)>2 else ""))
    t,ldsz=gen(**kw)
    out=sys.argv[1]
    if out.endswith(".s"): open(out,"w").write(t)
    else:
        assemble(t+meta([(NAME,256,102,512)]), out); print(f"work/{out}:{NAME},256,512,{ldsz}")
```

```python
import sys, math
from common import *

NAME="parallel_sum__mha_block_cached__dense_activation_silu__decode_kernel"
HEADER=open("parallel_sum__mha_block_cached__dense_activation_silu__decode.s.ref").read().split("; Override launch")[0]

L_Q=0; L_MX=512; L_SC=576; L_S=1024; S_STR=1040; L_O=L_S+8*S_STR; O_STR=144
L_X=L_O+8*O_STR; X_STR=272; X_SZ=8*X_STR; L_H=L_X+5*X_SZ; H_STR=48; L_X2=L_H+8*H_STR; X2_STR=80; X2_SZ=8*X2_STR; L_CNT=580; L_END=L_X2
CEXP=math.log2(math.e)/16.0
import struct
def f2u(f): return struct.unpack("<I",struct.pack("<f",f))[0]

def gen(N=22, N0=8, R=48, NF=4, NW=2, stamp=False, catchup=True, SC="sc1", lds=None, wol=0, noffn=0, HF="nt", QF="nt", ch=2, bprio=3, qprio=0, dbg=0, calib=0, SF="nt", HB=0, stag=1, rot=1):
    L=[]; A=L.append
    def C(s): A("    ; "+s)
    A('.amdgcn_target "amdgcn-amd-amdhsa--gfx950"'); A(".text"); A(f".globl {NAME}"); A(".p2align 8"); A(f".type {NAME},@function"); A(f"{NAME}:")
    nst=[0]; lbl0=[0]
    def STAMP(i):
        if stamp or dbg or (calib and i==0): A(f"s_memrealtime s[{70+2*i}:{71+2*i}]")
    A("s_cmp_ge_u32 s2, 256"); A("s_cbranch_scc1 L_end")
    STAMP(0)
    A("s_load_dwordx16 s[4:19], s[0:1], 0")
    A("s_load_dwordx4 s[20:23], s[0:1], 64")
    A("s_load_dwordx2 s[24:25], s[0:1], 80")
    A("v_lshrrev_b32 v1, 6, v0"); A("v_and_b32 v0, 63, v0"); A("v_readfirstlane_b32 s3, v1")
    A("s_and_b32 s26, s2, 7"); A("s_lshr_b32 s27, s2, 3"); A("s_and_b32 s28, s27, 1")
    if HB==0:
        A("s_bfe_u32 s29, s27, 0x10001"); A("s_lshr_b32 s30, s27, 2")
        A("s_lshl_b32 s29, s29, 3"); A("s_add_u32 s31, s26, s29")
    else:
        A(f"s_bfe_u32 s29, s27, {(HB<<16)|1:#x}")
        A(f"s_lshr_b32 s30, s27, {1+HB}")
        A(f"s_and_b32 s31, s26, {(1<<(4-HB))-1}"); A(f"s_lshl_b32 s31, s31, {HB}"); A("s_add_u32 s31, s31, s29")
        A(f"s_lshr_b32 s29, s26, {4-HB}"); A(f"s_lshl_b32 s29, s29, {4-HB}"); A("s_add_u32 s30, s30, s29")
    A("s_lshl_b32 s32, s31, 1"); A("s_add_u32 s32, s32, s28")
    A("s_lshl_b32 s33, s30, 5"); A("s_add_u32 s33, s33, s32")
    C("s30=b s31=h s32=pidx s33=gidx ; v2=g v3=e")
    A("v_lshrrev_b32 v2, 3, v0"); A("v_and_b32 v3, 7, v0")
    A(f"s_mov_b32 s34, {f2u(CEXP):#x}")
    A("s_mov_b32 s60, 0x00ff00ff"); A("s_mov_b32 s61, 0x00ff00ff")
    A("s_cmp_eq_u32 s3, 0"); A("s_cbranch_scc1 L_stream")
    A("s_cmp_ge_u32 s3, 5"); A("s_cbranch_scc1 L_buf")
    A("s_branch L_help")

    def srd(d, lo, hi, off_sgpr, size):
        if off_sgpr is None:
            A(f"s_mov_b32 s{d}, s{lo}"); A(f"s_mov_b32 s{d+1}, s{hi}")
        else:
            A(f"s_add_u32 s{d}, s{lo}, {off_sgpr}"); A(f"s_addc_u32 s{d+1}, s{hi}, 0")
        A(f"s_mov_b32 s{d+2}, {size}"); A(f"s_mov_b32 s{d+3}, 0x20000")
    def masks(base,t0,t1):
        A(f"v_and_b32 v{t0}, 1, v3"); A(f"v_lshlrev_b32 v{t0}, 4, v{t0}"); A(f"v_mov_b32 v{t1}, 0xffff"); A(f"v_lshlrev_b32 v{t0}, v{t0}, v{t1}")
        A(f"v_lshrrev_b32 v{t1}, 1, v3")
        for r in range(4):
            A(f"v_cmp_eq_u32 vcc, {r}, v{t1}"); A("s_nop 1"); A(f"v_cndmask_b32 v{base+r}, 0, v{t0}, vcc")
    def stamp_out(tmp=4, role=""):
        if dbg:
            A("s_waitcnt vmcnt(0) lgkmcnt(0)")
            A("s_memrealtime s[82:83]")
            A("s_mov_b64 exec, 1")
            srd(64,22,23,None,256)
            A("s_waitcnt lgkmcnt(0)")
            def um(word, sreg, inv=False):
                if inv: A(f"s_not_b32 s68, s{sreg}"); A(f"v_mov_b32 v{tmp}, s68")
                else: A(f"v_mov_b32 v{tmp}, s{sreg}")
                A(f"buffer_atomic_umax v{tmp}, off, s[64:67], 0 offset:{4*word} sc1"); A("s_waitcnt vmcnt(0)")
            if role=="s":
                um(1,70,True); um(7,70); um(3,78); um(5,74); um(6,76); um(9,78,True); um(10,74,True)
            if role=="f":
                um(2,82)
            return
        if not stamp: return
        A("s_waitcnt lgkmcnt(0)")
        A("s_mov_b64 exec, 1")
        srd(64,24,25,None,0x40000000)
        A("s_lshl_b32 s68, s2, 3"); A("s_add_u32 s68, s68, s3"); A("s_lshl_b32 s68, s68, 5"); A("s_add_u32 s68, s68, 0x20000000")
        A("s_getreg_b32 s69, hwreg(HW_REG_XCC_ID)")
        for i in range(7): A(f"v_mov_b32 v{tmp+i}, s{70+2*i}")
        A(f"v_mov_b32 v{tmp+7}, s69")
        A(f"buffer_store_dwordx4 v[{tmp}:{tmp+3}], off, s[64:67], s68")
        A(f"buffer_store_dwordx4 v[{tmp+4}:{tmp+7}], off, s[64:67], s68 offset:16")
        A("s_waitcnt vmcnt(0)")

    RING=256-4*R
    vK=4; vV=5; vSW=6; vSR=7; vMX=8; vR=9; vR2=10; vA=[11,12]; vB=[13,14]; vQ=16
    def slot(i): return RING+4*(i%R)
    def k_consume(c, dsoff):
        p=c%8; m=p%4; acc=vA if p<4 else vB; r=slot(c)
        for k in range(4):
            if ch==2:
                src2 = "0" if (m==0 and k<2) else f"v{acc[k%2]}"
                A(f"v_dot2_f32_bf16 v{acc[k%2]}, v{r+k}, v{vQ+4*m+k}, {src2}")
            elif ch==4:
                a4=(acc+([32,33] if p<4 else [34,35]))[k]
                if m==0: A(f"v_dot2_f32_bf16 v{a4}, v{r+k}, v{vQ+4*m+k}, 0")
                else: A(f"v_dot2c_f32_bf16 v{a4}, v{r+k}, v{vQ+4*m+k}")
        k_post(p, dsoff)
    def k_post(p, dsoff):
        prev = dsoff is not None
        if p==0 and prev:
            if ch==4: A(f"v_add_f32 v{vB[0]}, v{vB[0]}, v34"); A(f"v_add_f32 v{vB[1]}, v{vB[1]}, v35")
            A(f"v_add_f32 v{vB[0]}, v{vB[0]}, v{vB[1]}")
        if p==1 and prev: A(f"v_add_f32_dpp v{vR}, v{vB[0]}, v{vB[0]} row_half_mirror row_mask:0xf bank_mask:0xa")
        if p==2 and prev: A(f"v_add_f32_dpp v{vR}, v{vR}, v{vR} quad_perm:[1,0,3,2] row_mask:0xf bank_mask:0xf")
        if p==3 and prev: A(f"v_add_f32_dpp v{vR}, v{vR}, v{vR} quad_perm:[2,3,0,1] row_mask:0xf bank_mask:0xf")
        if p==4:
            if prev: A(f"v_cvt_pk_bf16_f32 v{vR2}, 0, v{vR}")
            if ch==4: A(f"v_add_f32 v{vA[0]}, v{vA[0]}, v32"); A(f"v_add_f32 v{vA[1]}, v{vA[1]}, v33")
            A(f"v_add_f32 v{vA[0]}, v{vA[0]}, v{vA[1]}")
        if p==5:
            if prev:
                A(f"v_max_f32 v{vMX}, v{vMX}, v{vR2}"); A(f"ds_write_b32 v{vSW}, v{vR2} offset:{dsoff}")
            A(f"v_add_f32_dpp v{vR}, v{vA[0]}, v{vA[0]} row_half_mirror row_mask:0xf bank_mask:0x5")
    def k_flush(dsoff):
        A("s_nop 2")
        if ch==4: A(f"v_add_f32 v{vB[0]}, v{vB[0]}, v34"); A(f"v_add_f32 v{vB[1]}, v{vB[1]}, v35")
        A(f"v_add_f32 v{vB[0]}, v{vB[0]}, v{vB[1]}"); A("s_nop 1")
        A(f"v_add_f32_dpp v{vR}, v{vB[0]}, v{vB[0]} row_half_mirror row_mask:0xf bank_mask:0xa"); A("s_nop 1")
        A(f"v_add_f32_dpp v{vR}, v{vR}, v{vR} quad_perm:[1,0,3,2] row_mask:0xf bank_mask:0xf"); A("s_nop 1")
        A(f"v_add_f32_dpp v{vR}, v{vR}, v{vR} quad_perm:[2,3,0,1] row_mask:0xf bank_mask:0xf")
        A(f"v_cvt_pk_bf16_f32 v{vR2}, 0, v{vR}")
        A(f"v_max_f32 v{vMX}, v{vMX}, v{vR2}"); A(f"ds_write_b32 v{vSW}, v{vR2} offset:{dsoff}")
    def mx_publish(w, tmp):
        A("s_nop 1")
        A(f"v_max_f32_dpp v{vMX}, v{vMX}, v{vMX} row_ror:4 row_mask:0xf bank_mask:0xf"); A("s_nop 1")
        A(f"v_max_f32_dpp v{vMX}, v{vMX}, v{vMX} row_ror:8 row_mask:0xf bank_mask:0xf")
        A(f"v_lshrrev_b32 v{tmp}, 4, v0"); A(f"v_lshlrev_b32 v{tmp}, 2, v{tmp}")
        if isinstance(w,int): A(f"ds_write_b32 v{tmp}, v{vMX} offset:{L_MX+16*w}")
        else:
            A(f"v_add_u32 v{tmp}, {w}, v{tmp}"); A(f"ds_write_b32 v{tmp}, v{vMX} offset:{L_MX}")
    def k_setup():
        A(f"v_lshlrev_b32 v{vK}, 9, v2"); A(f"v_lshl_add_u32 v{vK}, v3, 4, v{vK}")
        A(f"v_mul_u32_u24 v{vSW}, {S_STR}, v2"); A(f"v_lshrrev_b32 v{vSR}, 2, v3"); A(f"v_lshl_add_u32 v{vSW}, v{vSR}, 2, v{vSW}")
        A(f"v_mov_b32 v{vMX}, 0xff800000")
        A("s_lshl_b32 s35, s33, 20")
    def q_read():
        A(f"v_lshlrev_b32 v{vR}, 4, v3")
        for m in range(4): A(f"ds_read_b128 v[{vQ+4*m}:{vQ+4*m+3}], v{vR} offset:{L_Q+128*m}")
        A("s_waitcnt lgkmcnt(0)")
    NP0=R//8
    assert R%8==0
    NB=3
    NKS=1024-NB*R
    NTOT=NKS+1024

    A("L_stream:")
    A("s_setprio 3")
    k_setup()
    A(f"v_lshrrev_b32 v{vV}, 4, v0"); A(f"v_lshlrev_b32 v{vV}, 10, v{vV}"); A(f"v_and_b32 v{vSR}, 15, v0"); A(f"v_lshl_add_u32 v{vV}, v{vSR}, 4, v{vV}")
    A("s_waitcnt lgkmcnt(0)")
    srd(36,6,7,"s35",1<<20); srd(40,8,9,"s35",1<<20)
    A("s_mov_b32 s44, 0"); A("s_mov_b32 s45, 0")
    def issue(i):
        r=slot(i)
        if i<NKS:
            A(f"buffer_load_dwordx4 v[{r}:{r+3}], v{vK}, s[36:39], s44 offen offset:{128*(i%4)} {SF}")
            if i%4==3:
                inc=4096
                if i<R and i%8==7: inc=4096+NB*8192
                A(f"s_add_u32 s44, s44, {inc}")
        elif i<NTOT:
            u=i-NKS
            A(f"buffer_load_dwordx4 v[{r}:{r+3}], v{vV}, s[40:43], s45 offen offset:{256*(u%4)} {SF}")
            if u%4==3: A("s_add_u32 s45, s45, 4096")
    DK=R-1
    def bar0(first):
        if not stag:
            if first: A("s_barrier")
            return
        lbl0[0]+=1
        A(f"s_cmp_eq_u32 s28, {1 if first else 0}"); A(f"s_cbranch_scc1 L_b0_{lbl0[0]}"); A("s_barrier"); A(f"L_b0_{lbl0[0]}:")
    bar0(True)
    for i in range(DK):
        if i>=N0: A(f"s_waitcnt vmcnt({N0-1})")
        issue(i)
    bar0(False)
    STAMP(1)
    A("s_barrier")
    STAMP(2)
    q_read()
    def pair_T(pi):
        return 2*((NB+1)*pi) if pi<NP0 else 2*((NB+1)*NP0+(pi-NP0))
    def kstep(c, dsbase):
        I=c+DK
        A(f"s_waitcnt vmcnt({min(N-1,I-c-1)})")
        issue(I)
        pi=c//8
        k_consume(c, None if pi==0 else L_S+4*pair_T(pi-1)-dsbase)
    for c in range(0,2*R): kstep(c,0)
    nK=(NKS-DK-2*R)//R
    A(f"s_mov_b32 s46, {nK}")
    A("L_kloop:")
    for c in range(2*R,3*R): kstep(c,0)
    A(f"v_add_u32 v{vSW}, {R}, v{vSW}")
    A("s_sub_u32 s46, s46, 1"); A("s_cmp_lg_u32 s46, 0"); A("s_cbranch_scc1 L_kloop")
    dsb=nK*R
    for c in range((2+nK)*R,NKS): kstep(c,dsb)
    k_flush(L_S+4*pair_T(NKS//8-1)-dsb)
    mx_publish(0, vR)
    vM=[12,13,14,15]; vNM=11; vT=9; vP=10; vACC=16; vBB=[32,36]; vSS=[40,44,48]; vTM=52
    assert vTM+12<=RING
    masks(vM[0], vTM, vTM+1)
    A(f"v_mul_u32_u24 v{vSR}, {S_STR}, v2")
    A(f"v_mov_b32 v{vT}, 0")
    A("s_waitcnt lgkmcnt(0)")
    STAMP(3)
    A("s_barrier")
    for w in range(4): A(f"ds_read_b128 v[{48+4*w}:{48+4*w+3}], v{vT} offset:{L_MX+16*w}")
    A(f"ds_read_b128 v[{vSS[0]}:{vSS[0]+3}], v{vSR} offset:{L_S}")
    inext=[NKS+DK]
    A(f"s_waitcnt vmcnt({N-1})")
    issue(inext[0]); inext[0]+=1
    for r in range(16): A(f"v_mov_b32 v{vACC+r}, 0")
    A("s_waitcnt lgkmcnt(0)")
    def max12(dst,b):
        A(f"v_max3_f32 v{dst}, v{b}, v{b+1}, v{b+2}")
        for k in range(3,15,2): A(f"v_max3_f32 v{dst}, v{dst}, v{b+k}, v{b+k+1}")
        A(f"v_max_f32 v{dst}, v{dst}, v{b+15}")
    max12(vNM,48)
    A(f"v_mul_f32 v{vNM}, s34, v{vNM}"); A(f"v_sub_f32 v{vNM}, 0, v{vNM}")
    def bprep(tile, part):
        s=vSS[(tile//4)%3]+tile%4; b=vBB[tile%2]
        if part==0: A(f"v_fma_f32 v{vT}, v{s}, s34, v{vNM}")
        if part==1: A(f"v_exp_f32 v{vT}, v{vT}")
        if part==2: A(f"v_cvt_pk_bf16_f32 v{vP}, v{vT}, v{vT}"); A(f"v_and_b32 v{b}, v{vP}, v{vM[0]}")
        if part==3:
            for r in range(1,4): A(f"v_and_b32 v{b+r}, v{vP}, v{vM[r]}")
    bprep(0,0); bprep(0,1); A("s_nop 0"); bprep(0,2); bprep(0,3); A("s_nop 1")
    def vconsume(u, srbase, mark):
        tile=u//4; q=u%4; r=slot(NKS+u); b=vBB[tile%2]
        if q==0 and tile%4==0 and tile+4<256:
            nb=vSS[(tile//4+1)%3]
            A(f"ds_read_b128 v[{nb}:{nb+3}], v{vSR} offset:{L_S+4*(tile+4)-srbase}")
        if q==0 and tile%4==3 and tile+1<256: A("s_waitcnt lgkmcnt(0)")
        a=vACC+4*q
        if q==0 and len(L)-mark<2: A(f"s_nop {1-(len(L)-mark)}")
        A(f"v_mfma_f32_16x16x32_bf16 v[{a}:{a+3}], v[{r}:{r+3}], v[{b}:{b+3}], v[{a}:{a+3}]")
        if tile+1<256: bprep(tile+1,q)
    def vstep(u, srbase, do_issue=True):
        c=NKS+u; I=inext[0]; mark=len(L)
        if do_issue and I<NTOT:
            A(f"s_waitcnt vmcnt({min(N-1,I-c-1)})")
            assert I-R < c
            issue(I); inext[0]+=1
        else:
            k=I-c-1
            if k<N: A(f"s_waitcnt vmcnt({k})")
        vconsume(u,srbase,mark)
    u=0
    DV=N if catchup else R-1
    first=True
    while True:
        D=inext[0]-(NKS+u)
        if D<=DV and u%R==0: break
        if D>DV:
            vstep(u,0,do_issue=False); u+=1
            D=inext[0]-(NKS+u)
            if D>DV or u%R!=0:
                if D>=DV: vstep(u,0,True); u+=1
        else:
            vstep(u,0,True); u+=1
    D=inext[0]-(NKS+u)
    assert D==DV and u%R==0 and (R//16)%3==0 and R%16==0, (D,DV,u)
    u0=u
    nV=(1024-DV-u0)//R
    while u0+nV*R+16>1024: nV-=1
    A(f"s_mov_b32 s46, {nV}")
    A("L_vloop:")
    for uu in range(u0,u0+R): vstep(uu,0,True)
    A(f"v_add_u32 v{vSR}, {R}, v{vSR}")
    A("s_sub_u32 s46, s46, 1"); A("s_cmp_lg_u32 s46, 0"); A("s_cbranch_scc1 L_vloop")
    inext[0]+=(nV-1)*R
    for uu in range(u0+nV*R,1024): vstep(uu,nV*R,True)
    STAMP(4)
    A(f"v_lshrrev_b32 v{vT}, 4, v0"); A(f"v_lshlrev_b32 v{vT}, 4, v{vT}"); A(f"v_mul_u32_u24 v{vP}, {O_STR}, v3"); A(f"v_add_u32 v{vT}, v{vT}, v{vP}")
    A("s_nop 3")
    for hf in range(2):
        for r in range(4):
            A(f"v_add_f32_dpp v{vTM+4*hf+r}, v{vACC+8+4*hf+r}, v{vACC+4*hf+r} row_ror:8 row_mask:0xf bank_mask:0xf")
    for k in range(8): A(f"v_cvt_pk_bf16_f32 v{vTM+k}, v{vTM+k}, v{vTM+k}")
    A("s_mov_b64 exec, s[60:61]")
    A(f"ds_write_b128 v{vT}, v[{vTM}:{vTM+3}] offset:{L_O}")
    A(f"ds_write_b128 v{vT}, v[{vTM+4}:{vTM+7}] offset:{L_O+64}")
    A("s_waitcnt lgkmcnt(0)")
    A("s_barrier")
    STAMP(5)
    if calib:
        A("L_cal:"); A("s_memrealtime s[72:73]"); A("s_waitcnt lgkmcnt(0)"); A("s_sub_u32 s72, s72, s70"); A(f"s_cmp_lt_u32 s72, {calib}"); A("s_cbranch_scc1 L_cal")
    stamp_out(role="s")
    A("s_endpgm")

    hM=20
    hACC=24
    hAD=28; hLD=29
    WO=128
    def wo_issue():
        C("wo block loads, c = wave-1")
        A("s_mul_i32 s47, s31, 229376"); A("s_sub_u32 s48, s3, 1"); A("s_lshl_b32 s48, s48, 7"); A("s_add_u32 s47, s47, s48")
        A(f"s_sub_u32 s48, {4096*896}, s47")
        srd(52,12,13,"s47","s48")
        A(f"v_mul_u32_u24 v{hAD}, 896, v2"); A(f"v_lshl_add_u32 v{hAD}, v3, 4, v{hAD}")
        A("s_mov_b32 s47, 0")
        for t in range(32):
            if t>=NW: A(f"s_waitcnt vmcnt({NW-1})")
            A(f"buffer_load_dwordx4 v[{WO+4*t}:{WO+4*t+3}], v{hAD}, s[52:55], s47 offen {HF}")
            A("s_add_u32 s47, s47, 7168")
    def combine(acc, dst):
        A(f"v_permlane32_swap_b32 v{acc}, v{acc+1}"); A(f"v_permlane32_swap_b32 v{acc+2}, v{acc+3}")
        A("s_nop 1")
        A(f"v_add_f32_dpp v{dst}, v{acc+1}, v{acc} row_ror:8 row_mask:0xf bank_mask:0xf")
        A(f"v_add_f32_dpp v{dst+1}, v{acc+3}, v{acc+2} row_ror:8 row_mask:0xf bank_mask:0xf")
    def wave_sum(v,t,op="add"):
        for pat in ["quad_perm:[1,0,3,2]","quad_perm:[2,3,0,1]","row_half_mirror","row_mirror"]:
            A("s_nop 1"); A(f"v_{op}_f32_dpp v{v}, v{v}, v{v} {pat} row_mask:0xf bank_mask:0xf")
        for sw in ["16","32"]:
            A(f"v_mov_b32 v{t}, v{v}"); A("s_nop 1"); A(f"v_permlane{sw}_swap_b32 v{v}, v{t}"); A(f"v_{op}_f32 v{v}, v{v}, v{t}")
    def srd_slots():
        A("s_lshl_b32 s47, s33, 12"); srd(36,24,25,"s47",4096)
        A("s_lshl_b32 s47, s30, 17"); srd(40,24,25,"s47",131072)
        srd(56,22,23,None,256)
    lbl=[0]
    def cnt_wait(t):
        lbl[0]+=1; n=lbl[0]
        A("s_lshl_b32 s47, s30, 2"); A("s_mov_b32 s49, 400000")
        A(f"L_cw{n}:")
        A(f"buffer_load_dword v{t}, off, s[56:59], s47 {SC}"); A("s_waitcnt vmcnt(0)")
        A(f"v_cmp_gt_u32 vcc, 32, v{t}"); A("s_sub_u32 s49, s49, 1"); A("s_cbranch_scc1 L_cwx%d"%n)
        A(f"s_cbranch_vccz L_cwx{n}"); A("s_sleep 8"); A(f"s_branch L_cw{n}")
        A(f"L_cwx{n}:")
    def arrive(t):
        lbl[0]+=1; n=lbl[0]
        A(f"v_mov_b32 v{t}, 0"); A(f"v_mov_b32 v{t+1}, 1")
        A("s_mov_b64 exec, 1")
        A("s_waitcnt vmcnt(0)")
        A(f"ds_add_rtn_u32 v{t}, v{t}, v{t+1} offset:{L_CNT}")
        A("s_lshl_b32 s47, s31, 2")
        A("s_waitcnt lgkmcnt(0)")
        A(f"v_cmp_eq_u32 vcc, 3, v{t}"); A("s_nop 1")
        A(f"s_cbranch_vccz L_ar{n}")
        A(f"buffer_atomic_add v{t+1}, off, s[56:59], s47 offset:128 {SC}")
        A(f"L_ar{n}:")
        A("s_mov_b64 exec, -1")
    def gather(off, b, vad, sleep):
        lbl[0]+=1; n=lbl[0]
        A("s_mov_b32 s49, 400000"); A("s_mov_b32 s47, 65536")
        A(f"L_g{n}:")
        A(f"buffer_load_dwordx4 v[{b}:{b+3}], v{vad}, s[40:43], 0 offen offset:{off} {SC}")
        A(f"buffer_load_dwordx4 v[{b+4}:{b+7}], v{vad}, s[40:43], s47 offen offset:{off} {SC}")
        A("s_waitcnt vmcnt(0)")
        A(f"v_max3_u32 v{b+8}, v{b}, v{b+1}, v{b+2}"); A(f"v_max3_u32 v{b+9}, v{b+3}, v{b+4}, v{b+5}")
        A(f"v_max3_u32 v{b+8}, v{b+8}, v{b+6}, v{b+7}"); A(f"v_max_u32 v{b+8}, v{b+8}, v{b+9}")
        A(f"v_cmp_eq_u32 vcc, -1, v{b+8}"); A("s_sub_u32 s49, s49, 1"); A(f"s_cbranch_scc1 L_gx{n}")
        A(f"s_cbranch_vccz L_gx{n}")
        if sleep: A(f"s_sleep {sleep}")
        A(f"s_branch L_g{n}")
        A(f"L_gx{n}:")
        for r in range(4): A(f"v_add_f32 v{b+r}, v{b+r}, v{b+4+r}")
        for pat in ["row_ror:4","row_ror:8"]:
            if pat=="row_ror:4": pass
            for r in range(4): A(f"v_add_f32_dpp v{b+r}, v{b+r}, v{b+r} {pat} row_mask:0xf bank_mask:0xf")
        for r in range(1,4): A(f"v_mov_b32_dpp v{b}, v{b+r} quad_perm:[0,1,2,3] row_mask:0xf bank_mask:{1<<r:#x}")
        for sw in ["16","32"]:
            A(f"v_mov_b32 v{b+1}, v{b}"); A("s_nop 1"); A(f"v_permlane{sw}_swap_b32 v{b}, v{b+1}"); A(f"v_add_f32 v{b}, v{b}, v{b+1}")
    def tail_gemv():
        P=32
        A(f"v_mul_u32_u24 v{hLD}, {O_STR}, v2"); A("v_mov_b32 v30, 0")
        A(f"v_lshrrev_b32 v{hAD}, 4, v0"); A(f"v_lshl_add_u32 v{hAD}, v{hAD}, 3, v3"); A(f"v_lshlrev_b32 v{hAD}, 3, v{hAD}")
        A("s_sub_u32 s48, s3, 1"); A("s_lshl_b32 s48, s48, 8")
        A("s_waitcnt vmcnt(0) lgkmcnt(0)")
        STAMP(4)
        A("s_barrier")
        STAMP(5)
        for n in range(8): A(f"ds_read_b128 v[{P+4*n}:{P+4*n+3}], v{hLD} offset:{L_O+16*n}")
        A(f"ds_read_b32 v31, v30 offset:{L_SC}")
        BB=[12,16]
        def bp(t):
            if t%4==0: A(f"s_waitcnt lgkmcnt({8-t//4})")
            for r in range(4): A(f"v_and_b32 v{BB[t%2]+r}, v{P+t}, v{hM+r}")
        bp(0)
        for t in range(32):
            if t+1<32: bp(t+1)
            else: A("s_nop 0")
            A(f"v_mfma_f32_16x16x32_bf16 v[{hACC}:{hACC+3}], v[{WO+4*t}:{WO+4*t+3}], v[{BB[t%2]}:{BB[t%2]+3}], {'0' if t==0 else f'v[{hACC}:{hACC+3}]'}")
        A("s_waitcnt lgkmcnt(0)"); A("s_nop 6")
        combine(hACC,12)
        A("v_mul_f32 v12, v31, v12"); A("v_mul_f32 v13, v31, v13")
        A("v_min_u32 v12, -2, v12"); A("v_min_u32 v13, -2, v13")
        A("s_mov_b64 exec, s[60:61]")
        A(f"buffer_store_dwordx2 v[12:13], v{hAD}, s[36:39], s48 offen {SC}")
        A("s_mov_b64 exec, -1")

    A("L_buf:")
    if bprio: A(f"s_setprio {bprio}")
    k_setup()
    A("s_waitcnt lgkmcnt(0)")
    srd(84,6,7,"s35",1<<20)
    A("s_sub_u32 s47, s3, 4"); A("s_lshl_b32 s44, s47, 13")
    A("s_lshl_b32 s47, s47, 3"); A(f"v_add_u32 v{vSW}, s47, v{vSW}")
    bar0(True)
    for i in range(R):
        if i==N0:
            srd_slots()
            A("s_cmp_lg_u32 s3, 5"); A("s_cbranch_scc1 L_noclr")
            C("wave 5: clear own slot with the sentinel")
            A("v_lshlrev_b32 v1, 4, v0")
            A("s_cmp_ge_u32 s32, 28"); A("s_cselect_b32 s47, 0, -1")
            for k in range(4): A(f"v_mov_b32 v{32+k}, -1")
            for k in range(4): A(f"v_mov_b32 v{36+k}, s47")
            A("v_cmp_lt_u32 vcc, 47, v0"); A("s_nop 1")
            for k in range(4): A(f"v_cndmask_b32 v{40+k}, v36, v32, vcc")
            A(f"buffer_store_dwordx4 v[32:35], v1, s[36:39], 0 offen {SC}")
            A(f"buffer_store_dwordx4 v[32:35], v1, s[36:39], 0 offen offset:1024 {SC}")
            A(f"buffer_store_dwordx4 v[36:39], v1, s[36:39], 0 offen offset:2048 {SC}")
            A(f"buffer_store_dwordx4 v[40:43], v1, s[36:39], 0 offen offset:3072 {SC}")
            A("L_noclr:")
        if i>=N0: A(f"s_waitcnt vmcnt({N0-1})")
        r=slot(i)
        A(f"buffer_load_dwordx4 v[{r}:{r+3}], v{vK}, s[84:87], s44 offen offset:{128*(i%4)} {SF}")
        if i%4==3: A(f"s_add_u32 s44, s44, {4096 if i%8==3 else 4096+NB*8192}")
    bar0(False)
    STAMP(1)
    A("s_barrier")
    STAMP(2)
    if bprio: A("s_setprio 0")
    q_read()
    for c in range(R):
        A(f"s_waitcnt vmcnt({R-1-c})")
        pi=c//8
        k_consume(c, None if pi==0 else L_S+8*(NB+1)*(pi-1))
    k_flush(L_S+8*(NB+1)*(NP0-1))
    A("s_sub_u32 s47, s3, 4"); A("s_lshl_b32 s47, s47, 4")
    mx_publish("s47", vR)
    masks(hM,12,13)
    A("s_cmp_eq_u32 s3, 5"); A("s_cbranch_scc1 L_ffn0")
    if not wol: wo_issue()
    A("s_waitcnt lgkmcnt(0)")
    STAMP(3)
    A("s_barrier")
    if wol: wo_issue()
    A("s_cmp_eq_u32 s3, 7"); A("s_cbranch_scc1 L_tail")
    C("wave 6: softmax denominator, exchange (m,l) with partner, scale")
    A("v_mov_b32 v4, 0")
    for w in range(4): A(f"ds_read_b128 v[{64+4*w}:{64+4*w+3}], v4 offset:{L_MX+16*w}")
    A(f"v_mul_u32_u24 v5, {S_STR}, v2"); A("v_lshl_add_u32 v5, v3, 7, v5")
    for n in range(8): A(f"ds_read_b128 v[{32+4*n}:{32+4*n+3}], v5 offset:{L_S+16*n}")
    A("s_waitcnt lgkmcnt(8)")
    max12(6,64)
    A("v_mul_f32 v7, s34, v6"); A("v_sub_f32 v7, 0, v7")
    A("s_waitcnt lgkmcnt(0)")
    for k in range(32): A(f"v_fma_f32 v{32+k}, v{32+k}, s34, v7")
    for k in range(32): A(f"v_exp_f32 v{32+k}, v{32+k}")
    for st in (16,8,4,2,1):
        for k in range(st): A(f"v_add_f32 v{32+k}, v{32+k}, v{32+k+st}")
    wave_sum(32,33)
    C("v6=M v32=l")
    A("v_min_u32 v8, -2, v6"); A("v_min_u32 v9, -2, v32")
    A("s_mov_b64 exec, 1")
    A(f"buffer_store_dwordx2 v[8:9], off, s[36:39], 0 offset:3840 {SC}")
    A("s_mov_b64 exec, -1")
    cnt_wait(10)
    A("s_xor_b32 s47, s32, 1"); A("s_lshl_b32 s47, s47, 12"); A("s_mov_b32 s49, 400000")
    A("L_mlp:")
    A(f"buffer_load_dwordx2 v[10:11], off, s[40:43], s47 offset:3840 {SC}"); A("s_waitcnt vmcnt(0)")
    A("v_max_u32 v12, v10, v11"); A("v_cmp_eq_u32 vcc, -1, v12"); A("s_sub_u32 s49, s49, 1"); A("s_cbranch_scc1 L_mlx")
    A("s_cbranch_vccz L_mlx"); A("s_sleep 8"); A("s_branch L_mlp")
    A("L_mlx:")
    A("v_max_f32 v12, v6, v10")
    A("v_sub_f32 v13, v6, v12"); A("v_sub_f32 v14, v10, v12")
    A("v_mul_f32 v13, s34, v13"); A("v_mul_f32 v14, s34, v14")
    A("v_exp_f32 v13, v13"); A("v_exp_f32 v14, v14"); A("s_nop 0")
    A("v_mul_f32 v15, v13, v32"); A("v_fma_f32 v15, v14, v11, v15")
    A("v_rcp_f32 v15, v15"); A("s_nop 0"); A("v_mul_f32 v15, v15, v13")
    A(f"ds_write_b32 v4, v15 offset:{L_SC}")
    A("s_branch L_tail")

    A("L_help:")
    D0=32
    def layernorm(xr):
        for k in range(4):
            A(f"v_lshlrev_b32 v{8+2*k}, 16, v{xr+k}"); A(f"v_and_b32 v{9+2*k}, 0xffff0000, v{xr+k}")
        A("v_add_f32 v16, v8, v9"); A("v_add_f32 v17, v10, v11"); A("v_add_f32 v18, v12, v13"); A("v_add_f32 v19, v14, v15")
        A("v_add_f32 v16, v16, v17"); A("v_add_f32 v18, v18, v19"); A("v_add_f32 v16, v16, v18")
        wave_sum(16,17)
        A(f"v_mul_f32 v16, {f2u(1.0/448):#x}, v16")
        A("v_cmp_gt_u32 vcc, 56, v0"); A("v_cvt_pk_bf16_f32 v17, 0, v16"); A("s_nop 0")
        A("v_cndmask_b32 v16, 0, v16, vcc")
        A("v_sub_f32 v4, v8, v16"); A("v_mul_f32 v18, v4, v4")
        for k in range(1,8):
            A(f"v_sub_f32 v4, v{8+k}, v16"); A("v_fmac_f32 v18, v4, v4")
        wave_sum(18,19)
        A(f"v_mul_f32 v18, {f2u(1.0/448):#x}, v18")
        A("v_cvt_pk_bf16_f32 v18, 0, v18")
        A(f"v_add_f32 v18, {f2u(1e-5):#x}, v18")
        A("v_cvt_pk_bf16_f32 v18, 0, v18")
        A("v_sqrt_f32 v18, v18"); A("s_nop 0")
        A("v_cvt_pk_bf16_f32 v18, 0, v18")
        A("v_rcp_f32 v19, v18")
        for k in range(8):
            A(f"v_sub_f32 v{8+k}, v{8+k}, v17"); A(f"v_cvt_pk_bf16_f32 v{8+k}, 0, v{8+k}")
            A(f"v_mul_f32 v4, v{8+k}, v19"); A(f"v_fma_f32 v6, -v4, v18, v{8+k}"); A("v_fma_f32 v4, v6, v19, v4")
            A(f"v_cvt_pk_bf16_f32 v{8+k}, v4, v4")
    def gemv56(waits):
        XX=[4,8]; BB=[12,16]
        A("s_waitcnt lgkmcnt(0)")
        A(f"ds_read_b128 v[4:7], v{hLD}"); A(f"ds_read_b128 v[8:11], v{hLD} offset:16")
        def bp(t):
            if t%4==0: A(f"s_waitcnt lgkmcnt({1 if t//4+1<14 else 0})")
            for r in range(4): A(f"v_and_b32 v{BB[t%2]+r}, v{XX[(t//4)%2]+t%4}, v{hM+r}")
            if t%4==3 and t//4+2<14:
                x=XX[(t//4)%2]; A(f"ds_read_b128 v[{x}:{x+3}], v{hLD} offset:{16*(t//4+2)}")
        bp(0)
        for t in range(56):
            if t+1<56: bp(t+1)
            else: A("s_nop 0")
            if waits: A(f"s_waitcnt vmcnt({55-t})")
            A(f"v_mfma_f32_16x16x32_bf16 v[{hACC}:{hACC+3}], v[{D0+4*t}:{D0+4*t+3}], v[{BB[t%2]}:{BB[t%2]+3}], {'0' if t==0 else f'v[{hACC}:{hACC+3}]'}")
        A("s_nop 7")
        combine(hACC,12)
    C("waves 1..4: q column block w-1 over all 448 rows, tile order rotated by 4*rot tiles")
    A("v_lshlrev_b32 v1, 4, v0")
    A(f"v_lshlrev_b32 v{hAD}, 13, v2"); A(f"v_lshl_add_u32 v{hAD}, v3, 4, v{hAD}")
    A("s_mul_i32 s47, s30, 896")
    A("s_lshl_b32 s48, s31, 9"); A("s_sub_u32 s49, s3, 1"); A("s_lshl_b32 s49, s49, 7"); A("s_add_u32 s48, s48, s49"); A(f"s_sub_u32 s49, {448*8192}, s48")
    if rot:
        A("s_mul_i32 s51, s30, 7"); A("s_lshr_b32 s51, s51, 2")
    else: A("s_mov_b32 s51, 0")
    A("s_waitcnt lgkmcnt(0)")
    srd(88,4,5,"s47",896)
    srd(52,10,11,"s48","s49")
    A("buffer_load_dwordx4 v[4:7], v1, s[88:91], 0 offen")
    A("s_lshl_b32 s48, s51, 18")
    def wq_loads():
        for t in range(56):
            A(f"buffer_load_dwordx4 v[{D0+4*t}:{D0+4*t+3}], v{hAD}, s[52:55], s48 offen {QF}")
            A("s_add_u32 s48, s48, 65536")
            if rot and t%4==3 and t<55: A(f"s_cmp_ge_u32 s48, {56*65536}"); A("s_cselect_b32 s48, 0, s48")
    def ln_part(wait):
        masks(hM,12,13)
        A(f"s_waitcnt vmcnt({wait})")
        layernorm(4)
        C("X'[e][t - 4*rot mod 56]")
        A("s_sub_u32 s47, s3, 1"); A(f"s_mul_i32 s47, s47, {X_SZ}"); A(f"s_add_u32 s47, s47, {L_X}")
        A("s_lshl_b32 s50, s51, 2"); A("v_subrev_u32 v5, s50, v0"); A("v_add_u32 v6, 56, v5"); A("v_min_u32 v5, v5, v6")
        A("v_cmp_lt_u32 vcc, 55, v0"); A("s_nop 1"); A("v_cndmask_b32 v5, v5, v0, vcc")
        A("v_lshl_add_u32 v5, v5, 2, s47")
        for k in range(8): A(f"ds_write_b32 v5, v{8+k} offset:{k*X_STR}")
        A(f"v_mul_u32_u24 v{hLD}, {X_STR}, v2"); A(f"v_add_u32 v{hLD}, s47, v{hLD}")
    if stag:
        A("s_cmp_eq_u32 s28, 1"); A("s_cbranch_scc1 L_q1")
        wq_loads(); A("s_barrier"); ln_part(56); A("s_branch L_q2")
        A("L_q1:")
        ln_part(0); A("s_barrier"); wq_loads()
        A("L_q2:")
    else:
        wq_loads(); A("s_barrier"); ln_part(56)
    STAMP(6)
    gemv56(True)
    C("q -> bf16 -> LDS: addr = m*128 + (4*rowq+hi)*16 + j*2 (+32 for the second register)")
    A("v_cvt_pk_bf16_f32 v12, v12, v13")
    A("v_bfe_u32 v4, v0, 4, 1"); A("v_lshrrev_b32 v5, 5, v0"); A("v_lshl_add_u32 v4, v4, 2, v5"); A("v_lshlrev_b32 v4, 4, v4"); A("v_lshl_add_u32 v4, v3, 1, v4")
    A("s_sub_u32 s47, s3, 1"); A("s_lshl_b32 s47, s47, 7"); A("v_add_u32 v4, s47, v4")
    A("s_mov_b64 exec, s[60:61]")
    A(f"ds_write_b16 v4, v12 offset:{L_Q}"); A(f"ds_write_b16_d16_hi v4, v12 offset:{L_Q+32}")
    A("s_mov_b64 exec, -1")
    A("s_waitcnt lgkmcnt(0)")
    A("L_qdone:")
    STAMP(1)
    A("s_barrier")
    STAMP(2)
    if not wol: wo_issue()
    srd_slots()
    STAMP(3)
    A("s_barrier")
    if wol: wo_issue()
    A("L_tail:")
    tail_gemv()
    if not stamp: STAMP(6)
    stamp_out()
    A("s_endpgm")

    A("L_ffn0:")
    C("wave 5: the clear stores completed long ago (vmcnt(0) above): count them; then the FFN slice")
    A("v_mov_b32 v8, 1"); A("s_lshl_b32 s47, s30, 2")
    A("s_mov_b64 exec, 1")
    A(f"buffer_atomic_add v8, off, s[56:59], s47 {SC}")
    A("s_mov_b64 exec, -1")
    A("s_mul_i32 s47, s30, 896"); srd(88,4,5,"s47",896)
    A("buffer_load_dwordx4 v[96:99], v1, s[88:91], 0 offen")
    A("s_waitcnt vmcnt(0)")
    layernorm(96)
    A(f"v_lshlrev_b32 v5, 2, v0")
    for k in range(8): A(f"ds_write_b32 v5, v{8+k} offset:{L_X+4*X_SZ+k*X_STR}")
    A(f"v_mul_u32_u24 v{hLD}, {X_STR}, v2"); A(f"v_add_u32 v{hLD}, {L_X+4*X_SZ}, v{hLD}")
    if noffn: A("s_barrier")
    A("s_cmp_ge_u32 s32, 28"); A("s_cbranch_scc1 L_noffn")
    A("s_lshl_b32 s48, s32, 7"); A(f"s_sub_u32 s49, {448*3584}, s48"); srd(52,16,17,"s48","s49")
    A(f"v_mul_u32_u24 v{hAD}, 3584, v2"); A(f"v_lshl_add_u32 v{hAD}, v3, 4, v{hAD}")
    A("s_mov_b32 s48, 0")
    for t in range(56):
        if t>=NF: A(f"s_waitcnt vmcnt({NF-1})")
        A(f"buffer_load_dwordx4 v[{D0+4*t}:{D0+4*t+3}], v{hAD}, s[52:55], s48 offen {HF}")
        A(f"s_add_u32 s48, s48, {8*3584}")
    A("s_waitcnt vmcnt(0)")
    gemv56(False)
    C("w2 loads (tile t, block beta) -> D0 + 4*(7t+beta)")
    A(f"s_mul_i32 s48, s32, {64*896}"); A(f"s_sub_u32 s49, {1792*896}, s48"); srd(52,18,19,"s48","s49")
    A(f"v_mul_u32_u24 v{hAD}, 896, v2"); A(f"v_lshl_add_u32 v{hAD}, v3, 4, v{hAD}")
    A("s_mov_b32 s48, 0")
    for t in range(8):
        for be in range(7):
            i=7*t+be
            if i>=NF: A(f"s_waitcnt vmcnt({NF-1})")
            A(f"buffer_load_dwordx4 v[{D0+4*i}:{D0+4*i+3}], v{hAD}, s[52:55], s48 offen offset:{128*be} {HF}")
        A("s_add_u32 s48, s48, 7168")
    C("h -> bf16 -> silu -> bf16 (dup) -> LDS H[g=j][T=4*rowq+hi+2s]")
    for k in (12,13):
        A(f"v_cvt_pk_bf16_f32 v{k}, 0, v{k}")
        A(f"v_mul_f32 v4, {f2u(-math.log2(math.e)):#x}, v{k}"); A("v_exp_f32 v4, v4"); A("s_nop 0")
        A("v_add_f32 v4, 1.0, v4"); A("v_rcp_f32 v4, v4"); A("s_nop 0")
        A(f"v_mul_f32 v{k}, v{k}, v4"); A(f"v_cvt_pk_bf16_f32 v{k}, v{k}, v{k}")
    A("v_bfe_u32 v4, v0, 4, 1"); A("v_lshrrev_b32 v5, 5, v0"); A("v_lshl_add_u32 v4, v4, 2, v5"); A("v_lshlrev_b32 v4, 2, v4")
    A(f"v_mul_u32_u24 v5, {H_STR}, v3"); A("v_add_u32 v4, v4, v5")
    A("s_mov_b64 exec, s[60:61]")
    A(f"ds_write_b32 v4, v12 offset:{L_H}"); A(f"ds_write_b32 v4, v13 offset:{L_H+8}")
    A("s_mov_b64 exec, -1")
    A(f"v_mul_u32_u24 v5, {H_STR}, v2")
    A("s_waitcnt lgkmcnt(0)")
    A(f"ds_read_b128 v[4:7], v5 offset:{L_H}"); A(f"ds_read_b128 v[8:11], v5 offset:{L_H+16}")
    A("s_waitcnt vmcnt(0) lgkmcnt(0)")
    A(f"v_lshrrev_b32 v{hAD}, 4, v0"); A(f"v_lshl_add_u32 v{hAD}, v{hAD}, 3, v3"); A(f"v_lshlrev_b32 v{hAD}, 3, v{hAD}")
    for be in range(7):
        BB=[12,16]
        for t in range(8):
            for r in range(4): A(f"v_and_b32 v{BB[t%2]+r}, v{4+t}, v{hM+r}")
            A("s_nop 1")
            i=7*t+be
            A(f"v_mfma_f32_16x16x32_bf16 v[{hACC}:{hACC+3}], v[{D0+4*i}:{D0+4*i+3}], v[{BB[t%2]}:{BB[t%2]+3}], {'0' if t==0 else f'v[{hACC}:{hACC+3}]'}")
        A("s_nop 7")
        combine(hACC,30)
        A("v_min_u32 v30, -2, v30"); A("v_min_u32 v31, -2, v31")
        A("s_mov_b64 exec, s[60:61]")
        A(f"buffer_store_dwordx2 v[30:31], v{hAD}, s[36:39], 0 offen offset:{2048+256*be} {SC}")
        A("s_mov_b64 exec, -1")
    A("L_noffn:")
    STAMP(3)
    A("s_waitcnt lgkmcnt(0)")
    if not noffn: A("s_barrier")
    wo_issue()
    A("s_cmp_ge_u32 s32, 28"); A("s_cbranch_scc1 L_tail")
    C("consumer setup: gather address v64, column byte offset v65, x value v66, FFN value v67")
    A("v_lshrrev_b32 v64, 2, v0"); A("v_lshlrev_b32 v64, 12, v64"); A("v_and_b32 v4, 3, v0"); A("v_lshl_add_u32 v64, v4, 4, v64")
    A("s_lshl_b32 s47, s32, 6"); A("v_add_u32 v64, s47, v64")
    C("col = 64*(k>>2) + 32*(k&1) + 8*((k>>1)&1) + 16*(rho&1) + 2*qd + (rho>>1), rho=(l>>2)&3, qd=l&3")
    A("s_lshr_b32 s47, s32, 2"); A("s_lshl_b32 s47, s47, 6"); A("s_and_b32 s48, s32, 1"); A("s_lshl_b32 s48, s48, 5"); A("s_add_u32 s47, s47, s48")
    A("s_bfe_u32 s48, s32, 0x10001"); A("s_lshl_b32 s48, s48, 3"); A("s_add_u32 s47, s47, s48")
    A("v_bfe_u32 v5, v0, 2, 1"); A("v_lshlrev_b32 v5, 4, v5"); A("v_lshl_add_u32 v5, v4, 1, v5"); A("v_bfe_u32 v6, v0, 3, 1"); A("v_add3_u32 v65, v5, v6, s47")
    A("v_lshlrev_b32 v65, 1, v65")
    A("buffer_load_ushort v66, v65, s[88:91], 0 offen")
    cnt_wait(4)
    gather(2048, 68, 64, 8)
    A("v_cvt_pk_bf16_f32 v67, 0, v68"); A("v_lshlrev_b32 v66, 16, v66")
    A("s_mul_i32 s47, s30, 896"); srd(92,20,21,"s47",896)
    tail_gemv()
    gather(0, 68, 64, 0)
    A("v_cvt_pk_bf16_f32 v68, 0, v68"); A("v_add_f32 v68, v66, v68"); A("v_cvt_pk_bf16_f32 v68, 0, v68"); A("v_add_f32 v68, v68, v67")
    A("v_cvt_pk_bf16_f32 v68, v68, v68")
    A("s_mov_b64 exec, 0xffff")
    A("buffer_store_short v68, v65, s[92:95], 0 offen")
    A("s_mov_b64 exec, -1")
    STAMP(6)
    stamp_out(role="f")
    A("L_end:")
    A("s_endpgm")
    body="\n".join(("" if (l.endswith(":") or l.startswith(".")) else "    ")+l for l in L)+"\n"
    ldsz=lds if lds else L_END
    head=HEADER+f"; @launch grid=(256,1,1) block=(512,1,1) lds={ldsz}\n"
    return head+body+kd(NAME,256,102,256), ldsz

if __name__=="__main__":
    kw=eval("dict(%s)"%(sys.argv[2] if len(sys.argv)>2 else ""))
    t,ldsz=gen(**kw)
    out=sys.argv[1]
    if out.endswith(".s"): open(out,"w").write(t)
    else:
        assemble(t+meta([(NAME,256,102,512)]), out); print(f"work/{out}:{NAME},256,512,{ldsz}")
```

```python
import sys, math
from common import *

NAME="parallel_sum__mha_block_cached__dense_activation_silu__decode_kernel"
HEADER=open("parallel_sum__mha_block_cached__dense_activation_silu__decode.s.ref").read().split("; Override launch")[0]

L_Q=0; L_MX=512; L_SC=576; L_S=1024; S_STR=1040; L_O=L_S+8*S_STR; O_STR=144
L_X=L_O+8*O_STR; X_STR=272; X_SZ=8*X_STR; L_H=L_X+5*X_SZ; H_STR=48; L_X2=L_H+8*H_STR; X2_STR=80; X2_SZ=8*X2_STR; L_CNT=580; L_END=L_X2
CEXP=math.log2(math.e)/16.0
import struct
def f2u(f): return struct.unpack("<I",struct.pack("<f",f))[0]

def gen(N=22, N0=8, R=48, NF=4, NW=2, stamp=False, catchup=True, SC="sc1", lds=None, wol=0, noffn=0, HF="nt", QF="nt", ch=2, bprio=3, qprio=0, dbg=0, calib=0, SF="nt", HB=0, stag=1, rot=1):
    L=[]; A=L.append
    def C(s): A("    ; "+s)
    A('.amdgcn_target "amdgcn-amd-amdhsa--gfx950"'); A(".text"); A(f".globl {NAME}"); A(".p2align 8"); A(f".type {NAME},@function"); A(f"{NAME}:")
    nst=[0]; lbl0=[0]
    def STAMP(i):
        if stamp or dbg or (calib and i==0): A(f"s_memrealtime s[{70+2*i}:{71+2*i}]")
    A("s_cmp_ge_u32 s2, 256"); A("s_cbranch_scc1 L_end")
    STAMP(0)
    A("s_load_dwordx16 s[4:19], s[0:1], 0")
    A("s_load_dwordx4 s[20:23], s[0:1], 64")
    A("s_load_dwordx2 s[24:25], s[0:1], 80")
    A("v_lshrrev_b32 v1, 6, v0"); A("v_and_b32 v0, 63, v0"); A("v_readfirstlane_b32 s3, v1")
    A("s_and_b32 s26, s2, 7"); A("s_lshr_b32 s27, s2, 3"); A("s_and_b32 s28, s27, 1")
    if HB==0:
        A("s_bfe_u32 s29, s27, 0x10001"); A("s_lshr_b32 s30, s27, 2")
        A("s_lshl_b32 s29, s29, 3"); A("s_add_u32 s31, s26, s29")
    else:
        A(f"s_bfe_u32 s29, s27, {(HB<<16)|1:#x}")
        A(f"s_lshr_b32 s30, s27, {1+HB}")
        A(f"s_and_b32 s31, s26, {(1<<(4-HB))-1}"); A(f"s_lshl_b32 s31, s31, {HB}"); A("s_add_u32 s31, s31, s29")
        A(f"s_lshr_b32 s29, s26, {4-HB}"); A(f"s_lshl_b32 s29, s29, {4-HB}"); A("s_add_u32 s30, s30, s29")
    A("s_lshl_b32 s32, s31, 1"); A("s_add_u32 s32, s32, s28")
    A("s_lshl_b32 s33, s30, 5"); A("s_add_u32 s33, s33, s32")
    C("s30=b s31=h s32=pidx s33=gidx ; v2=g v3=e")
    A("v_lshrrev_b32 v2, 3, v0"); A("v_and_b32 v3, 7, v0")
    A(f"s_mov_b32 s34, {f2u(CEXP):#x}")
    A("s_mov_b32 s60, 0x00ff00ff"); A("s_mov_b32 s61, 0x00ff00ff")
    A("s_cmp_eq_u32 s3, 0"); A("s_cbranch_scc1 L_stream")
    A("s_cmp_ge_u32 s3, 5"); A("s_cbranch_scc1 L_buf")
    A("s_branch L_help")

    def srd(d, lo, hi, off_sgpr, size):
        if off_sgpr is None:
            A(f"s_mov_b32 s{d}, s{lo}"); A(f"s_mov_b32 s{d+1}, s{hi}")
        else:
            A(f"s_add_u32 s{d}, s{lo}, {off_sgpr}"); A(f"s_addc_u32 s{d+1}, s{hi}, 0")
        A(f"s_mov_b32 s{d+2}, {size}"); A(f"s_mov_b32 s{d+3}, 0x20000")
    def masks(base,t0,t1):
        A(f"v_and_b32 v{t0}, 1, v3"); A(f"v_lshlrev_b32 v{t0}, 4, v{t0}"); A(f"v_mov_b32 v{t1}, 0xffff"); A(f"v_lshlrev_b32 v{t0}, v{t0}, v{t1}")
        A(f"v_lshrrev_b32 v{t1}, 1, v3")
        for r in range(4):
            A(f"v_cmp_eq_u32 vcc, {r}, v{t1}"); A("s_nop 1"); A(f"v_cndmask_b32 v{base+r}, 0, v{t0}, vcc")
    def stamp_out(tmp=4, role=""):
        if dbg:
            A("s_waitcnt vmcnt(0) lgkmcnt(0)")
            A("s_memrealtime s[82:83]")
            A("s_mov_b64 exec, 1")
            srd(64,22,23,None,256)
            A("s_waitcnt lgkmcnt(0)")
            def um(word, sreg, inv=False):
                if inv: A(f"s_not_b32 s68, s{sreg}"); A(f"v_mov_b32 v{tmp}, s68")
                else: A(f"v_mov_b32 v{tmp}, s{sreg}")
                A(f"buffer_atomic_umax v{tmp}, off, s[64:67], 0 offset:{4*word} sc1"); A("s_waitcnt vmcnt(0)")
            if role=="s":
                um(1,70,True); um(7,70); um(3,78); um(5,74); um(6,76); um(9,78,True); um(10,74,True)
            if role=="f":
                um(2,82)
            return
        if not stamp: return
        A("s_waitcnt lgkmcnt(0)")
        A("s_mov_b64 exec, 1")
        srd(64,24,25,None,0x40000000)
        A("s_lshl_b32 s68, s2, 3"); A("s_add_u32 s68, s68, s3"); A("s_lshl_b32 s68, s68, 5"); A("s_add_u32 s68, s68, 0x20000000")
        A("s_getreg_b32 s69, hwreg(HW_REG_XCC_ID)")
        for i in range(7): A(f"v_mov_b32 v{tmp+i}, s{70+2*i}")
        A(f"v_mov_b32 v{tmp+7}, s69")
        A(f"buffer_store_dwordx4 v[{tmp}:{tmp+3}], off, s[64:67], s68")
        A(f"buffer_store_dwordx4 v[{tmp+4}:{tmp+7}], off, s[64:67], s68 offset:16")
        A("s_waitcnt vmcnt(0)")

    RING=256-4*R
    vK=4; vV=5; vSW=6; vSR=7; vMX=8; vR=9; vR2=10; vA=[11,12]; vB=[13,14]; vQ=16
    def slot(i): return RING+4*(i%R)
    def k_consume(c, dsoff):
        p=c%8; m=p%4; acc=vA if p<4 else vB; r=slot(c)
        for k in range(4):
            if ch==2:
                src2 = "0" if (m==0 and k<2) else f"v{acc[k%2]}"
                A(f"v_dot2_f32_bf16 v{acc[k%2]}, v{r+k}, v{vQ+4*m+k}, {src2}")
            elif ch==4:
                a4=(acc+([32,33] if p<4 else [34,35]))[k]
                if m==0: A(f"v_dot2_f32_bf16 v{a4}, v{r+k}, v{vQ+4*m+k}, 0")
                else: A(f"v_dot2c_f32_bf16 v{a4}, v{r+k}, v{vQ+4*m+k}")
        k_post(p, dsoff)
    def k_post(p, dsoff):
        prev = dsoff is not None
        if p==0 and prev:
            if ch==4: A(f"v_add_f32 v{vB[0]}, v{vB[0]}, v34"); A(f"v_add_f32 v{vB[1]}, v{vB[1]}, v35")
            A(f"v_add_f32 v{vB[0]}, v{vB[0]}, v{vB[1]}")
        if p==1 and prev: A(f"v_add_f32_dpp v{vR}, v{vB[0]}, v{vB[0]} row_half_mirror row_mask:0xf bank_mask:0xa")
        if p==2 and prev: A(f"v_add_f32_dpp v{vR}, v{vR}, v{vR} quad_perm:[1,0,3,2] row_mask:0xf bank_mask:0xf")
        if p==3 and prev: A(f"v_add_f32_dpp v{vR}, v{vR}, v{vR} quad_perm:[2,3,0,1] row_mask:0xf bank_mask:0xf")
        if p==4:
            if prev: A(f"v_cvt_pk_bf16_f32 v{vR2}, 0, v{vR}")
            if ch==4: A(f"v_add_f32 v{vA[0]}, v{vA[0]}, v32"); A(f"v_add_f32 v{vA[1]}, v{vA[1]}, v33")
            A(f"v_add_f32 v{vA[0]}, v{vA[0]}, v{vA[1]}")
        if p==5:
            if prev:
                A(f"v_max_f32 v{vMX}, v{vMX}, v{vR2}"); A(f"ds_write_b32 v{vSW}, v{vR2} offset:{dsoff}")
            A(f"v_add_f32_dpp v{vR}, v{vA[0]}, v{vA[0]} row_half_mirror row_mask:0xf bank_mask:0x5")
    def k_flush(dsoff):
        A("s_nop 2")
        if ch==4: A(f"v_add_f32 v{vB[0]}, v{vB[0]}, v34"); A(f"v_add_f32 v{vB[1]}, v{vB[1]}, v35")
        A(f"v_add_f32 v{vB[0]}, v{vB[0]}, v{vB[1]}"); A("s_nop 1")
        A(f"v_add_f32_dpp v{vR}, v{vB[0]}, v{vB[0]} row_half_mirror row_mask:0xf bank_mask:0xa"); A("s_nop 1")
        A(f"v_add_f32_dpp v{vR}, v{vR}, v{vR} quad_perm:[1,0,3,2] row_mask:0xf bank_mask:0xf"); A("s_nop 1")
        A(f"v_add_f32_dpp v{vR}, v{vR}, v{vR} quad_perm:[2,3,0,1] row_mask:0xf bank_mask:0xf")
        A(f"v_cvt_pk_bf16_f32 v{vR2}, 0, v{vR}")
        A(f"v_max_f32 v{vMX}, v{vMX}, v{vR2}"); A(f"ds_write_b32 v{vSW}, v{vR2} offset:{dsoff}")
    def mx_publish(w, tmp):
        A("s_nop 1")
        A(f"v_max_f32_dpp v{vMX}, v{vMX}, v{vMX} row_ror:4 row_mask:0xf bank_mask:0xf"); A("s_nop 1")
        A(f"v_max_f32_dpp v{vMX}, v{vMX}, v{vMX} row_ror:8 row_mask:0xf bank_mask:0xf")
        A(f"v_lshrrev_b32 v{tmp}, 4, v0"); A(f"v_lshlrev_b32 v{tmp}, 2, v{tmp}")
        if isinstance(w,int): A(f"ds_write_b32 v{tmp}, v{vMX} offset:{L_MX+16*w}")
        else:
            A(f"v_add_u32 v{tmp}, {w}, v{tmp}"); A(f"ds_write_b32 v{tmp}, v{vMX} offset:{L_MX}")
    def k_setup():
        A(f"v_lshlrev_b32 v{vK}, 9, v2"); A(f"v_lshl_add_u32 v{vK}, v3, 4, v{vK}")
        A(f"v_mul_u32_u24 v{vSW}, {S_STR}, v2"); A(f"v_lshrrev_b32 v{vSR}, 2, v3"); A(f"v_lshl_add_u32 v{vSW}, v{vSR}, 2, v{vSW}")
        A(f"v_mov_b32 v{vMX}, 0xff800000")
        A("s_lshl_b32 s35, s33, 20")
    def q_read():
        A(f"v_lshlrev_b32 v{vR}, 4, v3")
        for m in range(4): A(f"ds_read_b128 v[{vQ+4*m}:{vQ+4*m+3}], v{vR} offset:{L_Q+128*m}")
        A("s_waitcnt lgkmcnt(0)")
    NP0=R//8
    assert R%8==0
    NB=3
    NKS=1024-NB*R
    NTOT=NKS+1024

    A("L_stream:")
    A("s_setprio 3")
    k_setup()
    A(f"v_lshrrev_b32 v{vV}, 4, v0"); A(f"v_lshlrev_b32 v{vV}, 10, v{vV}"); A(f"v_and_b32 v{vSR}, 15, v0"); A(f"v_lshl_add_u32 v{vV}, v{vSR}, 4, v{vV}")
    A("s_waitcnt lgkmcnt(0)")
    srd(36,6,7,"s35",1<<20); srd(40,8,9,"s35",1<<20)
    A("s_mov_b32 s44, 0"); A("s_mov_b32 s45, 0")
    def issue(i):
        r=slot(i)
        if i<NKS:
            A(f"buffer_load_dwordx4 v[{r}:{r+3}], v{vK}, s[36:39], s44 offen offset:{128*(i%4)} {SF}")
            if i%4==3:
                inc=4096
                if i<R and i%8==7: inc=4096+NB*8192
                A(f"s_add_u32 s44, s44, {inc}")
        elif i<NTOT:
            u=i-NKS
            A(f"buffer_load_dwordx4 v[{r}:{r+3}], v{vV}, s[40:43], s45 offen offset:{256*(u%4)} {SF}")
            if u%4==3: A("s_add_u32 s45, s45, 4096")
    DK=R-1
    def bar0(first):
        if not stag:
            if first: A("s_barrier")
            return
        lbl0[0]+=1
        A(f"s_cmp_eq_u32 s28, {1 if first else 0}"); A(f"s_cbranch_scc1 L_b0_{lbl0[0]}"); A("s_barrier"); A(f"L_b0_{lbl0[0]}:")
    bar0(True)
    for i in range(DK):
        if i>=N0: A(f"s_waitcnt vmcnt({N0-1})")
        issue(i)
    bar0(False)
    STAMP(1)
    A("s_barrier")
    STAMP(2)
    q_read()
    def pair_T(pi):
        return 2*((NB+1)*pi) if pi<NP0 else 2*((NB+1)*NP0+(pi-NP0))
    def kstep(c, dsbase):
        I=c+DK
        A(f"s_waitcnt vmcnt({min(N-1,I-c-1)})")
        issue(I)
        pi=c//8
        k_consume(c, None if pi==0 else L_S+4*pair_T(pi-1)-dsbase)
    for c in range(0,2*R): kstep(c,0)
    nK=(NKS-DK-2*R)//R
    A(f"s_mov_b32 s46, {nK}")
    A("L_kloop:")
    for c in range(2*R,3*R): kstep(c,0)
    A(f"v_add_u32 v{vSW}, {R}, v{vSW}")
    A("s_sub_u32 s46, s46, 1"); A("s_cmp_lg_u32 s46, 0"); A("s_cbranch_scc1 L_kloop")
    dsb=nK*R
    for c in range((2+nK)*R,NKS): kstep(c,dsb)
    k_flush(L_S+4*pair_T(NKS//8-1)-dsb)
    mx_publish(0, vR)
    vM=[12,13,14,15]; vNM=11; vT=9; vP=10; vACC=16; vBB=[32,36]; vSS=[40,44,48]; vTM=52
    assert vTM+12<=RING
    masks(vM[0], vTM, vTM+1)
    A(f"v_mul_u32_u24 v{vSR}, {S_STR}, v2")
    A(f"v_mov_b32 v{vT}, 0")
    A("s_waitcnt lgkmcnt(0)")
    STAMP(3)
    A("s_barrier")
    for w in range(4): A(f"ds_read_b128 v[{48+4*w}:{48+4*w+3}], v{vT} offset:{L_MX+16*w}")
    A(f"ds_read_b128 v[{vSS[0]}:{vSS[0]+3}], v{vSR} offset:{L_S}")
    inext=[NKS+DK]
    A(f"s_waitcnt vmcnt({N-1})")
    issue(inext[0]); inext[0]+=1
    for r in range(16): A(f"v_mov_b32 v{vACC+r}, 0")
    A("s_waitcnt lgkmcnt(0)")
    def max12(dst,b):
        A(f"v_max3_f32 v{dst}, v{b}, v{b+1}, v{b+2}")
        for k in range(3,15,2): A(f"v_max3_f32 v{dst}, v{dst}, v{b+k}, v{b+k+1}")
        A(f"v_max_f32 v{dst}, v{dst}, v{b+15}")
    max12(vNM,48)
    A(f"v_mul_f32 v{vNM}, s34, v{vNM}"); A(f"v_sub_f32 v{vNM}, 0, v{vNM}")
    def bprep(tile, part):
        s=vSS[(tile//4)%3]+tile%4; b=vBB[tile%2]
        if part==0: A(f"v_fma_f32 v{vT}, v{s}, s34, v{vNM}")
        if part==1: A(f"v_exp_f32 v{vT}, v{vT}")
        if part==2: A(f"v_cvt_pk_bf16_f32 v{vP}, v{vT}, v{vT}"); A(f"v_and_b32 v{b}, v{vP}, v{vM[0]}")
        if part==3:
            for r in range(1,4): A(f"v_and_b32 v{b+r}, v{vP}, v{vM[r]}")
    bprep(0,0); bprep(0,1); A("s_nop 0"); bprep(0,2); bprep(0,3); A("s_nop 1")
    def vconsume(u, srbase, mark):
        tile=u//4; q=u%4; r=slot(NKS+u); b=vBB[tile%2]
        if q==0 and tile%4==0 and tile+4<256:
            nb=vSS[(tile//4+1)%3]
            A(f"ds_read_b128 v[{nb}:{nb+3}], v{vSR} offset:{L_S+4*(tile+4)-srbase}")
        if q==0 and tile%4==3 and tile+1<256: A("s_waitcnt lgkmcnt(0)")
        a=vACC+4*q
        if q==0 and len(L)-mark<2: A(f"s_nop {1-(len(L)-mark)}")
        A(f"v_mfma_f32_16x16x32_bf16 v[{a}:{a+3}], v[{r}:{r+3}], v[{b}:{b+3}], v[{a}:{a+3}]")
        if tile+1<256: bprep(tile+1,q)
    def vstep(u, srbase, do_issue=True):
        c=NKS+u; I=inext[0]; mark=len(L)
        if do_issue and I<NTOT:
            A(f"s_waitcnt vmcnt({min(N-1,I-c-1)})")
            assert I-R < c
            issue(I); inext[0]+=1
        else:
            k=I-c-1
            if k<N: A(f"s_waitcnt vmcnt({k})")
        vconsume(u,srbase,mark)
    u=0
    DV=N if catchup else R-1
    first=True
    while True:
        D=inext[0]-(NKS+u)
        if D<=DV and u%R==0: break
        if D>DV:
            vstep(u,0,do_issue=False); u+=1
            D=inext[0]-(NKS+u)
            if D>DV or u%R!=0:
                if D>=DV: vstep(u,0,True); u+=1
        else:
            vstep(u,0,True); u+=1
    D=inext[0]-(NKS+u)
    assert D==DV and u%R==0 and (R//16)%3==0 and R%16==0, (D,DV,u)
    u0=u
    nV=(1024-DV-u0)//R
    while u0+nV*R+16>1024: nV-=1
    A(f"s_mov_b32 s46, {nV}")
    A("L_vloop:")
    for uu in range(u0,u0+R): vstep(uu,0,True)
    A(f"v_add_u32 v{vSR}, {R}, v{vSR}")
    A("s_sub_u32 s46, s46, 1"); A("s_cmp_lg_u32 s46, 0"); A("s_cbranch_scc1 L_vloop")
    inext[0]+=(nV-1)*R
    for uu in range(u0+nV*R,1024): vstep(uu,nV*R,True)
    STAMP(4)
    A(f"v_lshrrev_b32 v{vT}, 4, v0"); A(f"v_lshlrev_b32 v{vT}, 4, v{vT}"); A(f"v_mul_u32_u24 v{vP}, {O_STR}, v3"); A(f"v_add_u32 v{vT}, v{vT}, v{vP}")
    A("s_nop 3")
    for hf in range(2):
        for r in range(4):
            A(f"v_add_f32_dpp v{vTM+4*hf+r}, v{vACC+8+4*hf+r}, v{vACC+4*hf+r} row_ror:8 row_mask:0xf bank_mask:0xf")
    for k in range(8): A(f"v_cvt_pk_bf16_f32 v{vTM+k}, v{vTM+k}, v{vTM+k}")
    A("s_mov_b64 exec, s[60:61]")
    A(f"ds_write_b128 v{vT}, v[{vTM}:{vTM+3}] offset:{L_O}")
    A(f"ds_write_b128 v{vT}, v[{vTM+4}:{vTM+7}] offset:{L_O+64}")
    A("s_waitcnt lgkmcnt(0)")
    A("s_barrier")
    STAMP(5)
    if calib:
        A("L_cal:"); A("s_memrealtime s[72:73]"); A("s_waitcnt lgkmcnt(0)"); A("s_sub_u32 s72, s72, s70"); A(f"s_cmp_lt_u32 s72, {calib}"); A("s_cbranch_scc1 L_cal")
    stamp_out(role="s")
    A("s_endpgm")

    hM=20
    hACC=24
    hAD=28; hLD=29
    WO=128
    def wo_issue():
        C("wo block loads, c = wave-1")
        A("s_mul_i32 s47, s31, 229376"); A("s_sub_u32 s48, s3, 1"); A("s_lshl_b32 s48, s48, 7"); A("s_add_u32 s47, s47, s48")
        A(f"s_sub_u32 s48, {4096*896}, s47")
        srd(52,12,13,"s47","s48")
        A(f"v_mul_u32_u24 v{hAD}, 896, v2"); A(f"v_lshl_add_u32 v{hAD}, v3, 4, v{hAD}")
        A("s_mov_b32 s47, 0")
        for t in range(32):
            if t>=NW: A(f"s_waitcnt vmcnt({NW-1})")
            A(f"buffer_load_dwordx4 v[{WO+4*t}:{WO+4*t+3}], v{hAD}, s[52:55], s47 offen {HF}")
            A("s_add_u32 s47, s47, 7168")
    def combine(acc, dst):
        A(f"v_permlane32_swap_b32 v{acc}, v{acc+1}"); A(f"v_permlane32_swap_b32 v{acc+2}, v{acc+3}")
        A("s_nop 1")
        A(f"v_add_f32_dpp v{dst}, v{acc+1}, v{acc} row_ror:8 row_mask:0xf bank_mask:0xf")
        A(f"v_add_f32_dpp v{dst+1}, v{acc+3}, v{acc+2} row_ror:8 row_mask:0xf bank_mask:0xf")
    def wave_sum(v,t,op="add"):
        for pat in ["quad_perm:[1,0,3,2]","quad_perm:[2,3,0,1]","row_half_mirror","row_mirror"]:
            A("s_nop 1"); A(f"v_{op}_f32_dpp v{v}, v{v}, v{v} {pat} row_mask:0xf bank_mask:0xf")
        for sw in ["16","32"]:
            A(f"v_mov_b32 v{t}, v{v}"); A("s_nop 1"); A(f"v_permlane{sw}_swap_b32 v{v}, v{t}"); A(f"v_{op}_f32 v{v}, v{v}, v{t}")
    def srd_slots():
        A("s_lshl_b32 s47, s33, 12"); srd(36,24,25,"s47",4096)
        A("s_lshl_b32 s47, s30, 17"); srd(40,24,25,"s47",131072)
        srd(56,22,23,None,256)
    lbl=[0]
    def cnt_wait(t):
        lbl[0]+=1; n=lbl[0]
        A("s_lshl_b32 s47, s30, 2"); A("s_mov_b32 s49, 400000")
        A(f"L_cw{n}:")
        A(f"buffer_load_dword v{t}, off, s[56:59], s47 {SC}"); A("s_waitcnt vmcnt(0)")
        A(f"v_cmp_gt_u32 vcc, 32, v{t}"); A("s_sub_u32 s49, s49, 1"); A("s_cbranch_scc1 L_cwx%d"%n)
        A(f"s_cbranch_vccz L_cwx{n}"); A("s_sleep 8"); A(f"s_branch L_cw{n}")
        A(f"L_cwx{n}:")
    def arrive(t):
        lbl[0]+=1; n=lbl[0]
        A(f"v_mov_b32 v{t}, 0"); A(f"v_mov_b32 v{t+1}, 1")
        A("s_mov_b64 exec, 1")
        A("s_waitcnt vmcnt(0)")
        A(f"ds_add_rtn_u32 v{t}, v{t}, v{t+1} offset:{L_CNT}")
        A("s_lshl_b32 s47, s31, 2")
        A("s_waitcnt lgkmcnt(0)")
        A(f"v_cmp_eq_u32 vcc, 3, v{t}"); A("s_nop 1")
        A(f"s_cbranch_vccz L_ar{n}")
        A(f"buffer_atomic_add v{t+1}, off, s[56:59], s47 offset:128 {SC}")
        A(f"L_ar{n}:")
        A("s_mov_b64 exec, -1")
    def gather(off, b, vad, sleep):
        lbl[0]+=1; n=lbl[0]
        A("s_mov_b32 s49, 400000"); A("s_mov_b32 s47, 65536")
        A(f"L_g{n}:")
        A(f"buffer_load_dwordx4 v[{b}:{b+3}], v{vad}, s[40:43], 0 offen offset:{off} {SC}")
        A(f"buffer_load_dwordx4 v[{b+4}:{b+7}], v{vad}, s[40:43], s47 offen offset:{off} {SC}")
        A("s_waitcnt vmcnt(0)")
        A(f"v_max3_u32 v{b+8}, v{b}, v{b+1}, v{b+2}"); A(f"v_max3_u32 v{b+9}, v{b+3}, v{b+4}, v{b+5}")
        A(f"v_max3_u32 v{b+8}, v{b+8}, v{b+6}, v{b+7}"); A(f"v_max_u32 v{b+8}, v{b+8}, v{b+9}")
        A(f"v_cmp_eq_u32 vcc, -1, v{b+8}"); A("s_sub_u32 s49, s49, 1"); A(f"s_cbranch_scc1 L_gx{n}")
        A(f"s_cbranch_vccz L_gx{n}")
        if sleep: A(f"s_sleep {sleep}")
        A(f"s_branch L_g{n}")
        A(f"L_gx{n}:")
        for r in range(4): A(f"v_add_f32 v{b+r}, v{b+r}, v{b+4+r}")
        for pat in ["row_ror:4","row_ror:8"]:
            if pat=="row_ror:4": pass
            for r in range(4): A(f"v_add_f32_dpp v{b+r}, v{b+r}, v{b+r} {pat} row_mask:0xf bank_mask:0xf")
        for r in range(1,4): A(f"v_mov_b32_dpp v{b}, v{b+r} quad_perm:[0,1,2,3] row_mask:0xf bank_mask:{1<<r:#x}")
        for sw in ["16","32"]:
            A(f"v_mov_b32 v{b+1}, v{b}"); A("s_nop 1"); A(f"v_permlane{sw}_swap_b32 v{b}, v{b+1}"); A(f"v_add_f32 v{b}, v{b}, v{b+1}")
    def tail_gemv():
        P=32
        A(f"v_mul_u32_u24 v{hLD}, {O_STR}, v2"); A("v_mov_b32 v30, 0")
        A(f"v_lshrrev_b32 v{hAD}, 4, v0"); A(f"v_lshl_add_u32 v{hAD}, v{hAD}, 3, v3"); A(f"v_lshlrev_b32 v{hAD}, 3, v{hAD}")
        A("s_sub_u32 s48, s3, 1"); A("s_lshl_b32 s48, s48, 8")
        A("s_waitcnt vmcnt(0) lgkmcnt(0)")
        STAMP(4)
        A("s_barrier")
        STAMP(5)
        for n in range(8): A(f"ds_read_b128 v[{P+4*n}:{P+4*n+3}], v{hLD} offset:{L_O+16*n}")
        A(f"ds_read_b32 v31, v30 offset:{L_SC}")
        BB=[12,16]
        def bp(t):
            if t%4==0: A(f"s_waitcnt lgkmcnt({8-t//4})")
            for r in range(4): A(f"v_and_b32 v{BB[t%2]+r}, v{P+t}, v{hM+r}")
        bp(0)
        for t in range(32):
            if t+1<32: bp(t+1)
            else: A("s_nop 0")
            A(f"v_mfma_f32_16x16x32_bf16 v[{hACC}:{hACC+3}], v[{WO+4*t}:{WO+4*t+3}], v[{BB[t%2]}:{BB[t%2]+3}], {'0' if t==0 else f'v[{hACC}:{hACC+3}]'}")
        A("s_waitcnt lgkmcnt(0)"); A("s_nop 6")
        combine(hACC,12)
        A("v_mul_f32 v12, v31, v12"); A("v_mul_f32 v13, v31, v13")
        A("v_min_u32 v12, -2, v12"); A("v_min_u32 v13, -2, v13")
        A("s_mov_b64 exec, s[60:61]")
        A(f"buffer_store_dwordx2 v[12:13], v{hAD}, s[36:39], s48 offen {SC}")
        A("s_mov_b64 exec, -1")

    A("L_buf:")
    if bprio: A(f"s_setprio {bprio}")
    k_setup()
    A("s_waitcnt lgkmcnt(0)")
    srd(84,6,7,"s35",1<<20)
    A("s_sub_u32 s47, s3, 4"); A("s_lshl_b32 s44, s47, 13")
    A("s_lshl_b32 s47, s47, 3"); A(f"v_add_u32 v{vSW}, s47, v{vSW}")
    bar0(True)
    for i in range(R):
        if i==N0:
            srd_slots()
            A("s_cmp_lg_u32 s3, 5"); A("s_cbranch_scc1 L_noclr")
            C("wave 5: clear own slot with the sentinel")
            A("v_lshlrev_b32 v1, 4, v0")
            A("s_cmp_ge_u32 s32, 28"); A("s_cselect_b32 s47, 0, -1")
            for k in range(4): A(f"v_mov_b32 v{32+k}, -1")
            for k in range(4): A(f"v_mov_b32 v{36+k}, s47")
            A("v_cmp_lt_u32 vcc, 47, v0"); A("s_nop 1")
            for k in range(4): A(f"v_cndmask_b32 v{40+k}, v36, v32, vcc")
            A(f"buffer_store_dwordx4 v[32:35], v1, s[36:39], 0 offen {SC}")
            A(f"buffer_store_dwordx4 v[32:35], v1, s[36:39], 0 offen offset:1024 {SC}")
            A(f"buffer_store_dwordx4 v[36:39], v1, s[36:39], 0 offen offset:2048 {SC}")
            A(f"buffer_store_dwordx4 v[40:43], v1, s[36:39], 0 offen offset:3072 {SC}")
            A("L_noclr:")
        if i>=N0: A(f"s_waitcnt vmcnt({N0-1})")
        r=slot(i)
        A(f"buffer_load_dwordx4 v[{r}:{r+3}], v{vK}, s[84:87], s44 offen offset:{128*(i%4)} {SF}")
        if i%4==3: A(f"s_add_u32 s44, s44, {4096 if i%8==3 else 4096+NB*8192}")
    bar0(False)
    STAMP(1)
    A("s_barrier")
    STAMP(2)
    if bprio: A("s_setprio 0")
    q_read()
    for c in range(R):
        A(f"s_waitcnt vmcnt({R-1-c})")
        pi=c//8
        k_consume(c, None if pi==0 else L_S+8*(NB+1)*(pi-1))
    k_flush(L_S+8*(NB+1)*(NP0-1))
    A("s_sub_u32 s47, s3, 4"); A("s_lshl_b32 s47, s47, 4")
    mx_publish("s47", vR)
    masks(hM,12,13)
    A("s_cmp_eq_u32 s3, 5"); A("s_cbranch_scc1 L_ffn0")
    if not wol: wo_issue()
    A("s_waitcnt lgkmcnt(0)")
    STAMP(3)
    A("s_barrier")
    if wol: wo_issue()
    A("s_cmp_eq_u32 s3, 7"); A("s_cbranch_scc1 L_tail")
    C("wave 6: softmax denominator, exchange (m,l) with partner, scale")
    A("v_mov_b32 v4, 0")
    for w in range(4): A(f"ds_read_b128 v[{64+4*w}:{64+4*w+3}], v4 offset:{L_MX+16*w}")
    A(f"v_mul_u32_u24 v5, {S_STR}, v2"); A("v_lshl_add_u32 v5, v3, 7, v5")
    for n in range(8): A(f"ds_read_b128 v[{32+4*n}:{32+4*n+3}], v5 offset:{L_S+16*n}")
    A("s_waitcnt lgkmcnt(8)")
    max12(6,64)
    A("v_mul_f32 v7, s34, v6"); A("v_sub_f32 v7, 0, v7")
    A("s_waitcnt lgkmcnt(0)")
    for k in range(32): A(f"v_fma_f32 v{32+k}, v{32+k}, s34, v7")
    for k in range(32): A(f"v_exp_f32 v{32+k}, v{32+k}")
    for st in (16,8,4,2,1):
        for k in range(st): A(f"v_add_f32 v{32+k}, v{32+k}, v{32+k+st}")
    wave_sum(32,33)
    C("v6=M v32=l")
    A("v_min_u32 v8, -2, v6"); A("v_min_u32 v9, -2, v32")
    A("s_mov_b64 exec, 1")
    A(f"buffer_store_dwordx2 v[8:9], off, s[36:39], 0 offset:3840 {SC}")
    A("s_mov_b64 exec, -1")
    cnt_wait(10)
    A("s_xor_b32 s47, s32, 1"); A("s_lshl_b32 s47, s47, 12"); A("s_mov_b32 s49, 400000")
    A("L_mlp:")
    A(f"buffer_load_dwordx2 v[10:11], off, s[40:43], s47 offset:3840 {SC}"); A("s_waitcnt vmcnt(0)")
    A("v_max_u32 v12, v10, v11"); A("v_cmp_eq_u32 vcc, -1, v12"); A("s_sub_u32 s49, s49, 1"); A("s_cbranch_scc1 L_mlx")
    A("s_cbranch_vccz L_mlx"); A("s_sleep 8"); A("s_branch L_mlp")
    A("L_mlx:")
    A("v_max_f32 v12, v6, v10")
    A("v_sub_f32 v13, v6, v12"); A("v_sub_f32 v14, v10, v12")
    A("v_mul_f32 v13, s34, v13"); A("v_mul_f32 v14, s34, v14")
    A("v_exp_f32 v13, v13"); A("v_exp_f32 v14, v14"); A("s_nop 0")
    A("v_mul_f32 v15, v13, v32"); A("v_fma_f32 v15, v14, v11, v15")
    A("v_rcp_f32 v15, v15"); A("s_nop 0"); A("v_mul_f32 v15, v15, v13")
    A(f"ds_write_b32 v4, v15 offset:{L_SC}")
    A("s_branch L_tail")

    A("L_help:")
    D0=32
    def layernorm(xr):
        for k in range(4):
            A(f"v_lshlrev_b32 v{8+2*k}, 16, v{xr+k}"); A(f"v_and_b32 v{9+2*k}, 0xffff0000, v{xr+k}")
        A("v_add_f32 v16, v8, v9"); A("v_add_f32 v17, v10, v11"); A("v_add_f32 v18, v12, v13"); A("v_add_f32 v19, v14, v15")
        A("v_add_f32 v16, v16, v17"); A("v_add_f32 v18, v18, v19"); A("v_add_f32 v16, v16, v18")
        wave_sum(16,17)
        A(f"v_mul_f32 v16, {f2u(1.0/448):#x}, v16")
        A("v_cmp_gt_u32 vcc, 56, v0"); A("v_cvt_pk_bf16_f32 v17, 0, v16"); A("s_nop 0")
        A("v_cndmask_b32 v16, 0, v16, vcc")
        A("v_sub_f32 v4, v8, v16"); A("v_mul_f32 v18, v4, v4")
        for k in range(1,8):
            A(f"v_sub_f32 v4, v{8+k}, v16"); A("v_fmac_f32 v18, v4, v4")
        wave_sum(18,19)
        A(f"v_mul_f32 v18, {f2u(1.0/448):#x}, v18")
        A("v_cvt_pk_bf16_f32 v18, 0, v18")
        A(f"v_add_f32 v18, {f2u(1e-5):#x}, v18")
        A("v_cvt_pk_bf16_f32 v18, 0, v18")
        A("v_sqrt_f32 v18, v18"); A("s_nop 0")
        A("v_cvt_pk_bf16_f32 v18, 0, v18")
        A("v_rcp_f32 v19, v18")
        for k in range(8):
            A(f"v_sub_f32 v{8+k}, v{8+k}, v17"); A(f"v_cvt_pk_bf16_f32 v{8+k}, 0, v{8+k}")
            A(f"v_mul_f32 v4, v{8+k}, v19"); A(f"v_fma_f32 v6, -v4, v18, v{8+k}"); A("v_fma_f32 v4, v6, v19, v4")
            A(f"v_cvt_pk_bf16_f32 v{8+k}, v4, v4")
    def gemv56(waits):
        XX=[4,8]; BB=[12,16]
        A("s_waitcnt lgkmcnt(0)")
        A(f"ds_read_b128 v[4:7], v{hLD}"); A(f"ds_read_b128 v[8:11], v{hLD} offset:16")
        def bp(t):
            if t%4==0: A(f"s_waitcnt lgkmcnt({1 if t//4+1<14 else 0})")
            for r in range(4): A(f"v_and_b32 v{BB[t%2]+r}, v{XX[(t//4)%2]+t%4}, v{hM+r}")
            if t%4==3 and t//4+2<14:
                x=XX[(t//4)%2]; A(f"ds_read_b128 v[{x}:{x+3}], v{hLD} offset:{16*(t//4+2)}")
        bp(0)
        for t in range(56):
            if t+1<56: bp(t+1)
            else: A("s_nop 0")
            if waits: A(f"s_waitcnt vmcnt({55-t})")
            A(f"v_mfma_f32_16x16x32_bf16 v[{hACC}:{hACC+3}], v[{D0+4*t}:{D0+4*t+3}], v[{BB[t%2]}:{BB[t%2]+3}], {'0' if t==0 else f'v[{hACC}:{hACC+3}]'}")
        A("s_nop 7")
        combine(hACC,12)
    C("waves 1..4: q column block w-1 over all 448 rows, tile order rotated by 4*rot tiles")
    A("v_lshlrev_b32 v1, 4, v0")
    A(f"v_lshlrev_b32 v{hAD}, 13, v2"); A(f"v_lshl_add_u32 v{hAD}, v3, 4, v{hAD}")
    A("s_mul_i32 s47, s30, 896")
    A("s_lshl_b32 s48, s31, 9"); A("s_sub_u32 s49, s3, 1"); A("s_lshl_b32 s49, s49, 7"); A("s_add_u32 s48, s48, s49"); A(f"s_sub_u32 s49, {448*8192}, s48")
    if rot:
        A("s_mul_i32 s51, s30, 7"); A("s_lshr_b32 s51, s51, 2")
    else: A("s_mov_b32 s51, 0")
    A("s_waitcnt lgkmcnt(0)")
    srd(88,4,5,"s47",896)
    srd(52,10,11,"s48","s49")
    A("buffer_load_dwordx4 v[4:7], v1, s[88:91], 0 offen")
    A("s_lshl_b32 s48, s51, 18")
    def wq_loads():
        for t in range(56):
            A(f"buffer_load_dwordx4 v[{D0+4*t}:{D0+4*t+3}], v{hAD}, s[52:55], s48 offen {QF}")
            A("s_add_u32 s48, s48, 65536")
            if rot and t%4==3 and t<55: A(f"s_cmp_ge_u32 s48, {56*65536}"); A("s_cselect_b32 s48, 0, s48")
    def ln_part(wait):
        masks(hM,12,13)
        A(f"s_waitcnt vmcnt({wait})")
        layernorm(4)
        C("X'[e][t - 4*rot mod 56]")
        A("s_sub_u32 s47, s3, 1"); A(f"s_mul_i32 s47, s47, {X_SZ}"); A(f"s_add_u32 s47, s47, {L_X}")
        A("s_lshl_b32 s50, s51, 2"); A("v_subrev_u32 v5, s50, v0"); A("v_add_u32 v6, 56, v5"); A("v_min_u32 v5, v5, v6")
        A("v_cmp_lt_u32 vcc, 55, v0"); A("s_nop 1"); A("v_cndmask_b32 v5, v5, v0, vcc")
        A("v_lshl_add_u32 v5, v5, 2, s47")
        for k in range(8): A(f"ds_write_b32 v5, v{8+k} offset:{k*X_STR}")
        A(f"v_mul_u32_u24 v{hLD}, {X_STR}, v2"); A(f"v_add_u32 v{hLD}, s47, v{hLD}")
    if stag:
        A("s_cmp_eq_u32 s28, 1"); A("s_cbranch_scc1 L_q1")
        wq_loads(); A("s_barrier"); ln_part(56); A("s_branch L_q2")
        A("L_q1:")
        ln_part(0); A("s_barrier"); wq_loads()
        A("L_q2:")
    else:
        wq_loads(); A("s_barrier"); ln_part(56)
    STAMP(6)
    gemv56(True)
    C("q -> bf16 -> LDS: addr = m*128 + (4*rowq+hi)*16 + j*2 (+32 for the second register)")
    A("v_cvt_pk_bf16_f32 v12, v12, v13")
    A("v_bfe_u32 v4, v0, 4, 1"); A("v_lshrrev_b32 v5, 5, v0"); A("v_lshl_add_u32 v4, v4, 2, v5"); A("v_lshlrev_b32 v4, 4, v4"); A("v_lshl_add_u32 v4, v3, 1, v4")
    A("s_sub_u32 s47, s3, 1"); A("s_lshl_b32 s47, s47, 7"); A("v_add_u32 v4, s47, v4")
    A("s_mov_b64 exec, s[60:61]")
    A(f"ds_write_b16 v4, v12 offset:{L_Q}"); A(f"ds_write_b16_d16_hi v4, v12 offset:{L_Q+32}")
    A("s_mov_b64 exec, -1")
    A("s_waitcnt lgkmcnt(0)")
    STAMP(1)
    A("s_barrier")
    STAMP(2)
    srd_slots()
    A("s_cmp_eq_u32 s3, 1"); A("s_cbranch_scc1 L_ffn")
    if not wol: wo_issue()
    STAMP(3)
    A("s_barrier")
    if wol: wo_issue()
    A("L_tail:")
    tail_gemv()
    if not stamp: STAMP(6)
    stamp_out()
    A("s_endpgm")

    A("L_ffn:")
    C("wave 1: FFN slice pidx (64 hidden units) for batch b")
    A("s_cmp_ge_u32 s32, 28"); A("s_cbranch_scc1 L_q3")
    A("s_lshl_b32 s48, s32, 7"); A(f"s_sub_u32 s49, {448*3584}, s48"); srd(52,16,17,"s48","s49")
    A(f"v_mul_u32_u24 v{hAD}, 3584, v2"); A(f"v_lshl_add_u32 v{hAD}, v3, 4, v{hAD}")
    A(f"s_mul_i32 s48, s51, {32*3584}")
    for t in range(56):
        if t>=NF: A(f"s_waitcnt vmcnt({NF-1})")
        A(f"buffer_load_dwordx4 v[{D0+4*t}:{D0+4*t+3}], v{hAD}, s[52:55], s48 offen {HF}")
        A(f"s_add_u32 s48, s48, {8*3584}")
        if rot and t%4==3 and t<55: A(f"s_cmp_ge_u32 s48, {448*3584}"); A("s_cselect_b32 s48, 0, s48")
    A("s_waitcnt vmcnt(0)")
    gemv56(False)
    C("w2 loads (tile t, block beta) -> D0 + 4*(7t+beta)")
    A(f"s_mul_i32 s48, s32, {64*896}"); A(f"s_sub_u32 s49, {1792*896}, s48"); srd(52,18,19,"s48","s49")
    A(f"v_mul_u32_u24 v{hAD}, 896, v2"); A(f"v_lshl_add_u32 v{hAD}, v3, 4, v{hAD}")
    A("s_mov_b32 s48, 0")
    for t in range(8):
        for be in range(7):
            i=7*t+be
            if i>=NF: A(f"s_waitcnt vmcnt({NF-1})")
            A(f"buffer_load_dwordx4 v[{D0+4*i}:{D0+4*i+3}], v{hAD}, s[52:55], s48 offen offset:{128*be} {HF}")
        A("s_add_u32 s48, s48, 7168")
    C("h -> bf16 -> silu -> bf16 (dup) -> LDS H[g=j][T=4*rowq+hi+2s]")
    for k in (12,13):
        A(f"v_cvt_pk_bf16_f32 v{k}, 0, v{k}")
        A(f"v_mul_f32 v4, {f2u(-math.log2(math.e)):#x}, v{k}"); A("v_exp_f32 v4, v4"); A("s_nop 0")
        A("v_add_f32 v4, 1.0, v4"); A("v_rcp_f32 v4, v4"); A("s_nop 0")
        A(f"v_mul_f32 v{k}, v{k}, v4"); A(f"v_cvt_pk_bf16_f32 v{k}, v{k}, v{k}")
    A("v_bfe_u32 v4, v0, 4, 1"); A("v_lshrrev_b32 v5, 5, v0"); A("v_lshl_add_u32 v4, v4, 2, v5"); A("v_lshlrev_b32 v4, 2, v4")
    A(f"v_mul_u32_u24 v5, {H_STR}, v3"); A("v_add_u32 v4, v4, v5")
    A("s_mov_b64 exec, s[60:61]")
    A(f"ds_write_b32 v4, v12 offset:{L_H}"); A(f"ds_write_b32 v4, v13 offset:{L_H+8}")
    A("s_mov_b64 exec, -1")
    A(f"v_mul_u32_u24 v5, {H_STR}, v2")
    A("s_waitcnt lgkmcnt(0)")
    A(f"ds_read_b128 v[4:7], v5 offset:{L_H}"); A(f"ds_read_b128 v[8:11], v5 offset:{L_H+16}")
    A("s_waitcnt vmcnt(0) lgkmcnt(0)")
    A(f"v_lshrrev_b32 v{hAD}, 4, v0"); A(f"v_lshl_add_u32 v{hAD}, v{hAD}, 3, v3"); A(f"v_lshlrev_b32 v{hAD}, 3, v{hAD}")
    for be in range(7):
        BB=[12,16]
        for t in range(8):
            for r in range(4): A(f"v_and_b32 v{BB[t%2]+r}, v{4+t}, v{hM+r}")
            A("s_nop 1")
            i=7*t+be
            A(f"v_mfma_f32_16x16x32_bf16 v[{hACC}:{hACC+3}], v[{D0+4*i}:{D0+4*i+3}], v[{BB[t%2]}:{BB[t%2]+3}], {'0' if t==0 else f'v[{hACC}:{hACC+3}]'}")
        A("s_nop 7")
        combine(hACC,30)
        A("v_min_u32 v30, -2, v30"); A("v_min_u32 v31, -2, v31")
        A("s_mov_b64 exec, s[60:61]")
        A(f"buffer_store_dwordx2 v[30:31], v{hAD}, s[36:39], 0 offen offset:{2048+256*be} {SC}")
        A("s_mov_b64 exec, -1")
    A("L_q3:")
    STAMP(3)
    A("s_barrier")
    wo_issue()
    A("s_branch L_tail")

    A("L_ffn0:")
    C("wave 5: the clear stores completed before barrier 1: count them")
    A("v_mov_b32 v8, 1"); A("s_lshl_b32 s47, s30, 2")
    A("s_mov_b64 exec, 1")
    A(f"buffer_atomic_add v8, off, s[56:59], s47 {SC}")
    A("s_mov_b64 exec, -1")
    A("s_mul_i32 s47, s30, 896"); srd(88,4,5,"s47",896)
    if not wol: wo_issue()
    A("L_noffn:")
    STAMP(3)
    A("s_waitcnt lgkmcnt(0)")
    A("s_barrier")
    if wol: wo_issue()
    A("s_cmp_ge_u32 s32, 28"); A("s_cbranch_scc1 L_tail")
    C("consumer setup: gather address v64, column byte offset v65, x value v66, FFN value v67")
    A("v_lshrrev_b32 v64, 2, v0"); A("v_lshlrev_b32 v64, 12, v64"); A("v_and_b32 v4, 3, v0"); A("v_lshl_add_u32 v64, v4, 4, v64")
    A("s_lshl_b32 s47, s32, 6"); A("v_add_u32 v64, s47, v64")
    C("col = 64*(k>>2) + 32*(k&1) + 8*((k>>1)&1) + 16*(rho&1) + 2*qd + (rho>>1), rho=(l>>2)&3, qd=l&3")
    A("s_lshr_b32 s47, s32, 2"); A("s_lshl_b32 s47, s47, 6"); A("s_and_b32 s48, s32, 1"); A("s_lshl_b32 s48, s48, 5"); A("s_add_u32 s47, s47, s48")
    A("s_bfe_u32 s48, s32, 0x10001"); A("s_lshl_b32 s48, s48, 3"); A("s_add_u32 s47, s47, s48")
    A("v_bfe_u32 v5, v0, 2, 1"); A("v_lshlrev_b32 v5, 4, v5"); A("v_lshl_add_u32 v5, v4, 1, v5"); A("v_bfe_u32 v6, v0, 3, 1"); A("v_add3_u32 v65, v5, v6, s47")
    A("v_lshlrev_b32 v65, 1, v65")
    A("buffer_load_ushort v66, v65, s[88:91], 0 offen")
    cnt_wait(4)
    gather(2048, 68, 64, 8)
    A("v_cvt_pk_bf16_f32 v67, 0, v68"); A("v_lshlrev_b32 v66, 16, v66")
    A("s_mul_i32 s47, s30, 896"); srd(92,20,21,"s47",896)
    tail_gemv()
    gather(0, 68, 64, 0)
    A("v_cvt_pk_bf16_f32 v68, 0, v68"); A("v_add_f32 v68, v66, v68"); A("v_cvt_pk_bf16_f32 v68, 0, v68"); A("v_add_f32 v68, v68, v67")
    A("v_cvt_pk_bf16_f32 v68, v68, v68")
    A("s_mov_b64 exec, 0xffff")
    A("buffer_store_short v68, v65, s[92:95], 0 offen")
    A("s_mov_b64 exec, -1")
    STAMP(6)
    stamp_out(role="f")
    A("L_end:")
    A("s_endpgm")
    body="\n".join(("" if (l.endswith(":") or l.startswith(".")) else "    ")+l for l in L)+"\n"
    ldsz=lds if lds else L_END
    head=HEADER+f"; @launch grid=(256,1,1) block=(512,1,1) lds={ldsz}\n"
    return head+body+kd(NAME,256,102,256), ldsz

if __name__=="__main__":
    kw=eval("dict(%s)"%(sys.argv[2] if len(sys.argv)>2 else ""))
    t,ldsz=gen(**kw)
    out=sys.argv[1]
    if out.endswith(".s"): open(out,"w").write(t)
    else:
        assemble(t+meta([(NAME,256,102,512)]), out); print(f"work/{out}:{NAME},256,512,{ldsz}")
```

```python
import sys, math
from common import *

NAME="parallel_sum__mha_block_cached__dense_activation_silu__decode_kernel"
HEADER=open("parallel_sum__mha_block_cached__dense_activation_silu__decode.s.ref").read().split("; Override launch")[0]

L_Q=0; L_MX=512; L_SC=576; L_S=1024; S_STR=1040; L_O=L_S+8*S_STR; O_STR=144
L_X=L_O+8*O_STR; X_STR=272; X_SZ=8*X_STR; L_H=L_X+5*X_SZ; H_STR=48; L_X2=L_H+8*H_STR; X2_STR=80; X2_SZ=8*X2_STR; L_CNT=580; L_END=L_X2
CEXP=math.log2(math.e)/16.0
import struct
def f2u(f): return struct.unpack("<I",struct.pack("<f",f))[0]

def gen(N=22, N0=10, R=48, NF=4, NW=2, stamp=False, catchup=True, SC="sc1", lds=None, wol=0, noffn=0, HF="", QF="", ch=2, bprio=3, qprio=0, dbg=0, calib=0, SF="nt", HB=0, stag=1, rot=1, NK=None, skipwo=0, skipffn=0, QD=12):
    L=[]; A=L.append
    def C(s): A("    ; "+s)
    A('.amdgcn_target "amdgcn-amd-amdhsa--gfx950"'); A(".text"); A(f".globl {NAME}"); A(".p2align 8"); A(f".type {NAME},@function"); A(f"{NAME}:")
    nst=[0]; lbl0=[0]
    def STAMP(i):
        if stamp or dbg or (calib and i==0): A(f"s_memrealtime s[{70+2*i}:{71+2*i}]")
    A("s_cmp_ge_u32 s2, 256"); A("s_cbranch_scc1 L_end")
    STAMP(0)
    A("s_load_dwordx16 s[4:19], s[0:1], 0")
    A("s_load_dwordx4 s[20:23], s[0:1], 64")
    A("s_load_dwordx2 s[24:25], s[0:1], 80")
    A("v_lshrrev_b32 v1, 6, v0"); A("v_and_b32 v0, 63, v0"); A("v_readfirstlane_b32 s3, v1")
    A("s_and_b32 s26, s2, 7"); A("s_lshr_b32 s27, s2, 3"); A("s_and_b32 s28, s27, 1")
    if HB==0:
        A("s_bfe_u32 s29, s27, 0x10001"); A("s_lshr_b32 s30, s27, 2")
        A("s_lshl_b32 s29, s29, 3"); A("s_add_u32 s31, s26, s29")
    else:
        A(f"s_bfe_u32 s29, s27, {(HB<<16)|1:#x}")
        A(f"s_lshr_b32 s30, s27, {1+HB}")
        A(f"s_and_b32 s31, s26, {(1<<(4-HB))-1}"); A(f"s_lshl_b32 s31, s31, {HB}"); A("s_add_u32 s31, s31, s29")
        A(f"s_lshr_b32 s29, s26, {4-HB}"); A(f"s_lshl_b32 s29, s29, {4-HB}"); A("s_add_u32 s30, s30, s29")
    A("s_lshl_b32 s32, s31, 1"); A("s_add_u32 s32, s32, s28")
    A("s_lshl_b32 s33, s30, 5"); A("s_add_u32 s33, s33, s32")
    C("s30=b s31=h s32=pidx s33=gidx ; v2=g v3=e")
    A("v_lshrrev_b32 v2, 3, v0"); A("v_and_b32 v3, 7, v0")
    A(f"s_mov_b32 s34, {f2u(CEXP):#x}")
    A("s_mov_b32 s60, 0x00ff00ff"); A("s_mov_b32 s61, 0x00ff00ff")
    A("s_cmp_eq_u32 s3, 0"); A("s_cbranch_scc1 L_stream")
    A("s_cmp_ge_u32 s3, 5"); A("s_cbranch_scc1 L_buf")
    A("s_branch L_help")

    def srd(d, lo, hi, off_sgpr, size):
        if off_sgpr is None:
            A(f"s_mov_b32 s{d}, s{lo}"); A(f"s_mov_b32 s{d+1}, s{hi}")
        else:
            A(f"s_add_u32 s{d}, s{lo}, {off_sgpr}"); A(f"s_addc_u32 s{d+1}, s{hi}, 0")
        A(f"s_mov_b32 s{d+2}, {size}"); A(f"s_mov_b32 s{d+3}, 0x20000")
    def masks(base,t0,t1):
        A(f"v_and_b32 v{t0}, 1, v3"); A(f"v_lshlrev_b32 v{t0}, 4, v{t0}"); A(f"v_mov_b32 v{t1}, 0xffff"); A(f"v_lshlrev_b32 v{t0}, v{t0}, v{t1}")
        A(f"v_lshrrev_b32 v{t1}, 1, v3")
        for r in range(4):
            A(f"v_cmp_eq_u32 vcc, {r}, v{t1}"); A("s_nop 1"); A(f"v_cndmask_b32 v{base+r}, 0, v{t0}, vcc")
    def stamp_out(tmp=4, role=""):
        if dbg:
            A("s_waitcnt vmcnt(0) lgkmcnt(0)")
            A("s_memrealtime s[82:83]")
            A("s_mov_b64 exec, 1")
            srd(64,22,23,None,256)
            A("s_waitcnt lgkmcnt(0)")
            def um(word, sreg, inv=False):
                if inv: A(f"s_not_b32 s68, s{sreg}"); A(f"v_mov_b32 v{tmp}, s68")
                else: A(f"v_mov_b32 v{tmp}, s{sreg}")
                A(f"buffer_atomic_umax v{tmp}, off, s[64:67], 0 offset:{4*word} sc1"); A("s_waitcnt vmcnt(0)")
            if role=="s":
                um(1,70,True); um(7,70); um(3,78); um(5,74); um(6,76); um(9,78,True); um(10,74,True)
            if role=="f":
                um(2,82)
            return
        if not stamp: return
        A("s_waitcnt lgkmcnt(0)")
        A("s_mov_b64 exec, 1")
        srd(64,24,25,None,0x40000000)
        A("s_lshl_b32 s68, s2, 3"); A("s_add_u32 s68, s68, s3"); A("s_lshl_b32 s68, s68, 5"); A("s_add_u32 s68, s68, 0x20000000")
        A("s_getreg_b32 s69, hwreg(HW_REG_XCC_ID)")
        for i in range(7): A(f"v_mov_b32 v{tmp+i}, s{70+2*i}")
        A(f"v_mov_b32 v{tmp+7}, s69")
        A(f"buffer_store_dwordx4 v[{tmp}:{tmp+3}], off, s[64:67], s68")
        A(f"buffer_store_dwordx4 v[{tmp+4}:{tmp+7}], off, s[64:67], s68 offset:16")
        A("s_waitcnt vmcnt(0)")

    RING=256-4*R
    vK=4; vV=5; vSW=6; vSR=7; vMX=8; vR=9; vR2=10; vA=[11,12]; vB=[13,14]; vQ=16
    def slot(i): return RING+4*(i%R)
    def k_consume(c, dsoff):
        p=c%8; m=p%4; acc=vA if p<4 else vB; r=slot(c)
        for k in range(4):
            if ch==2:
                src2 = "0" if (m==0 and k<2) else f"v{acc[k%2]}"
                A(f"v_dot2_f32_bf16 v{acc[k%2]}, v{r+k}, v{vQ+4*m+k}, {src2}")
            elif ch==4:
                a4=(acc+([32,33] if p<4 else [34,35]))[k]
                if m==0: A(f"v_dot2_f32_bf16 v{a4}, v{r+k}, v{vQ+4*m+k}, 0")
                else: A(f"v_dot2c_f32_bf16 v{a4}, v{r+k}, v{vQ+4*m+k}")
        k_post(p, dsoff)
    def k_post(p, dsoff):
        prev = dsoff is not None
        if p==0 and prev:
            if ch==4: A(f"v_add_f32 v{vB[0]}, v{vB[0]}, v34"); A(f"v_add_f32 v{vB[1]}, v{vB[1]}, v35")
            A(f"v_add_f32 v{vB[0]}, v{vB[0]}, v{vB[1]}")
        if p==1 and prev: A(f"v_add_f32_dpp v{vR}, v{vB[0]}, v{vB[0]} row_half_mirror row_mask:0xf bank_mask:0xa")
        if p==2 and prev: A(f"v_add_f32_dpp v{vR}, v{vR}, v{vR} quad_perm:[1,0,3,2] row_mask:0xf bank_mask:0xf")
        if p==3 and prev: A(f"v_add_f32_dpp v{vR}, v{vR}, v{vR} quad_perm:[2,3,0,1] row_mask:0xf bank_mask:0xf")
        if p==4:
            if prev: A(f"v_cvt_pk_bf16_f32 v{vR2}, 0, v{vR}")
            if ch==4: A(f"v_add_f32 v{vA[0]}, v{vA[0]}, v32"); A(f"v_add_f32 v{vA[1]}, v{vA[1]}, v33")
            A(f"v_add_f32 v{vA[0]}, v{vA[0]}, v{vA[1]}")
        if p==5:
            if prev:
                A(f"v_max_f32 v{vMX}, v{vMX}, v{vR2}"); A(f"ds_write_b32 v{vSW}, v{vR2} offset:{dsoff}")
            A(f"v_add_f32_dpp v{vR}, v{vA[0]}, v{vA[0]} row_half_mirror row_mask:0xf bank_mask:0x5")
    def k_flush(dsoff):
        A("s_nop 2")
        if ch==4: A(f"v_add_f32 v{vB[0]}, v{vB[0]}, v34"); A(f"v_add_f32 v{vB[1]}, v{vB[1]}, v35")
        A(f"v_add_f32 v{vB[0]}, v{vB[0]}, v{vB[1]}"); A("s_nop 1")
        A(f"v_add_f32_dpp v{vR}, v{vB[0]}, v{vB[0]} row_half_mirror row_mask:0xf bank_mask:0xa"); A("s_nop 1")
        A(f"v_add_f32_dpp v{vR}, v{vR}, v{vR} quad_perm:[1,0,3,2] row_mask:0xf bank_mask:0xf"); A("s_nop 1")
        A(f"v_add_f32_dpp v{vR}, v{vR}, v{vR} quad_perm:[2,3,0,1] row_mask:0xf bank_mask:0xf")
        A(f"v_cvt_pk_bf16_f32 v{vR2}, 0, v{vR}")
        A(f"v_max_f32 v{vMX}, v{vMX}, v{vR2}"); A(f"ds_write_b32 v{vSW}, v{vR2} offset:{dsoff}")
    def mx_publish(w, tmp):
        A("s_nop 1")
        A(f"v_max_f32_dpp v{vMX}, v{vMX}, v{vMX} row_ror:4 row_mask:0xf bank_mask:0xf"); A("s_nop 1")
        A(f"v_max_f32_dpp v{vMX}, v{vMX}, v{vMX} row_ror:8 row_mask:0xf bank_mask:0xf")
        A(f"v_lshrrev_b32 v{tmp}, 4, v0"); A(f"v_lshlrev_b32 v{tmp}, 2, v{tmp}")
        if isinstance(w,int): A(f"ds_write_b32 v{tmp}, v{vMX} offset:{L_MX+16*w}")
        else:
            A(f"v_add_u32 v{tmp}, {w}, v{tmp}"); A(f"ds_write_b32 v{tmp}, v{vMX} offset:{L_MX}")
    def k_setup():
        A(f"v_lshlrev_b32 v{vK}, 9, v2"); A(f"v_lshl_add_u32 v{vK}, v3, 4, v{vK}")
        A(f"v_mul_u32_u24 v{vSW}, {S_STR}, v2"); A(f"v_lshrrev_b32 v{vSR}, 2, v3"); A(f"v_lshl_add_u32 v{vSW}, v{vSR}, 2, v{vSW}")
        A(f"v_mov_b32 v{vMX}, 0xff800000")
        A("s_lshl_b32 s35, s33, 20")
    def q_read():
        A(f"v_lshlrev_b32 v{vR}, 4, v3")
        for m in range(4): A(f"ds_read_b128 v[{vQ+4*m}:{vQ+4*m+3}], v{vR} offset:{L_Q+128*m}")
        A("s_waitcnt lgkmcnt(0)")
    NP0=R//8
    assert R%8==0
    NB=3
    NKS=1024-NB*R
    NTOT=NKS+1024

    A("L_stream:")
    A("s_setprio 3")
    k_setup()
    A(f"v_lshrrev_b32 v{vV}, 4, v0"); A(f"v_lshlrev_b32 v{vV}, 10, v{vV}"); A(f"v_and_b32 v{vSR}, 15, v0"); A(f"v_lshl_add_u32 v{vV}, v{vSR}, 4, v{vV}")
    A("s_waitcnt lgkmcnt(0)")
    srd(36,6,7,"s35",1<<20); srd(40,8,9,"s35",1<<20)
    A("s_mov_b32 s44, 0"); A("s_mov_b32 s45, 0")
    def issue(i):
        r=slot(i)
        if i<NKS:
            A(f"buffer_load_dwordx4 v[{r}:{r+3}], v{vK}, s[36:39], s44 offen offset:{128*(i%4)} {SF}")
            if i%4==3:
                inc=4096
                if i<R and i%8==7: inc=4096+NB*8192
                A(f"s_add_u32 s44, s44, {inc}")
        elif i<NTOT:
            u=i-NKS
            A(f"buffer_load_dwordx4 v[{r}:{r+3}], v{vV}, s[40:43], s45 offen offset:{256*(u%4)} {SF}")
            if u%4==3: A("s_add_u32 s45, s45, 4096")
    DK=R-1
    def bar0(first):
        if not stag:
            if first: A("s_barrier")
            return
        lbl0[0]+=1
        A(f"s_cmp_eq_u32 s28, {1 if first else 0}"); A(f"s_cbranch_scc1 L_b0_{lbl0[0]}"); A("s_barrier"); A(f"L_b0_{lbl0[0]}:")
    bar0(True)
    for i in range(DK):
        if i>=N0: A(f"s_waitcnt vmcnt({N0-1})")
        issue(i)
    bar0(False)
    STAMP(1)
    A("s_barrier")
    STAMP(2)
    q_read()
    def pair_T(pi):
        return 2*((NB+1)*pi) if pi<NP0 else 2*((NB+1)*NP0+(pi-NP0))
    def kstep(c, dsbase):
        I=c+DK
        A(f"s_waitcnt vmcnt({min((NK or N)-1,I-c-1)})")
        issue(I)
        pi=c//8
        k_consume(c, None if pi==0 else L_S+4*pair_T(pi-1)-dsbase)
    for c in range(0,2*R): kstep(c,0)
    nK=(NKS-DK-2*R)//R
    A(f"s_mov_b32 s46, {nK}")
    A("L_kloop:")
    for c in range(2*R,3*R): kstep(c,0)
    A(f"v_add_u32 v{vSW}, {R}, v{vSW}")
    A("s_sub_u32 s46, s46, 1"); A("s_cmp_lg_u32 s46, 0"); A("s_cbranch_scc1 L_kloop")
    dsb=nK*R
    for c in range((2+nK)*R,NKS): kstep(c,dsb)
    k_flush(L_S+4*pair_T(NKS//8-1)-dsb)
    mx_publish(0, vR)
    vM=[12,13,14,15]; vNM=11; vT=9; vP=10; vACC=16; vBB=[32,36]; vSS=[40,44,48]; vTM=52
    assert vTM+12<=RING
    masks(vM[0], vTM, vTM+1)
    A(f"v_mul_u32_u24 v{vSR}, {S_STR}, v2")
    A(f"v_mov_b32 v{vT}, 0")
    A("s_waitcnt lgkmcnt(0)")
    STAMP(3)
    A("s_barrier")
    for w in range(4): A(f"ds_read_b128 v[{48+4*w}:{48+4*w+3}], v{vT} offset:{L_MX+16*w}")
    A(f"ds_read_b128 v[{vSS[0]}:{vSS[0]+3}], v{vSR} offset:{L_S}")
    inext=[NKS+DK]
    A(f"s_waitcnt vmcnt({N-1})")
    issue(inext[0]); inext[0]+=1
    for r in range(16): A(f"v_mov_b32 v{vACC+r}, 0")
    A("s_waitcnt lgkmcnt(0)")
    def max12(dst,b):
        A(f"v_max3_f32 v{dst}, v{b}, v{b+1}, v{b+2}")
        for k in range(3,15,2): A(f"v_max3_f32 v{dst}, v{dst}, v{b+k}, v{b+k+1}")
        A(f"v_max_f32 v{dst}, v{dst}, v{b+15}")
    max12(vNM,48)
    A(f"v_mul_f32 v{vNM}, s34, v{vNM}"); A(f"v_sub_f32 v{vNM}, 0, v{vNM}")
    def bprep(tile, part):
        s=vSS[(tile//4)%3]+tile%4; b=vBB[tile%2]
        if part==0: A(f"v_fma_f32 v{vT}, v{s}, s34, v{vNM}")
        if part==1: A(f"v_exp_f32 v{vT}, v{vT}")
        if part==2: A(f"v_cvt_pk_bf16_f32 v{vP}, v{vT}, v{vT}"); A(f"v_and_b32 v{b}, v{vP}, v{vM[0]}")
        if part==3:
            for r in range(1,4): A(f"v_and_b32 v{b+r}, v{vP}, v{vM[r]}")
    bprep(0,0); bprep(0,1); A("s_nop 0"); bprep(0,2); bprep(0,3); A("s_nop 1")
    def vconsume(u, srbase, mark):
        tile=u//4; q=u%4; r=slot(NKS+u); b=vBB[tile%2]
        if q==0 and tile%4==0 and tile+4<256:
            nb=vSS[(tile//4+1)%3]
            A(f"ds_read_b128 v[{nb}:{nb+3}], v{vSR} offset:{L_S+4*(tile+4)-srbase}")
        if q==0 and tile%4==3 and tile+1<256: A("s_waitcnt lgkmcnt(0)")
        a=vACC+4*q
        if q==0 and len(L)-mark<2: A(f"s_nop {1-(len(L)-mark)}")
        A(f"v_mfma_f32_16x16x32_bf16 v[{a}:{a+3}], v[{r}:{r+3}], v[{b}:{b+3}], v[{a}:{a+3}]")
        if tile+1<256: bprep(tile+1,q)
    def vstep(u, srbase, do_issue=True):
        c=NKS+u; I=inext[0]; mark=len(L)
        if do_issue and I<NTOT:
            A(f"s_waitcnt vmcnt({min(N-1,I-c-1)})")
            assert I-R < c
            issue(I); inext[0]+=1
        else:
            k=I-c-1
            if k<N: A(f"s_waitcnt vmcnt({k})")
        vconsume(u,srbase,mark)
    u=0
    DV=N if catchup else R-1
    first=True
    while True:
        D=inext[0]-(NKS+u)
        if D<=DV and u%R==0: break
        if D>DV:
            vstep(u,0,do_issue=False); u+=1
            D=inext[0]-(NKS+u)
            if D>DV or u%R!=0:
                if D>=DV: vstep(u,0,True); u+=1
        else:
            vstep(u,0,True); u+=1
    D=inext[0]-(NKS+u)
    assert D==DV and u%R==0 and (R//16)%3==0 and R%16==0, (D,DV,u)
    u0=u
    nV=(1024-DV-u0)//R
    while u0+nV*R+16>1024: nV-=1
    A(f"s_mov_b32 s46, {nV}")
    A("L_vloop:")
    for uu in range(u0,u0+R): vstep(uu,0,True)
    A(f"v_add_u32 v{vSR}, {R}, v{vSR}")
    A("s_sub_u32 s46, s46, 1"); A("s_cmp_lg_u32 s46, 0"); A("s_cbranch_scc1 L_vloop")
    inext[0]+=(nV-1)*R
    for uu in range(u0+nV*R,1024): vstep(uu,nV*R,True)
    STAMP(4)
    A(f"v_lshrrev_b32 v{vT}, 4, v0"); A(f"v_lshlrev_b32 v{vT}, 4, v{vT}"); A(f"v_mul_u32_u24 v{vP}, {O_STR}, v3"); A(f"v_add_u32 v{vT}, v{vT}, v{vP}")
    A("s_nop 3")
    for hf in range(2):
        for r in range(4):
            A(f"v_add_f32_dpp v{vTM+4*hf+r}, v{vACC+8+4*hf+r}, v{vACC+4*hf+r} row_ror:8 row_mask:0xf bank_mask:0xf")
    for k in range(8): A(f"v_cvt_pk_bf16_f32 v{vTM+k}, v{vTM+k}, v{vTM+k}")
    A("s_mov_b64 exec, s[60:61]")
    A(f"ds_write_b128 v{vT}, v[{vTM}:{vTM+3}] offset:{L_O}")
    A(f"ds_write_b128 v{vT}, v[{vTM+4}:{vTM+7}] offset:{L_O+64}")
    A("s_waitcnt lgkmcnt(0)")
    A("s_barrier")
    STAMP(5)
    if calib:
        A("L_cal:"); A("s_memrealtime s[72:73]"); A("s_waitcnt lgkmcnt(0)"); A("s_sub_u32 s72, s72, s70"); A(f"s_cmp_lt_u32 s72, {calib}"); A("s_cbranch_scc1 L_cal")
    stamp_out(role="s")
    A("s_endpgm")

    hM=20
    hACC=24
    hAD=28; hLD=29
    WO=128
    def wo_issue():
        C("wo block loads, c = wave-1")
        A("s_mul_i32 s47, s31, 229376"); A("s_sub_u32 s48, s3, 1"); A("s_lshl_b32 s48, s48, 7"); A("s_add_u32 s47, s47, s48")
        A(f"s_sub_u32 s48, {4096*896}, s47")
        srd(52,12,13,"s47","s48")
        A(f"v_mul_u32_u24 v{hAD}, 896, v2"); A(f"v_lshl_add_u32 v{hAD}, v3, 4, v{hAD}")
        A("s_mov_b32 s47, 0")
        for t in range(0 if skipwo else 32):
            if t>=NW: A(f"s_waitcnt vmcnt({NW-1})")
            A(f"buffer_load_dwordx4 v[{WO+4*t}:{WO+4*t+3}], v{hAD}, s[52:55], s47 offen {HF}")
            A("s_add_u32 s47, s47, 7168")
    def combine(acc, dst):
        A(f"v_permlane32_swap_b32 v{acc}, v{acc+1}"); A(f"v_permlane32_swap_b32 v{acc+2}, v{acc+3}")
        A("s_nop 1")
        A(f"v_add_f32_dpp v{dst}, v{acc+1}, v{acc} row_ror:8 row_mask:0xf bank_mask:0xf")
        A(f"v_add_f32_dpp v{dst+1}, v{acc+3}, v{acc+2} row_ror:8 row_mask:0xf bank_mask:0xf")
    def wave_sum(v,t,op="add"):
        for pat in ["quad_perm:[1,0,3,2]","quad_perm:[2,3,0,1]","row_half_mirror","row_mirror"]:
            A("s_nop 1"); A(f"v_{op}_f32_dpp v{v}, v{v}, v{v} {pat} row_mask:0xf bank_mask:0xf")
        for sw in ["16","32"]:
            A(f"v_mov_b32 v{t}, v{v}"); A("s_nop 1"); A(f"v_permlane{sw}_swap_b32 v{v}, v{t}"); A(f"v_{op}_f32 v{v}, v{v}, v{t}")
    def srd_slots():
        A("s_lshl_b32 s47, s33, 12"); srd(36,24,25,"s47",4096)
        A("s_lshl_b32 s47, s30, 17"); srd(40,24,25,"s47",131072)
        srd(56,22,23,None,256)
    lbl=[0]
    def cnt_wait(t):
        lbl[0]+=1; n=lbl[0]
        A("s_lshl_b32 s47, s30, 2"); A("s_mov_b32 s49, 400000")
        A(f"L_cw{n}:")
        A(f"buffer_load_dword v{t}, off, s[56:59], s47 {SC}"); A("s_waitcnt vmcnt(0)")
        A(f"v_cmp_gt_u32 vcc, 32, v{t}"); A("s_sub_u32 s49, s49, 1"); A("s_cbranch_scc1 L_cwx%d"%n)
        A(f"s_cbranch_vccz L_cwx{n}"); A("s_sleep 8"); A(f"s_branch L_cw{n}")
        A(f"L_cwx{n}:")
    def arrive(t):
        lbl[0]+=1; n=lbl[0]
        A(f"v_mov_b32 v{t}, 0"); A(f"v_mov_b32 v{t+1}, 1")
        A("s_mov_b64 exec, 1")
        A("s_waitcnt vmcnt(0)")
        A(f"ds_add_rtn_u32 v{t}, v{t}, v{t+1} offset:{L_CNT}")
        A("s_lshl_b32 s47, s31, 2")
        A("s_waitcnt lgkmcnt(0)")
        A(f"v_cmp_eq_u32 vcc, 3, v{t}"); A("s_nop 1")
        A(f"s_cbranch_vccz L_ar{n}")
        A(f"buffer_atomic_add v{t+1}, off, s[56:59], s47 offset:128 {SC}")
        A(f"L_ar{n}:")
        A("s_mov_b64 exec, -1")
    def gather(off, b, vad, sleep):
        lbl[0]+=1; n=lbl[0]
        A("s_mov_b32 s49, 400000"); A("s_mov_b32 s47, 65536")
        A(f"L_g{n}:")
        A(f"buffer_load_dwordx4 v[{b}:{b+3}], v{vad}, s[40:43], 0 offen offset:{off} {SC}")
        A(f"buffer_load_dwordx4 v[{b+4}:{b+7}], v{vad}, s[40:43], s47 offen offset:{off} {SC}")
        A("s_waitcnt vmcnt(0)")
        A(f"v_max3_u32 v{b+8}, v{b}, v{b+1}, v{b+2}"); A(f"v_max3_u32 v{b+9}, v{b+3}, v{b+4}, v{b+5}")
        A(f"v_max3_u32 v{b+8}, v{b+8}, v{b+6}, v{b+7}"); A(f"v_max_u32 v{b+8}, v{b+8}, v{b+9}")
        A(f"v_cmp_eq_u32 vcc, -1, v{b+8}"); A("s_sub_u32 s49, s49, 1"); A(f"s_cbranch_scc1 L_gx{n}")
        A(f"s_cbranch_vccz L_gx{n}")
        if sleep: A(f"s_sleep {sleep}")
        A(f"s_branch L_g{n}")
        A(f"L_gx{n}:")
        for r in range(4): A(f"v_add_f32 v{b+r}, v{b+r}, v{b+4+r}")
        for pat in ["row_ror:4","row_ror:8"]:
            if pat=="row_ror:4": pass
            for r in range(4): A(f"v_add_f32_dpp v{b+r}, v{b+r}, v{b+r} {pat} row_mask:0xf bank_mask:0xf")
        for r in range(1,4): A(f"v_mov_b32_dpp v{b}, v{b+r} quad_perm:[0,1,2,3] row_mask:0xf bank_mask:{1<<r:#x}")
        for sw in ["16","32"]:
            A(f"v_mov_b32 v{b+1}, v{b}"); A("s_nop 1"); A(f"v_permlane{sw}_swap_b32 v{b}, v{b+1}"); A(f"v_add_f32 v{b}, v{b}, v{b+1}")
    def tail_gemv():
        P=32
        A(f"v_mul_u32_u24 v{hLD}, {O_STR}, v2"); A("v_mov_b32 v30, 0")
        A(f"v_lshrrev_b32 v{hAD}, 4, v0"); A(f"v_lshl_add_u32 v{hAD}, v{hAD}, 3, v3"); A(f"v_lshlrev_b32 v{hAD}, 3, v{hAD}")
        A("s_sub_u32 s48, s3, 1"); A("s_lshl_b32 s48, s48, 8")
        A("s_waitcnt vmcnt(0) lgkmcnt(0)")
        STAMP(4)
        A("s_barrier")
        STAMP(5)
        for n in range(8): A(f"ds_read_b128 v[{P+4*n}:{P+4*n+3}], v{hLD} offset:{L_O+16*n}")
        A(f"ds_read_b32 v31, v30 offset:{L_SC}")
        BB=[12,16]
        def bp(t):
            if t%4==0: A(f"s_waitcnt lgkmcnt({8-t//4})")
            for r in range(4): A(f"v_and_b32 v{BB[t%2]+r}, v{P+t}, v{hM+r}")
        bp(0)
        for t in range(32):
            if t+1<32: bp(t+1)
            else: A("s_nop 0")
            A(f"v_mfma_f32_16x16x32_bf16 v[{hACC}:{hACC+3}], v[{WO+4*t}:{WO+4*t+3}], v[{BB[t%2]}:{BB[t%2]+3}], {'0' if t==0 else f'v[{hACC}:{hACC+3}]'}")
        A("s_waitcnt lgkmcnt(0)"); A("s_nop 6")
        combine(hACC,12)
        A("v_mul_f32 v12, v31, v12"); A("v_mul_f32 v13, v31, v13")
        A("v_min_u32 v12, -2, v12"); A("v_min_u32 v13, -2, v13")
        A("s_mov_b64 exec, s[60:61]")
        A(f"buffer_store_dwordx2 v[12:13], v{hAD}, s[36:39], s48 offen {SC}")
        A("s_mov_b64 exec, -1")

    A("L_buf:")
    if bprio: A(f"s_setprio {bprio}")
    k_setup()
    A("s_waitcnt lgkmcnt(0)")
    srd(84,6,7,"s35",1<<20)
    A("s_sub_u32 s47, s3, 4"); A("s_lshl_b32 s44, s47, 13")
    A("s_lshl_b32 s47, s47, 3"); A(f"v_add_u32 v{vSW}, s47, v{vSW}")
    bar0(True)
    for i in range(R):
        if i==N0:
            srd_slots()
            A("s_cmp_lg_u32 s3, 5"); A("s_cbranch_scc1 L_noclr")
            C("wave 5: clear own slot with the sentinel")
            A("v_lshlrev_b32 v1, 4, v0")
            A("s_cmp_ge_u32 s32, 28"); A("s_cselect_b32 s47, 0, -1")
            for k in range(4): A(f"v_mov_b32 v{32+k}, -1")
            for k in range(4): A(f"v_mov_b32 v{36+k}, s47")
            A("v_cmp_lt_u32 vcc, 47, v0"); A("s_nop 1")
            for k in range(4): A(f"v_cndmask_b32 v{40+k}, v36, v32, vcc")
            A(f"buffer_store_dwordx4 v[32:35], v1, s[36:39], 0 offen {SC}")
            A(f"buffer_store_dwordx4 v[32:35], v1, s[36:39], 0 offen offset:1024 {SC}")
            A(f"buffer_store_dwordx4 v[36:39], v1, s[36:39], 0 offen offset:2048 {SC}")
            A(f"buffer_store_dwordx4 v[40:43], v1, s[36:39], 0 offen offset:3072 {SC}")
            A("L_noclr:")
        if i>=N0: A(f"s_waitcnt vmcnt({N0-1})")
        r=slot(i)
        A(f"buffer_load_dwordx4 v[{r}:{r+3}], v{vK}, s[84:87], s44 offen offset:{128*(i%4)} {SF}")
        if i%4==3: A(f"s_add_u32 s44, s44, {4096 if i%8==3 else 4096+NB*8192}")
    bar0(False)
    STAMP(1)
    A("s_barrier")
    STAMP(2)
    if bprio: A("s_setprio 0")
    q_read()
    for c in range(R):
        A(f"s_waitcnt vmcnt({R-1-c})")
        pi=c//8
        k_consume(c, None if pi==0 else L_S+8*(NB+1)*(pi-1))
    k_flush(L_S+8*(NB+1)*(NP0-1))
    A("s_sub_u32 s47, s3, 4"); A("s_lshl_b32 s47, s47, 4")
    mx_publish("s47", vR)
    masks(hM,12,13)
    A("s_cmp_eq_u32 s3, 5"); A("s_cbranch_scc1 L_ffn0")
    if not wol: wo_issue()
    A("s_waitcnt lgkmcnt(0)")
    STAMP(3)
    A("s_barrier")
    if wol: wo_issue()
    A("s_cmp_eq_u32 s3, 7"); A("s_cbranch_scc1 L_tail")
    C("wave 6: softmax denominator, exchange (m,l) with partner, scale")
    A("v_mov_b32 v4, 0")
    for w in range(4): A(f"ds_read_b128 v[{64+4*w}:{64+4*w+3}], v4 offset:{L_MX+16*w}")
    A(f"v_mul_u32_u24 v5, {S_STR}, v2"); A("v_lshl_add_u32 v5, v3, 7, v5")
    for n in range(8): A(f"ds_read_b128 v[{32+4*n}:{32+4*n+3}], v5 offset:{L_S+16*n}")
    A("s_waitcnt lgkmcnt(8)")
    max12(6,64)
    A("v_mul_f32 v7, s34, v6"); A("v_sub_f32 v7, 0, v7")
    A("s_waitcnt lgkmcnt(0)")
    for k in range(32): A(f"v_fma_f32 v{32+k}, v{32+k}, s34, v7")
    for k in range(32): A(f"v_exp_f32 v{32+k}, v{32+k}")
    for st in (16,8,4,2,1):
        for k in range(st): A(f"v_add_f32 v{32+k}, v{32+k}, v{32+k+st}")
    wave_sum(32,33)
    C("v6=M v32=l")
    A("v_min_u32 v8, -2, v6"); A("v_min_u32 v9, -2, v32")
    A("s_mov_b64 exec, 1")
    A(f"buffer_store_dwordx2 v[8:9], off, s[36:39], 0 offset:3840 {SC}")
    A("s_mov_b64 exec, -1")
    cnt_wait(10)
    A("s_xor_b32 s47, s32, 1"); A("s_lshl_b32 s47, s47, 12"); A("s_mov_b32 s49, 400000")
    A("L_mlp:")
    A(f"buffer_load_dwordx2 v[10:11], off, s[40:43], s47 offset:3840 {SC}"); A("s_waitcnt vmcnt(0)")
    A("v_max_u32 v12, v10, v11"); A("v_cmp_eq_u32 vcc, -1, v12"); A("s_sub_u32 s49, s49, 1"); A("s_cbranch_scc1 L_mlx")
    A("s_cbranch_vccz L_mlx"); A("s_sleep 8"); A("s_branch L_mlp")
    A("L_mlx:")
    A("v_max_f32 v12, v6, v10")
    A("v_sub_f32 v13, v6, v12"); A("v_sub_f32 v14, v10, v12")
    A("v_mul_f32 v13, s34, v13"); A("v_mul_f32 v14, s34, v14")
    A("v_exp_f32 v13, v13"); A("v_exp_f32 v14, v14"); A("s_nop 0")
    A("v_mul_f32 v15, v13, v32"); A("v_fma_f32 v15, v14, v11, v15")
    A("v_rcp_f32 v15, v15"); A("s_nop 0"); A("v_mul_f32 v15, v15, v13")
    A(f"ds_write_b32 v4, v15 offset:{L_SC}")
    A("s_branch L_tail")

    A("L_help:")
    D0=32
    def layernorm(xr):
        for k in range(4):
            A(f"v_lshlrev_b32 v{8+2*k}, 16, v{xr+k}"); A(f"v_and_b32 v{9+2*k}, 0xffff0000, v{xr+k}")
        A("v_add_f32 v16, v8, v9"); A("v_add_f32 v17, v10, v11"); A("v_add_f32 v18, v12, v13"); A("v_add_f32 v19, v14, v15")
        A("v_add_f32 v16, v16, v17"); A("v_add_f32 v18, v18, v19"); A("v_add_f32 v16, v16, v18")
        wave_sum(16,17)
        A(f"v_mul_f32 v16, {f2u(1.0/448):#x}, v16")
        A("v_cmp_gt_u32 vcc, 56, v0"); A("v_cvt_pk_bf16_f32 v17, 0, v16"); A("s_nop 0")
        A("v_cndmask_b32 v16, 0, v16, vcc")
        A("v_sub_f32 v4, v8, v16"); A("v_mul_f32 v18, v4, v4")
        for k in range(1,8):
            A(f"v_sub_f32 v4, v{8+k}, v16"); A("v_fmac_f32 v18, v4, v4")
        wave_sum(18,19)
        A(f"v_mul_f32 v18, {f2u(1.0/448):#x}, v18")
        A("v_cvt_pk_bf16_f32 v18, 0, v18")
        A(f"v_add_f32 v18, {f2u(1e-5):#x}, v18")
        A("v_cvt_pk_bf16_f32 v18, 0, v18")
        A("v_sqrt_f32 v18, v18"); A("s_nop 0")
        A("v_cvt_pk_bf16_f32 v18, 0, v18")
        A("v_rcp_f32 v19, v18")
        for k in range(8):
            A(f"v_sub_f32 v{8+k}, v{8+k}, v17"); A(f"v_cvt_pk_bf16_f32 v{8+k}, 0, v{8+k}")
            A(f"v_mul_f32 v4, v{8+k}, v19"); A(f"v_fma_f32 v6, -v4, v18, v{8+k}"); A("v_fma_f32 v4, v6, v19, v4")
            A(f"v_cvt_pk_bf16_f32 v{8+k}, v4, v4")
    def gemv56(waits, issue_fn=None, bar_at=None):
        XX=[4,8]; BB=[12,16]
        A("s_waitcnt lgkmcnt(0)")
        A(f"ds_read_b128 v[4:7], v{hLD}"); A(f"ds_read_b128 v[8:11], v{hLD} offset:16")
        def bp(t):
            if t%4==0: A(f"s_waitcnt lgkmcnt({1 if t//4+1<14 else 0})")
            for r in range(4): A(f"v_and_b32 v{BB[t%2]+r}, v{XX[(t//4)%2]+t%4}, v{hM+r}")
            if t%4==3 and t//4+2<14:
                x=XX[(t//4)%2]; A(f"ds_read_b128 v[{x}:{x+3}], v{hLD} offset:{16*(t//4+2)}")
        bp(0)
        for t in range(56):
            if t+1<56: bp(t+1)
            else: A("s_nop 0")
            if issue_fn:
                if t+QD<56: issue_fn(t+QD)
                if t+QD==bar_at: A("s_barrier")
                A(f"s_waitcnt vmcnt({min(QD,55-t)})")
            elif waits: A(f"s_waitcnt vmcnt({55-t})")
            A(f"v_mfma_f32_16x16x32_bf16 v[{hACC}:{hACC+3}], v[{D0+4*t}:{D0+4*t+3}], v[{BB[t%2]}:{BB[t%2]+3}], {'0' if t==0 else f'v[{hACC}:{hACC+3}]'}")
        A("s_nop 7")
        combine(hACC,12)
    C("waves 1..4: q column block w-1 over all 448 rows, tile order rotated by 4*rot tiles")
    A("v_lshlrev_b32 v1, 4, v0")
    A(f"v_lshlrev_b32 v{hAD}, 13, v2"); A(f"v_lshl_add_u32 v{hAD}, v3, 4, v{hAD}")
    A("s_mul_i32 s47, s30, 896")
    A("s_lshl_b32 s48, s31, 9"); A("s_sub_u32 s49, s3, 1"); A("s_lshl_b32 s49, s49, 7"); A("s_add_u32 s48, s48, s49"); A(f"s_sub_u32 s49, {448*8192}, s48")
    if rot:
        A("s_mul_i32 s51, s30, 7"); A("s_lshr_b32 s51, s51, 2")
    else: A("s_mov_b32 s51, 0")
    A("s_waitcnt lgkmcnt(0)")
    srd(88,4,5,"s47",896)
    srd(52,10,11,"s48","s49")
    A("buffer_load_dwordx4 v[4:7], v1, s[88:91], 0 offen")
    A("s_lshl_b32 s48, s51, 18")
    def wq_load(t):
        A(f"buffer_load_dwordx4 v[{D0+4*t}:{D0+4*t+3}], v{hAD}, s[52:55], s48 offen {QF}")
        A("s_add_u32 s48, s48, 65536")
        if rot and t%4==3 and t<55: A(f"s_cmp_ge_u32 s48, {56*65536}"); A("s_cselect_b32 s48, 0, s48")
    def ln_part(wait):
        masks(hM,12,13)
        A(f"s_waitcnt vmcnt({wait})")
        layernorm(4)
        C("X'[e][t - 4*rot mod 56]")
        A("s_sub_u32 s47, s3, 1"); A(f"s_mul_i32 s47, s47, {X_SZ}"); A(f"s_add_u32 s47, s47, {L_X}")
        A("s_lshl_b32 s50, s51, 2"); A("v_subrev_u32 v5, s50, v0"); A("v_add_u32 v6, 56, v5"); A("v_min_u32 v5, v5, v6")
        A("v_cmp_lt_u32 vcc, 55, v0"); A("s_nop 1"); A("v_cndmask_b32 v5, v5, v0, vcc")
        A("v_lshl_add_u32 v5, v5, 2, s47")
        for k in range(8): A(f"ds_write_b32 v5, v{8+k} offset:{k*X_STR}")
        C("unrotated copy for the FFN (all four waves write the same values)")
        A("v_lshlrev_b32 v5, 2, v0")
        for k in range(8): A(f"ds_write_b32 v5, v{8+k} offset:{L_X+4*X_SZ+k*X_STR}")
        A(f"v_mul_u32_u24 v{hLD}, {X_STR}, v2"); A(f"v_add_u32 v{hLD}, s47, v{hLD}")
    if stag:
        A("s_cmp_eq_u32 s28, 1"); A("s_cbranch_scc1 L_q1")
        for t in range(QD): wq_load(t)
        ln_part(QD); gemv56(True, wq_load, 55); A("s_branch L_q2")
        A("L_q1:")
        ln_part(0); A("s_barrier")
        for t in range(QD): wq_load(t)
        gemv56(True, wq_load, None)
        A("L_q2:")
    else:
        for t in range(QD): wq_load(t)
        A("s_barrier"); ln_part(QD); gemv56(True, wq_load, None)
    C("q -> bf16 -> LDS: addr = m*128 + (4*rowq+hi)*16 + j*2 (+32 for the second register)")
    A("v_cvt_pk_bf16_f32 v12, v12, v13")
    A("v_bfe_u32 v4, v0, 4, 1"); A("v_lshrrev_b32 v5, 5, v0"); A("v_lshl_add_u32 v4, v4, 2, v5"); A("v_lshlrev_b32 v4, 4, v4"); A("v_lshl_add_u32 v4, v3, 1, v4")
    A("s_sub_u32 s47, s3, 1"); A("s_lshl_b32 s47, s47, 7"); A("v_add_u32 v4, s47, v4")
    A("s_mov_b64 exec, s[60:61]")
    A(f"ds_write_b16 v4, v12 offset:{L_Q}"); A(f"ds_write_b16_d16_hi v4, v12 offset:{L_Q+32}")
    A("s_mov_b64 exec, -1")
    A("s_waitcnt lgkmcnt(0)")
    STAMP(1)
    A("s_barrier")
    STAMP(2)
    srd_slots()
    A("s_cmp_eq_u32 s3, 1"); A("s_cbranch_scc1 L_ffn")
    if not wol: wo_issue()
    STAMP(3)
    A("s_barrier")
    if wol: wo_issue()
    A("L_tail:")
    tail_gemv()
    if not stamp: STAMP(6)
    stamp_out()
    A("s_endpgm")

    A("L_ffn:")
    C("wave 1: FFN slice pidx (64 hidden units) for batch b")
    if noffn: A("s_barrier")
    A("s_cmp_ge_u32 s32, 28"); A("s_cbranch_scc1 L_q3")
    A("s_lshl_b32 s48, s32, 7"); A(f"s_sub_u32 s49, {448*3584}, s48"); srd(52,16,17,"s48","s49")
    A(f"v_mul_u32_u24 v{hAD}, 3584, v2"); A(f"v_lshl_add_u32 v{hAD}, v3, 4, v{hAD}")
    A("s_mov_b32 s48, 0")
    A(f"v_mul_u32_u24 v{hLD}, {X_STR}, v2"); A(f"v_add_u32 v{hLD}, {L_X+4*X_SZ}, v{hLD}")
    for t in range(0 if skipffn else 56):
        if t>=NF: A(f"s_waitcnt vmcnt({NF-1})")
        A(f"buffer_load_dwordx4 v[{D0+4*t}:{D0+4*t+3}], v{hAD}, s[52:55], s48 offen {HF}")
        A(f"s_add_u32 s48, s48, {8*3584}")
    A("s_waitcnt vmcnt(0)")
    gemv56(False)
    C("w2 loads (tile t, block beta) -> D0 + 4*(7t+beta)")
    A(f"s_mul_i32 s48, s32, {64*896}"); A(f"s_sub_u32 s49, {1792*896}, s48"); srd(52,18,19,"s48","s49")
    A(f"v_mul_u32_u24 v{hAD}, 896, v2"); A(f"v_lshl_add_u32 v{hAD}, v3, 4, v{hAD}")
    A("s_mov_b32 s48, 0")
    for t in range(0 if skipffn else 8):
        for be in range(7):
            i=7*t+be
            if i>=NF: A(f"s_waitcnt vmcnt({NF-1})")
            A(f"buffer_load_dwordx4 v[{D0+4*i}:{D0+4*i+3}], v{hAD}, s[52:55], s48 offen offset:{128*be} {HF}")
        A("s_add_u32 s48, s48, 7168")
    C("h -> bf16 -> silu -> bf16 (dup) -> LDS H[g=j][T=4*rowq+hi+2s]")
    for k in (12,13):
        A(f"v_cvt_pk_bf16_f32 v{k}, 0, v{k}")
        A(f"v_mul_f32 v4, {f2u(-math.log2(math.e)):#x}, v{k}"); A("v_exp_f32 v4, v4"); A("s_nop 0")
        A("v_add_f32 v4, 1.0, v4"); A("v_rcp_f32 v4, v4"); A("s_nop 0")
        A(f"v_mul_f32 v{k}, v{k}, v4"); A(f"v_cvt_pk_bf16_f32 v{k}, v{k}, v{k}")
    A("v_bfe_u32 v4, v0, 4, 1"); A("v_lshrrev_b32 v5, 5, v0"); A("v_lshl_add_u32 v4, v4, 2, v5"); A("v_lshlrev_b32 v4, 2, v4")
    A(f"v_mul_u32_u24 v5, {H_STR}, v3"); A("v_add_u32 v4, v4, v5")
    A("s_mov_b64 exec, s[60:61]")
    A(f"ds_write_b32 v4, v12 offset:{L_H}"); A(f"ds_write_b32 v4, v13 offset:{L_H+8}")
    A("s_mov_b64 exec, -1")
    A(f"v_mul_u32_u24 v5, {H_STR}, v2")
    A("s_waitcnt lgkmcnt(0)")
    A(f"ds_read_b128 v[4:7], v5 offset:{L_H}"); A(f"ds_read_b128 v[8:11], v5 offset:{L_H+16}")
    A("s_waitcnt vmcnt(0) lgkmcnt(0)")
    A(f"v_lshrrev_b32 v{hAD}, 4, v0"); A(f"v_lshl_add_u32 v{hAD}, v{hAD}, 3, v3"); A(f"v_lshlrev_b32 v{hAD}, 3, v{hAD}")
    for be in range(7):
        BB=[12,16]
        for t in range(8):
            for r in range(4): A(f"v_and_b32 v{BB[t%2]+r}, v{4+t}, v{hM+r}")
            A("s_nop 1")
            i=7*t+be
            A(f"v_mfma_f32_16x16x32_bf16 v[{hACC}:{hACC+3}], v[{D0+4*i}:{D0+4*i+3}], v[{BB[t%2]}:{BB[t%2]+3}], {'0' if t==0 else f'v[{hACC}:{hACC+3}]'}")
        A("s_nop 7")
        combine(hACC,30)
        A("v_min_u32 v30, -2, v30"); A("v_min_u32 v31, -2, v31")
        A("s_mov_b64 exec, s[60:61]")
        A(f"buffer_store_dwordx2 v[30:31], v{hAD}, s[36:39], 0 offen offset:{2048+256*be} {SC}")
        A("s_mov_b64 exec, -1")
    A("L_q3:")
    STAMP(3)
    if not noffn: A("s_barrier")
    wo_issue()
    A("s_branch L_tail")

    A("L_ffn0:")
    C("wave 5: the clear stores completed before barrier 1: count them")
    A("v_mov_b32 v8, 1"); A("s_lshl_b32 s47, s30, 2")
    A("s_mov_b64 exec, 1")
    A(f"buffer_atomic_add v8, off, s[56:59], s47 {SC}")
    A("s_mov_b64 exec, -1")
    A("s_mul_i32 s47, s30, 896"); srd(88,4,5,"s47",896)
    if not wol: wo_issue()
    A("L_noffn:")
    STAMP(3)
    A("s_waitcnt lgkmcnt(0)")
    A("s_barrier")
    if wol: wo_issue()
    A("s_cmp_ge_u32 s32, 28"); A("s_cbranch_scc1 L_tail")
    C("consumer setup: gather address v64, column byte offset v65, x value v66, FFN value v67")
    A("v_lshrrev_b32 v64, 2, v0"); A("v_lshlrev_b32 v64, 12, v64"); A("v_and_b32 v4, 3, v0"); A("v_lshl_add_u32 v64, v4, 4, v64")
    A("s_lshl_b32 s47, s32, 6"); A("v_add_u32 v64, s47, v64")
    C("col = 64*(k>>2) + 32*(k&1) + 8*((k>>1)&1) + 16*(rho&1) + 2*qd + (rho>>1), rho=(l>>2)&3, qd=l&3")
    A("s_lshr_b32 s47, s32, 2"); A("s_lshl_b32 s47, s47, 6"); A("s_and_b32 s48, s32, 1"); A("s_lshl_b32 s48, s48, 5"); A("s_add_u32 s47, s47, s48")
    A("s_bfe_u32 s48, s32, 0x10001"); A("s_lshl_b32 s48, s48, 3"); A("s_add_u32 s47, s47, s48")
    A("v_bfe_u32 v5, v0, 2, 1"); A("v_lshlrev_b32 v5, 4, v5"); A("v_lshl_add_u32 v5, v4, 1, v5"); A("v_bfe_u32 v6, v0, 3, 1"); A("v_add3_u32 v65, v5, v6, s47")
    A("v_lshlrev_b32 v65, 1, v65")
    A("buffer_load_ushort v66, v65, s[88:91], 0 offen")
    cnt_wait(4)
    gather(2048, 68, 64, 8)
    A("v_cvt_pk_bf16_f32 v67, 0, v68"); A("v_lshlrev_b32 v66, 16, v66")
    A("s_mul_i32 s47, s30, 896"); srd(92,20,21,"s47",896)
    tail_gemv()
    gather(0, 68, 64, 0)
    A("v_cvt_pk_bf16_f32 v68, 0, v68"); A("v_add_f32 v68, v66, v68"); A("v_cvt_pk_bf16_f32 v68, 0, v68"); A("v_add_f32 v68, v68, v67")
    A("v_cvt_pk_bf16_f32 v68, v68, v68")
    A("s_mov_b64 exec, 0xffff")
    A("buffer_store_short v68, v65, s[92:95], 0 offen")
    A("s_mov_b64 exec, -1")
    STAMP(6)
    stamp_out(role="f")
    A("L_end:")
    A("s_endpgm")
    body="\n".join(("" if (l.endswith(":") or l.startswith(".")) else "    ")+l for l in L)+"\n"
    ldsz=lds if lds else L_END
    head=HEADER+f"; @launch grid=(256,1,1) block=(512,1,1) lds={ldsz}\n"
    return head+body+kd(NAME,256,102,256), ldsz

if __name__=="__main__":
    kw=eval("dict(%s)"%(sys.argv[2] if len(sys.argv)>2 else ""))
    t,ldsz=gen(**kw)
    out=sys.argv[1]
    if out.endswith(".s"): open(out,"w").write(t)
    else:
        assemble(t+meta([(NAME,256,102,512)]), out); print(f"work/{out}:{NAME},256,512,{ldsz}")
```

```python
import sys, math
from common import *

NAME="parallel_sum__mha_block_cached__dense_activation_silu__decode_kernel"
HEADER=open("parallel_sum__mha_block_cached__dense_activation_silu__decode.s.ref").read().split("; Override launch")[0]

L_Q=0; L_MX=512; L_SC=576; L_S=1024; S_STR=1040; L_O=L_S+8*S_STR; O_STR=144
L_X=L_O+8*O_STR; X_STR=272; X_SZ=8*X_STR; L_H=L_X+5*X_SZ; H_STR=48; L_X2=L_H+8*H_STR; X2_STR=80; X2_SZ=8*X2_STR; L_CNT=580; L_PRG=584; L_CTL=588; L_END=L_X2
CEXP=math.log2(math.e)/16.0
import struct
def f2u(f): return struct.unpack("<I",struct.pack("<f",f))[0]

def gen(N=22, N0=10, R=48, NF=4, NW=2, stamp=False, catchup=True, SC="sc1", lds=None, wol=0, noffn=0, HF="", QF="", ch=2, bprio=3, qprio=0, dbg=0, calib=0, SF="nt", HB=0, stag=1, rot=1, NK=None, skipwo=0, skipffn=0, QD=12, ctl=(18,24,30), TH=6, BIAS=0, NREF=4, smon=1, nopub=0, noread=0, PSC=None, msleep=16, gref=0, full=0, PD=2, RD=2, RPH=0, nobst=0, noclr=0, noml=0, ctlK=None):
    L=[]; A=L.append
    def C(s): A("    ; "+s)
    A('.amdgcn_target "amdgcn-amd-amdhsa--gfx950"'); A(".text"); A(f".globl {NAME}"); A(".p2align 8"); A(f".type {NAME},@function"); A(f"{NAME}:")
    nst=[0]; lbl0=[0]
    def STAMP(i):
        if stamp or dbg or (calib and i==0): A(f"s_memrealtime s[{70+2*i}:{71+2*i}]")
    A("s_cmp_ge_u32 s2, 256"); A("s_cbranch_scc1 L_end")
    STAMP(0)
    A("s_load_dwordx16 s[4:19], s[0:1], 0")
    A("s_load_dwordx4 s[20:23], s[0:1], 64")
    A("s_load_dwordx2 s[24:25], s[0:1], 80")
    A("v_lshrrev_b32 v1, 6, v0"); A("v_and_b32 v0, 63, v0"); A("v_readfirstlane_b32 s3, v1")
    A("s_and_b32 s26, s2, 7"); A("s_lshr_b32 s27, s2, 3"); A("s_and_b32 s28, s27, 1")
    if HB==0:
        A("s_bfe_u32 s29, s27, 0x10001"); A("s_lshr_b32 s30, s27, 2")
        A("s_lshl_b32 s29, s29, 3"); A("s_add_u32 s31, s26, s29")
    else:
        A(f"s_bfe_u32 s29, s27, {(HB<<16)|1:#x}")
        A(f"s_lshr_b32 s30, s27, {1+HB}")
        A(f"s_and_b32 s31, s26, {(1<<(4-HB))-1}"); A(f"s_lshl_b32 s31, s31, {HB}"); A("s_add_u32 s31, s31, s29")
        A(f"s_lshr_b32 s29, s26, {4-HB}"); A(f"s_lshl_b32 s29, s29, {4-HB}"); A("s_add_u32 s30, s30, s29")
    A("s_lshl_b32 s32, s31, 1"); A("s_add_u32 s32, s32, s28")
    A("s_lshl_b32 s33, s30, 5"); A("s_add_u32 s33, s33, s32")
    C("s30=b s31=h s32=pidx s33=gidx ; v2=g v3=e")
    A("v_lshrrev_b32 v2, 3, v0"); A("v_and_b32 v3, 7, v0")
    A(f"s_mov_b32 s34, {f2u(CEXP):#x}")
    A("s_mov_b32 s60, 0x00ff00ff"); A("s_mov_b32 s61, 0x00ff00ff")
    A("s_cmp_eq_u32 s3, 0"); A("s_cbranch_scc1 L_stream")
    A("s_cmp_ge_u32 s3, 5"); A("s_cbranch_scc1 L_buf")
    A("s_branch L_help")

    def srd(d, lo, hi, off_sgpr, size):
        if off_sgpr is None:
            A(f"s_mov_b32 s{d}, s{lo}"); A(f"s_mov_b32 s{d+1}, s{hi}")
        else:
            A(f"s_add_u32 s{d}, s{lo}, {off_sgpr}"); A(f"s_addc_u32 s{d+1}, s{hi}, 0")
        A(f"s_mov_b32 s{d+2}, {size}"); A(f"s_mov_b32 s{d+3}, 0x20000")
    def masks(base,t0,t1):
        A(f"v_and_b32 v{t0}, 1, v3"); A(f"v_lshlrev_b32 v{t0}, 4, v{t0}"); A(f"v_mov_b32 v{t1}, 0xffff"); A(f"v_lshlrev_b32 v{t0}, v{t0}, v{t1}")
        A(f"v_lshrrev_b32 v{t1}, 1, v3")
        for r in range(4):
            A(f"v_cmp_eq_u32 vcc, {r}, v{t1}"); A("s_nop 1"); A(f"v_cndmask_b32 v{base+r}, 0, v{t0}, vcc")
    def stamp_out(tmp=4, role=""):
        if dbg:
            A("s_waitcnt vmcnt(0) lgkmcnt(0)")
            A("s_memrealtime s[82:83]")
            A("s_mov_b64 exec, 1")
            srd(64,22,23,None,256)
            A("s_waitcnt lgkmcnt(0)")
            def um(word, sreg, inv=False):
                if inv: A(f"s_not_b32 s68, s{sreg}"); A(f"v_mov_b32 v{tmp}, s68")
                else: A(f"v_mov_b32 v{tmp}, s{sreg}")
                A(f"buffer_atomic_umax v{tmp}, off, s[64:67], 0 offset:{4*word} sc1"); A("s_waitcnt vmcnt(0)")
            if role=="s":
                um(1,70,True); um(7,70); um(3,78); um(5,74); um(6,76); um(9,78,True); um(10,74,True)
            if role=="f":
                um(2,82)
            return
        if not stamp: return
        A("s_waitcnt lgkmcnt(0)")
        A("s_mov_b64 exec, 1")
        srd(64,24,25,None,0x40000000)
        A("s_lshl_b32 s68, s2, 3"); A("s_add_u32 s68, s68, s3"); A("s_lshl_b32 s68, s68, 5"); A("s_add_u32 s68, s68, 0x20000000")
        A("s_getreg_b32 s69, hwreg(HW_REG_XCC_ID)")
        for i in range(7): A(f"v_mov_b32 v{tmp+i}, s{70+2*i}")
        A(f"v_mov_b32 v{tmp+7}, s69")
        A(f"buffer_store_dwordx4 v[{tmp}:{tmp+3}], off, s[64:67], s68")
        A(f"buffer_store_dwordx4 v[{tmp+4}:{tmp+7}], off, s[64:67], s68 offset:16")
        A("s_waitcnt vmcnt(0)")

    RING=256-4*R
    vK=4; vV=5; vSW=6; vSR=7; vMX=8; vR=9; vR2=10; vA=[11,12]; vB=[13,14]; vQ=16
    def slot(i): return RING+4*(i%R)
    def k_consume(c, dsoff):
        p=c%8; m=p%4; acc=vA if p<4 else vB; r=slot(c)
        for k in range(4):
            if ch==2:
                src2 = "0" if (m==0 and k<2) else f"v{acc[k%2]}"
                A(f"v_dot2_f32_bf16 v{acc[k%2]}, v{r+k}, v{vQ+4*m+k}, {src2}")
            elif ch==4:
                a4=(acc+([32,33] if p<4 else [34,35]))[k]
                if m==0: A(f"v_dot2_f32_bf16 v{a4}, v{r+k}, v{vQ+4*m+k}, 0")
                else: A(f"v_dot2c_f32_bf16 v{a4}, v{r+k}, v{vQ+4*m+k}")
        k_post(p, dsoff)
    def k_post(p, dsoff):
        prev = dsoff is not None
        if p==0 and prev:
            if ch==4: A(f"v_add_f32 v{vB[0]}, v{vB[0]}, v34"); A(f"v_add_f32 v{vB[1]}, v{vB[1]}, v35")
            A(f"v_add_f32 v{vB[0]}, v{vB[0]}, v{vB[1]}")
        if p==1 and prev: A(f"v_add_f32_dpp v{vR}, v{vB[0]}, v{vB[0]} row_half_mirror row_mask:0xf bank_mask:0xa")
        if p==2 and prev: A(f"v_add_f32_dpp v{vR}, v{vR}, v{vR} quad_perm:[1,0,3,2] row_mask:0xf bank_mask:0xf")
        if p==3 and prev: A(f"v_add_f32_dpp v{vR}, v{vR}, v{vR} quad_perm:[2,3,0,1] row_mask:0xf bank_mask:0xf")
        if p==4:
            if prev: A(f"v_cvt_pk_bf16_f32 v{vR2}, 0, v{vR}")
            if ch==4: A(f"v_add_f32 v{vA[0]}, v{vA[0]}, v32"); A(f"v_add_f32 v{vA[1]}, v{vA[1]}, v33")
            A(f"v_add_f32 v{vA[0]}, v{vA[0]}, v{vA[1]}")
        if p==5:
            if prev:
                A(f"v_max_f32 v{vMX}, v{vMX}, v{vR2}"); A(f"ds_write_b32 v{vSW}, v{vR2} offset:{dsoff}")
            A(f"v_add_f32_dpp v{vR}, v{vA[0]}, v{vA[0]} row_half_mirror row_mask:0xf bank_mask:0x5")
    def k_flush(dsoff):
        A("s_nop 2")
        if ch==4: A(f"v_add_f32 v{vB[0]}, v{vB[0]}, v34"); A(f"v_add_f32 v{vB[1]}, v{vB[1]}, v35")
        A(f"v_add_f32 v{vB[0]}, v{vB[0]}, v{vB[1]}"); A("s_nop 1")
        A(f"v_add_f32_dpp v{vR}, v{vB[0]}, v{vB[0]} row_half_mirror row_mask:0xf bank_mask:0xa"); A("s_nop 1")
        A(f"v_add_f32_dpp v{vR}, v{vR}, v{vR} quad_perm:[1,0,3,2] row_mask:0xf bank_mask:0xf"); A("s_nop 1")
        A(f"v_add_f32_dpp v{vR}, v{vR}, v{vR} quad_perm:[2,3,0,1] row_mask:0xf bank_mask:0xf")
        A(f"v_cvt_pk_bf16_f32 v{vR2}, 0, v{vR}")
        A(f"v_max_f32 v{vMX}, v{vMX}, v{vR2}"); A(f"ds_write_b32 v{vSW}, v{vR2} offset:{dsoff}")
    def mx_publish(w, tmp):
        A("s_nop 1")
        A(f"v_max_f32_dpp v{vMX}, v{vMX}, v{vMX} row_ror:4 row_mask:0xf bank_mask:0xf"); A("s_nop 1")
        A(f"v_max_f32_dpp v{vMX}, v{vMX}, v{vMX} row_ror:8 row_mask:0xf bank_mask:0xf")
        A(f"v_lshrrev_b32 v{tmp}, 4, v0"); A(f"v_lshlrev_b32 v{tmp}, 2, v{tmp}")
        if isinstance(w,int): A(f"ds_write_b32 v{tmp}, v{vMX} offset:{L_MX+16*w}")
        else:
            A(f"v_add_u32 v{tmp}, {w}, v{tmp}"); A(f"ds_write_b32 v{tmp}, v{vMX} offset:{L_MX}")
    def k_setup():
        A(f"v_lshlrev_b32 v{vK}, 9, v2"); A(f"v_lshl_add_u32 v{vK}, v3, 4, v{vK}")
        A(f"v_mul_u32_u24 v{vSW}, {S_STR}, v2"); A(f"v_lshrrev_b32 v{vSR}, 2, v3"); A(f"v_lshl_add_u32 v{vSW}, v{vSR}, 2, v{vSW}")
        A(f"v_mov_b32 v{vMX}, 0xff800000")
        A("s_lshl_b32 s35, s33, 20")
    def q_read():
        A(f"v_lshlrev_b32 v{vR}, 4, v3")
        for m in range(4): A(f"ds_read_b128 v[{vQ+4*m}:{vQ+4*m+3}], v{vR} offset:{L_Q+128*m}")
        A("s_waitcnt lgkmcnt(0)")
    NP0=R//8
    assert R%8==0
    NB=3
    NKS=1024-NB*R
    NTOT=NKS+1024

    A("L_stream:")
    A("s_setprio 3")
    k_setup()
    A(f"v_lshrrev_b32 v{vV}, 4, v0"); A(f"v_lshlrev_b32 v{vV}, 10, v{vV}"); A(f"v_and_b32 v{vSR}, 15, v0"); A(f"v_lshl_add_u32 v{vV}, v{vSR}, 4, v{vV}")
    A("s_waitcnt lgkmcnt(0)")
    srd(36,6,7,"s35",1<<20); srd(40,8,9,"s35",1<<20)
    A("s_mov_b32 s44, 0"); A("s_mov_b32 s45, 0")
    vZ=36; vPC=37; vPP=38
    if ctl:
        A(f"v_mov_b32 v{vZ}, 0"); A(f"ds_write_b32 v{vZ}, v{vZ} offset:{L_PRG}"); A("s_mov_b32 s47, 2")
    def issue(i):
        r=slot(i)
        if i<NKS:
            A(f"buffer_load_dwordx4 v[{r}:{r+3}], v{vK}, s[36:39], s44 offen offset:{128*(i%4)} {SF}")
            if i%4==3:
                inc=4096
                if i<R and i%8==7: inc=4096+NB*8192
                A(f"s_add_u32 s44, s44, {inc}")
        elif i<NTOT:
            u=i-NKS
            A(f"buffer_load_dwordx4 v[{r}:{r+3}], v{vV}, s[40:43], s45 offen offset:{256*(u%4)} {SF}")
            if u%4==3: A("s_add_u32 s45, s45, 4096")
    DK=R-1
    def bar0(first):
        if not stag:
            if first: A("s_barrier")
            return
        lbl0[0]+=1
        A(f"s_cmp_eq_u32 s28, {1 if first else 0}"); A(f"s_cbranch_scc1 L_b0_{lbl0[0]}"); A("s_barrier"); A(f"L_b0_{lbl0[0]}:")
    bar0(True)
    for i in range(DK):
        if i>=N0: A(f"s_waitcnt vmcnt({N0-1})")
        issue(i)
    bar0(False)
    STAMP(1)
    A("s_barrier")
    STAMP(2)
    q_read()
    cur=[None]
    def pair_T(pi):
        return 2*((NB+1)*pi) if pi<NP0 else 2*((NB+1)*NP0+(pi-NP0))
    def kstep(c, dsbase):
        I=c+DK
        A(f"s_waitcnt vmcnt({min((cur[0] or NK or N)-1,I-c-1)})")
        issue(I)
        pi=c//8
        k_consume(c, None if pi==0 else L_S+4*pair_T(pi-1)-dsbase)
    for c in range(0,2*R): kstep(c,0)
    nK=(NKS-DK-2*R)//R
    A(f"s_mov_b32 s46, {nK}")
    def loop_variants(tag, body, post, zr, cr, pr, lv):
        if not ctl:
            A(f"L_{tag}:"); body(N); post()
            A("s_sub_u32 s46, s46, 1"); A("s_cmp_lg_u32 s46, 0"); A(f"s_cbranch_scc1 L_{tag}")
            return
        order=[1,0,2]
        for k,v in enumerate(order):
            A(f"L_{tag}{v}:")
            A(f"ds_read_b32 v{cr}, v{zr} offset:{L_CTL}")
            body(lv[v]); post()
            A("s_add_u32 s47, s47, 1"); A(f"v_mov_b32 v{pr}, s47")
            A("s_waitcnt lgkmcnt(0)")
            A(f"v_readfirstlane_b32 s48, v{cr}")
            A(f"ds_write_b32 v{zr}, v{pr} offset:{L_PRG}")
            A("s_sub_u32 s46, s46, 1"); A("s_cmp_eq_u32 s46, 0"); A(f"s_cbranch_scc1 L_{tag}x")
            others=[w for w in (0,1,2) if w!=v]
            A(f"s_cmp_eq_u32 s48, {v}"); A(f"s_cbranch_scc1 L_{tag}{v}")
            A(f"s_cmp_eq_u32 s48, {others[0]}"); A(f"s_cbranch_scc1 L_{tag}{others[0]}")
            A(f"s_branch L_{tag}{others[1]}")
        A(f"L_{tag}x:")
    def kbody(n):
        cur[0]=n
        for c in range(2*R,3*R): kstep(c,0)
        cur[0]=None
    loop_variants("kloop", kbody, lambda: A(f"v_add_u32 v{vSW}, {R}, v{vSW}"), vZ, vPC, vPP, ctlK or ctl)
    dsb=nK*R
    for c in range((2+nK)*R,NKS): kstep(c,dsb)
    k_flush(L_S+4*pair_T(NKS//8-1)-dsb)
    mx_publish(0, vR)
    vM=[12,13,14,15]; vNM=11; vT=9; vP=10; vACC=16; vBB=[32,36]; vSS=[40,44,48]; vTM=52
    assert vTM+12<=RING
    masks(vM[0], vTM, vTM+1)
    A(f"v_mul_u32_u24 v{vSR}, {S_STR}, v2")
    A(f"v_mov_b32 v{vT}, 0")
    A("s_waitcnt lgkmcnt(0)")
    STAMP(3)
    A("s_barrier")
    for w in range(4): A(f"ds_read_b128 v[{48+4*w}:{48+4*w+3}], v{vT} offset:{L_MX+16*w}")
    A(f"ds_read_b128 v[{vSS[0]}:{vSS[0]+3}], v{vSR} offset:{L_S}")
    inext=[NKS+DK]
    A(f"s_waitcnt vmcnt({N-1})")
    issue(inext[0]); inext[0]+=1
    for r in range(16): A(f"v_mov_b32 v{vACC+r}, 0")
    A("s_waitcnt lgkmcnt(0)")
    def max12(dst,b):
        A(f"v_max3_f32 v{dst}, v{b}, v{b+1}, v{b+2}")
        for k in range(3,15,2): A(f"v_max3_f32 v{dst}, v{dst}, v{b+k}, v{b+k+1}")
        A(f"v_max_f32 v{dst}, v{dst}, v{b+15}")
    max12(vNM,48)
    A(f"v_mul_f32 v{vNM}, s34, v{vNM}"); A(f"v_sub_f32 v{vNM}, 0, v{vNM}")
    def bprep(tile, part):
        s=vSS[(tile//4)%3]+tile%4; b=vBB[tile%2]
        if part==0: A(f"v_fma_f32 v{vT}, v{s}, s34, v{vNM}")
        if part==1: A(f"v_exp_f32 v{vT}, v{vT}")
        if part==2: A(f"v_cvt_pk_bf16_f32 v{vP}, v{vT}, v{vT}"); A(f"v_and_b32 v{b}, v{vP}, v{vM[0]}")
        if part==3:
            for r in range(1,4): A(f"v_and_b32 v{b+r}, v{vP}, v{vM[r]}")
    bprep(0,0); bprep(0,1); A("s_nop 0"); bprep(0,2); bprep(0,3); A("s_nop 1")
    def vconsume(u, srbase, mark):
        tile=u//4; q=u%4; r=slot(NKS+u); b=vBB[tile%2]
        if q==0 and tile%4==0 and tile+4<256:
            nb=vSS[(tile//4+1)%3]
            A(f"ds_read_b128 v[{nb}:{nb+3}], v{vSR} offset:{L_S+4*(tile+4)-srbase}")
        if q==0 and tile%4==3 and tile+1<256: A("s_waitcnt lgkmcnt(0)")
        a=vACC+4*q
        if q==0 and len(L)-mark<2: A(f"s_nop {1-(len(L)-mark)}")
        A(f"v_mfma_f32_16x16x32_bf16 v[{a}:{a+3}], v[{r}:{r+3}], v[{b}:{b+3}], v[{a}:{a+3}]")
        if tile+1<256: bprep(tile+1,q)
    def vstep(u, srbase, do_issue=True):
        c=NKS+u; I=inext[0]; mark=len(L)
        if do_issue and I<NTOT:
            A(f"s_waitcnt vmcnt({min((cur[0] or N)-1,I-c-1)})")
            assert I-R < c
            issue(I); inext[0]+=1
        else:
            k=I-c-1
            if k<N: A(f"s_waitcnt vmcnt({k})")
        vconsume(u,srbase,mark)
    u=0
    DV=(max(ctl) if ctl else N) if catchup else R-1
    first=True
    while True:
        D=inext[0]-(NKS+u)
        if D<=DV and u%R==0: break
        if D>DV:
            vstep(u,0,do_issue=False); u+=1
            D=inext[0]-(NKS+u)
            if D>DV or u%R!=0:
                if D>=DV: vstep(u,0,True); u+=1
        else:
            vstep(u,0,True); u+=1
    D=inext[0]-(NKS+u)
    assert D==DV and u%R==0 and (R//16)%3==0 and R%16==0, (D,DV,u)
    u0=u
    PKEND=2+nK; PV0=(inext[0]+R//2)//R-1;
    nV=(1024-DV-u0)//R
    while u0+nV*R+16>1024: nV-=1
    PVEND=PV0+nV
    A(f"s_mov_b32 s46, {nV}")
    if ctl:
        A("v_mov_b32 v6, 0"); A(f"s_mov_b32 s47, {PV0}")
    i0=inext[0]
    def vbody(n):
        cur[0]=n; inext[0]=i0
        for uu in range(u0,u0+R): vstep(uu,0,True)
        cur[0]=None
    loop_variants("vloop", vbody, lambda: A(f"v_add_u32 v{vSR}, {R}, v{vSR}"), 6, 4, 8, ctl)
    inext[0]=i0+nV*R
    for uu in range(u0+nV*R,1024): vstep(uu,nV*R,True)
    STAMP(4)
    A(f"v_lshrrev_b32 v{vT}, 4, v0"); A(f"v_lshlrev_b32 v{vT}, 4, v{vT}"); A(f"v_mul_u32_u24 v{vP}, {O_STR}, v3"); A(f"v_add_u32 v{vT}, v{vT}, v{vP}")
    A("s_nop 3")
    for hf in range(2):
        for r in range(4):
            A(f"v_add_f32_dpp v{vTM+4*hf+r}, v{vACC+8+4*hf+r}, v{vACC+4*hf+r} row_ror:8 row_mask:0xf bank_mask:0xf")
    for k in range(8): A(f"v_cvt_pk_bf16_f32 v{vTM+k}, v{vTM+k}, v{vTM+k}")
    A("s_mov_b64 exec, s[60:61]")
    A(f"ds_write_b128 v{vT}, v[{vTM}:{vTM+3}] offset:{L_O}")
    A(f"ds_write_b128 v{vT}, v[{vTM+4}:{vTM+7}] offset:{L_O+64}")
    A("s_waitcnt lgkmcnt(0)")
    A("s_barrier")
    STAMP(5)
    if calib:
        A("L_cal:"); A("s_memrealtime s[72:73]"); A("s_waitcnt lgkmcnt(0)"); A("s_sub_u32 s72, s72, s70"); A(f"s_cmp_lt_u32 s72, {calib}"); A("s_cbranch_scc1 L_cal")
    stamp_out(role="s")
    A("s_endpgm")

    hM=20
    hACC=24
    hAD=28; hLD=29
    WO=128
    def wo_issue():
        C("wo block loads, c = wave-1")
        A("s_mul_i32 s47, s31, 229376"); A("s_sub_u32 s48, s3, 1"); A("s_lshl_b32 s48, s48, 7"); A("s_add_u32 s47, s47, s48")
        A(f"s_sub_u32 s48, {4096*896}, s47")
        srd(52,12,13,"s47","s48")
        A(f"v_mul_u32_u24 v{hAD}, 896, v2"); A(f"v_lshl_add_u32 v{hAD}, v3, 4, v{hAD}")
        A("s_mov_b32 s47, 0")
        for t in range(0 if skipwo else 32):
            if t>=NW: A(f"s_waitcnt vmcnt({NW-1})")
            A(f"buffer_load_dwordx4 v[{WO+4*t}:{WO+4*t+3}], v{hAD}, s[52:55], s47 offen {HF}")
            A("s_add_u32 s47, s47, 7168")
    def combine(acc, dst):
        A(f"v_permlane32_swap_b32 v{acc}, v{acc+1}"); A(f"v_permlane32_swap_b32 v{acc+2}, v{acc+3}")
        A("s_nop 1")
        A(f"v_add_f32_dpp v{dst}, v{acc+1}, v{acc} row_ror:8 row_mask:0xf bank_mask:0xf")
        A(f"v_add_f32_dpp v{dst+1}, v{acc+3}, v{acc+2} row_ror:8 row_mask:0xf bank_mask:0xf")
    def wave_sum(v,t,op="add"):
        for pat in ["quad_perm:[1,0,3,2]","quad_perm:[2,3,0,1]","row_half_mirror","row_mirror"]:
            A("s_nop 1"); A(f"v_{op}_f32_dpp v{v}, v{v}, v{v} {pat} row_mask:0xf bank_mask:0xf")
        for sw in ["16","32"]:
            A(f"v_mov_b32 v{t}, v{v}"); A("s_nop 1"); A(f"v_permlane{sw}_swap_b32 v{v}, v{t}"); A(f"v_{op}_f32 v{v}, v{v}, v{t}")
    def srd_slots():
        A("s_lshl_b32 s47, s33, 12"); srd(36,24,25,"s47",4096)
        A("s_lshl_b32 s47, s30, 17"); srd(40,24,25,"s47",131072)
        srd(56,22,23,None,256)
    lbl=[0]
    def cnt_wait(t):
        lbl[0]+=1; n=lbl[0]
        A("s_lshl_b32 s47, s30, 2"); A("s_mov_b32 s49, 400000")
        A(f"L_cw{n}:")
        A(f"buffer_load_dword v{t}, off, s[56:59], s47 {SC}"); A("s_waitcnt vmcnt(0)")
        A(f"v_cmp_gt_u32 vcc, 32, v{t}"); A("s_sub_u32 s49, s49, 1"); A("s_cbranch_scc1 L_cwx%d"%n)
        A(f"s_cbranch_vccz L_cwx{n}"); A("s_sleep 8"); A(f"s_branch L_cw{n}")
        A(f"L_cwx{n}:")
    def arrive(t):
        lbl[0]+=1; n=lbl[0]
        A(f"v_mov_b32 v{t}, 0"); A(f"v_mov_b32 v{t+1}, 1")
        A("s_mov_b64 exec, 1")
        A("s_waitcnt vmcnt(0)")
        A(f"ds_add_rtn_u32 v{t}, v{t}, v{t+1} offset:{L_CNT}")
        A("s_lshl_b32 s47, s31, 2")
        A("s_waitcnt lgkmcnt(0)")
        A(f"v_cmp_eq_u32 vcc, 3, v{t}"); A("s_nop 1")
        A(f"s_cbranch_vccz L_ar{n}")
        A(f"buffer_atomic_add v{t+1}, off, s[56:59], s47 offset:128 {SC}")
        A(f"L_ar{n}:")
        A("s_mov_b64 exec, -1")
    def gather(off, b, vad, sleep):
        lbl[0]+=1; n=lbl[0]
        A("s_mov_b32 s49, 400000"); A("s_mov_b32 s47, 65536")
        A(f"L_g{n}:")
        A(f"buffer_load_dwordx4 v[{b}:{b+3}], v{vad}, s[40:43], 0 offen offset:{off} {SC}")
        A(f"buffer_load_dwordx4 v[{b+4}:{b+7}], v{vad}, s[40:43], s47 offen offset:{off} {SC}")
        A("s_waitcnt vmcnt(0)")
        A(f"v_max3_u32 v{b+8}, v{b}, v{b+1}, v{b+2}"); A(f"v_max3_u32 v{b+9}, v{b+3}, v{b+4}, v{b+5}")
        A(f"v_max3_u32 v{b+8}, v{b+8}, v{b+6}, v{b+7}"); A(f"v_max_u32 v{b+8}, v{b+8}, v{b+9}")
        A(f"v_cmp_eq_u32 vcc, -1, v{b+8}"); A("s_sub_u32 s49, s49, 1"); A(f"s_cbranch_scc1 L_gx{n}")
        A(f"s_cbranch_vccz L_gx{n}")
        if sleep: A(f"s_sleep {sleep}")
        A(f"s_branch L_g{n}")
        A(f"L_gx{n}:")
        for r in range(4): A(f"v_add_f32 v{b+r}, v{b+r}, v{b+4+r}")
        for pat in ["row_ror:4","row_ror:8"]:
            if pat=="row_ror:4": pass
            for r in range(4): A(f"v_add_f32_dpp v{b+r}, v{b+r}, v{b+r} {pat} row_mask:0xf bank_mask:0xf")
        for r in range(1,4): A(f"v_mov_b32_dpp v{b}, v{b+r} quad_perm:[0,1,2,3] row_mask:0xf bank_mask:{1<<r:#x}")
        for sw in ["16","32"]:
            A(f"v_mov_b32 v{b+1}, v{b}"); A("s_nop 1"); A(f"v_permlane{sw}_swap_b32 v{b}, v{b+1}"); A(f"v_add_f32 v{b}, v{b}, v{b+1}")
    def tail_gemv():
        P=32
        A(f"v_mul_u32_u24 v{hLD}, {O_STR}, v2"); A("v_mov_b32 v30, 0")
        A(f"v_lshrrev_b32 v{hAD}, 4, v0"); A(f"v_lshl_add_u32 v{hAD}, v{hAD}, 3, v3"); A(f"v_lshlrev_b32 v{hAD}, 3, v{hAD}")
        A("s_sub_u32 s48, s3, 1"); A("s_lshl_b32 s48, s48, 8")
        A("s_waitcnt vmcnt(0) lgkmcnt(0)")
        STAMP(4)
        A("s_barrier")
        STAMP(5)
        for n in range(8): A(f"ds_read_b128 v[{P+4*n}:{P+4*n+3}], v{hLD} offset:{L_O+16*n}")
        A(f"ds_read_b32 v31, v30 offset:{L_SC}")
        BB=[12,16]
        def bp(t):
            if t%4==0: A(f"s_waitcnt lgkmcnt({8-t//4})")
            for r in range(4): A(f"v_and_b32 v{BB[t%2]+r}, v{P+t}, v{hM+r}")
        bp(0)
        for t in range(32):
            if t+1<32: bp(t+1)
            else: A("s_nop 0")
            A(f"v_mfma_f32_16x16x32_bf16 v[{hACC}:{hACC+3}], v[{WO+4*t}:{WO+4*t+3}], v[{BB[t%2]}:{BB[t%2]+3}], {'0' if t==0 else f'v[{hACC}:{hACC+3}]'}")
        A("s_waitcnt lgkmcnt(0)"); A("s_nop 6")
        combine(hACC,12)
        A("v_mul_f32 v12, v31, v12"); A("v_mul_f32 v13, v31, v13")
        A("v_min_u32 v12, -2, v12"); A("v_min_u32 v13, -2, v13")
        A("s_mov_b64 exec, s[60:61]")
        A(f"buffer_store_dwordx2 v[12:13], v{hAD}, s[36:39], s48 offen {SC}")
        A("s_mov_b64 exec, -1")

    A("L_buf:")
    if bprio: A(f"s_setprio {bprio}")
    if ctl:
        A("v_mov_b32 v32, 0"); A("v_mov_b32 v33, 1"); A(f"ds_write_b32 v32, v33 offset:{L_CTL}")
    k_setup()
    A("s_waitcnt lgkmcnt(0)")
    srd(84,6,7,"s35",1<<20)
    A("s_sub_u32 s47, s3, 4"); A("s_lshl_b32 s44, s47, 13")
    A("s_lshl_b32 s47, s47, 3"); A(f"v_add_u32 v{vSW}, s47, v{vSW}")
    bar0(True)
    for i in range(R):
        if i==N0:
            srd_slots()
            A("s_cmp_lg_u32 s3, 5"); A("s_cbranch_scc1 L_noclr")
            C("wave 5: clear own slot with the sentinel")
            A("v_lshlrev_b32 v1, 4, v0")
            A("s_cmp_ge_u32 s32, 28"); A("s_cselect_b32 s47, 0, -1")
            for k in range(4): A(f"v_mov_b32 v{32+k}, -1")
            for k in range(4): A(f"v_mov_b32 v{36+k}, s47")
            A("v_cmp_lt_u32 vcc, 47, v0"); A("s_nop 1")
            for k in range(4): A(f"v_cndmask_b32 v{40+k}, v36, v32, vcc")
            if not noclr:
                A(f"buffer_store_dwordx4 v[32:35], v1, s[36:39], 0 offen {SC}")
                A(f"buffer_store_dwordx4 v[32:35], v1, s[36:39], 0 offen offset:1024 {SC}")
                A(f"buffer_store_dwordx4 v[36:39], v1, s[36:39], 0 offen offset:2048 {SC}")
            A(f"buffer_store_dwordx4 v[40:43], v1, s[36:39], 0 offen offset:3072 {SC}")
            A("L_noclr:")
        if i>=N0: A(f"s_waitcnt vmcnt({N0-1})")
        r=slot(i)
        A(f"buffer_load_dwordx4 v[{r}:{r+3}], v{vK}, s[84:87], s44 offen offset:{128*(i%4)} {SF}")
        if i%4==3: A(f"s_add_u32 s44, s44, {4096 if i%8==3 else 4096+NB*8192}")
    bar0(False)
    STAMP(1)
    A("s_barrier")
    STAMP(2)
    if bprio: A("s_setprio 0")
    q_read()
    for c in range(R):
        A(f"s_waitcnt vmcnt({R-1-c})")
        pi=c//8
        k_consume(c, None if pi==0 else L_S+8*(NB+1)*(pi-1))
    k_flush(L_S+8*(NB+1)*(NP0-1))
    A("s_sub_u32 s47, s3, 4"); A("s_lshl_b32 s47, s47, 4")
    mx_publish("s47", vR)
    masks(hM,12,13)
    A("s_cmp_eq_u32 s3, 5"); A("s_cbranch_scc1 L_ffn0")
    if not wol: wo_issue()
    if ctl:
        A("s_cmp_eq_u32 s3, 7"); A("s_cbranch_scc1 L_mon")
    A("s_waitcnt lgkmcnt(0)")
    STAMP(3)
    A("s_barrier")
    if wol: wo_issue()
    A("s_cmp_eq_u32 s3, 7"); A("s_cbranch_scc1 L_tail")
    C("wave 6: softmax denominator, exchange (m,l) with partner, scale")
    A("v_mov_b32 v4, 0")
    for w in range(4): A(f"ds_read_b128 v[{64+4*w}:{64+4*w+3}], v4 offset:{L_MX+16*w}")
    A(f"v_mul_u32_u24 v5, {S_STR}, v2"); A("v_lshl_add_u32 v5, v3, 7, v5")
    for n in range(8): A(f"ds_read_b128 v[{32+4*n}:{32+4*n+3}], v5 offset:{L_S+16*n}")
    A("s_waitcnt lgkmcnt(8)")
    max12(6,64)
    A("v_mul_f32 v7, s34, v6"); A("v_sub_f32 v7, 0, v7")
    A("s_waitcnt lgkmcnt(0)")
    for k in range(32): A(f"v_fma_f32 v{32+k}, v{32+k}, s34, v7")
    for k in range(32): A(f"v_exp_f32 v{32+k}, v{32+k}")
    for st in (16,8,4,2,1):
        for k in range(st): A(f"v_add_f32 v{32+k}, v{32+k}, v{32+k+st}")
    wave_sum(32,33)
    C("v6=M v32=l")
    A("v_min_u32 v8, -2, v6"); A("v_min_u32 v9, -2, v32")
    A("s_mov_b64 exec, 1")
    if not noml: A(f"buffer_store_dwordx2 v[8:9], off, s[36:39], 0 offset:3840 {SC}")
    A("s_mov_b64 exec, -1")
    if noml: A("s_branch L_mlx")
    cnt_wait(10)
    A("s_xor_b32 s47, s32, 1"); A("s_lshl_b32 s47, s47, 12"); A("s_mov_b32 s49, 400000")
    A("L_mlp:")
    A(f"buffer_load_dwordx2 v[10:11], off, s[40:43], s47 offset:3840 {SC}"); A("s_waitcnt vmcnt(0)")
    A("v_max_u32 v12, v10, v11"); A("v_cmp_eq_u32 vcc, -1, v12"); A("s_sub_u32 s49, s49, 1"); A("s_cbranch_scc1 L_mlx")
    A("s_cbranch_vccz L_mlx"); A("s_sleep 8"); A("s_branch L_mlp")
    A("L_mlx:")
    A("v_max_f32 v12, v6, v10")
    A("v_sub_f32 v13, v6, v12"); A("v_sub_f32 v14, v10, v12")
    A("v_mul_f32 v13, s34, v13"); A("v_mul_f32 v14, s34, v14")
    A("v_exp_f32 v13, v13"); A("v_exp_f32 v14, v14"); A("s_nop 0")
    A("v_mul_f32 v15, v13, v32"); A("v_fma_f32 v15, v14, v11, v15")
    A("v_rcp_f32 v15, v15"); A("s_nop 0"); A("v_mul_f32 v15, v15, v13")
    A(f"ds_write_b32 v4, v15 offset:{L_SC}")
    A("s_branch L_tail")

    REFS={32:list(range(32)),16:[2*k for k in range(16)],8:[2*k for k in range(8)],4:[0,6,10,12],2:[0,10],1:[4]}[NREF]
    if ctl:
        A("L_mon:")
        C("wave 7: compare this workgroup's progress with its batch's mean and pick the streamer's depth")
        if gref:
            C("references: workgroups of batch 0")
            A("s_mov_b32 s51, s30"); A("s_mov_b32 s30, 0"); srd(40,24,25,None,131072)
            A(f"s_and_b32 s47, s32, {32//NREF-1}"); A("s_or_b32 s51, s51, s47")
        else:
            A(f"s_mov_b32 s51, {(~sum(1<<r for r in REFS))&0xffffffff:#x}"); A("s_lshr_b32 s51, s51, s32"); A("s_and_b32 s51, s51, 1")
        cnt_wait(4)
        A("v_and_b32 v5, 31, v0"); A("v_lshlrev_b32 v5, 12, v5"); A("v_mov_b32 v4, 0"); A("s_mov_b32 s50, 0")
        for ph,pend in (("k",PKEND),("v",PVEND)):
            A(f"L_mon{ph}:")
            A(f"ds_read_b32 v6, v4 offset:{L_PRG}"); A("s_waitcnt lgkmcnt(0)"); A("v_readfirstlane_b32 s47, v6")
            A(f"s_cmp_ge_u32 s47, {pend}"); A(f"s_cbranch_scc1 L_mon{ph}x")
            A("s_cmp_lg_u32 s47, s50"); A(f"s_cbranch_scc1 L_mon{ph}n")
            A(f"s_sleep {msleep}"); A(f"s_branch L_mon{ph}")
            A(f"L_mon{ph}n:")
            A("s_mov_b32 s50, s47")
            A(f"s_and_b32 s48, s47, {PD-1}"); A("s_or_b32 s48, s48, s51"); A(f"s_cbranch_scc1 L_mon{ph}p")
            if full:
                A("s_mov_b64 exec, 0xffffffff"); A("v_lshlrev_b32 v8, 2, v0")
                A(f"buffer_store_dword v6, v8, s[36:39], 0 offen offset:3968 {SC if PSC is None else PSC}")
            else:
                A("s_mov_b64 exec, 1")
                if not nopub: A(f"buffer_store_dword v6, off, s[36:39], 0 offset:3968 {SC if PSC is None else PSC}")
            A("s_mov_b64 exec, -1")
            A(f"L_mon{ph}p:")
            if RD>1: A(f"s_and_b32 s48, s47, {RD-1}"); A(f"s_cmp_lg_u32 s48, {RPH}"); A(f"s_cbranch_scc1 L_mon{ph}")
            if smon:
                step=32//NREF
                for k in range(0 if noread else NREF): A(f"s_buffer_load_dword s{(4+k) if k<16 else (64+k-16)}, s[40:43], {4096*REFS[k]+3968} glc")
                A("s_waitcnt lgkmcnt(0)")
                A(f"s_add_u32 s48, s4, {NREF}")
                for k in range(1,NREF): A(f"s_add_u32 s48, s48, s{(4+k) if k<16 else (64+k-16)}")
                A(f"s_mul_i32 s48, s48, {step}")
                A("s_lshl_b32 s49, s47, 5"); A(f"s_add_u32 s49, s49, {BIAS}"); A("s_sub_i32 s49, s49, s48")
            else:
                A(f"buffer_load_dword v7, v5, s[40:43], 0 offen offset:3968 {SC}")
                A("s_waitcnt vmcnt(0)")
                A("v_add_u32 v7, 1, v7")
                for pat in ["quad_perm:[1,0,3,2]","quad_perm:[2,3,0,1]","row_half_mirror","row_mirror"]:
                    A("s_nop 1"); A(f"v_add_u32_dpp v7, v7, v7 {pat} row_mask:0xf bank_mask:0xf")
                A("s_nop 0"); A("v_readlane_b32 s48, v7, 0"); A("v_readlane_b32 s49, v7, 16")
                A("s_add_u32 s48, s48, s49"); A("s_lshl_b32 s49, s47, 5"); A(f"s_add_u32 s49, s49, {BIAS}"); A("s_sub_i32 s49, s49, s48")
            A(f"s_cmp_gt_i32 s49, {TH}"); A("s_cselect_b32 s48, 0, 1"); A(f"s_cmp_lt_i32 s49, {-TH}"); A("s_cselect_b32 s48, 2, s48")
            A("v_mov_b32 v7, s48"); A(f"ds_write_b32 v4, v7 offset:{L_CTL}")
            A(f"s_branch L_mon{ph}")
            A(f"L_mon{ph}x:")
            if ph=="k":
                A("s_waitcnt lgkmcnt(0)"); STAMP(3); A("s_barrier")
        A("s_branch L_tail")

    A("L_help:")
    D0=32
    def layernorm(xr):
        for k in range(4):
            A(f"v_lshlrev_b32 v{8+2*k}, 16, v{xr+k}"); A(f"v_and_b32 v{9+2*k}, 0xffff0000, v{xr+k}")
        A("v_add_f32 v16, v8, v9"); A("v_add_f32 v17, v10, v11"); A("v_add_f32 v18, v12, v13"); A("v_add_f32 v19, v14, v15")
        A("v_add_f32 v16, v16, v17"); A("v_add_f32 v18, v18, v19"); A("v_add_f32 v16, v16, v18")
        wave_sum(16,17)
        A(f"v_mul_f32 v16, {f2u(1.0/448):#x}, v16")
        A("v_cmp_gt_u32 vcc, 56, v0"); A("v_cvt_pk_bf16_f32 v17, 0, v16"); A("s_nop 0")
        A("v_cndmask_b32 v16, 0, v16, vcc")
        A("v_sub_f32 v4, v8, v16"); A("v_mul_f32 v18, v4, v4")
        for k in range(1,8):
            A(f"v_sub_f32 v4, v{8+k}, v16"); A("v_fmac_f32 v18, v4, v4")
        wave_sum(18,19)
        A(f"v_mul_f32 v18, {f2u(1.0/448):#x}, v18")
        A("v_cvt_pk_bf16_f32 v18, 0, v18")
        A(f"v_add_f32 v18, {f2u(1e-5):#x}, v18")
        A("v_cvt_pk_bf16_f32 v18, 0, v18")
        A("v_sqrt_f32 v18, v18"); A("s_nop 0")
        A("v_cvt_pk_bf16_f32 v18, 0, v18")
        A("v_rcp_f32 v19, v18")
        for k in range(8):
            A(f"v_sub_f32 v{8+k}, v{8+k}, v17"); A(f"v_cvt_pk_bf16_f32 v{8+k}, 0, v{8+k}")
            A(f"v_mul_f32 v4, v{8+k}, v19"); A(f"v_fma_f32 v6, -v4, v18, v{8+k}"); A("v_fma_f32 v4, v6, v19, v4")
            A(f"v_cvt_pk_bf16_f32 v{8+k}, v4, v4")
    def gemv56(waits, issue_fn=None, bar_at=None):
        XX=[4,8]; BB=[12,16]
        A("s_waitcnt lgkmcnt(0)")
        A(f"ds_read_b128 v[4:7], v{hLD}"); A(f"ds_read_b128 v[8:11], v{hLD} offset:16")
        def bp(t):
            if t%4==0: A(f"s_waitcnt lgkmcnt({1 if t//4+1<14 else 0})")
            for r in range(4): A(f"v_and_b32 v{BB[t%2]+r}, v{XX[(t//4)%2]+t%4}, v{hM+r}")
            if t%4==3 and t//4+2<14:
                x=XX[(t//4)%2]; A(f"ds_read_b128 v[{x}:{x+3}], v{hLD} offset:{16*(t//4+2)}")
        bp(0)
        for t in range(56):
            if t+1<56: bp(t+1)
            else: A("s_nop 0")
            if issue_fn:
                if t+QD<56: issue_fn(t+QD)
                if t+QD==bar_at: A("s_barrier")
                A(f"s_waitcnt vmcnt({min(QD,55-t)})")
            elif waits: A(f"s_waitcnt vmcnt({55-t})")
            A(f"v_mfma_f32_16x16x32_bf16 v[{hACC}:{hACC+3}], v[{D0+4*t}:{D0+4*t+3}], v[{BB[t%2]}:{BB[t%2]+3}], {'0' if t==0 else f'v[{hACC}:{hACC+3}]'}")
        A("s_nop 7")
        combine(hACC,12)
    C("waves 1..4: q column block w-1 over all 448 rows, tile order rotated by 4*rot tiles")
    A("v_lshlrev_b32 v1, 4, v0")
    A(f"v_lshlrev_b32 v{hAD}, 13, v2"); A(f"v_lshl_add_u32 v{hAD}, v3, 4, v{hAD}")
    A("s_mul_i32 s47, s30, 896")
    A("s_lshl_b32 s48, s31, 9"); A("s_sub_u32 s49, s3, 1"); A("s_lshl_b32 s49, s49, 7"); A("s_add_u32 s48, s48, s49"); A(f"s_sub_u32 s49, {448*8192}, s48")
    if rot:
        A("s_mul_i32 s51, s30, 7"); A("s_lshr_b32 s51, s51, 2")
    else: A("s_mov_b32 s51, 0")
    A("s_waitcnt lgkmcnt(0)")
    srd(88,4,5,"s47",896)
    srd(52,10,11,"s48","s49")
    A("buffer_load_dwordx4 v[4:7], v1, s[88:91], 0 offen")
    A("s_lshl_b32 s48, s51, 18")
    def wq_load(t):
        A(f"buffer_load_dwordx4 v[{D0+4*t}:{D0+4*t+3}], v{hAD}, s[52:55], s48 offen {QF}")
        A("s_add_u32 s48, s48, 65536")
        if rot and t%4==3 and t<55: A(f"s_cmp_ge_u32 s48, {56*65536}"); A("s_cselect_b32 s48, 0, s48")
    def ln_part(wait):
        masks(hM,12,13)
        A(f"s_waitcnt vmcnt({wait})")
        layernorm(4)
        C("X'[e][t - 4*rot mod 56]")
        A("s_sub_u32 s47, s3, 1"); A(f"s_mul_i32 s47, s47, {X_SZ}"); A(f"s_add_u32 s47, s47, {L_X}")
        A("s_lshl_b32 s50, s51, 2"); A("v_subrev_u32 v5, s50, v0"); A("v_add_u32 v6, 56, v5"); A("v_min_u32 v5, v5, v6")
        A("v_cmp_lt_u32 vcc, 55, v0"); A("s_nop 1"); A("v_cndmask_b32 v5, v5, v0, vcc")
        A("v_lshl_add_u32 v5, v5, 2, s47")
        for k in range(8): A(f"ds_write_b32 v5, v{8+k} offset:{k*X_STR}")
        C("unrotated copy for the FFN (all four waves write the same values)")
        A("v_lshlrev_b32 v5, 2, v0")
        for k in range(8): A(f"ds_write_b32 v5, v{8+k} offset:{L_X+4*X_SZ+k*X_STR}")
        A(f"v_mul_u32_u24 v{hLD}, {X_STR}, v2"); A(f"v_add_u32 v{hLD}, s47, v{hLD}")
    if stag:
        A("s_cmp_eq_u32 s28, 1"); A("s_cbranch_scc1 L_q1")
        for t in range(QD): wq_load(t)
        ln_part(QD); gemv56(True, wq_load, 55); A("s_branch L_q2")
        A("L_q1:")
        ln_part(0); A("s_barrier")
        for t in range(QD): wq_load(t)
        gemv56(True, wq_load, None)
        A("L_q2:")
    else:
        for t in range(QD): wq_load(t)
        A("s_barrier"); ln_part(QD); gemv56(True, wq_load, None)
    C("q -> bf16 -> LDS: addr = m*128 + (4*rowq+hi)*16 + j*2 (+32 for the second register)")
    A("v_cvt_pk_bf16_f32 v12, v12, v13")
    A("v_bfe_u32 v4, v0, 4, 1"); A("v_lshrrev_b32 v5, 5, v0"); A("v_lshl_add_u32 v4, v4, 2, v5"); A("v_lshlrev_b32 v4, 4, v4"); A("v_lshl_add_u32 v4, v3, 1, v4")
    A("s_sub_u32 s47, s3, 1"); A("s_lshl_b32 s47, s47, 7"); A("v_add_u32 v4, s47, v4")
    A("s_mov_b64 exec, s[60:61]")
    A(f"ds_write_b16 v4, v12 offset:{L_Q}"); A(f"ds_write_b16_d16_hi v4, v12 offset:{L_Q+32}")
    A("s_mov_b64 exec, -1")
    A("s_waitcnt lgkmcnt(0)")
    STAMP(1)
    A("s_barrier")
    STAMP(2)
    srd_slots()
    A("s_cmp_eq_u32 s3, 1"); A("s_cbranch_scc1 L_ffn")
    if not wol: wo_issue()
    STAMP(3)
    A("s_barrier")
    if wol: wo_issue()
    A("L_tail:")
    tail_gemv()
    if not stamp: STAMP(6)
    stamp_out()
    A("s_endpgm")

    A("L_ffn:")
    C("wave 1: FFN slice pidx (64 hidden units) for batch b")
    if noffn: A("s_barrier")
    A("s_cmp_ge_u32 s32, 28"); A("s_cbranch_scc1 L_q3")
    A("s_lshl_b32 s48, s32, 7"); A(f"s_sub_u32 s49, {448*3584}, s48"); srd(52,16,17,"s48","s49")
    A(f"v_mul_u32_u24 v{hAD}, 3584, v2"); A(f"v_lshl_add_u32 v{hAD}, v3, 4, v{hAD}")
    A("s_mov_b32 s48, 0")
    A(f"v_mul_u32_u24 v{hLD}, {X_STR}, v2"); A(f"v_add_u32 v{hLD}, {L_X+4*X_SZ}, v{hLD}")
    for t in range(0 if skipffn else 56):
        if t>=NF: A(f"s_waitcnt vmcnt({NF-1})")
        A(f"buffer_load_dwordx4 v[{D0+4*t}:{D0+4*t+3}], v{hAD}, s[52:55], s48 offen {HF}")
        A(f"s_add_u32 s48, s48, {8*3584}")
    A("s_waitcnt vmcnt(0)")
    gemv56(False)
    C("w2 loads (tile t, block beta) -> D0 + 4*(7t+beta)")
    A(f"s_mul_i32 s48, s32, {64*896}"); A(f"s_sub_u32 s49, {1792*896}, s48"); srd(52,18,19,"s48","s49")
    A(f"v_mul_u32_u24 v{hAD}, 896, v2"); A(f"v_lshl_add_u32 v{hAD}, v3, 4, v{hAD}")
    A("s_mov_b32 s48, 0")
    for t in range(0 if skipffn else 8):
        for be in range(7):
            i=7*t+be
            if i>=NF: A(f"s_waitcnt vmcnt({NF-1})")
            A(f"buffer_load_dwordx4 v[{D0+4*i}:{D0+4*i+3}], v{hAD}, s[52:55], s48 offen offset:{128*be} {HF}")
        A("s_add_u32 s48, s48, 7168")
    C("h -> bf16 -> silu -> bf16 (dup) -> LDS H[g=j][T=4*rowq+hi+2s]")
    for k in (12,13):
        A(f"v_cvt_pk_bf16_f32 v{k}, 0, v{k}")
        A(f"v_mul_f32 v4, {f2u(-math.log2(math.e)):#x}, v{k}"); A("v_exp_f32 v4, v4"); A("s_nop 0")
        A("v_add_f32 v4, 1.0, v4"); A("v_rcp_f32 v4, v4"); A("s_nop 0")
        A(f"v_mul_f32 v{k}, v{k}, v4"); A(f"v_cvt_pk_bf16_f32 v{k}, v{k}, v{k}")
    A("v_bfe_u32 v4, v0, 4, 1"); A("v_lshrrev_b32 v5, 5, v0"); A("v_lshl_add_u32 v4, v4, 2, v5"); A("v_lshlrev_b32 v4, 2, v4")
    A(f"v_mul_u32_u24 v5, {H_STR}, v3"); A("v_add_u32 v4, v4, v5")
    A("s_mov_b64 exec, s[60:61]")
    A(f"ds_write_b32 v4, v12 offset:{L_H}"); A(f"ds_write_b32 v4, v13 offset:{L_H+8}")
    A("s_mov_b64 exec, -1")
    A(f"v_mul_u32_u24 v5, {H_STR}, v2")
    A("s_waitcnt lgkmcnt(0)")
    A(f"ds_read_b128 v[4:7], v5 offset:{L_H}"); A(f"ds_read_b128 v[8:11], v5 offset:{L_H+16}")
    A("s_waitcnt vmcnt(0) lgkmcnt(0)")
    A(f"v_lshrrev_b32 v{hAD}, 4, v0"); A(f"v_lshl_add_u32 v{hAD}, v{hAD}, 3, v3"); A(f"v_lshlrev_b32 v{hAD}, 3, v{hAD}")
    for be in range(7):
        BB=[12,16]
        for t in range(8):
            for r in range(4): A(f"v_and_b32 v{BB[t%2]+r}, v{4+t}, v{hM+r}")
            A("s_nop 1")
            i=7*t+be
            A(f"v_mfma_f32_16x16x32_bf16 v[{hACC}:{hACC+3}], v[{D0+4*i}:{D0+4*i+3}], v[{BB[t%2]}:{BB[t%2]+3}], {'0' if t==0 else f'v[{hACC}:{hACC+3}]'}")
        A("s_nop 7")
        combine(hACC,30)
        A("v_min_u32 v30, -2, v30"); A("v_min_u32 v31, -2, v31")
        A("s_mov_b64 exec, s[60:61]")
        if not nobst: A(f"buffer_store_dwordx2 v[30:31], v{hAD}, s[36:39], 0 offen offset:{2048+256*be} {SC}")
        A("s_mov_b64 exec, -1")
    A("L_q3:")
    STAMP(3)
    if not noffn: A("s_barrier")
    wo_issue()
    A("s_branch L_tail")

    A("L_ffn0:")
    C("wave 5: the clear stores completed before barrier 1: count them")
    A("v_mov_b32 v8, 1"); A("s_lshl_b32 s47, s30, 2")
    A("s_mov_b64 exec, 1")
    A(f"buffer_atomic_add v8, off, s[56:59], s47 {SC}")
    A("s_mov_b64 exec, -1")
    A("s_mul_i32 s47, s30, 896"); srd(88,4,5,"s47",896)
    if not wol: wo_issue()
    A("L_noffn:")
    STAMP(3)
    A("s_waitcnt lgkmcnt(0)")
    A("s_barrier")
    if wol: wo_issue()
    A("s_cmp_ge_u32 s32, 28"); A("s_cbranch_scc1 L_tail")
    C("consumer setup: gather address v64, column byte offset v65, x value v66, FFN value v67")
    A("v_lshrrev_b32 v64, 2, v0"); A("v_lshlrev_b32 v64, 12, v64"); A("v_and_b32 v4, 3, v0"); A("v_lshl_add_u32 v64, v4, 4, v64")
    A("s_lshl_b32 s47, s32, 6"); A("v_add_u32 v64, s47, v64")
    C("col = 64*(k>>2) + 32*(k&1) + 8*((k>>1)&1) + 16*(rho&1) + 2*qd + (rho>>1), rho=(l>>2)&3, qd=l&3")
    A("s_lshr_b32 s47, s32, 2"); A("s_lshl_b32 s47, s47, 6"); A("s_and_b32 s48, s32, 1"); A("s_lshl_b32 s48, s48, 5"); A("s_add_u32 s47, s47, s48")
    A("s_bfe_u32 s48, s32, 0x10001"); A("s_lshl_b32 s48, s48, 3"); A("s_add_u32 s47, s47, s48")
    A("v_bfe_u32 v5, v0, 2, 1"); A("v_lshlrev_b32 v5, 4, v5"); A("v_lshl_add_u32 v5, v4, 1, v5"); A("v_bfe_u32 v6, v0, 3, 1"); A("v_add3_u32 v65, v5, v6, s47")
    A("v_lshlrev_b32 v65, 1, v65")
    A("buffer_load_ushort v66, v65, s[88:91], 0 offen")
    cnt_wait(4)
    if not nobst: gather(2048, 68, 64, 8)
    A("v_cvt_pk_bf16_f32 v67, 0, v68"); A("v_lshlrev_b32 v66, 16, v66")
    A("s_mul_i32 s47, s30, 896"); srd(92,20,21,"s47",896)
    tail_gemv()
    gather(0, 68, 64, 0)
    A("v_cvt_pk_bf16_f32 v68, 0, v68"); A("v_add_f32 v68, v66, v68"); A("v_cvt_pk_bf16_f32 v68, 0, v68"); A("v_add_f32 v68, v68, v67")
    A("v_cvt_pk_bf16_f32 v68, v68, v68")
    A("s_mov_b64 exec, 0xffff")
    A("buffer_store_short v68, v65, s[92:95], 0 offen")
    A("s_mov_b64 exec, -1")
    STAMP(6)
    stamp_out(role="f")
    A("L_end:")
    A("s_endpgm")
    body="\n".join(("" if (l.endswith(":") or l.startswith(".")) else "    ")+l for l in L)+"\n"
    ldsz=lds if lds else L_END
    head=HEADER+f"; @launch grid=(256,1,1) block=(512,1,1) lds={ldsz}\n"
    return head+body+kd(NAME,256,102,256), ldsz

if __name__=="__main__":
    kw=eval("dict(%s)"%(sys.argv[2] if len(sys.argv)>2 else ""))
    t,ldsz=gen(**kw)
    out=sys.argv[1]
    if out.endswith(".s"): open(out,"w").write(t)
    else:
        assemble(t+meta([(NAME,256,102,512)]), out); print(f"work/{out}:{NAME},256,512,{ldsz}")
```

```python
import sys, math
from common import *

NAME="parallel_sum__mha_block_cached__dense_activation_silu__decode_kernel"
HEADER=open("parallel_sum__mha_block_cached__dense_activation_silu__decode.s.ref").read().split("; Override launch")[0]

L_Q=0; L_MX=512; L_SC=576; L_S=1024; S_STR=1040; L_O=L_S+8*S_STR; O_STR=144
L_X=L_O+8*O_STR; X_STR=272; X_SZ=8*X_STR; L_H=L_X+5*X_SZ; H_STR=48; L_X2=L_H+8*H_STR; X2_STR=80; X2_SZ=8*X2_STR; L_TAG=580; L_PRG=584; L_CTL=588; L_END=L_X2
CEXP=math.log2(math.e)/16.0
import struct
def f2u(f): return struct.unpack("<I",struct.pack("<f",f))[0]

def gen(N=22, N0=10, R=48, NF=4, NW=1, stamp=False, catchup=True, SC="sc1", lds=None, wol=0, noffn=0, HF="", QF="", ch=2, bprio=3, qprio=0, dbg=0, calib=0, SF="nt", HB=0, stag=1, rot=1, NK=27, skipwo=0, skipffn=0, QD=12, ctl=(18,24,30), TH=6, BIAS=0, NREF=4, smon=1, nopub=0, noread=0, PSC=None, msleep=16, gref=0, full=0, PD=2, RD=2, RPH=0, nobst=0, noclr=0, noml=0, ctlK=(20,27,34)):
    L=[]; A=L.append
    def C(s): A("    ; "+s)
    A('.amdgcn_target "amdgcn-amd-amdhsa--gfx950"'); A(".text"); A(f".globl {NAME}"); A(".p2align 8"); A(f".type {NAME},@function"); A(f"{NAME}:")
    nst=[0]; lbl0=[0]
    def STAMP(i):
        if stamp or dbg or (calib and i==0): A(f"s_memrealtime s[{70+2*i}:{71+2*i}]")
    A("s_cmp_ge_u32 s2, 256"); A("s_cbranch_scc1 L_end")
    STAMP(0)
    A("s_load_dwordx16 s[4:19], s[0:1], 0")
    A("s_load_dwordx4 s[20:23], s[0:1], 64")
    A("s_load_dwordx2 s[24:25], s[0:1], 80")
    A("v_lshrrev_b32 v1, 6, v0"); A("v_and_b32 v0, 63, v0"); A("v_readfirstlane_b32 s3, v1")
    A("s_and_b32 s26, s2, 7"); A("s_lshr_b32 s27, s2, 3"); A("s_and_b32 s28, s27, 1")
    if HB==0:
        A("s_bfe_u32 s29, s27, 0x10001"); A("s_lshr_b32 s30, s27, 2")
        A("s_lshl_b32 s29, s29, 3"); A("s_add_u32 s31, s26, s29")
    else:
        A(f"s_bfe_u32 s29, s27, {(HB<<16)|1:#x}")
        A(f"s_lshr_b32 s30, s27, {1+HB}")
        A(f"s_and_b32 s31, s26, {(1<<(4-HB))-1}"); A(f"s_lshl_b32 s31, s31, {HB}"); A("s_add_u32 s31, s31, s29")
        A(f"s_lshr_b32 s29, s26, {4-HB}"); A(f"s_lshl_b32 s29, s29, {4-HB}"); A("s_add_u32 s30, s30, s29")
    A("s_lshl_b32 s32, s31, 1"); A("s_add_u32 s32, s32, s28")
    A("s_lshl_b32 s33, s30, 5"); A("s_add_u32 s33, s33, s32")
    C("s30=b s31=h s32=pidx s33=gidx ; v2=g v3=e")
    A("v_lshrrev_b32 v2, 3, v0"); A("v_and_b32 v3, 7, v0")
    A(f"s_mov_b32 s34, {f2u(CEXP):#x}")
    A("s_mov_b32 s60, 0x00ff00ff"); A("s_mov_b32 s61, 0x00ff00ff"); A("s_mov_b32 s97, 0xfffff000")
    A("s_cmp_eq_u32 s3, 0"); A("s_cbranch_scc1 L_stream")
    A("s_cmp_ge_u32 s3, 5"); A("s_cbranch_scc1 L_buf")
    A("s_branch L_help")

    def srd(d, lo, hi, off_sgpr, size):
        if off_sgpr is None:
            A(f"s_mov_b32 s{d}, s{lo}"); A(f"s_mov_b32 s{d+1}, s{hi}")
        else:
            A(f"s_add_u32 s{d}, s{lo}, {off_sgpr}"); A(f"s_addc_u32 s{d+1}, s{hi}, 0")
        A(f"s_mov_b32 s{d+2}, {size}"); A(f"s_mov_b32 s{d+3}, 0x20000")
    def masks(base,t0,t1):
        A(f"v_and_b32 v{t0}, 1, v3"); A(f"v_lshlrev_b32 v{t0}, 4, v{t0}"); A(f"v_mov_b32 v{t1}, 0xffff"); A(f"v_lshlrev_b32 v{t0}, v{t0}, v{t1}")
        A(f"v_lshrrev_b32 v{t1}, 1, v3")
        for r in range(4):
            A(f"v_cmp_eq_u32 vcc, {r}, v{t1}"); A("s_nop 1"); A(f"v_cndmask_b32 v{base+r}, 0, v{t0}, vcc")
    def stamp_out(tmp=4, role=""):
        if dbg:
            A("s_waitcnt vmcnt(0) lgkmcnt(0)")
            A("s_memrealtime s[82:83]")
            A("s_mov_b64 exec, 1")
            srd(64,22,23,None,256)
            A("s_waitcnt lgkmcnt(0)")
            def um(word, sreg, inv=False):
                if inv: A(f"s_not_b32 s68, s{sreg}"); A(f"v_mov_b32 v{tmp}, s68")
                else: A(f"v_mov_b32 v{tmp}, s{sreg}")
                A(f"buffer_atomic_umax v{tmp}, off, s[64:67], 0 offset:{4*word} sc1"); A("s_waitcnt vmcnt(0)")
            if role=="s":
                um(1,70,True); um(7,70); um(3,78); um(5,74); um(6,76); um(9,78,True); um(10,74,True)
            if role=="f":
                um(2,82)
            return
        if not stamp: return
        A("s_waitcnt lgkmcnt(0)")
        A("s_mov_b64 exec, 1")
        srd(64,24,25,None,0x40000000)
        A("s_lshl_b32 s68, s2, 3"); A("s_add_u32 s68, s68, s3"); A("s_lshl_b32 s68, s68, 5"); A("s_add_u32 s68, s68, 0x20000000")
        A("s_getreg_b32 s69, hwreg(HW_REG_XCC_ID)")
        for i in range(7): A(f"v_mov_b32 v{tmp+i}, s{70+2*i}")
        A(f"v_mov_b32 v{tmp+7}, s69")
        A(f"buffer_store_dwordx4 v[{tmp}:{tmp+3}], off, s[64:67], s68")
        A(f"buffer_store_dwordx4 v[{tmp+4}:{tmp+7}], off, s[64:67], s68 offset:16")
        A("s_waitcnt vmcnt(0)")

    RING=256-4*R
    vK=4; vV=5; vSW=6; vSR=7; vMX=8; vR=9; vR2=10; vA=[11,12]; vB=[13,14]; vQ=16
    def slot(i): return RING+4*(i%R)
    def k_consume(c, dsoff):
        p=c%8; m=p%4; acc=vA if p<4 else vB; r=slot(c)
        for k in range(4):
            if ch==2:
                src2 = "0" if (m==0 and k<2) else f"v{acc[k%2]}"
                A(f"v_dot2_f32_bf16 v{acc[k%2]}, v{r+k}, v{vQ+4*m+k}, {src2}")
            elif ch==4:
                a4=(acc+([32,33] if p<4 else [34,35]))[k]
                if m==0: A(f"v_dot2_f32_bf16 v{a4}, v{r+k}, v{vQ+4*m+k}, 0")
                else: A(f"v_dot2c_f32_bf16 v{a4}, v{r+k}, v{vQ+4*m+k}")
        k_post(p, dsoff)
    def k_post(p, dsoff):
        prev = dsoff is not None
        if p==0 and prev:
            if ch==4: A(f"v_add_f32 v{vB[0]}, v{vB[0]}, v34"); A(f"v_add_f32 v{vB[1]}, v{vB[1]}, v35")
            A(f"v_add_f32 v{vB[0]}, v{vB[0]}, v{vB[1]}")
        if p==1 and prev: A(f"v_add_f32_dpp v{vR}, v{vB[0]}, v{vB[0]} row_half_mirror row_mask:0xf bank_mask:0xa")
        if p==2 and prev: A(f"v_add_f32_dpp v{vR}, v{vR}, v{vR} quad_perm:[1,0,3,2] row_mask:0xf bank_mask:0xf")
        if p==3 and prev: A(f"v_add_f32_dpp v{vR}, v{vR}, v{vR} quad_perm:[2,3,0,1] row_mask:0xf bank_mask:0xf")
        if p==4:
            if prev: A(f"v_cvt_pk_bf16_f32 v{vR2}, 0, v{vR}")
            if ch==4: A(f"v_add_f32 v{vA[0]}, v{vA[0]}, v32"); A(f"v_add_f32 v{vA[1]}, v{vA[1]}, v33")
            A(f"v_add_f32 v{vA[0]}, v{vA[0]}, v{vA[1]}")
        if p==5:
            if prev:
                A(f"v_max_f32 v{vMX}, v{vMX}, v{vR2}"); A(f"ds_write_b32 v{vSW}, v{vR2} offset:{dsoff}")
            A(f"v_add_f32_dpp v{vR}, v{vA[0]}, v{vA[0]} row_half_mirror row_mask:0xf bank_mask:0x5")
    def k_flush(dsoff):
        A("s_nop 2")
        if ch==4: A(f"v_add_f32 v{vB[0]}, v{vB[0]}, v34"); A(f"v_add_f32 v{vB[1]}, v{vB[1]}, v35")
        A(f"v_add_f32 v{vB[0]}, v{vB[0]}, v{vB[1]}"); A("s_nop 1")
        A(f"v_add_f32_dpp v{vR}, v{vB[0]}, v{vB[0]} row_half_mirror row_mask:0xf bank_mask:0xa"); A("s_nop 1")
        A(f"v_add_f32_dpp v{vR}, v{vR}, v{vR} quad_perm:[1,0,3,2] row_mask:0xf bank_mask:0xf"); A("s_nop 1")
        A(f"v_add_f32_dpp v{vR}, v{vR}, v{vR} quad_perm:[2,3,0,1] row_mask:0xf bank_mask:0xf")
        A(f"v_cvt_pk_bf16_f32 v{vR2}, 0, v{vR}")
        A(f"v_max_f32 v{vMX}, v{vMX}, v{vR2}"); A(f"ds_write_b32 v{vSW}, v{vR2} offset:{dsoff}")
    def mx_publish(w, tmp):
        A("s_nop 1")
        A(f"v_max_f32_dpp v{vMX}, v{vMX}, v{vMX} row_ror:4 row_mask:0xf bank_mask:0xf"); A("s_nop 1")
        A(f"v_max_f32_dpp v{vMX}, v{vMX}, v{vMX} row_ror:8 row_mask:0xf bank_mask:0xf")
        A(f"v_lshrrev_b32 v{tmp}, 4, v0"); A(f"v_lshlrev_b32 v{tmp}, 2, v{tmp}")
        if isinstance(w,int): A(f"ds_write_b32 v{tmp}, v{vMX} offset:{L_MX+16*w}")
        else:
            A(f"v_add_u32 v{tmp}, {w}, v{tmp}"); A(f"ds_write_b32 v{tmp}, v{vMX} offset:{L_MX}")
    def k_setup():
        A(f"v_lshlrev_b32 v{vK}, 9, v2"); A(f"v_lshl_add_u32 v{vK}, v3, 4, v{vK}")
        A(f"v_mul_u32_u24 v{vSW}, {S_STR}, v2"); A(f"v_lshrrev_b32 v{vSR}, 2, v3"); A(f"v_lshl_add_u32 v{vSW}, v{vSR}, 2, v{vSW}")
        A(f"v_mov_b32 v{vMX}, 0xff800000")
        A("s_lshl_b32 s35, s33, 20")
    def q_read():
        A(f"v_lshlrev_b32 v{vR}, 4, v3")
        for m in range(4): A(f"ds_read_b128 v[{vQ+4*m}:{vQ+4*m+3}], v{vR} offset:{L_Q+128*m}")
        A("s_waitcnt lgkmcnt(0)")
    NP0=R//8
    assert R%8==0
    NB=3
    NKS=1024-NB*R
    NTOT=NKS+1024

    A("L_stream:")
    A("s_setprio 3")
    k_setup()
    A(f"v_lshrrev_b32 v{vV}, 4, v0"); A(f"v_lshlrev_b32 v{vV}, 10, v{vV}"); A(f"v_and_b32 v{vSR}, 15, v0"); A(f"v_lshl_add_u32 v{vV}, v{vSR}, 4, v{vV}")
    A("s_waitcnt lgkmcnt(0)")
    srd(36,6,7,"s35",1<<20); srd(40,8,9,"s35",1<<20)
    A("s_mov_b32 s44, 0"); A("s_mov_b32 s45, 0")
    vZ=36; vPC=37; vPP=38
    if ctl:
        A(f"v_mov_b32 v{vZ}, 0"); A(f"ds_write_b32 v{vZ}, v{vZ} offset:{L_PRG}"); A("s_mov_b32 s47, 2")
    def issue(i):
        r=slot(i)
        if i<NKS:
            A(f"buffer_load_dwordx4 v[{r}:{r+3}], v{vK}, s[36:39], s44 offen offset:{128*(i%4)} {SF}")
            if i%4==3:
                inc=4096
                if i<R and i%8==7: inc=4096+NB*8192
                A(f"s_add_u32 s44, s44, {inc}")
        elif i<NTOT:
            u=i-NKS
            A(f"buffer_load_dwordx4 v[{r}:{r+3}], v{vV}, s[40:43], s45 offen offset:{256*(u%4)} {SF}")
            if u%4==3: A("s_add_u32 s45, s45, 4096")
    DK=R-1
    def bar0(first):
        if not stag:
            if first: A("s_barrier")
            return
        lbl0[0]+=1
        A(f"s_cmp_eq_u32 s28, {1 if first else 0}"); A(f"s_cbranch_scc1 L_b0_{lbl0[0]}"); A("s_barrier"); A(f"L_b0_{lbl0[0]}:")
    bar0(True)
    for i in range(DK):
        if i>=N0: A(f"s_waitcnt vmcnt({N0-1})")
        issue(i)
    bar0(False)
    STAMP(1)
    A("s_barrier")
    STAMP(2)
    q_read()
    cur=[None]
    def pair_T(pi):
        return 2*((NB+1)*pi) if pi<NP0 else 2*((NB+1)*NP0+(pi-NP0))
    def kstep(c, dsbase):
        I=c+DK
        A(f"s_waitcnt vmcnt({min((cur[0] or NK or N)-1,I-c-1)})")
        issue(I)
        pi=c//8
        k_consume(c, None if pi==0 else L_S+4*pair_T(pi-1)-dsbase)
    for c in range(0,2*R): kstep(c,0)
    nK=(NKS-DK-2*R)//R
    A(f"s_mov_b32 s46, {nK}")
    def loop_variants(tag, body, post, zr, cr, pr, lv):
        if not ctl:
            A(f"L_{tag}:"); body(N); post()
            A("s_sub_u32 s46, s46, 1"); A("s_cmp_lg_u32 s46, 0"); A(f"s_cbranch_scc1 L_{tag}")
            return
        order=[1,0,2]
        for k,v in enumerate(order):
            A(f"L_{tag}{v}:")
            A(f"ds_read_b32 v{cr}, v{zr} offset:{L_CTL}")
            body(lv[v]); post()
            A("s_add_u32 s47, s47, 1"); A(f"v_mov_b32 v{pr}, s47")
            A("s_waitcnt lgkmcnt(0)")
            A(f"v_readfirstlane_b32 s48, v{cr}")
            A(f"ds_write_b32 v{zr}, v{pr} offset:{L_PRG}")
            A("s_sub_u32 s46, s46, 1"); A("s_cmp_eq_u32 s46, 0"); A(f"s_cbranch_scc1 L_{tag}x")
            others=[w for w in (0,1,2) if w!=v]
            A(f"s_cmp_eq_u32 s48, {v}"); A(f"s_cbranch_scc1 L_{tag}{v}")
            A(f"s_cmp_eq_u32 s48, {others[0]}"); A(f"s_cbranch_scc1 L_{tag}{others[0]}")
            A(f"s_branch L_{tag}{others[1]}")
        A(f"L_{tag}x:")
    def kbody(n):
        cur[0]=n
        for c in range(2*R,3*R): kstep(c,0)
        cur[0]=None
    loop_variants("kloop", kbody, lambda: A(f"v_add_u32 v{vSW}, {R}, v{vSW}"), vZ, vPC, vPP, ctlK or ctl)
    dsb=nK*R
    for c in range((2+nK)*R,NKS): kstep(c,dsb)
    k_flush(L_S+4*pair_T(NKS//8-1)-dsb)
    mx_publish(0, vR)
    vM=[12,13,14,15]; vNM=11; vT=9; vP=10; vACC=16; vBB=[32,36]; vSS=[40,44,48]; vTM=52
    assert vTM+12<=RING
    masks(vM[0], vTM, vTM+1)
    A(f"v_mul_u32_u24 v{vSR}, {S_STR}, v2")
    A(f"v_mov_b32 v{vT}, 0")
    A("s_waitcnt lgkmcnt(0)")
    STAMP(3)
    A("s_barrier")
    for w in range(4): A(f"ds_read_b128 v[{48+4*w}:{48+4*w+3}], v{vT} offset:{L_MX+16*w}")
    A(f"ds_read_b128 v[{vSS[0]}:{vSS[0]+3}], v{vSR} offset:{L_S}")
    inext=[NKS+DK]
    A(f"s_waitcnt vmcnt({N-1})")
    issue(inext[0]); inext[0]+=1
    for r in range(16): A(f"v_mov_b32 v{vACC+r}, 0")
    A("s_waitcnt lgkmcnt(0)")
    def max12(dst,b):
        A(f"v_max3_f32 v{dst}, v{b}, v{b+1}, v{b+2}")
        for k in range(3,15,2): A(f"v_max3_f32 v{dst}, v{dst}, v{b+k}, v{b+k+1}")
        A(f"v_max_f32 v{dst}, v{dst}, v{b+15}")
    max12(vNM,48)
    A(f"v_mul_f32 v{vNM}, s34, v{vNM}"); A(f"v_sub_f32 v{vNM}, 0, v{vNM}")
    def bprep(tile, part):
        s=vSS[(tile//4)%3]+tile%4; b=vBB[tile%2]
        if part==0: A(f"v_fma_f32 v{vT}, v{s}, s34, v{vNM}")
        if part==1: A(f"v_exp_f32 v{vT}, v{vT}")
        if part==2: A(f"v_cvt_pk_bf16_f32 v{vP}, v{vT}, v{vT}"); A(f"v_and_b32 v{b}, v{vP}, v{vM[0]}")
        if part==3:
            for r in range(1,4): A(f"v_and_b32 v{b+r}, v{vP}, v{vM[r]}")
    bprep(0,0); bprep(0,1); A("s_nop 0"); bprep(0,2); bprep(0,3); A("s_nop 1")
    def vconsume(u, srbase, mark):
        tile=u//4; q=u%4; r=slot(NKS+u); b=vBB[tile%2]
        if q==0 and tile%4==0 and tile+4<256:
            nb=vSS[(tile//4+1)%3]
            A(f"ds_read_b128 v[{nb}:{nb+3}], v{vSR} offset:{L_S+4*(tile+4)-srbase}")
        if q==0 and tile%4==3 and tile+1<256: A("s_waitcnt lgkmcnt(0)")
        a=vACC+4*q
        if q==0 and len(L)-mark<2: A(f"s_nop {1-(len(L)-mark)}")
        A(f"v_mfma_f32_16x16x32_bf16 v[{a}:{a+3}], v[{r}:{r+3}], v[{b}:{b+3}], v[{a}:{a+3}]")
        if tile+1<256: bprep(tile+1,q)
    def vstep(u, srbase, do_issue=True):
        c=NKS+u; I=inext[0]; mark=len(L)
        if do_issue and I<NTOT:
            A(f"s_waitcnt vmcnt({min((cur[0] or N)-1,I-c-1)})")
            assert I-R < c
            issue(I); inext[0]+=1
        else:
            k=I-c-1
            if k<N: A(f"s_waitcnt vmcnt({k})")
        vconsume(u,srbase,mark)
    u=0
    DV=(max(ctl) if ctl else N) if catchup else R-1
    first=True
    while True:
        D=inext[0]-(NKS+u)
        if D<=DV and u%R==0: break
        if D>DV:
            vstep(u,0,do_issue=False); u+=1
            D=inext[0]-(NKS+u)
            if D>DV or u%R!=0:
                if D>=DV: vstep(u,0,True); u+=1
        else:
            vstep(u,0,True); u+=1
    D=inext[0]-(NKS+u)
    assert D==DV and u%R==0 and (R//16)%3==0 and R%16==0, (D,DV,u)
    u0=u
    PKEND=2+nK; PV0=(inext[0]+R//2)//R-1;
    nV=(1024-DV-u0)//R
    while u0+nV*R+16>1024: nV-=1
    PVEND=PV0+nV
    A(f"s_mov_b32 s46, {nV}")
    if ctl:
        A("v_mov_b32 v6, 0"); A(f"s_mov_b32 s47, {PV0}")
    i0=inext[0]
    def vbody(n):
        cur[0]=n; inext[0]=i0
        for uu in range(u0,u0+R): vstep(uu,0,True)
        cur[0]=None
    loop_variants("vloop", vbody, lambda: A(f"v_add_u32 v{vSR}, {R}, v{vSR}"), 6, 4, 8, ctl)
    inext[0]=i0+nV*R
    for uu in range(u0+nV*R,1024): vstep(uu,nV*R,True)
    STAMP(4)
    A(f"v_lshrrev_b32 v{vT}, 4, v0"); A(f"v_lshlrev_b32 v{vT}, 4, v{vT}"); A(f"v_mul_u32_u24 v{vP}, {O_STR}, v3"); A(f"v_add_u32 v{vT}, v{vT}, v{vP}")
    A("s_nop 3")
    for hf in range(2):
        for r in range(4):
            A(f"v_add_f32_dpp v{vTM+4*hf+r}, v{vACC+8+4*hf+r}, v{vACC+4*hf+r} row_ror:8 row_mask:0xf bank_mask:0xf")
    for k in range(8): A(f"v_cvt_pk_bf16_f32 v{vTM+k}, v{vTM+k}, v{vTM+k}")
    A("s_mov_b64 exec, s[60:61]")
    A(f"ds_write_b128 v{vT}, v[{vTM}:{vTM+3}] offset:{L_O}")
    A(f"ds_write_b128 v{vT}, v[{vTM+4}:{vTM+7}] offset:{L_O+64}")
    A("s_waitcnt lgkmcnt(0)")
    A("s_barrier")
    STAMP(5)
    if calib:
        A("L_cal:"); A("s_memrealtime s[72:73]"); A("s_waitcnt lgkmcnt(0)"); A("s_sub_u32 s72, s72, s70"); A(f"s_cmp_lt_u32 s72, {calib}"); A("s_cbranch_scc1 L_cal")
    stamp_out(role="s")
    A("s_endpgm")

    hM=20
    hACC=24
    hAD=28; hLD=29
    WO=128
    def wo_issue():
        C("wo block loads, c = wave-1")
        A("s_mul_i32 s47, s31, 229376"); A("s_sub_u32 s48, s3, 1"); A("s_lshl_b32 s48, s48, 7"); A("s_add_u32 s47, s47, s48")
        A(f"s_sub_u32 s48, {4096*896}, s47")
        srd(52,12,13,"s47","s48")
        A(f"v_mul_u32_u24 v{hAD}, 896, v2"); A(f"v_lshl_add_u32 v{hAD}, v3, 4, v{hAD}")
        A("s_mov_b32 s47, 0")
        for t in range(0 if skipwo else 32):
            if t>=NW: A(f"s_waitcnt vmcnt({NW-1})")
            A(f"buffer_load_dwordx4 v[{WO+4*t}:{WO+4*t+3}], v{hAD}, s[52:55], s47 offen {HF}")
            A("s_add_u32 s47, s47, 7168")
    def combine(acc, dst):
        A(f"v_permlane32_swap_b32 v{acc}, v{acc+1}"); A(f"v_permlane32_swap_b32 v{acc+2}, v{acc+3}")
        A("s_nop 1")
        A(f"v_add_f32_dpp v{dst}, v{acc+1}, v{acc} row_ror:8 row_mask:0xf bank_mask:0xf")
        A(f"v_add_f32_dpp v{dst+1}, v{acc+3}, v{acc+2} row_ror:8 row_mask:0xf bank_mask:0xf")
    def wave_sum(v,t,op="add"):
        for pat in ["quad_perm:[1,0,3,2]","quad_perm:[2,3,0,1]","row_half_mirror","row_mirror"]:
            A("s_nop 1"); A(f"v_{op}_f32_dpp v{v}, v{v}, v{v} {pat} row_mask:0xf bank_mask:0xf")
        for sw in ["16","32"]:
            A(f"v_mov_b32 v{t}, v{v}"); A("s_nop 1"); A(f"v_permlane{sw}_swap_b32 v{v}, v{t}"); A(f"v_{op}_f32 v{v}, v{v}, v{t}")
    def srd_slots():
        A("s_lshl_b32 s47, s33, 12"); srd(36,24,25,"s47",4096)
        A("s_lshl_b32 s47, s30, 17"); srd(40,24,25,"s47",131072)
        srd(56,22,23,None,256)
    lbl=[0]
    def tag_wait(t):
        lbl[0]+=1; n=lbl[0]
        A("s_mov_b32 s49, 400000")
        A(f"L_cw{n}:")
        A(f"buffer_load_dword v{t}, off, s[56:59], 0 {SC}"); A("s_waitcnt vmcnt(0)")
        A(f"v_cmp_eq_u32 vcc, 0, v{t}"); A("s_sub_u32 s49, s49, 1"); A("s_cbranch_scc1 L_cwx%d"%n)
        A(f"s_cbranch_vccz L_cwx{n}"); A("s_sleep 8"); A(f"s_branch L_cw{n}")
        A(f"L_cwx{n}:")
        A(f"v_and_b32 v{t}, 0xfff, v{t}"); A("s_nop 0"); A(f"v_readfirstlane_b32 s96, v{t}")
    def gather(off, b, vad, sleep, vtag, only28=False):
        lbl[0]+=1; n=lbl[0]
        A("s_mov_b32 s49, 400000"); A("s_mov_b32 s47, 65536")
        if only28:
            for r in range(4): A(f"v_mov_b32 v{b+4+r}, v{vtag}")
            A("s_mov_b32 s62, -1"); A("s_mov_b32 s63, 0xffff")
        A(f"L_g{n}:")
        A(f"buffer_load_dwordx4 v[{b}:{b+3}], v{vad}, s[40:43], 0 offen offset:{off} {SC}")
        if only28: A("s_mov_b64 exec, s[62:63]")
        A(f"buffer_load_dwordx4 v[{b+4}:{b+7}], v{vad}, s[40:43], s47 offen offset:{off} {SC}")
        if only28: A("s_mov_b64 exec, -1")
        A("s_waitcnt vmcnt(1)")
        A(f"v_xor_b32 v{b+8}, v{b}, v{vtag}")
        for r in range(1,4): A(f"v_bitop3_b32 v{b+8}, v{b+r}, v{vtag}, v{b+8} bitop3:0xbe")
        A("s_waitcnt vmcnt(0)")
        for r in range(4,8): A(f"v_bitop3_b32 v{b+8}, v{b+r}, v{vtag}, v{b+8} bitop3:0xbe")
        A(f"v_and_b32 v{b+8}, 0xfff, v{b+8}")
        A(f"v_cmp_ne_u32 vcc, 0, v{b+8}"); A("s_sub_u32 s49, s49, 1"); A(f"s_cbranch_scc1 L_gx{n}")
        A(f"s_cbranch_vccz L_gx{n}")
        if sleep: A(f"s_sleep {sleep}")
        A(f"s_branch L_g{n}")
        A(f"L_gx{n}:")
        for r in range(8): A(f"v_xor_b32 v{b+r}, v{b+r}, v{vtag}")
        for r in range(4): A(f"v_add_f32 v{b+r}, v{b+r}, v{b+4+r}")
        for pat in ["row_ror:4","row_ror:8"]:
            if pat=="row_ror:4": pass
            for r in range(4): A(f"v_add_f32_dpp v{b+r}, v{b+r}, v{b+r} {pat} row_mask:0xf bank_mask:0xf")
        for r in range(1,4): A(f"v_mov_b32_dpp v{b}, v{b+r} quad_perm:[0,1,2,3] row_mask:0xf bank_mask:{1<<r:#x}")
        for sw in ["16","32"]:
            A(f"v_mov_b32 v{b+1}, v{b}"); A("s_nop 1"); A(f"v_permlane{sw}_swap_b32 v{b}, v{b+1}"); A(f"v_add_f32 v{b}, v{b}, v{b+1}")
    def tail_gemv():
        P=32
        A(f"v_mul_u32_u24 v{hLD}, {O_STR}, v2"); A("v_mov_b32 v30, 0")
        A(f"v_lshrrev_b32 v{hAD}, 4, v0"); A(f"v_lshl_add_u32 v{hAD}, v{hAD}, 3, v3"); A(f"v_lshlrev_b32 v{hAD}, 3, v{hAD}")
        A("s_sub_u32 s48, s3, 1"); A("s_lshl_b32 s48, s48, 8")
        A("s_waitcnt vmcnt(0) lgkmcnt(0)")
        STAMP(4)
        A("s_barrier")
        STAMP(5)
        for n in range(8): A(f"ds_read_b128 v[{P+4*n}:{P+4*n+3}], v{hLD} offset:{L_O+16*n}")
        A(f"ds_read_b64 v[10:11], v30 offset:{L_SC}")
        BB=[12,16]
        def bp(t):
            if t%4==0: A(f"s_waitcnt lgkmcnt({8-t//4})")
            for r in range(4): A(f"v_and_b32 v{BB[t%2]+r}, v{P+t}, v{hM+r}")
        bp(0)
        for t in range(32):
            if t+1<32: bp(t+1)
            else: A("s_nop 0")
            A(f"v_mfma_f32_16x16x32_bf16 v[{hACC}:{hACC+3}], v[{WO+4*t}:{WO+4*t+3}], v[{BB[t%2]}:{BB[t%2]+3}], {'0' if t==0 else f'v[{hACC}:{hACC+3}]'}")
        A("s_waitcnt lgkmcnt(0)"); A("s_nop 6")
        combine(hACC,12)
        A("v_mul_f32 v12, v10, v12"); A("v_mul_f32 v13, v10, v13")
        A("v_and_or_b32 v12, v12, s97, v11"); A("v_and_or_b32 v13, v13, s97, v11")
        A("s_mov_b64 exec, s[60:61]")
        A(f"buffer_store_dwordx2 v[12:13], v{hAD}, s[36:39], s48 offen {SC}")
        A("s_mov_b64 exec, -1")

    A("L_buf:")
    if bprio: A(f"s_setprio {bprio}")
    if ctl:
        A("v_mov_b32 v32, 0"); A("v_mov_b32 v33, 1"); A(f"ds_write_b32 v32, v33 offset:{L_CTL}")
    k_setup()
    A("s_waitcnt lgkmcnt(0)")
    srd(84,6,7,"s35",1<<20)
    A("s_sub_u32 s47, s3, 4"); A("s_lshl_b32 s44, s47, 13")
    A("s_lshl_b32 s47, s47, 3"); A(f"v_add_u32 v{vSW}, s47, v{vSW}")
    bar0(True)
    for i in range(R):
        if i==N0:
            srd_slots()
            A("s_cmp_lg_u32 s3, 5"); A("s_cbranch_scc1 L_noclr"); A("s_cmp_lg_u32 s2, 0"); A("s_cbranch_scc1 L_noclr")
            C("workgroup 0, wave 5: this launch's tag = (word left in d_ws + 1) mod 4096, announced in d_debug[0]")
            srd(92,24,25,"0x100000",256)
            A(f"buffer_load_dword v32, off, s[92:95], 0 {SC}"); A("s_waitcnt vmcnt(0)")
            A("v_add_u32 v32, 1, v32"); A("v_and_b32 v32, 0xfff, v32"); A("v_or_b32 v33, 0x1000, v32")
            A("s_mov_b64 exec, 1")
            A(f"buffer_store_dword v33, off, s[56:59], 0 {SC}")
            A(f"buffer_store_dword v32, off, s[92:95], 0 {SC}")
            A("s_mov_b64 exec, -1")
            A("L_noclr:")
        if i>=N0: A(f"s_waitcnt vmcnt({N0-1})")
        r=slot(i)
        A(f"buffer_load_dwordx4 v[{r}:{r+3}], v{vK}, s[84:87], s44 offen offset:{128*(i%4)} {SF}")
        if i%4==3: A(f"s_add_u32 s44, s44, {4096 if i%8==3 else 4096+NB*8192}")
    bar0(False)
    STAMP(1)
    A("s_barrier")
    STAMP(2)
    if bprio: A("s_setprio 0")
    q_read()
    for c in range(R):
        A(f"s_waitcnt vmcnt({R-1-c})")
        pi=c//8
        k_consume(c, None if pi==0 else L_S+8*(NB+1)*(pi-1))
    k_flush(L_S+8*(NB+1)*(NP0-1))
    A("s_sub_u32 s47, s3, 4"); A("s_lshl_b32 s47, s47, 4")
    mx_publish("s47", vR)
    masks(hM,12,13)
    A("s_cmp_eq_u32 s3, 5"); A("s_cbranch_scc1 L_ffn0")
    if not wol: wo_issue()
    if ctl:
        A("s_cmp_eq_u32 s3, 7"); A("s_cbranch_scc1 L_mon")
    A("s_waitcnt lgkmcnt(0)")
    STAMP(3)
    A("s_barrier")
    if wol: wo_issue()
    A("s_cmp_eq_u32 s3, 7"); A("s_cbranch_scc1 L_tail")
    C("wave 6: softmax denominator, exchange (m,l) with partner, scale")
    A("v_mov_b32 v4, 0")
    for w in range(4): A(f"ds_read_b128 v[{64+4*w}:{64+4*w+3}], v4 offset:{L_MX+16*w}")
    A(f"v_mul_u32_u24 v5, {S_STR}, v2"); A("v_lshl_add_u32 v5, v3, 7, v5")
    for n in range(8): A(f"ds_read_b128 v[{32+4*n}:{32+4*n+3}], v5 offset:{L_S+16*n}")
    A("s_waitcnt lgkmcnt(8)")
    max12(6,64)
    A("v_mul_f32 v7, s34, v6"); A("v_sub_f32 v7, 0, v7")
    A("s_waitcnt lgkmcnt(0)")
    for k in range(32): A(f"v_fma_f32 v{32+k}, v{32+k}, s34, v7")
    for k in range(32): A(f"v_exp_f32 v{32+k}, v{32+k}")
    for st in (16,8,4,2,1):
        for k in range(st): A(f"v_add_f32 v{32+k}, v{32+k}, v{32+k+st}")
    wave_sum(32,33)
    C("v6=M v32=l")
    tag_wait(16)
    C("four words: 16-bit halves of M and l, each with a 16-bit tag")
    A("v_or_b32 v16, 0xa000, v16"); A("s_mov_b32 s47, 0xffff0000")
    A("v_and_or_b32 v8, v6, s47, v16"); A("v_lshl_or_b32 v9, v6, 16, v16"); A("v_and_or_b32 v10, v32, s47, v16"); A("v_lshl_or_b32 v11, v32, 16, v16")
    A("s_mov_b64 exec, 1")
    A(f"buffer_store_dwordx4 v[8:11], off, s[36:39], 0 offset:3840 {SC}")
    A("s_mov_b64 exec, -1")
    A("s_xor_b32 s48, s32, 1"); A("s_lshl_b32 s48, s48, 12"); A("s_mov_b32 s49, 400000")
    A("L_mlp:")
    A(f"buffer_load_dwordx4 v[12:15], off, s[40:43], s48 offset:3840 {SC}"); A("s_waitcnt vmcnt(0)")
    A("v_xor_b32 v17, v12, v16")
    for r in (13,14,15): A(f"v_bitop3_b32 v17, v{r}, v16, v17 bitop3:0xbe")
    A("v_and_b32 v17, 0xffff, v17")
    A("v_cmp_ne_u32 vcc, 0, v17"); A("s_sub_u32 s49, s49, 1"); A("s_cbranch_scc1 L_mlx")
    A("s_cbranch_vccz L_mlx"); A("s_sleep 8"); A("s_branch L_mlp")
    A("L_mlx:")
    A("v_lshrrev_b32 v13, 16, v13"); A("v_lshrrev_b32 v15, 16, v15"); A("v_and_or_b32 v10, v12, s47, v13"); A("v_and_or_b32 v11, v14, s47, v15")
    A("v_max_f32 v12, v6, v10")
    A("v_sub_f32 v13, v6, v12"); A("v_sub_f32 v14, v10, v12")
    A("v_mul_f32 v13, s34, v13"); A("v_mul_f32 v14, s34, v14")
    A("v_exp_f32 v13, v13"); A("v_exp_f32 v14, v14"); A("s_nop 0")
    A("v_mul_f32 v15, v13, v32"); A("v_fma_f32 v15, v14, v11, v15")
    A("v_rcp_f32 v15, v15"); A("s_nop 0"); A("v_mul_f32 v15, v15, v13")
    A(f"ds_write_b32 v4, v15 offset:{L_SC}")
    A("s_branch L_tail")

    REFS={32:list(range(32)),16:[2*k for k in range(16)],8:[2*k for k in range(8)],4:[0,6,10,12],2:[0,10],1:[4]}[NREF]
    if ctl:
        A("L_mon:")
        C("wave 7: compare this workgroup's progress with its batch's mean and pick the streamer's depth")
        A(f"s_mov_b32 s51, {(~sum(1<<r for r in REFS))&0xffffffff:#x}"); A("s_lshr_b32 s51, s51, s32"); A("s_and_b32 s51, s51, 1")
        tag_wait(5)
        A("v_lshlrev_b32 v5, 16, v5"); A("s_lshl_b32 s96, s96, 16"); A("v_mov_b32 v4, 0"); A("s_mov_b32 s50, 0")
        for ph,pend in (("k",PKEND),("v",PVEND)):
            A(f"L_mon{ph}:")
            A(f"ds_read_b32 v6, v4 offset:{L_PRG}"); A("s_waitcnt lgkmcnt(0)"); A("v_readfirstlane_b32 s47, v6")
            A(f"s_cmp_ge_u32 s47, {pend}"); A(f"s_cbranch_scc1 L_mon{ph}x")
            A("s_cmp_lg_u32 s47, s50"); A(f"s_cbranch_scc1 L_mon{ph}n")
            A(f"s_sleep {msleep}"); A(f"s_branch L_mon{ph}")
            A(f"L_mon{ph}n:")
            A("s_mov_b32 s50, s47")
            A(f"s_and_b32 s48, s47, {PD-1}"); A("s_or_b32 s48, s48, s51"); A(f"s_cbranch_scc1 L_mon{ph}p")
            A("v_or_b32 v6, v5, v6")
            A("s_mov_b64 exec, 1")
            A(f"buffer_store_dword v6, off, s[36:39], 0 offset:3968 {SC}")
            A("s_mov_b64 exec, -1")
            A(f"L_mon{ph}p:")
            if RD>1: A(f"s_and_b32 s48, s47, {RD-1}"); A(f"s_cmp_lg_u32 s48, {RPH}"); A(f"s_cbranch_scc1 L_mon{ph}")
            for k in range(NREF): A(f"s_buffer_load_dword s{4+k}, s[40:43], {4096*REFS[k]+3968} glc")
            A("s_waitcnt lgkmcnt(0)")
            for k in range(NREF): A(f"s_sub_u32 s{4+k}, s{4+k}, s96")
            A("s_mov_b32 s48, s4"); A("s_mov_b32 s49, s4")
            for k in range(1,NREF): A(f"s_add_u32 s48, s48, s{4+k}"); A(f"s_max_u32 s49, s49, s{4+k}")
            A("s_cmp_gt_u32 s49, 63"); A(f"s_cbranch_scc1 L_mon{ph}")
            A(f"s_mul_i32 s48, s48, {32//NREF}")
            A("s_lshl_b32 s49, s47, 5"); A(f"s_add_i32 s49, s49, {BIAS-32}"); A("s_sub_i32 s49, s49, s48")
            A(f"s_cmp_gt_i32 s49, {TH}"); A("s_cselect_b32 s48, 0, 1"); A(f"s_cmp_lt_i32 s49, {-TH}"); A("s_cselect_b32 s48, 2, s48")
            A("v_mov_b32 v7, s48"); A(f"ds_write_b32 v4, v7 offset:{L_CTL}")
            A(f"s_branch L_mon{ph}")
            A(f"L_mon{ph}x:")
            if ph=="k":
                A("s_waitcnt lgkmcnt(0)"); STAMP(3); A("s_barrier")
        A("s_branch L_tail")

    A("L_help:")
    D0=32
    def layernorm(xr):
        for k in range(4):
            A(f"v_lshlrev_b32 v{8+2*k}, 16, v{xr+k}"); A(f"v_and_b32 v{9+2*k}, 0xffff0000, v{xr+k}")
        A("v_add_f32 v16, v8, v9"); A("v_add_f32 v17, v10, v11"); A("v_add_f32 v18, v12, v13"); A("v_add_f32 v19, v14, v15")
        A("v_add_f32 v16, v16, v17"); A("v_add_f32 v18, v18, v19"); A("v_add_f32 v16, v16, v18")
        wave_sum(16,17)
        A(f"v_mul_f32 v16, {f2u(1.0/448):#x}, v16")
        A("v_cmp_gt_u32 vcc, 56, v0"); A("v_cvt_pk_bf16_f32 v17, 0, v16"); A("s_nop 0")
        A("v_cndmask_b32 v16, 0, v16, vcc")
        A("v_sub_f32 v4, v8, v16"); A("v_mul_f32 v18, v4, v4")
        for k in range(1,8):
            A(f"v_sub_f32 v4, v{8+k}, v16"); A("v_fmac_f32 v18, v4, v4")
        wave_sum(18,19)
        A(f"v_mul_f32 v18, {f2u(1.0/448):#x}, v18")
        A("v_cvt_pk_bf16_f32 v18, 0, v18")
        A(f"v_add_f32 v18, {f2u(1e-5):#x}, v18")
        A("v_cvt_pk_bf16_f32 v18, 0, v18")
        A("v_sqrt_f32 v18, v18"); A("s_nop 0")
        A("v_cvt_pk_bf16_f32 v18, 0, v18")
        A("v_rcp_f32 v19, v18")
        for k in range(8):
            A(f"v_sub_f32 v{8+k}, v{8+k}, v17"); A(f"v_cvt_pk_bf16_f32 v{8+k}, 0, v{8+k}")
            A(f"v_mul_f32 v4, v{8+k}, v19"); A(f"v_fma_f32 v6, -v4, v18, v{8+k}"); A("v_fma_f32 v4, v6, v19, v4")
            A(f"v_cvt_pk_bf16_f32 v{8+k}, v4, v4")
    def gemv56(waits, issue_fn=None, bar_at=None):
        XX=[4,8]; BB=[12,16]
        A("s_waitcnt lgkmcnt(0)")
        A(f"ds_read_b128 v[4:7], v{hLD}"); A(f"ds_read_b128 v[8:11], v{hLD} offset:16")
        def bp(t):
            if t%4==0: A(f"s_waitcnt lgkmcnt({1 if t//4+1<14 else 0})")
            for r in range(4): A(f"v_and_b32 v{BB[t%2]+r}, v{XX[(t//4)%2]+t%4}, v{hM+r}")
            if t%4==3 and t//4+2<14:
                x=XX[(t//4)%2]; A(f"ds_read_b128 v[{x}:{x+3}], v{hLD} offset:{16*(t//4+2)}")
        bp(0)
        for t in range(56):
            if t+1<56: bp(t+1)
            else: A("s_nop 0")
            if issue_fn:
                if t+QD<56: issue_fn(t+QD)
                if t+QD==bar_at: A("s_barrier")
                A(f"s_waitcnt vmcnt({min(QD,55-t)})")
            elif waits: A(f"s_waitcnt vmcnt({55-t})")
            A(f"v_mfma_f32_16x16x32_bf16 v[{hACC}:{hACC+3}], v[{D0+4*t}:{D0+4*t+3}], v[{BB[t%2]}:{BB[t%2]+3}], {'0' if t==0 else f'v[{hACC}:{hACC+3}]'}")
        A("s_nop 7")
        combine(hACC,12)
    C("waves 1..4: q column block w-1 over all 448 rows, tile order rotated by 4*rot tiles")
    A("v_lshlrev_b32 v1, 4, v0")
    A(f"v_lshlrev_b32 v{hAD}, 13, v2"); A(f"v_lshl_add_u32 v{hAD}, v3, 4, v{hAD}")
    A("s_mul_i32 s47, s30, 896")
    A("s_lshl_b32 s48, s31, 9"); A("s_sub_u32 s49, s3, 1"); A("s_lshl_b32 s49, s49, 7"); A("s_add_u32 s48, s48, s49"); A(f"s_sub_u32 s49, {448*8192}, s48")
    if rot:
        A("s_mul_i32 s51, s30, 7"); A("s_lshr_b32 s51, s51, 2")
    else: A("s_mov_b32 s51, 0")
    A("s_waitcnt lgkmcnt(0)")
    srd(88,4,5,"s47",896)
    srd(52,10,11,"s48","s49")
    A("buffer_load_dwordx4 v[4:7], v1, s[88:91], 0 offen")
    A("s_lshl_b32 s48, s51, 18")
    def wq_load(t):
        A(f"buffer_load_dwordx4 v[{D0+4*t}:{D0+4*t+3}], v{hAD}, s[52:55], s48 offen {QF}")
        A("s_add_u32 s48, s48, 65536")
        if rot and t%4==3 and t<55: A(f"s_cmp_ge_u32 s48, {56*65536}"); A("s_cselect_b32 s48, 0, s48")
    def ln_part(wait):
        masks(hM,12,13)
        A(f"s_waitcnt vmcnt({wait})")
        layernorm(4)
        C("X'[e][t - 4*rot mod 56]")
        A("s_sub_u32 s47, s3, 1"); A(f"s_mul_i32 s47, s47, {X_SZ}"); A(f"s_add_u32 s47, s47, {L_X}")
        A("s_lshl_b32 s50, s51, 2"); A("v_subrev_u32 v5, s50, v0"); A("v_add_u32 v6, 56, v5"); A("v_min_u32 v5, v5, v6")
        A("v_cmp_lt_u32 vcc, 55, v0"); A("s_nop 1"); A("v_cndmask_b32 v5, v5, v0, vcc")
        A("v_lshl_add_u32 v5, v5, 2, s47")
        for k in range(8): A(f"ds_write_b32 v5, v{8+k} offset:{k*X_STR}")
        C("unrotated copy for the FFN (all four waves write the same values)")
        A("v_lshlrev_b32 v5, 2, v0")
        for k in range(8): A(f"ds_write_b32 v5, v{8+k} offset:{L_X+4*X_SZ+k*X_STR}")
        A(f"v_mul_u32_u24 v{hLD}, {X_STR}, v2"); A(f"v_add_u32 v{hLD}, s47, v{hLD}")
    if stag:
        A("s_cmp_eq_u32 s28, 1"); A("s_cbranch_scc1 L_q1")
        for t in range(QD): wq_load(t)
        ln_part(QD); gemv56(True, wq_load, 55); A("s_branch L_q2")
        A("L_q1:")
        ln_part(0); A("s_barrier")
        for t in range(QD): wq_load(t)
        gemv56(True, wq_load, None)
        A("L_q2:")
    else:
        for t in range(QD): wq_load(t)
        A("s_barrier"); ln_part(QD); gemv56(True, wq_load, None)
    C("q -> bf16 -> LDS: addr = m*128 + (4*rowq+hi)*16 + j*2 (+32 for the second register)")
    A("v_cvt_pk_bf16_f32 v12, v12, v13")
    A("v_bfe_u32 v4, v0, 4, 1"); A("v_lshrrev_b32 v5, 5, v0"); A("v_lshl_add_u32 v4, v4, 2, v5"); A("v_lshlrev_b32 v4, 4, v4"); A("v_lshl_add_u32 v4, v3, 1, v4")
    A("s_sub_u32 s47, s3, 1"); A("s_lshl_b32 s47, s47, 7"); A("v_add_u32 v4, s47, v4")
    A("s_mov_b64 exec, s[60:61]")
    A(f"ds_write_b16 v4, v12 offset:{L_Q}"); A(f"ds_write_b16_d16_hi v4, v12 offset:{L_Q+32}")
    A("s_mov_b64 exec, -1")
    A("s_waitcnt lgkmcnt(0)")
    STAMP(1)
    A("s_barrier")
    STAMP(2)
    srd_slots()
    A("s_cmp_eq_u32 s3, 1"); A("s_cbranch_scc1 L_ffn")
    if not wol: wo_issue()
    STAMP(3)
    A("s_barrier")
    if wol: wo_issue()
    A("L_tail:")
    tail_gemv()
    if not stamp: STAMP(6)
    stamp_out()
    A("s_endpgm")

    A("L_ffn:")
    C("wave 1: FFN slice pidx (64 hidden units) for batch b")
    if noffn: A("s_barrier")
    A("s_cmp_ge_u32 s32, 28"); A("s_cbranch_scc1 L_q3")
    A("s_lshl_b32 s48, s32, 7"); A(f"s_sub_u32 s49, {448*3584}, s48"); srd(52,16,17,"s48","s49")
    A(f"v_mul_u32_u24 v{hAD}, 3584, v2"); A(f"v_lshl_add_u32 v{hAD}, v3, 4, v{hAD}")
    A("s_mov_b32 s48, 0")
    A(f"v_mul_u32_u24 v{hLD}, {X_STR}, v2"); A(f"v_add_u32 v{hLD}, {L_X+4*X_SZ}, v{hLD}")
    for t in range(0 if skipffn else 56):
        if t>=NF: A(f"s_waitcnt vmcnt({NF-1})")
        A(f"buffer_load_dwordx4 v[{D0+4*t}:{D0+4*t+3}], v{hAD}, s[52:55], s48 offen {HF}")
        A(f"s_add_u32 s48, s48, {8*3584}")
    A("s_waitcnt vmcnt(0)")
    gemv56(False)
    C("w2 loads (tile t, block beta) -> D0 + 4*(7t+beta)")
    A(f"s_mul_i32 s48, s32, {64*896}"); A(f"s_sub_u32 s49, {1792*896}, s48"); srd(52,18,19,"s48","s49")
    A(f"v_mul_u32_u24 v{hAD}, 896, v2"); A(f"v_lshl_add_u32 v{hAD}, v3, 4, v{hAD}")
    A("s_mov_b32 s48, 0")
    for t in range(0 if skipffn else 8):
        for be in range(7):
            i=7*t+be
            if i>=NF: A(f"s_waitcnt vmcnt({NF-1})")
            A(f"buffer_load_dwordx4 v[{D0+4*i}:{D0+4*i+3}], v{hAD}, s[52:55], s48 offen offset:{128*be} {HF}")
        A("s_add_u32 s48, s48, 7168")
    C("h -> bf16 -> silu -> bf16 (dup) -> LDS H[g=j][T=4*rowq+hi+2s]")
    for k in (12,13):
        A(f"v_cvt_pk_bf16_f32 v{k}, 0, v{k}")
        A(f"v_mul_f32 v4, {f2u(-math.log2(math.e)):#x}, v{k}"); A("v_exp_f32 v4, v4"); A("s_nop 0")
        A("v_add_f32 v4, 1.0, v4"); A("v_rcp_f32 v4, v4"); A("s_nop 0")
        A(f"v_mul_f32 v{k}, v{k}, v4"); A(f"v_cvt_pk_bf16_f32 v{k}, v{k}, v{k}")
    A("v_bfe_u32 v4, v0, 4, 1"); A("v_lshrrev_b32 v5, 5, v0"); A("v_lshl_add_u32 v4, v4, 2, v5"); A("v_lshlrev_b32 v4, 2, v4")
    A(f"v_mul_u32_u24 v5, {H_STR}, v3"); A("v_add_u32 v4, v4, v5")
    A("s_mov_b64 exec, s[60:61]")
    A(f"ds_write_b32 v4, v12 offset:{L_H}"); A(f"ds_write_b32 v4, v13 offset:{L_H+8}")
    A("s_mov_b64 exec, -1")
    A(f"v_mul_u32_u24 v5, {H_STR}, v2")
    A("s_waitcnt lgkmcnt(0)")
    A(f"ds_read_b128 v[4:7], v5 offset:{L_H}"); A(f"ds_read_b128 v[8:11], v5 offset:{L_H+16}")
    tag_wait(1)
    A("s_waitcnt vmcnt(0) lgkmcnt(0)")
    A(f"v_lshrrev_b32 v{hAD}, 4, v0"); A(f"v_lshl_add_u32 v{hAD}, v{hAD}, 3, v3"); A(f"v_lshlrev_b32 v{hAD}, 3, v{hAD}")
    for be in range(7):
        BB=[12,16]
        for t in range(8):
            for r in range(4): A(f"v_and_b32 v{BB[t%2]+r}, v{4+t}, v{hM+r}")
            A("s_nop 1")
            i=7*t+be
            A(f"v_mfma_f32_16x16x32_bf16 v[{hACC}:{hACC+3}], v[{D0+4*i}:{D0+4*i+3}], v[{BB[t%2]}:{BB[t%2]+3}], {'0' if t==0 else f'v[{hACC}:{hACC+3}]'}")
        A("s_nop 7")
        combine(hACC,30)
        A("v_and_or_b32 v30, v30, s97, v1"); A("v_and_or_b32 v31, v31, s97, v1")
        A("s_mov_b64 exec, s[60:61]")
        if not nobst: A(f"buffer_store_dwordx2 v[30:31], v{hAD}, s[36:39], 0 offen offset:{2048+256*be} {SC}")
        A("s_mov_b64 exec, -1")
    A("L_q3:")
    STAMP(3)
    if not noffn: A("s_barrier")
    wo_issue()
    A("s_branch L_tail")

    A("L_ffn0:")
    C("wave 5: hand the tag to the other waves")
    tag_wait(78)
    A("v_mov_b32 v4, 0"); A(f"ds_write_b32 v4, v78 offset:{L_TAG}")
    A("s_mul_i32 s47, s30, 896"); srd(88,4,5,"s47",896)
    if not wol: wo_issue()
    A("L_noffn:")
    STAMP(3)
    A("s_waitcnt lgkmcnt(0)")
    A("s_barrier")
    if wol: wo_issue()
    A("s_cmp_ge_u32 s32, 28"); A("s_cbranch_scc1 L_tail")
    C("consumer setup: gather address v64, column byte offset v65, x value v66, FFN value v67")
    A("v_lshrrev_b32 v64, 2, v0"); A("v_lshlrev_b32 v64, 12, v64"); A("v_and_b32 v4, 3, v0"); A("v_lshl_add_u32 v64, v4, 4, v64")
    A("s_lshl_b32 s47, s32, 6"); A("v_add_u32 v64, s47, v64")
    C("col = 64*(k>>2) + 32*(k&1) + 8*((k>>1)&1) + 16*(rho&1) + 2*qd + (rho>>1), rho=(l>>2)&3, qd=l&3")
    A("s_lshr_b32 s47, s32, 2"); A("s_lshl_b32 s47, s47, 6"); A("s_and_b32 s48, s32, 1"); A("s_lshl_b32 s48, s48, 5"); A("s_add_u32 s47, s47, s48")
    A("s_bfe_u32 s48, s32, 0x10001"); A("s_lshl_b32 s48, s48, 3"); A("s_add_u32 s47, s47, s48")
    A("v_bfe_u32 v5, v0, 2, 1"); A("v_lshlrev_b32 v5, 4, v5"); A("v_lshl_add_u32 v5, v4, 1, v5"); A("v_bfe_u32 v6, v0, 3, 1"); A("v_add3_u32 v65, v5, v6, s47")
    A("v_lshlrev_b32 v65, 1, v65")
    A("buffer_load_ushort v66, v65, s[88:91], 0 offen")
    gather(2048, 68, 64, 8, 78, True)
    A("v_cvt_pk_bf16_f32 v67, 0, v68"); A("v_lshlrev_b32 v66, 16, v66")
    A("s_mul_i32 s47, s30, 896"); srd(92,20,21,"s47",896)
    tail_gemv()
    gather(0, 68, 64, 0, 78)
    A("v_cvt_pk_bf16_f32 v68, 0, v68"); A("v_add_f32 v68, v66, v68"); A("v_cvt_pk_bf16_f32 v68, 0, v68"); A("v_add_f32 v68, v68, v67")
    A("v_cvt_pk_bf16_f32 v68, v68, v68")
    A("s_mov_b64 exec, 0xffff")
    A("buffer_store_short v68, v65, s[92:95], 0 offen")
    A("s_mov_b64 exec, -1")
    STAMP(6)
    stamp_out(role="f")
    A("L_end:")
    A("s_endpgm")
    body="\n".join(("" if (l.endswith(":") or l.startswith(".")) else "    ")+l for l in L)+"\n"
    ldsz=lds if lds else L_END
    head=HEADER+f"; @launch grid=(256,1,1) block=(512,1,1) lds={ldsz}\n"
    return head+body+kd(NAME,256,102,256), ldsz

if __name__=="__main__":
    kw=eval("dict(%s)"%(sys.argv[2] if len(sys.argv)>2 else ""))
    t,ldsz=gen(**kw)
    out=sys.argv[1]
    if out.endswith(".s"): open(out,"w").write(t)
    else:
        assemble(t+meta([(NAME,256,102,512)]), out); print(f"work/{out}:{NAME},256,512,{ldsz}")
```

```python
import sys, math, struct
from common import *

NAME="parallel_sum__mha_block_cached__dense_activation_silu__decode_kernel"
HEADER=open("parallel_sum__mha_block_cached__dense_activation_silu__decode.s.ref").read().split("; Override launch")[0]

L_Q=0; L_MX=512; L_SC=576; L_TAG=580; L_PRG=584; L_CTL=588; L_XB=640
L_O=768
L_S=1280; S_STR=1040
L_X=L_S+8*S_STR; X_STR=272; X_SZ=8*X_STR
L_XN=L_X+4*X_SZ; XN_STR=1040
L_HP=L_XN+8*XN_STR; HP_STR=144
L_T=L_HP+8*HP_STR; T_STR=1056; T_SZ=8*T_STR
L_END=L_T+7*T_SZ
CEXP=math.log2(math.e)/16.0
def f2u(f): return struct.unpack("<I",struct.pack("<f",f))[0]

def gen(N=24, N0=10, R=48, NF=6, NW=2, NW7=4, QD=12, stamp=False, SC="sc1", HF="", QF="", SF="nt",
        rot=1, ctl=(18,24,30), ctlK=None, TH=6, BIAS=0, PD=2, RD=2, msleep=16, xb=1, dpoll=1, skipwo=0, skipffn=0, NT=None):
    L=[]; A=L.append
    def C(s): A("    ; "+s)
    lbl=[0]
    def newl(): lbl[0]+=1; return lbl[0]
    def STAMP(i):
        if stamp: A(f"s_memrealtime s[{70+2*i}:{71+2*i}]")
    def srd(d, lo, hi, off, size):
        if off is None: A(f"s_mov_b32 s{d}, s{lo}"); A(f"s_mov_b32 s{d+1}, s{hi}")
        else: A(f"s_add_u32 s{d}, s{lo}, {off}"); A(f"s_addc_u32 s{d+1}, s{hi}, 0")
        A(f"s_mov_b32 s{d+2}, {size}"); A(f"s_mov_b32 s{d+3}, 0x20000")
    def masks(base,t0,t1):
        A(f"v_and_b32 v{t0}, 1, v3"); A(f"v_lshlrev_b32 v{t0}, 4, v{t0}"); A(f"v_mov_b32 v{t1}, 0xffff"); A(f"v_lshlrev_b32 v{t0}, v{t0}, v{t1}")
        A(f"v_lshrrev_b32 v{t1}, 1, v3")
        for r in range(4):
            A(f"v_cmp_eq_u32 vcc, {r}, v{t1}"); A("s_nop 1"); A(f"v_cndmask_b32 v{base+r}, 0, v{t0}, vcc")
    def stamp_out(tmp=4):
        if not stamp: return
        A("s_waitcnt lgkmcnt(0)")
        A("s_mov_b64 exec, 1")
        srd(64,24,25,None,0x40000000)
        A("s_lshl_b32 s68, s2, 3"); A("s_add_u32 s68, s68, s3"); A("s_lshl_b32 s68, s68, 5"); A("s_add_u32 s68, s68, 0x20000000")
        A("s_getreg_b32 s69, hwreg(HW_REG_XCC_ID)")
        for i in range(7): A(f"v_mov_b32 v{tmp+i}, s{70+2*i}")
        A(f"v_mov_b32 v{tmp+7}, s69")
        A(f"buffer_store_dwordx4 v[{tmp}:{tmp+3}], off, s[64:67], s68")
        A(f"buffer_store_dwordx4 v[{tmp+4}:{tmp+7}], off, s[64:67], s68 offset:16")
        A("s_waitcnt vmcnt(0)")
    def srd_slots():
        A("s_lshl_b32 s47, s33, 12"); srd(36,24,25,"s47",4096)
        A("s_lshl_b32 s47, s30, 17"); srd(40,24,25,"s47",131072)
        srd(56,22,23,None,256)
    def tag_wait(t):
        n=newl()
        A("s_mov_b32 s49, 400000")
        A(f"L_cw{n}:")
        A(f"buffer_load_dword v{t}, off, s[56:59], 0 {SC}"); A("s_waitcnt vmcnt(0)")
        A(f"v_cmp_eq_u32 vcc, 0, v{t}"); A("s_sub_u32 s49, s49, 1"); A(f"s_cbranch_scc1 L_cwx{n}")
        A(f"s_cbranch_vccz L_cwx{n}"); A("s_sleep 8"); A(f"s_branch L_cw{n}")
        A(f"L_cwx{n}:")
        A(f"v_and_b32 v{t}, 0xfff, v{t}"); A("s_nop 0"); A(f"v_readfirstlane_b32 s96, v{t}")
    def g_issue(off,b,vad,srdn,only28=False):
        A(f"buffer_load_dwordx4 v[{b}:{b+3}], v{vad}, s[{srdn}:{srdn+3}], 0 offen offset:{off} {SC}")
        if only28: A("s_mov_b64 exec, s[62:63]")
        A(f"buffer_load_dwordx4 v[{b+4}:{b+7}], v{vad}, s[{srdn}:{srdn+3}], s47 offen offset:{off} {SC}")
        if only28: A("s_mov_b64 exec, -1")
    def g_check(b,t,vtag,younger):
        A(f"s_waitcnt vmcnt({younger+1})")
        A(f"v_xor_b32 v{t}, v{b}, v{vtag}")
        for r in range(1,4): A(f"v_bitop3_b32 v{t}, v{b+r}, v{vtag}, v{t} bitop3:0xbe")
        A(f"s_waitcnt vmcnt({younger})")
        for r in range(4,8): A(f"v_bitop3_b32 v{t}, v{b+r}, v{vtag}, v{t} bitop3:0xbe")
        A(f"v_and_b32 v{t}, 0xfff, v{t}")
        A(f"v_cmp_ne_u32 vcc, 0, v{t}")
    def g_reduce(b,vtag):
        for r in range(8): A(f"v_xor_b32 v{b+r}, v{b+r}, v{vtag}")
        for r in range(4): A(f"v_add_f32 v{b+r}, v{b+r}, v{b+4+r}")
        for pat in ["row_ror:4","row_ror:8"]:
            for r in range(4): A(f"v_add_f32_dpp v{b+r}, v{b+r}, v{b+r} {pat} row_mask:0xf bank_mask:0xf")
        for r in range(1,4): A(f"v_mov_b32_dpp v{b}, v{b+r} quad_perm:[0,1,2,3] row_mask:0xf bank_mask:{1<<r:#x}")
        for sw in ["16","32"]:
            A(f"v_mov_b32 v{b+1}, v{b}"); A("s_nop 1"); A(f"v_permlane{sw}_swap_b32 v{b}, v{b+1}"); A(f"v_add_f32 v{b}, v{b}, v{b+1}")
    def g_addr(vad,vcol,t):
        A(f"v_lshrrev_b32 v{vad}, 2, v0"); A(f"v_and_b32 v{t}, 3, v0"); A(f"v_and_b32 v{vcol}, 3, v{vad}")
        A(f"v_lshlrev_b32 v{vad}, 12, v{vad}"); A(f"v_lshl_add_u32 v{vad}, v{t}, 4, v{vad}")
        A("s_lshl_b32 s47, s32, 6"); A(f"v_add_u32 v{vad}, s47, v{vad}")
        A(f"v_lshl_add_u32 v{vcol}, v{t}, 2, v{vcol}"); A("s_lshl_b32 s47, s32, 5"); A(f"v_lshl_add_u32 v{vcol}, v{vcol}, 1, s47")
    def wave_sum(v,t):
        for pat in ["quad_perm:[1,0,3,2]","quad_perm:[2,3,0,1]","row_half_mirror","row_mirror"]:
            A("s_nop 1"); A(f"v_add_f32_dpp v{v}, v{v}, v{v} {pat} row_mask:0xf bank_mask:0xf")
        for sw in ["16","32"]:
            A(f"v_mov_b32 v{t}, v{v}"); A("s_nop 1"); A(f"v_permlane{sw}_swap_b32 v{v}, v{t}"); A(f"v_add_f32 v{v}, v{v}, v{t}")
    def max16(dst,b):
        A(f"v_max3_f32 v{dst}, v{b}, v{b+1}, v{b+2}")
        for k in range(3,15,2): A(f"v_max3_f32 v{dst}, v{dst}, v{b+k}, v{b+k+1}")
        A(f"v_max_f32 v{dst}, v{dst}, v{b+15}")

    A('.amdgcn_target "amdgcn-amd-amdhsa--gfx950"'); A(".text"); A(f".globl {NAME}"); A(".p2align 8"); A(f".type {NAME},@function"); A(f"{NAME}:")
    A("s_cmp_ge_u32 s2, 256"); A("s_cbranch_scc1 L_end")
    STAMP(0)
    A("s_load_dwordx16 s[4:19], s[0:1], 0")
    A("s_load_dwordx4 s[20:23], s[0:1], 64")
    A("s_load_dwordx2 s[24:25], s[0:1], 80")
    A("v_lshrrev_b32 v1, 6, v0"); A("v_and_b32 v0, 63, v0"); A("v_readfirstlane_b32 s3, v1")
    A("s_and_b32 s26, s2, 7"); A("s_lshr_b32 s27, s2, 3"); A("s_and_b32 s28, s27, 1")
    A("s_bfe_u32 s29, s27, 0x10001"); A("s_lshr_b32 s30, s27, 2")
    A("s_lshl_b32 s29, s29, 3"); A("s_add_u32 s31, s26, s29")
    A("s_lshl_b32 s32, s31, 1"); A("s_add_u32 s32, s32, s28")
    A("s_lshl_b32 s33, s30, 5"); A("s_add_u32 s33, s33, s32")
    C("s28=half s30=batch s31=head s32=2*head+half s33=32*batch+s32 ; v2=lane>>3 v3=lane&7")
    A("v_lshrrev_b32 v2, 3, v0"); A("v_and_b32 v3, 7, v0")
    A(f"s_mov_b32 s34, {f2u(CEXP):#x}")
    A("s_mov_b32 s60, 0x00ff00ff"); A("s_mov_b32 s61, 0x00ff00ff"); A("s_mov_b32 s97, 0xfffff000")
    A("s_cmp_eq_u32 s3, 0"); A("s_cbranch_scc1 L_stream")
    A("s_cmp_ge_u32 s3, 5"); A("s_cbranch_scc1 L_buf")
    A("s_branch L_help")

    RING=256-4*R
    vK=4; vV=5; vSW=6; vSR=7; vMX=8; vR=9; vR2=10; vA=[11,12]; vB=[13,14]; vQ=16
    def slot(i): return RING+4*(i%R)
    def k_consume(c, dsoff):
        p=c%8; m=p%4; acc=vA if p<4 else vB; r=slot(c)
        for k in range(4):
            src2 = "0" if (m==0 and k<2) else f"v{acc[k%2]}"
            A(f"v_dot2_f32_bf16 v{acc[k%2]}, v{r+k}, v{vQ+4*m+k}, {src2}")
        prev = dsoff is not None
        if p==0 and prev: A(f"v_add_f32 v{vB[0]}, v{vB[0]}, v{vB[1]}")
        if p==1 and prev: A(f"v_add_f32_dpp v{vR}, v{vB[0]}, v{vB[0]} row_half_mirror row_mask:0xf bank_mask:0xa")
        if p==2 and prev: A(f"v_add_f32_dpp v{vR}, v{vR}, v{vR} quad_perm:[1,0,3,2] row_mask:0xf bank_mask:0xf")
        if p==3 and prev: A(f"v_add_f32_dpp v{vR}, v{vR}, v{vR} quad_perm:[2,3,0,1] row_mask:0xf bank_mask:0xf")
        if p==4:
            if prev: A(f"v_cvt_pk_bf16_f32 v{vR2}, 0, v{vR}")
            A(f"v_add_f32 v{vA[0]}, v{vA[0]}, v{vA[1]}")
        if p==5:
            if prev: A(f"v_max_f32 v{vMX}, v{vMX}, v{vR2}"); A(f"ds_write_b32 v{vSW}, v{vR2} offset:{dsoff}")
            A(f"v_add_f32_dpp v{vR}, v{vA[0]}, v{vA[0]} row_half_mirror row_mask:0xf bank_mask:0x5")
    def k_flush(dsoff):
        A("s_nop 2"); A(f"v_add_f32 v{vB[0]}, v{vB[0]}, v{vB[1]}"); A("s_nop 1")
        A(f"v_add_f32_dpp v{vR}, v{vB[0]}, v{vB[0]} row_half_mirror row_mask:0xf bank_mask:0xa"); A("s_nop 1")
        A(f"v_add_f32_dpp v{vR}, v{vR}, v{vR} quad_perm:[1,0,3,2] row_mask:0xf bank_mask:0xf"); A("s_nop 1")
        A(f"v_add_f32_dpp v{vR}, v{vR}, v{vR} quad_perm:[2,3,0,1] row_mask:0xf bank_mask:0xf")
        A(f"v_cvt_pk_bf16_f32 v{vR2}, 0, v{vR}")
        A(f"v_max_f32 v{vMX}, v{vMX}, v{vR2}"); A(f"ds_write_b32 v{vSW}, v{vR2} offset:{dsoff}")
    def mx_publish(w, tmp):
        A("s_nop 1")
        A(f"v_max_f32_dpp v{vMX}, v{vMX}, v{vMX} row_ror:4 row_mask:0xf bank_mask:0xf"); A("s_nop 1")
        A(f"v_max_f32_dpp v{vMX}, v{vMX}, v{vMX} row_ror:8 row_mask:0xf bank_mask:0xf")
        A(f"v_lshrrev_b32 v{tmp}, 4, v0"); A(f"v_lshlrev_b32 v{tmp}, 2, v{tmp}")
        if isinstance(w,int): A(f"ds_write_b32 v{tmp}, v{vMX} offset:{L_MX+16*w}")
        else: A(f"v_add_u32 v{tmp}, {w}, v{tmp}"); A(f"ds_write_b32 v{tmp}, v{vMX} offset:{L_MX}")
    def k_setup():
        A(f"v_lshlrev_b32 v{vK}, 9, v2"); A(f"v_lshl_add_u32 v{vK}, v3, 4, v{vK}")
        A(f"v_mul_u32_u24 v{vSW}, {S_STR}, v2"); A(f"v_lshrrev_b32 v{vSR}, 2, v3"); A(f"v_lshl_add_u32 v{vSW}, v{vSR}, 2, v{vSW}")
        A(f"v_mov_b32 v{vMX}, 0xff800000")
        A("s_lshl_b32 s35, s33, 20")
    def q_read():
        A(f"v_lshlrev_b32 v{vR}, 4, v3")
        for m in range(4): A(f"ds_read_b128 v[{vQ+4*m}:{vQ+4*m+3}], v{vR} offset:{L_Q+128*m}")
        A("s_waitcnt lgkmcnt(0)")
    def bar0(first):
        n=newl()
        A(f"s_cmp_eq_u32 s28, {1 if first else 0}"); A(f"s_cbranch_scc1 L_b0_{n}"); A("s_barrier"); A(f"L_b0_{n}:")
    NP0=R//8; NB=3
    NKS=1024-NB*R
    NTOT=NKS+1024
    NT=NT or N

    A("L_stream:")
    A("s_setprio 3")
    k_setup()
    A(f"v_lshrrev_b32 v{vV}, 4, v0"); A(f"v_lshlrev_b32 v{vV}, 10, v{vV}"); A(f"v_and_b32 v{vSR}, 15, v0"); A(f"v_lshl_add_u32 v{vV}, v{vSR}, 4, v{vV}")
    vZ=36; vPC=37; vPP=38
    A(f"v_mov_b32 v{vZ}, 0"); A(f"ds_write_b32 v{vZ}, v{vZ} offset:{L_PRG}")
    A("s_waitcnt lgkmcnt(0)")
    srd(36,6,7,"s35",1<<20); srd(40,8,9,"s35",1<<20)
    A("s_mov_b32 s44, 0"); A("s_mov_b32 s45, 0"); A("s_mov_b32 s50, 2")
    def issue(i):
        r=slot(i)
        if i<NKS:
            A(f"buffer_load_dwordx4 v[{r}:{r+3}], v{vK}, s[36:39], s44 offen offset:{128*(i%4)} {SF}")
            if i%4==3: A(f"s_add_u32 s44, s44, {4096+NB*8192 if (i<R and i%8==7) else 4096}")
        elif i<NTOT:
            u=i-NKS
            A(f"buffer_load_dwordx4 v[{r}:{r+3}], v{vV}, s[40:43], s45 offen offset:{256*(u%4)} {SF}")
            if u%4==3: A("s_add_u32 s45, s45, 4096")
    DK=R-1
    bar0(True)
    for i in range(DK):
        if i>=N0: A(f"s_waitcnt vmcnt({N0-1})")
        issue(i)
        if i==N0-1:
            A("s_lshl_b32 s47, s30, 17"); srd(52,24,25,"s47",131072)
            A("s_mul_i32 s47, s30, 896"); srd(92,20,21,"s47",896)
    bar0(False)
    STAMP(1)
    A("s_barrier")
    STAMP(2)
    q_read()
    cur=[None]
    def pair_T(pi): return 2*((NB+1)*pi) if pi<NP0 else 2*((NB+1)*NP0+(pi-NP0))
    def kstep(c, dsbase):
        I=c+DK
        A(f"s_waitcnt vmcnt({min((cur[0] or N)-1,I-c-1)})")
        issue(I)
        pi=c//8
        k_consume(c, None if pi==0 else L_S+4*pair_T(pi-1)-dsbase)
    for c in range(0,2*R): kstep(c,0)
    nK=(NKS-DK-2*R)//R
    A(f"s_mov_b32 s46, {nK}")
    def loop_variants(tag, body, post, zr, cr, pr, lv):
        for v in (1,0,2):
            A(f"L_{tag}{v}:")
            A(f"ds_read_b32 v{cr}, v{zr} offset:{L_CTL}")
            cur[0]=lv[v]; body(); cur[0]=None; post()
            A("s_add_u32 s50, s50, 1"); A(f"v_mov_b32 v{pr}, s50")
            A("s_waitcnt lgkmcnt(0)")
            A(f"v_readfirstlane_b32 s48, v{cr}")
            A(f"ds_write_b32 v{zr}, v{pr} offset:{L_PRG}")
            A("s_sub_u32 s46, s46, 1"); A("s_cmp_eq_u32 s46, 0"); A(f"s_cbranch_scc1 L_{tag}x")
            o=[w for w in (0,1,2) if w!=v]
            A(f"s_cmp_eq_u32 s48, {v}"); A(f"s_cbranch_scc1 L_{tag}{v}")
            A(f"s_cmp_eq_u32 s48, {o[0]}"); A(f"s_cbranch_scc1 L_{tag}{o[0]}")
            A(f"s_branch L_{tag}{o[1]}")
        A(f"L_{tag}x:")
    def kbody():
        for c in range(2*R,3*R): kstep(c,0)
    loop_variants("kloop", kbody, lambda: A(f"v_add_u32 v{vSW}, {R}, v{vSW}"), vZ, vPC, vPP, ctlK or ctl)
    dsb=nK*R
    for c in range((2+nK)*R,NKS): kstep(c,dsb)
    k_flush(L_S+4*pair_T(NKS//8-1)-dsb)
    mx_publish(0, vR)
    vM=[12,13,14,15]; vNM=11; vT=9; vP=10; vACC=16; vBB=[32,36]; vSS=[40,44,48]; vTM=52
    masks(vM[0], vTM, vTM+1)
    A(f"v_mul_u32_u24 v{vSR}, {S_STR}, v2")
    A(f"v_mov_b32 v{vT}, 0")
    A("s_waitcnt lgkmcnt(0)")
    STAMP(3)
    A("s_barrier")
    for w in range(4): A(f"ds_read_b128 v[{48+4*w}:{48+4*w+3}], v{vT} offset:{L_MX+16*w}")
    A(f"ds_read_b128 v[{vSS[0]}:{vSS[0]+3}], v{vSR} offset:{L_S}")
    inext=[NKS+DK]
    A(f"s_waitcnt vmcnt({N-1})")
    issue(inext[0]); inext[0]+=1
    for r in range(16): A(f"v_mov_b32 v{vACC+r}, 0")
    A("s_waitcnt lgkmcnt(0)")
    max16(vNM,48)
    A(f"v_mul_f32 v{vNM}, s34, v{vNM}"); A(f"v_sub_f32 v{vNM}, 0, v{vNM}")
    def bprep(tile, part):
        s=vSS[(tile//4)%3]+tile%4; b=vBB[tile%2]
        if part==0: A(f"v_fma_f32 v{vT}, v{s}, s34, v{vNM}")
        if part==1: A(f"v_exp_f32 v{vT}, v{vT}")
        if part==2: A(f"v_cvt_pk_bf16_f32 v{vP}, v{vT}, v{vT}"); A(f"v_and_b32 v{b}, v{vP}, v{vM[0]}")
        if part==3:
            for r in range(1,4): A(f"v_and_b32 v{b+r}, v{vP}, v{vM[r]}")
    bprep(0,0); bprep(0,1); A("s_nop 0"); bprep(0,2); bprep(0,3); A("s_nop 1")
    def vstep(u, srbase, do_issue=True):
        c=NKS+u; I=inext[0]; mark=len(L)
        if do_issue and I<NTOT:
            A(f"s_waitcnt vmcnt({min((cur[0] or N)-1,I-c-1)})")
            assert I-R < c
            issue(I); inext[0]+=1
        else:
            k=I-c-1
            if k<max(N,NT): A(f"s_waitcnt vmcnt({k})")
        tile=u//4; q=u%4; r=slot(c); b=vBB[tile%2]
        if q==0 and tile%4==0 and tile+4<256:
            nb=vSS[(tile//4+1)%3]
            A(f"ds_read_b128 v[{nb}:{nb+3}], v{vSR} offset:{L_S+4*(tile+4)-srbase}")
        if q==0 and tile%4==3 and tile+1<256: A("s_waitcnt lgkmcnt(0)")
        a=vACC+4*q
        if q==0 and len(L)-mark<2: A(f"s_nop {1-(len(L)-mark)}")
        A(f"v_mfma_f32_16x16x32_bf16 v[{a}:{a+3}], v[{r}:{r+3}], v[{b}:{b+3}], v[{a}:{a+3}]")
        if tile+1<256: bprep(tile+1,q)
    u=0; DV=max(max(ctl),NT)
    while True:
        D=inext[0]-(NKS+u)
        if D<=DV and u%R==0: break
        if D>DV:
            vstep(u,0,False); u+=1
            D=inext[0]-(NKS+u)
            if D>DV or u%R!=0: vstep(u,0,True); u+=1
        else:
            vstep(u,0,True); u+=1
    assert inext[0]-(NKS+u)==DV and (R//16)%3==0 and R%16==0
    u0=u; PKEND=2+nK; PV0=(inext[0]+R//2)//R-1
    nV=(1024-DV-u0)//R
    while u0+nV*R+16>1024: nV-=1
    PVEND=PV0+nV
    A(f"s_mov_b32 s46, {nV}"); A("v_mov_b32 v6, 0"); A(f"s_mov_b32 s50, {PV0}")
    i0=inext[0]
    def vbody():
        inext[0]=i0
        for uu in range(u0,u0+R): vstep(uu,0,True)
    loop_variants("vloop", vbody, lambda: A(f"v_add_u32 v{vSR}, {R}, v{vSR}"), 6, 4, 8, ctl)
    inext[0]=i0+nV*R
    cur[0]=NT
    C("addresses for the tail: v4 gather address, v6 output offset, v8 O' address")
    g_addr(4,6,8)
    A("v_lshrrev_b32 v8, 4, v0"); A("v_lshl_add_u32 v8, v8, 3, v3"); A("v_lshlrev_b32 v8, 4, v8")
    A("s_mov_b32 s47, 65536"); A("s_mov_b32 s49, 400000")
    for uu in range(u0+nV*R,1024): vstep(uu,nV*R,True)
    cur[0]=None
    STAMP(4)
    A("v_and_b32 v7, 15, v0"); A("v_lshlrev_b32 v7, 3, v7"); A("v_mov_b32 v5, 0")
    A("s_nop 4")
    for hf in range(2):
        for r in range(4):
            A(f"v_add_f32_dpp v{vTM+4*hf+r}, v{vACC+8+4*hf+r}, v{vACC+4*hf+r} row_ror:8 row_mask:0xf bank_mask:0xf")
    for k in range(4): A(f"v_cvt_pk_bf16_f32 v{vTM+k}, v{vTM+2*k}, v{vTM+2*k+1}")
    A("s_mov_b64 exec, s[60:61]")
    A(f"ds_write_b128 v8, v[{vTM}:{vTM+3}] offset:{L_O}")
    A("s_mov_b64 exec, -1")
    A("s_waitcnt lgkmcnt(0)")
    A("s_barrier")
    STAMP(5)
    A("s_cmp_ge_u32 s32, 28"); A("s_cbranch_scc1 L_sdone")
    C("final: 16 output columns = sum over the 32 workgroups of this batch")
    A(f"ds_read_b32 v12, v5 offset:{L_TAG}")
    A(f"ds_read_b64 v[14:15], v7 offset:{L_XB}")
    g_issue(0,16,4,52)
    if dpoll: A("s_sleep 4"); g_issue(0,32,4,52)
    A("s_waitcnt lgkmcnt(0)")
    A("L_fp:")
    g_check(16,13,12,2 if dpoll else 0)
    A("s_sub_u32 s49, s49, 1"); A("s_cbranch_scc1 L_fa"); A("s_cbranch_vccz L_fa")
    g_issue(0,16,4,52)
    if dpoll:
        g_check(32,13,12,2)
        A("s_cbranch_vccz L_fb")
        g_issue(0,32,4,52)
    A("s_branch L_fp")
    def final(b):
        g_reduce(b,12)
        A(f"v_cvt_pk_bf16_f32 v{b}, 0, v{b}"); A(f"v_add_f32 v{b}, v14, v{b}"); A(f"v_cvt_pk_bf16_f32 v{b}, 0, v{b}"); A(f"v_add_f32 v{b}, v{b}, v15")
        A(f"v_cvt_pk_bf16_f32 v{b}, v{b}, v{b}")
        A("s_mov_b64 exec, 0xffff")
        A(f"buffer_store_short v{b}, v6, s[92:95], 0 offen")
    if dpoll:
        A("L_fb:"); final(32); A("s_branch L_sdone")
    A("L_fa:"); final(16)
    A("L_sdone:")
    STAMP(6)
    stamp_out(48)
    A("s_endpgm")

    hM=20; hACC=24; hAD=28; hLD=29
    WO=128
    def t_addr(vw, vr, natural):
        A("s_sub_u32 s47, s3, 1"); A(f"s_mul_i32 s47, s47, {T_SZ}"); A(f"s_add_u32 s47, s47, {L_T}")
        A(f"v_lshl_add_u32 v{vw}, v0, 4, s47")
        A(f"v_bfe_u32 v{vr}, v0, 2, 2")
        if natural:
            A(f"v_lshlrev_b32 v{vr}, 7, v{vr}"); A(f"v_lshrrev_b32 v31, 4, v0"); A(f"v_mul_u32_u24 v31, {T_STR}, v31")
        else:
            A(f"v_mul_u32_u24 v{vr}, {T_STR}, v{vr}"); A(f"v_lshrrev_b32 v31, 4, v0"); A(f"v_lshlrev_b32 v31, 7, v31")
        A(f"v_add3_u32 v{vr}, v{vr}, v31, s47"); A("v_and_b32 v31, 3, v0"); A(f"v_lshl_add_u32 v{vr}, v31, 3, v{vr}")
    def wo_issue(nw):
        C("wo rows of this head, column block c = wave-1; then transpose into MFMA B fragments")
        A("s_mul_i32 s47, s31, 229376"); A("s_sub_u32 s48, s3, 1"); A("s_lshl_b32 s48, s48, 7"); A("s_add_u32 s47, s47, s48")
        A(f"s_sub_u32 s48, {4096*896}, s47")
        srd(52,12,13,"s47","s48")
        A(f"v_mul_u32_u24 v{hAD}, 896, v2"); A(f"v_lshl_add_u32 v{hAD}, v3, 4, v{hAD}")
        n=0
        for g in range(4):
            for hf in range(2):
                A(f"s_mov_b32 s47, {7168*(16*hf+4*g)}")
                for r in range(4):
                    if skipwo: continue
                    if n>=nw: A(f"s_waitcnt vmcnt({nw-1})")
                    rr=WO+32*g+16*hf+4*r
                    A(f"buffer_load_dwordx4 v[{rr}:{rr+3}], v{hAD}, s[52:55], s47 offen {HF}")
                    if r<3: A("s_add_u32 s47, s47, 7168")
                    n+=1
        t_addr(hAD,hLD,False)
        A("s_waitcnt vmcnt(0)")
        for g in range(4):
            for k in range(8): A(f"ds_write_b128 v{hAD}, v[{WO+32*g+4*k}:{WO+32*g+4*k+3}] offset:{T_STR*k}")
            A("s_waitcnt lgkmcnt(0)")
            for kp in range(2):
                for nu in range(4):
                    for hf in range(2):
                        rr=WO+32*g+16*kp+4*nu+2*hf
                        A(f"ds_read_b64_tr_b16 v[{rr}:{rr+1}], v{hLD} offset:{4*T_STR*hf+512*kp+32*nu}")
            A("s_waitcnt lgkmcnt(0)")
    def combine(acc, dst):
        A(f"v_permlane32_swap_b32 v{acc}, v{acc+1}"); A(f"v_permlane32_swap_b32 v{acc+2}, v{acc+3}")
        A("s_nop 1")
        A(f"v_add_f32_dpp v{dst}, v{acc+1}, v{acc} row_ror:8 row_mask:0xf bank_mask:0xf")
        A(f"v_add_f32_dpp v{dst+1}, v{acc+3}, v{acc+2} row_ror:8 row_mask:0xf bank_mask:0xf")
    def rowsel(dst, srcs):
        for k in range(1,4): A(f"v_mov_b32_dpp v{dst}, v{srcs[k]} quad_perm:[0,1,2,3] row_mask:{1<<k:#x} bank_mask:0xf")

    A("L_buf:")
    A("s_setprio 3")
    A("v_mov_b32 v32, 0"); A("v_mov_b32 v33, 1"); A(f"ds_write_b32 v32, v33 offset:{L_CTL}")
    k_setup()
    A("s_waitcnt lgkmcnt(0)")
    srd(84,6,7,"s35",1<<20)
    A("s_sub_u32 s47, s3, 4"); A("s_lshl_b32 s44, s47, 13")
    A("s_lshl_b32 s47, s47, 3"); A(f"v_add_u32 v{vSW}, s47, v{vSW}")
    bar0(True)
    for i in range(R):
        if i==N0:
            srd_slots()
            A("s_cmp_lg_u32 s3, 5"); A("s_cbranch_scc1 L_notag"); A("s_cmp_lg_u32 s2, 0"); A("s_cbranch_scc1 L_notag")
            C("workgroup 0, wave 5: this launch's tag differs from the one left in d_ws; announced in d_debug[0]")
            srd(92,24,25,"0x100000",256)
            A("s_memrealtime s[62:63]")
            A(f"buffer_load_dword v32, off, s[92:95], 0 {SC}"); A("s_waitcnt vmcnt(0) lgkmcnt(0)")
            A("s_and_b32 s62, s62, 0x7ff"); A("s_add_u32 s62, s62, 1")
            A("v_add_u32 v32, s62, v32"); A("v_and_b32 v32, 0xfff, v32"); A("v_or_b32 v33, 0x1000, v32")
            A("s_mov_b64 exec, 1")
            A(f"buffer_store_dword v33, off, s[56:59], 0 {SC}")
            A(f"buffer_store_dword v32, off, s[92:95], 0 {SC}")
            A("s_mov_b64 exec, -1")
            A("L_notag:")
        if i>=N0: A(f"s_waitcnt vmcnt({N0-1})")
        r=slot(i)
        A(f"buffer_load_dwordx4 v[{r}:{r+3}], v{vK}, s[84:87], s44 offen offset:{128*(i%4)} {SF}")
        if i%4==3: A(f"s_add_u32 s44, s44, {4096 if i%8==3 else 4096+NB*8192}")
    bar0(False)
    STAMP(1)
    A("s_barrier")
    STAMP(2)
    A("s_setprio 0")
    q_read()
    for c in range(R):
        A(f"s_waitcnt vmcnt({R-1-c})")
        pi=c//8
        k_consume(c, None if pi==0 else L_S+8*(NB+1)*(pi-1))
    k_flush(L_S+8*(NB+1)*(NP0-1))
    A("s_sub_u32 s47, s3, 4"); A("s_lshl_b32 s47, s47, 4")
    mx_publish("s47", vR)
    A("s_cmp_eq_u32 s3, 7"); A("s_cbranch_scc1 L_mon")
    A("L_wo:")
    wo_issue(NW)
    STAMP(3)
    A("s_barrier")
    A("s_cmp_eq_u32 s3, 5"); A("s_cbranch_scc1 L_w5")
    A("s_cmp_lg_u32 s3, 6"); A("s_cbranch_scc1 L_tail")
    C("wave 6: softmax denominator, exchange (m,l) with the other half, scale")
    A("v_mov_b32 v4, 0")
    for w in range(4): A(f"ds_read_b128 v[{64+4*w}:{64+4*w+3}], v4 offset:{L_MX+16*w}")
    A(f"v_mul_u32_u24 v5, {S_STR}, v2"); A("v_lshl_add_u32 v5, v3, 7, v5")
    for n in range(8): A(f"ds_read_b128 v[{32+4*n}:{32+4*n+3}], v5 offset:{L_S+16*n}")
    A("s_waitcnt lgkmcnt(8)")
    max16(6,64)
    A("v_mul_f32 v7, s34, v6"); A("v_sub_f32 v7, 0, v7")
    A("s_waitcnt lgkmcnt(0)")
    for k in range(32): A(f"v_fma_f32 v{32+k}, v{32+k}, s34, v7")
    for k in range(32): A(f"v_exp_f32 v{32+k}, v{32+k}")
    for st in (16,8,4,2,1):
        for k in range(st): A(f"v_add_f32 v{32+k}, v{32+k}, v{32+k+st}")
    wave_sum(32,33)
    tag_wait(16)
    C("v6=M v32=l ; four words: 16-bit halves of M and l, each with a 16-bit tag")
    A("v_or_b32 v16, 0xa000, v16"); A("s_mov_b32 s47, 0xffff0000")
    A("v_and_or_b32 v8, v6, s47, v16"); A("v_lshl_or_b32 v9, v6, 16, v16"); A("v_and_or_b32 v10, v32, s47, v16"); A("v_lshl_or_b32 v11, v32, 16, v16")
    A("s_mov_b64 exec, 1")
    A(f"buffer_store_dwordx4 v[8:11], off, s[36:39], 0 offset:3840 {SC}")
    A("s_mov_b64 exec, -1")
    A("s_xor_b32 s48, s32, 1"); A("s_lshl_b32 s48, s48, 12"); A("s_mov_b32 s49, 400000")
    A("L_mlp:")
    A(f"buffer_load_dwordx4 v[12:15], off, s[40:43], s48 offset:3840 {SC}"); A("s_waitcnt vmcnt(0)")
    A("v_xor_b32 v17, v12, v16")
    for r in (13,14,15): A(f"v_bitop3_b32 v17, v{r}, v16, v17 bitop3:0xbe")
    A("v_and_b32 v17, 0xffff, v17")
    A("v_cmp_ne_u32 vcc, 0, v17"); A("s_sub_u32 s49, s49, 1"); A("s_cbranch_scc1 L_mlx")
    A("s_cbranch_vccz L_mlx"); A("s_sleep 8"); A("s_branch L_mlp")
    A("L_mlx:")
    A("v_lshrrev_b32 v13, 16, v13"); A("v_lshrrev_b32 v15, 16, v15"); A("v_and_or_b32 v10, v12, s47, v13"); A("v_and_or_b32 v11, v14, s47, v15")
    A("v_max_f32 v12, v6, v10")
    A("v_sub_f32 v13, v6, v12"); A("v_sub_f32 v14, v10, v12")
    A("v_mul_f32 v13, s34, v13"); A("v_mul_f32 v14, s34, v14")
    A("v_exp_f32 v13, v13"); A("v_exp_f32 v14, v14"); A("s_nop 0")
    A("v_mul_f32 v15, v13, v32"); A("v_fma_f32 v15, v14, v11, v15")
    A("v_rcp_f32 v15, v15"); A("s_nop 0"); A("v_mul_f32 v15, v15, v13")
    A(f"ds_write_b32 v4, v15 offset:{L_SC}")
    A("s_branch L_tail")

    A("L_w5:")
    C("wave 5: tag for the other waves; x and the gathered FFN result for the final step")
    tag_wait(78)
    A("v_mov_b32 v4, 0"); A(f"ds_write_b32 v4, v78 offset:{L_TAG}")
    A("s_cmp_ge_u32 s32, 28"); A("s_cbranch_scc1 L_tail")
    A("s_mul_i32 s47, s30, 896"); srd(88,4,5,"s47",896)
    g_addr(64,65,4)
    A("buffer_load_ushort v66, v65, s[88:91], 0 offen")
    A("s_mov_b32 s49, 400000"); A("s_mov_b32 s47, 65536")
    for r in range(4): A(f"v_mov_b32 v{72+r}, v78")
    A("s_mov_b32 s62, -1"); A("s_mov_b32 s63, 0xffff")
    A("L_bp:")
    if not skipffn:
        g_issue(2048,68,64,40,True)
        g_check(68,76,78,0)
        A("s_sub_u32 s49, s49, 1"); A("s_cbranch_scc1 L_bx"); A("s_cbranch_vccz L_bx"); A("s_sleep 16"); A("s_branch L_bp")
    A("L_bx:")
    A("s_waitcnt vmcnt(0)")
    g_reduce(68,78)
    A("v_cvt_pk_bf16_f32 v67, 0, v68"); A("v_lshlrev_b32 v66, 16, v66")
    A("v_and_b32 v4, 15, v0"); A("v_lshlrev_b32 v4, 3, v4")
    A(f"ds_write_b64 v4, v[66:67] offset:{L_XB}")
    A("s_branch L_tail")

    REFS=[0,6,10,12]
    A("L_mon:")
    C("wave 7: compare this workgroup's progress with four reference workgroups and pick the streamer's depth")
    wo_issue(NW7)
    srd(40,24,25,None,1<<20)
    for k in range(4):
        A(f"s_add_u32 s47, s30, {(2*k+(k>>1))%8 if xb else 0}"); A("s_and_b32 s47, s47, 7"); A("s_lshl_b32 s47, s47, 17"); A(f"s_add_u32 s{12+k}, s47, {4096*REFS[k]+3968}")
    A(f"s_mov_b32 s51, {(~sum(1<<r for r in REFS))&0xffffffff:#x}"); A("s_lshr_b32 s51, s51, s32"); A("s_and_b32 s51, s51, 1")
    tag_wait(5)
    A("v_lshlrev_b32 v5, 16, v5"); A("s_lshl_b32 s96, s96, 16"); A("v_mov_b32 v4, 0"); A("s_mov_b32 s50, 0")
    for ph,pend in (("k",PKEND),("v",PVEND)):
        A(f"L_mon{ph}:")
        A(f"ds_read_b32 v6, v4 offset:{L_PRG}"); A("s_waitcnt lgkmcnt(0)"); A("v_readfirstlane_b32 s47, v6")
        A(f"s_cmp_ge_u32 s47, {pend}"); A(f"s_cbranch_scc1 L_mon{ph}x")
        A("s_cmp_lg_u32 s47, s50"); A(f"s_cbranch_scc1 L_mon{ph}n")
        A(f"s_sleep {msleep}"); A(f"s_branch L_mon{ph}")
        A(f"L_mon{ph}n:")
        A("s_mov_b32 s50, s47")
        A(f"s_and_b32 s48, s47, {PD-1}"); A("s_or_b32 s48, s48, s51"); A(f"s_cbranch_scc1 L_mon{ph}p")
        A("v_or_b32 v6, v5, v6")
        A("s_mov_b64 exec, 1")
        A(f"buffer_store_dword v6, off, s[36:39], 0 offset:3968 {SC}")
        A("s_mov_b64 exec, -1")
        A(f"L_mon{ph}p:")
        if RD>1: A(f"s_and_b32 s48, s47, {RD-1}"); A(f"s_cbranch_scc1 L_mon{ph}")
        for k in range(4): A(f"s_buffer_load_dword s{4+k}, s[40:43], s{12+k} glc")
        A("s_waitcnt lgkmcnt(0)")
        for k in range(4): A(f"s_sub_u32 s{4+k}, s{4+k}, s96")
        A("s_mov_b32 s48, s4"); A("s_mov_b32 s49, s4")
        for k in range(1,4): A(f"s_add_u32 s48, s48, s{4+k}"); A(f"s_max_u32 s49, s49, s{4+k}")
        A("s_cmp_gt_u32 s49, 63"); A(f"s_cbranch_scc1 L_mon{ph}")
        A("s_lshl_b32 s48, s48, 3")
        A("s_lshl_b32 s49, s47, 5"); A(f"s_add_i32 s49, s49, {BIAS-32}"); A("s_sub_i32 s49, s49, s48")
        A(f"s_cmp_gt_i32 s49, {TH}"); A("s_cselect_b32 s48, 0, 1"); A(f"s_cmp_lt_i32 s49, {-TH}"); A("s_cselect_b32 s48, 2, s48")
        A("v_mov_b32 v7, s48"); A(f"ds_write_b32 v4, v7 offset:{L_CTL}")
        A(f"s_branch L_mon{ph}")
        A(f"L_mon{ph}x:")
        if ph=="k": A("s_waitcnt lgkmcnt(0)"); STAMP(3); A("s_barrier")

    A("L_tail:")
    A(f"v_lshrrev_b32 v{hLD}, 4, v0"); A(f"v_lshlrev_b32 v{hLD}, 4, v{hLD}"); A("v_mov_b32 v30, 0")
    A(f"v_lshlrev_b32 v{hAD}, 2, v0")
    A("s_sub_u32 s48, s3, 1"); A("s_lshl_b32 s48, s48, 8")
    A("s_waitcnt vmcnt(0) lgkmcnt(0)")
    STAMP(4)
    A("s_barrier")
    STAMP(5)
    for n in range(8): A(f"ds_read_b128 v[{32+4*n}:{32+4*n+3}], v{hLD} offset:{L_O+64*n}")
    A(f"ds_read_b64 v[10:11], v30 offset:{L_SC}")
    for ka in range(8):
        A(f"s_waitcnt lgkmcnt({8-ka})")
        for nu in range(4):
            a=12+4*nu; w=WO+16*ka+4*nu
            A(f"v_mfma_f32_16x16x32_bf16 v[{a}:{a+3}], v[{32+4*ka}:{32+4*ka+3}], v[{w}:{w+3}], {'0' if ka==0 else f'v[{a}:{a+3}]'}")
    A("s_waitcnt lgkmcnt(0)"); A("s_nop 4")
    rowsel(12,[12,16,20,24])
    A("v_mul_f32 v12, v10, v12"); A("v_add_u32 v12, 0x800, v12"); A("v_and_or_b32 v12, v12, s97, v11")
    A(f"buffer_store_dword v12, v{hAD}, s[36:39], s48 offen {SC}")
    STAMP(6)
    stamp_out()
    A("s_endpgm")

    A("L_help:")
    D0=32
    def layernorm(xr, dup):
        for k in range(4):
            A(f"v_lshlrev_b32 v{8+2*k}, 16, v{xr+k}"); A(f"v_and_b32 v{9+2*k}, 0xffff0000, v{xr+k}")
        A("v_add_f32 v16, v8, v9"); A("v_add_f32 v17, v10, v11"); A("v_add_f32 v18, v12, v13"); A("v_add_f32 v19, v14, v15")
        A("v_add_f32 v16, v16, v17"); A("v_add_f32 v18, v18, v19"); A("v_add_f32 v16, v16, v18")
        wave_sum(16,17)
        A(f"v_mul_f32 v16, {f2u(1.0/448):#x}, v16")
        A("v_cmp_gt_u32 vcc, 56, v0"); A("v_cvt_pk_bf16_f32 v17, 0, v16"); A("s_nop 0")
        A("v_cndmask_b32 v16, 0, v16, vcc")
        A("v_sub_f32 v4, v8, v16"); A("v_mul_f32 v18, v4, v4")
        for k in range(1,8): A(f"v_sub_f32 v4, v{8+k}, v16"); A("v_fmac_f32 v18, v4, v4")
        wave_sum(18,19)
        A(f"v_mul_f32 v18, {f2u(1.0/448):#x}, v18")
        A("v_cvt_pk_bf16_f32 v18, 0, v18")
        A(f"v_add_f32 v18, {f2u(1e-5):#x}, v18")
        A("v_cvt_pk_bf16_f32 v18, 0, v18")
        A("v_sqrt_f32 v18, v18"); A("s_nop 0")
        A("v_cvt_pk_bf16_f32 v18, 0, v18")
        A("v_rcp_f32 v19, v18")
        for k in range(8):
            A(f"v_sub_f32 v{8+k}, v{8+k}, v17"); A(f"v_cvt_pk_bf16_f32 v{8+k}, 0, v{8+k}")
            A(f"v_mul_f32 v4, v{8+k}, v19"); A(f"v_fma_f32 v6, -v4, v18, v{8+k}")
            if dup: A("v_fma_f32 v4, v6, v19, v4"); A(f"v_cvt_pk_bf16_f32 v{8+k}, v4, v4")
            else: A(f"v_fma_f32 v{8+k}, v6, v19, v4")
        if not dup:
            for k in range(4): A(f"v_cvt_pk_bf16_f32 v{8+k}, v{8+2*k}, v{9+2*k}")
    def wq_load(t):
        A(f"buffer_load_dwordx4 v[{D0+4*t}:{D0+4*t+3}], v{hAD}, s[52:55], s48 offen {QF}")
        A("s_add_u32 s48, s48, 65536")
        if rot and t%4==3 and t<55: A(f"s_cmp_ge_u32 s48, {56*65536}"); A("s_cselect_b32 s48, 0, s48")
    def gemv56(bar_at):
        XX=[4,8]; BB=[12,16]
        A("s_waitcnt lgkmcnt(0)")
        A(f"ds_read_b128 v[4:7], v{hLD}"); A(f"ds_read_b128 v[8:11], v{hLD} offset:16")
        def bp(t):
            if t%4==0: A(f"s_waitcnt lgkmcnt({1 if t//4+1<14 else 0})")
            for r in range(4): A(f"v_and_b32 v{BB[t%2]+r}, v{XX[(t//4)%2]+t%4}, v{hM+r}")
            if t%4==3 and t//4+2<14:
                x=XX[(t//4)%2]; A(f"ds_read_b128 v[{x}:{x+3}], v{hLD} offset:{16*(t//4+2)}")
        bp(0)
        for t in range(56):
            if t+1<56: bp(t+1)
            else: A("s_nop 0")
            if t+QD<56: wq_load(t+QD)
            if t+QD==bar_at: A("s_barrier")
            A(f"s_waitcnt vmcnt({min(QD,55-t)})")
            A(f"v_mfma_f32_16x16x32_bf16 v[{hACC}:{hACC+3}], v[{D0+4*t}:{D0+4*t+3}], v[{BB[t%2]}:{BB[t%2]+3}], {'0' if t==0 else f'v[{hACC}:{hACC+3}]'}")
        A("s_nop 7")
        combine(hACC,12)
    def ln_part(wait):
        masks(hM,12,13)
        A(f"s_waitcnt vmcnt({wait})")
        layernorm(4,True)
        C("X'[e][(t - 4*rot) mod 56]")
        A("s_sub_u32 s47, s3, 1"); A(f"s_mul_i32 s47, s47, {X_SZ}"); A(f"s_add_u32 s47, s47, {L_X}")
        A("s_lshl_b32 s50, s51, 2"); A("v_subrev_u32 v5, s50, v0"); A("v_add_u32 v6, 56, v5"); A("v_min_u32 v5, v5, v6")
        A("v_cmp_lt_u32 vcc, 55, v0"); A("s_nop 1"); A("v_cndmask_b32 v5, v5, v0, vcc")
        A("v_lshl_add_u32 v5, v5, 2, s47")
        for k in range(8): A(f"ds_write_b32 v5, v{8+k} offset:{k*X_STR}")
        A(f"v_mul_u32_u24 v{hLD}, {X_STR}, v2"); A(f"v_add_u32 v{hLD}, s47, v{hLD}")
    C("q column block w-1 over all 448 rows of wq, tile order rotated by 4*s51 tiles")
    A("v_lshlrev_b32 v1, 4, v0")
    A(f"v_lshlrev_b32 v{hAD}, 13, v2"); A(f"v_lshl_add_u32 v{hAD}, v3, 4, v{hAD}")
    A("s_mul_i32 s47, s30, 896")
    A("s_lshl_b32 s48, s31, 9"); A("s_sub_u32 s49, s3, 1"); A("s_lshl_b32 s49, s49, 7"); A("s_add_u32 s48, s48, s49"); A(f"s_sub_u32 s49, {448*8192}, s48")
    if rot: A("s_mul_i32 s51, s30, 7"); A("s_lshr_b32 s51, s51, 2")
    else: A("s_mov_b32 s51, 0")
    A("s_waitcnt lgkmcnt(0)")
    srd(88,4,5,"s47",896)
    srd(52,10,11,"s48","s49")
    A("buffer_load_dwordx4 v[4:7], v1, s[88:91], 0 offen")
    A("s_lshl_b32 s48, s51, 18")
    A("s_cmp_eq_u32 s28, 1"); A("s_cbranch_scc1 L_q1")
    for t in range(QD): wq_load(t)
    ln_part(QD); gemv56(55); A("s_branch L_q2")
    A("L_q1:")
    ln_part(0); A("s_barrier")
    for t in range(QD): wq_load(t)
    gemv56(None)
    A("L_q2:")
    C("q -> bf16 -> LDS: addr = m*128 + (4*rowq+hi)*16 + j*2 (+32 for the second register)")
    A("v_cvt_pk_bf16_f32 v12, v12, v13")
    A("v_bfe_u32 v4, v0, 4, 1"); A("v_lshrrev_b32 v5, 5, v0"); A("v_lshl_add_u32 v4, v4, 2, v5"); A("v_lshlrev_b32 v4, 4, v4"); A("v_lshl_add_u32 v4, v3, 1, v4")
    A("s_sub_u32 s47, s3, 1"); A("s_lshl_b32 s47, s47, 7"); A("v_add_u32 v4, s47, v4")
    A("s_mov_b64 exec, s[60:61]")
    A(f"ds_write_b16 v4, v12 offset:{L_Q}"); A(f"ds_write_b16_d16_hi v4, v12 offset:{L_Q+32}")
    A("s_mov_b64 exec, -1")
    A("s_waitcnt lgkmcnt(0)")
    STAMP(1)
    A("s_barrier")
    STAMP(2)
    srd_slots()
    C("FFN: wave 1 of 28 workgroups, slice f of 64 hidden units for all 8 batches")
    A("s_cmp_lg_u32 s3, 1"); A("s_cbranch_scc1 L_wo")
    if skipffn: A("s_branch L_wo")
    A("s_cmp_lg_u32 s28, 1"); A("s_cbranch_scc1 L_wo")
    A("s_mov_b32 s51, s31"); A("s_cmp_eq_u32 s30, s26"); A("s_cbranch_scc1 L_ffn")
    A("s_add_u32 s51, s31, 16"); A("s_xor_b32 s47, s26, 4"); A("s_cmp_lg_u32 s30, s47"); A("s_cbranch_scc1 L_wo")
    A("s_cmp_ge_u32 s51, 28"); A("s_cbranch_scc1 L_wo")
    A("L_ffn:")
    A("s_lshl_b32 s48, s51, 7"); A(f"s_sub_u32 s49, {448*3584}, s48"); srd(52,16,17,"s48","s49")
    A(f"v_mul_u32_u24 v{hAD}, 3584, v2"); A(f"v_lshl_add_u32 v{hAD}, v3, 4, v{hAD}")
    A("s_mov_b32 s48, 0")
    for t in range(56):
        if t>=NF: A(f"s_waitcnt vmcnt({NF-1})")
        A(f"buffer_load_dwordx4 v[{D0+4*t}:{D0+4*t+3}], v{hAD}, s[52:55], s48 offen {SF}")
        A(f"s_add_u32 s48, s48, {8*3584}")
    C("layernorm of the 8 rows of x -> XN")
    A("s_mov_b32 s48, 0"); A(f"v_add_u32 v5, {L_XN}, v1")
    A("L_ln8:")
    srd(88,4,5,"s48",896)
    A("buffer_load_dwordx4 v[20:23], v1, s[88:91], 0 offen")
    A("s_waitcnt vmcnt(0)")
    layernorm(20,False)
    A("ds_write_b128 v5, v[8:11]")
    A(f"v_add_u32 v5, {XN_STR}, v5"); A("s_add_u32 s48, s48, 896"); A(f"s_cmp_lt_u32 s48, {8*896}"); A("s_cbranch_scc1 L_ln8")
    def transpose4(regs):
        for k in range(4): A(f"ds_write_b128 v{hAD}, v[{regs[k]}:{regs[k]+3}] offset:{T_STR*k}")
        A("s_waitcnt lgkmcnt(0)")
        for nu in range(4):
            for hf in range(2): A(f"ds_read_b64_tr_b16 v[{regs[nu]+2*hf}:{regs[nu]+2*hf+1}], v{hLD} offset:{512*hf+32*nu}")
        A("s_waitcnt lgkmcnt(0)")
    t_addr(hAD,hLD,True)
    for ka in range(14): transpose4([D0+16*ka+4*k for k in range(4)])
    C("A fragments: row i of the MFMA is batch (i&3) (+4 in the second pass)")
    A("v_and_b32 v30, 3, v0"); A(f"v_mul_u32_u24 v30, {XN_STR}, v30"); A("v_lshrrev_b32 v31, 4, v0"); A("v_lshl_add_u32 v30, v31, 4, v30")
    A("v_lshlrev_b32 v1, 1, v0")
    for ps in range(2):
        for ka in range(14):
            A(f"ds_read_b128 v[{20+4*(ka%2)}:{23+4*(ka%2)}], v30 offset:{L_XN+4*XN_STR*ps+64*ka}"); A("s_waitcnt lgkmcnt(0)")
            for nu in range(4):
                a=4+4*nu; w=D0+16*ka+4*nu
                A(f"v_mfma_f32_16x16x32_bf16 v[{a}:{a+3}], v[{20+4*(ka%2)}:{23+4*(ka%2)}], v[{w}:{w+3}], {'0' if ka==0 else f'v[{a}:{a+3}]'}")
        A("s_nop 7")
        for r in range(4):
            rowsel(4+r,[4+r,8+r,12+r,16+r])
        for r in range(4):
            k=4+r
            A(f"v_cvt_pk_bf16_f32 v{k}, 0, v{k}")
            A(f"v_mul_f32 v20, {f2u(-math.log2(math.e)):#x}, v{k}"); A("v_exp_f32 v20, v20"); A("s_nop 0")
            A("v_add_f32 v20, 1.0, v20"); A("v_rcp_f32 v20, v20"); A("s_nop 0")
            A(f"v_mul_f32 v{k}, v{k}, v20"); A(f"v_cvt_pk_bf16_f32 v{k}, v{k}, v{k}")
            A(f"ds_write_b16 v1, v{k} offset:{L_HP+HP_STR*(4*ps+r)}")
    C("w2 rows 64f..64f+63: (block beta, tile t) -> D0 + 32*beta + 4*t")
    A(f"s_mul_i32 s48, s51, {64*896}"); A(f"s_sub_u32 s49, {1792*896}, s48"); srd(52,18,19,"s48","s49")
    A("v_mul_u32_u24 v4, 896, v2"); A("v_lshl_add_u32 v4, v3, 4, v4")
    A("s_mov_b32 s48, 0")
    for t in range(8):
        for be in range(7):
            if 7*t+be>=NF: A(f"s_waitcnt vmcnt({NF-1})")
            rr=D0+32*be+4*t
            A(f"buffer_load_dwordx4 v[{rr}:{rr+3}], v4, s[52:55], s48 offen offset:{128*be} {SF}")
        A("s_add_u32 s48, s48, 7168")
    tag_wait(1)
    for g in range(14): transpose4([D0+16*g+4*k for k in range(4)])
    A("v_and_b32 v30, 3, v0"); A(f"v_mul_u32_u24 v30, {HP_STR}, v30"); A("v_lshrrev_b32 v31, 4, v0"); A("v_lshl_add_u32 v30, v31, 4, v30")
    A("v_lshlrev_b32 v31, 2, v0")
    A("s_lshl_b32 s47, s51, 12"); srd(52,24,25,"s47",1<<20)
    for ps in range(2):
        A(f"ds_read_b128 v[20:23], v30 offset:{L_HP+4*HP_STR*ps}"); A(f"ds_read_b128 v[24:27], v30 offset:{L_HP+4*HP_STR*ps+64}")
        for r in range(4): A(f"s_mov_b32 s{44+r}, {(4*ps+r)<<17}")
        A("s_waitcnt lgkmcnt(0)")
        for be in range(7):
            for ka in range(2):
                for nu in range(4):
                    a=4+4*nu; w=D0+32*be+16*ka+4*nu
                    A(f"v_mfma_f32_16x16x32_bf16 v[{a}:{a+3}], v[{20+4*ka}:{23+4*ka}], v[{w}:{w+3}], {'0' if ka==0 else f'v[{a}:{a+3}]'}")
            A("s_nop 7")
            for r in range(4):
                rowsel(4+r,[4+r,8+r,12+r,16+r])
            for r in range(4):
                A(f"v_add_u32 v{4+r}, 0x800, v{4+r}"); A(f"v_and_or_b32 v{4+r}, v{4+r}, s97, v1")
                A(f"buffer_store_dword v{4+r}, v31, s[52:55], s{44+r} offen offset:{2048+256*be} {SC}")
            A("s_nop 1")
    STAMP(3)
    A("s_barrier")
    wo_issue(NW7)
    A("s_branch L_tail")
    A("L_end:")
    A("s_endpgm")
    body="\n".join(("" if (l.endswith(":") or l.startswith(".")) else "    ")+l for l in L)+"\n"
    head=HEADER+f"; @launch grid=(256,1,1) block=(512,1,1) lds={L_END}\n"
    return head+body+kd(NAME,256,102,256), L_END

if __name__=="__main__":
    kw=eval("dict(%s)"%(sys.argv[2] if len(sys.argv)>2 else ""))
    t,ldsz=gen(**kw)
    out=sys.argv[1]
    if out.endswith(".s"): open(out,"w").write(t)
    else:
        assemble(t+meta([(NAME,256,102,512)]), out); print(f"work/{out}:{NAME},256,512,{ldsz}")
```

```python
import sys, math, struct
from common import *

NAME="parallel_sum__mha_block_cached__dense_activation_silu__decode_kernel"
HEADER=open("parallel_sum__mha_block_cached__dense_activation_silu__decode.s.ref").read().split("; Override launch")[0]

L_Q=0; L_MX=512; L_SC=576; L_TAG=580; L_PRG=584; L_CTL=588; L_XB=640
L_O=768
L_S=1280; S_STR=1040
L_X=L_S+8*S_STR; X_STR=272; X_SZ=8*X_STR
L_XN=L_X+4*X_SZ; XN_STR=1040
L_HP=L_XN+8*XN_STR; HP_STR=144
L_T=L_HP+8*HP_STR; T_STR=1056; T_SZ=8*T_STR
L_END=L_T+7*T_SZ
CEXP=math.log2(math.e)/16.0
def f2u(f): return struct.unpack("<I",struct.pack("<f",f))[0]

def gen(N=24, N0=10, R=48, NF=6, NW=2, NW7=4, QD=12, stamp=False, SC="sc1", HF="", QF="", SF="nt",
        rot=1, ctl=(18,24,30), ctlK=None, TH=6, BIAS=0, PD=2, RD=2, msleep=16, xb=1, dpoll=1, skipwo=0, skipffn=0, NT=None):
    L=[]; A=L.append
    def C(s): A("    ; "+s)
    lbl=[0]
    def newl(): lbl[0]+=1; return lbl[0]
    def STAMP(i):
        if stamp: A(f"s_memrealtime s[{70+2*i}:{71+2*i}]")
    def srd(d, lo, hi, off, size):
        if off is None: A(f"s_mov_b32 s{d}, s{lo}"); A(f"s_mov_b32 s{d+1}, s{hi}")
        else: A(f"s_add_u32 s{d}, s{lo}, {off}"); A(f"s_addc_u32 s{d+1}, s{hi}, 0")
        A(f"s_mov_b32 s{d+2}, {size}"); A(f"s_mov_b32 s{d+3}, 0x20000")
    def masks(base,t0,t1):
        A(f"v_and_b32 v{t0}, 1, v3"); A(f"v_lshlrev_b32 v{t0}, 4, v{t0}"); A(f"v_mov_b32 v{t1}, 0xffff"); A(f"v_lshlrev_b32 v{t0}, v{t0}, v{t1}")
        A(f"v_lshrrev_b32 v{t1}, 1, v3")
        for r in range(4):
            A(f"v_cmp_eq_u32 vcc, {r}, v{t1}"); A("s_nop 1"); A(f"v_cndmask_b32 v{base+r}, 0, v{t0}, vcc")
    def stamp_out(tmp=4):
        if not stamp: return
        A("s_waitcnt lgkmcnt(0)")
        A("s_mov_b64 exec, 1")
        srd(64,24,25,None,0x40000000)
        A("s_lshl_b32 s68, s2, 3"); A("s_add_u32 s68, s68, s3"); A("s_lshl_b32 s68, s68, 5"); A("s_add_u32 s68, s68, 0x20000000")
        A("s_getreg_b32 s69, hwreg(HW_REG_XCC_ID)")
        for i in range(7): A(f"v_mov_b32 v{tmp+i}, s{70+2*i}")
        A(f"v_mov_b32 v{tmp+7}, s69")
        A(f"buffer_store_dwordx4 v[{tmp}:{tmp+3}], off, s[64:67], s68")
        A(f"buffer_store_dwordx4 v[{tmp+4}:{tmp+7}], off, s[64:67], s68 offset:16")
        A("s_waitcnt vmcnt(0)")
    def srd_slots():
        A("s_lshl_b32 s47, s33, 12"); srd(36,24,25,"s47",4096)
        A("s_lshl_b32 s47, s30, 17"); srd(40,24,25,"s47",131072)
        srd(56,22,23,None,256)
    def tag_wait(t):
        n=newl()
        A("s_mov_b32 s49, 400000")
        A(f"L_cw{n}:")
        A(f"buffer_load_dword v{t}, off, s[56:59], 0 {SC}"); A("s_waitcnt vmcnt(0)")
        A(f"v_cmp_eq_u32 vcc, 0, v{t}"); A("s_sub_u32 s49, s49, 1"); A(f"s_cbranch_scc1 L_cwx{n}")
        A(f"s_cbranch_vccz L_cwx{n}"); A("s_sleep 8"); A(f"s_branch L_cw{n}")
        A(f"L_cwx{n}:")
        A(f"v_and_b32 v{t}, 0xfff, v{t}"); A("s_nop 0"); A(f"v_readfirstlane_b32 s96, v{t}")
    def g_issue(off,b,vad,srdn,only28=False):
        A(f"buffer_load_dwordx4 v[{b}:{b+3}], v{vad}, s[{srdn}:{srdn+3}], 0 offen offset:{off} {SC}")
        if only28: A("s_mov_b64 exec, s[62:63]")
        A(f"buffer_load_dwordx4 v[{b+4}:{b+7}], v{vad}, s[{srdn}:{srdn+3}], s47 offen offset:{off} {SC}")
        if only28: A("s_mov_b64 exec, -1")
    def g_check(b,t,vtag,younger):
        A(f"s_waitcnt vmcnt({younger+1})")
        A(f"v_xor_b32 v{t}, v{b}, v{vtag}")
        for r in range(1,4): A(f"v_bitop3_b32 v{t}, v{b+r}, v{vtag}, v{t} bitop3:0xbe")
        A(f"s_waitcnt vmcnt({younger})")
        for r in range(4,8): A(f"v_bitop3_b32 v{t}, v{b+r}, v{vtag}, v{t} bitop3:0xbe")
        A(f"v_and_b32 v{t}, 0xfff, v{t}")
        A(f"v_cmp_ne_u32 vcc, 0, v{t}")
    def g_reduce(b,vtag):
        for r in range(8): A(f"v_xor_b32 v{b+r}, v{b+r}, v{vtag}")
        for r in range(4): A(f"v_add_f32 v{b+r}, v{b+r}, v{b+4+r}")
        for pat in ["row_ror:4","row_ror:8"]:
            for r in range(4): A(f"v_add_f32_dpp v{b+r}, v{b+r}, v{b+r} {pat} row_mask:0xf bank_mask:0xf")
        for r in range(1,4): A(f"v_mov_b32_dpp v{b}, v{b+r} quad_perm:[0,1,2,3] row_mask:0xf bank_mask:{1<<r:#x}")
        for sw in ["16","32"]:
            A(f"v_mov_b32 v{b+1}, v{b}"); A("s_nop 1"); A(f"v_permlane{sw}_swap_b32 v{b}, v{b+1}"); A(f"v_add_f32 v{b}, v{b}, v{b+1}")
    def g_addr(vad,vcol,t):
        A(f"v_lshrrev_b32 v{vad}, 2, v0"); A(f"v_and_b32 v{t}, 3, v0"); A(f"v_and_b32 v{vcol}, 3, v{vad}")
        A(f"v_lshlrev_b32 v{vad}, 12, v{vad}"); A(f"v_lshl_add_u32 v{vad}, v{t}, 4, v{vad}")
        A("s_lshl_b32 s47, s32, 6"); A(f"v_add_u32 v{vad}, s47, v{vad}")
        A(f"v_lshl_add_u32 v{vcol}, v{t}, 2, v{vcol}"); A("s_lshl_b32 s47, s32, 5"); A(f"v_lshl_add_u32 v{vcol}, v{vcol}, 1, s47")
    def wave_sum(v,t):
        for pat in ["quad_perm:[1,0,3,2]","quad_perm:[2,3,0,1]","row_half_mirror","row_mirror"]:
            A("s_nop 1"); A(f"v_add_f32_dpp v{v}, v{v}, v{v} {pat} row_mask:0xf bank_mask:0xf")
        for sw in ["16","32"]:
            A(f"v_mov_b32 v{t}, v{v}"); A("s_nop 1"); A(f"v_permlane{sw}_swap_b32 v{v}, v{t}"); A(f"v_add_f32 v{v}, v{v}, v{t}")
    def max16(dst,b):
        A(f"v_max3_f32 v{dst}, v{b}, v{b+1}, v{b+2}")
        for k in range(3,15,2): A(f"v_max3_f32 v{dst}, v{dst}, v{b+k}, v{b+k+1}")
        A(f"v_max_f32 v{dst}, v{dst}, v{b+15}")

    A('.amdgcn_target "amdgcn-amd-amdhsa--gfx950"'); A(".text"); A(f".globl {NAME}"); A(".p2align 8"); A(f".type {NAME},@function"); A(f"{NAME}:")
    A("s_cmp_ge_u32 s2, 256"); A("s_cbranch_scc1 L_end")
    STAMP(0)
    A("s_load_dwordx16 s[4:19], s[0:1], 0")
    A("s_load_dwordx4 s[20:23], s[0:1], 64")
    A("s_load_dwordx2 s[24:25], s[0:1], 80")
    A("v_lshrrev_b32 v1, 6, v0"); A("v_and_b32 v0, 63, v0"); A("v_readfirstlane_b32 s3, v1")
    A("s_and_b32 s26, s2, 7"); A("s_lshr_b32 s27, s2, 3"); A("s_and_b32 s28, s27, 1")
    A("s_bfe_u32 s29, s27, 0x10001"); A("s_lshr_b32 s30, s27, 2")
    A("s_lshl_b32 s29, s29, 3"); A("s_add_u32 s31, s26, s29")
    A("s_lshl_b32 s32, s31, 1"); A("s_add_u32 s32, s32, s28")
    A("s_lshl_b32 s33, s30, 5"); A("s_add_u32 s33, s33, s32")
    C("s28=half s30=batch s31=head s32=2*head+half s33=32*batch+s32 ; v2=lane>>3 v3=lane&7")
    A("v_lshrrev_b32 v2, 3, v0"); A("v_and_b32 v3, 7, v0")
    A(f"s_mov_b32 s34, {f2u(CEXP):#x}")
    A("s_mov_b32 s60, 0x00ff00ff"); A("s_mov_b32 s61, 0x00ff00ff"); A("s_mov_b32 s97, 0xfffff000")
    A("s_cmp_eq_u32 s3, 0"); A("s_cbranch_scc1 L_stream")
    A("s_cmp_ge_u32 s3, 5"); A("s_cbranch_scc1 L_buf")
    A("s_branch L_help")

    RING=256-4*R
    vK=4; vV=5; vSW=6; vSR=7; vMX=8; vR=9; vR2=10; vA=[11,12]; vB=[13,14]; vQ=16
    def slot(i): return RING+4*(i%R)
    def k_consume(c, dsoff):
        p=c%8; m=p%4; acc=vA if p<4 else vB; r=slot(c)
        for k in range(4):
            src2 = "0" if (m==0 and k<2) else f"v{acc[k%2]}"
            A(f"v_dot2_f32_bf16 v{acc[k%2]}, v{r+k}, v{vQ+4*m+k}, {src2}")
        prev = dsoff is not None
        if p==0 and prev: A(f"v_add_f32 v{vB[0]}, v{vB[0]}, v{vB[1]}")
        if p==1 and prev: A(f"v_add_f32_dpp v{vR}, v{vB[0]}, v{vB[0]} row_half_mirror row_mask:0xf bank_mask:0xa")
        if p==2 and prev: A(f"v_add_f32_dpp v{vR}, v{vR}, v{vR} quad_perm:[1,0,3,2] row_mask:0xf bank_mask:0xf")
        if p==3 and prev: A(f"v_add_f32_dpp v{vR}, v{vR}, v{vR} quad_perm:[2,3,0,1] row_mask:0xf bank_mask:0xf")
        if p==4:
            if prev: A(f"v_cvt_pk_bf16_f32 v{vR2}, 0, v{vR}")
            A(f"v_add_f32 v{vA[0]}, v{vA[0]}, v{vA[1]}")
        if p==5:
            if prev: A(f"v_max_f32 v{vMX}, v{vMX}, v{vR2}"); A(f"ds_write_b32 v{vSW}, v{vR2} offset:{dsoff}")
            A(f"v_add_f32_dpp v{vR}, v{vA[0]}, v{vA[0]} row_half_mirror row_mask:0xf bank_mask:0x5")
    def k_flush(dsoff):
        A("s_nop 2"); A(f"v_add_f32 v{vB[0]}, v{vB[0]}, v{vB[1]}"); A("s_nop 1")
        A(f"v_add_f32_dpp v{vR}, v{vB[0]}, v{vB[0]} row_half_mirror row_mask:0xf bank_mask:0xa"); A("s_nop 1")
        A(f"v_add_f32_dpp v{vR}, v{vR}, v{vR} quad_perm:[1,0,3,2] row_mask:0xf bank_mask:0xf"); A("s_nop 1")
        A(f"v_add_f32_dpp v{vR}, v{vR}, v{vR} quad_perm:[2,3,0,1] row_mask:0xf bank_mask:0xf")
        A(f"v_cvt_pk_bf16_f32 v{vR2}, 0, v{vR}")
        A(f"v_max_f32 v{vMX}, v{vMX}, v{vR2}"); A(f"ds_write_b32 v{vSW}, v{vR2} offset:{dsoff}")
    def mx_publish(w, tmp):
        A("s_nop 1")
        A(f"v_max_f32_dpp v{vMX}, v{vMX}, v{vMX} row_ror:4 row_mask:0xf bank_mask:0xf"); A("s_nop 1")
        A(f"v_max_f32_dpp v{vMX}, v{vMX}, v{vMX} row_ror:8 row_mask:0xf bank_mask:0xf")
        A(f"v_lshrrev_b32 v{tmp}, 4, v0"); A(f"v_lshlrev_b32 v{tmp}, 2, v{tmp}")
        if isinstance(w,int): A(f"ds_write_b32 v{tmp}, v{vMX} offset:{L_MX+16*w}")
        else: A(f"v_add_u32 v{tmp}, {w}, v{tmp}"); A(f"ds_write_b32 v{tmp}, v{vMX} offset:{L_MX}")
    def k_setup():
        A(f"v_lshlrev_b32 v{vK}, 9, v2"); A(f"v_lshl_add_u32 v{vK}, v3, 4, v{vK}")
        A(f"v_mul_u32_u24 v{vSW}, {S_STR}, v2"); A(f"v_lshrrev_b32 v{vSR}, 2, v3"); A(f"v_lshl_add_u32 v{vSW}, v{vSR}, 2, v{vSW}")
        A(f"v_mov_b32 v{vMX}, 0xff800000")
        A("s_lshl_b32 s35, s33, 20")
    def q_read():
        A(f"v_lshlrev_b32 v{vR}, 4, v3")
        for m in range(4): A(f"ds_read_b128 v[{vQ+4*m}:{vQ+4*m+3}], v{vR} offset:{L_Q+128*m}")
        A("s_waitcnt lgkmcnt(0)")
    def bar0(first):
        n=newl()
        A(f"s_cmp_eq_u32 s28, {1 if first else 0}"); A(f"s_cbranch_scc1 L_b0_{n}"); A("s_barrier"); A(f"L_b0_{n}:")
    NP0=R//8; NB=3
    NKS=1024-NB*R
    NTOT=NKS+1024
    NT=NT or N

    A("L_stream:")
    A("s_setprio 3")
    k_setup()
    A(f"v_lshrrev_b32 v{vV}, 4, v0"); A(f"v_lshlrev_b32 v{vV}, 10, v{vV}"); A(f"v_and_b32 v{vSR}, 15, v0"); A(f"v_lshl_add_u32 v{vV}, v{vSR}, 4, v{vV}")
    vZ=36; vPC=37; vPP=38
    A(f"v_mov_b32 v{vZ}, 0"); A(f"ds_write_b32 v{vZ}, v{vZ} offset:{L_PRG}")
    A("s_waitcnt lgkmcnt(0)")
    srd(36,6,7,"s35",1<<20); srd(40,8,9,"s35",1<<20)
    A("s_mov_b32 s44, 0"); A("s_mov_b32 s45, 0"); A("s_mov_b32 s50, 2")
    def issue(i):
        r=slot(i)
        if i<NKS:
            A(f"buffer_load_dwordx4 v[{r}:{r+3}], v{vK}, s[36:39], s44 offen offset:{128*(i%4)} {SF}")
            if i%4==3: A(f"s_add_u32 s44, s44, {4096+NB*8192 if (i<R and i%8==7) else 4096}")
        elif i<NTOT:
            u=i-NKS
            A(f"buffer_load_dwordx4 v[{r}:{r+3}], v{vV}, s[40:43], s45 offen offset:{256*(u%4)} {SF}")
            if u%4==3: A("s_add_u32 s45, s45, 4096")
    DK=R-1
    bar0(True)
    for i in range(DK):
        if i>=N0: A(f"s_waitcnt vmcnt({N0-1})")
        issue(i)
        if i==N0-1:
            A("s_lshl_b32 s47, s30, 17"); srd(52,24,25,"s47",131072)
            A("s_mul_i32 s47, s30, 896"); srd(92,20,21,"s47",896)
    bar0(False)
    STAMP(1)
    A("s_barrier")
    STAMP(2)
    q_read()
    cur=[None]
    def pair_T(pi): return 2*((NB+1)*pi) if pi<NP0 else 2*((NB+1)*NP0+(pi-NP0))
    def kstep(c, dsbase):
        I=c+DK
        A(f"s_waitcnt vmcnt({min((cur[0] or N)-1,I-c-1)})")
        issue(I)
        pi=c//8
        k_consume(c, None if pi==0 else L_S+4*pair_T(pi-1)-dsbase)
    for c in range(0,2*R): kstep(c,0)
    nK=(NKS-DK-2*R)//R
    A(f"s_mov_b32 s46, {nK}")
    def loop_variants(tag, body, post, zr, cr, pr, lv):
        for v in (1,0,2):
            A(f"L_{tag}{v}:")
            A(f"ds_read_b32 v{cr}, v{zr} offset:{L_CTL}")
            cur[0]=lv[v]; body(); cur[0]=None; post()
            A("s_add_u32 s50, s50, 1"); A(f"v_mov_b32 v{pr}, s50")
            A("s_waitcnt lgkmcnt(0)")
            A(f"v_readfirstlane_b32 s48, v{cr}")
            A(f"ds_write_b32 v{zr}, v{pr} offset:{L_PRG}")
            A("s_sub_u32 s46, s46, 1"); A("s_cmp_eq_u32 s46, 0"); A(f"s_cbranch_scc1 L_{tag}x")
            o=[w for w in (0,1,2) if w!=v]
            A(f"s_cmp_eq_u32 s48, {v}"); A(f"s_cbranch_scc1 L_{tag}{v}")
            A(f"s_cmp_eq_u32 s48, {o[0]}"); A(f"s_cbranch_scc1 L_{tag}{o[0]}")
            A(f"s_branch L_{tag}{o[1]}")
        A(f"L_{tag}x:")
    def kbody():
        for c in range(2*R,3*R): kstep(c,0)
    loop_variants("kloop", kbody, lambda: A(f"v_add_u32 v{vSW}, {R}, v{vSW}"), vZ, vPC, vPP, ctlK or ctl)
    dsb=nK*R
    for c in range((2+nK)*R,NKS): kstep(c,dsb)
    k_flush(L_S+4*pair_T(NKS//8-1)-dsb)
    mx_publish(0, vR)
    vM=[12,13,14,15]; vNM=11; vT=9; vP=10; vACC=16; vBB=[32,36]; vSS=[40,44,48]; vTM=52
    masks(vM[0], vTM, vTM+1)
    A(f"v_mul_u32_u24 v{vSR}, {S_STR}, v2")
    A(f"v_mov_b32 v{vT}, 0")
    A("s_waitcnt lgkmcnt(0)")
    STAMP(3)
    A("s_barrier")
    for w in range(4): A(f"ds_read_b128 v[{48+4*w}:{48+4*w+3}], v{vT} offset:{L_MX+16*w}")
    A(f"ds_read_b128 v[{vSS[0]}:{vSS[0]+3}], v{vSR} offset:{L_S}")
    inext=[NKS+DK]
    A(f"s_waitcnt vmcnt({N-1})")
    issue(inext[0]); inext[0]+=1
    for r in range(16): A(f"v_mov_b32 v{vACC+r}, 0")
    A("s_waitcnt lgkmcnt(0)")
    max16(vNM,48)
    A(f"v_mul_f32 v{vNM}, s34, v{vNM}"); A(f"v_sub_f32 v{vNM}, 0, v{vNM}")
    def bprep(tile, part):
        s=vSS[(tile//4)%3]+tile%4; b=vBB[tile%2]
        if part==0: A(f"v_fma_f32 v{vT}, v{s}, s34, v{vNM}")
        if part==1: A(f"v_exp_f32 v{vT}, v{vT}")
        if part==2: A(f"v_cvt_pk_bf16_f32 v{vP}, v{vT}, v{vT}"); A(f"v_and_b32 v{b}, v{vP}, v{vM[0]}")
        if part==3:
            for r in range(1,4): A(f"v_and_b32 v{b+r}, v{vP}, v{vM[r]}")
    bprep(0,0); bprep(0,1); A("s_nop 0"); bprep(0,2); bprep(0,3); A("s_nop 1")
    def vstep(u, srbase, do_issue=True):
        c=NKS+u; I=inext[0]; mark=len(L)
        if do_issue and I<NTOT:
            A(f"s_waitcnt vmcnt({min((cur[0] or N)-1,I-c-1)})")
            assert I-R < c
            issue(I); inext[0]+=1
        else:
            k=I-c-1
            if k<max(N,NT): A(f"s_waitcnt vmcnt({k})")
        tile=u//4; q=u%4; r=slot(c); b=vBB[tile%2]
        if q==0 and tile%4==0 and tile+4<256:
            nb=vSS[(tile//4+1)%3]
            A(f"ds_read_b128 v[{nb}:{nb+3}], v{vSR} offset:{L_S+4*(tile+4)-srbase}")
        if q==0 and tile%4==3 and tile+1<256: A("s_waitcnt lgkmcnt(0)")
        a=vACC+4*q
        if q==0 and len(L)-mark<2: A(f"s_nop {1-(len(L)-mark)}")
        A(f"v_mfma_f32_16x16x32_bf16 v[{a}:{a+3}], v[{r}:{r+3}], v[{b}:{b+3}], v[{a}:{a+3}]")
        if tile+1<256: bprep(tile+1,q)
    u=0; DV=max(max(ctl),NT)
    while True:
        D=inext[0]-(NKS+u)
        if D<=DV and u%R==0: break
        if D>DV:
            vstep(u,0,False); u+=1
            D=inext[0]-(NKS+u)
            if D>DV or u%R!=0: vstep(u,0,True); u+=1
        else:
            vstep(u,0,True); u+=1
    assert inext[0]-(NKS+u)==DV and (R//16)%3==0 and R%16==0
    u0=u; PKEND=2+nK; PV0=(inext[0]+R//2)//R-1
    nV=(1024-DV-u0)//R
    while u0+nV*R+16>1024: nV-=1
    PVEND=PV0+nV
    A(f"s_mov_b32 s46, {nV}"); A("v_mov_b32 v6, 0"); A(f"s_mov_b32 s50, {PV0}")
    i0=inext[0]
    def vbody():
        inext[0]=i0
        for uu in range(u0,u0+R): vstep(uu,0,True)
    loop_variants("vloop", vbody, lambda: A(f"v_add_u32 v{vSR}, {R}, v{vSR}"), 6, 4, 8, ctl)
    inext[0]=i0+nV*R
    cur[0]=NT
    C("addresses for the tail: v4 gather address, v6 output offset, v8 O' address")
    g_addr(4,6,8)
    A("v_lshrrev_b32 v8, 4, v0"); A("v_lshl_add_u32 v8, v8, 3, v3"); A("v_lshlrev_b32 v8, 4, v8")
    A("s_mov_b32 s47, 65536"); A("s_mov_b32 s49, 400000")
    for uu in range(u0+nV*R,1024): vstep(uu,nV*R,True)
    cur[0]=None
    STAMP(4)
    A("v_and_b32 v7, 15, v0"); A("v_lshlrev_b32 v7, 3, v7"); A("v_mov_b32 v5, 0")
    A("s_nop 4")
    for hf in range(2):
        for r in range(4):
            A(f"v_add_f32_dpp v{vTM+4*hf+r}, v{vACC+8+4*hf+r}, v{vACC+4*hf+r} row_ror:8 row_mask:0xf bank_mask:0xf")
    for k in range(4): A(f"v_cvt_pk_bf16_f32 v{vTM+k}, v{vTM+2*k}, v{vTM+2*k+1}")
    A("s_mov_b64 exec, s[60:61]")
    A(f"ds_write_b128 v8, v[{vTM}:{vTM+3}] offset:{L_O}")
    A("s_mov_b64 exec, -1")
    A("s_waitcnt lgkmcnt(0)")
    A("s_barrier")
    STAMP(5)
    A("s_cmp_ge_u32 s32, 28"); A("s_cbranch_scc1 L_sdone")
    C("final: 16 output columns = sum over the 32 workgroups of this batch")
    A(f"ds_read_b32 v12, v5 offset:{L_TAG}")
    A(f"ds_read_b64 v[14:15], v7 offset:{L_XB}")
    g_issue(0,16,4,52)
    if dpoll: A("s_sleep 4"); g_issue(0,32,4,52)
    A("s_waitcnt lgkmcnt(0)")
    A("L_fp:")
    g_check(16,13,12,2 if dpoll else 0)
    A("s_sub_u32 s49, s49, 1"); A("s_cbranch_scc1 L_fa"); A("s_cbranch_vccz L_fa")
    g_issue(0,16,4,52)
    if dpoll:
        g_check(32,13,12,2)
        A("s_cbranch_vccz L_fb")
        g_issue(0,32,4,52)
    A("s_branch L_fp")
    def final(b):
        g_reduce(b,12)
        A(f"v_cvt_pk_bf16_f32 v{b}, 0, v{b}"); A(f"v_add_f32 v{b}, v14, v{b}"); A(f"v_cvt_pk_bf16_f32 v{b}, 0, v{b}"); A(f"v_add_f32 v{b}, v{b}, v15")
        A(f"v_cvt_pk_bf16_f32 v{b}, v{b}, v{b}")
        A("s_mov_b64 exec, 0xffff")
        A(f"buffer_store_short v{b}, v6, s[92:95], 0 offen")
    if dpoll:
        A("L_fb:"); final(32); A("s_branch L_sdone")
    A("L_fa:"); final(16)
    A("L_sdone:")
    STAMP(6)
    stamp_out(48)
    A("s_endpgm")

    hM=20; hACC=24; hAD=28; hLD=29
    WO=128
    def t_addr(vw, vr, natural):
        A("s_sub_u32 s47, s3, 1"); A(f"s_mul_i32 s47, s47, {T_SZ}"); A(f"s_add_u32 s47, s47, {L_T}")
        A(f"v_lshl_add_u32 v{vw}, v0, 4, s47")
        A(f"v_bfe_u32 v{vr}, v0, 2, 2")
        if natural:
            A(f"v_lshlrev_b32 v{vr}, 7, v{vr}"); A(f"v_lshrrev_b32 v31, 4, v0"); A(f"v_mul_u32_u24 v31, {T_STR}, v31")
        else:
            A(f"v_mul_u32_u24 v{vr}, {T_STR}, v{vr}"); A(f"v_lshrrev_b32 v31, 4, v0"); A(f"v_lshlrev_b32 v31, 7, v31")
        A(f"v_add3_u32 v{vr}, v{vr}, v31, s47"); A("v_and_b32 v31, 3, v0"); A(f"v_lshl_add_u32 v{vr}, v31, 3, v{vr}")
    def wo_issue(nw):
        C("wo rows of this head, column block c = wave-1; then transpose into MFMA B fragments")
        A("s_mul_i32 s47, s31, 229376"); A("s_sub_u32 s48, s3, 1"); A("s_lshl_b32 s48, s48, 7"); A("s_add_u32 s47, s47, s48")
        A(f"s_sub_u32 s48, {4096*896}, s47")
        srd(52,12,13,"s47","s48")
        A(f"v_mul_u32_u24 v{hAD}, 896, v2"); A(f"v_lshl_add_u32 v{hAD}, v3, 4, v{hAD}")
        n=0
        for g in range(4):
            for hf in range(2):
                A(f"s_mov_b32 s47, {7168*(16*hf+4*g)}")
                for r in range(4):
                    if skipwo: continue
                    if n>=nw: A(f"s_waitcnt vmcnt({nw-1})")
                    rr=WO+32*g+16*hf+4*r
                    A(f"buffer_load_dwordx4 v[{rr}:{rr+3}], v{hAD}, s[52:55], s47 offen {HF}")
                    if r<3: A("s_add_u32 s47, s47, 7168")
                    n+=1
        t_addr(hAD,hLD,False)
        A("s_waitcnt vmcnt(0)")
        for g in range(4):
            for k in range(8): A(f"ds_write_b128 v{hAD}, v[{WO+32*g+4*k}:{WO+32*g+4*k+3}] offset:{T_STR*k}")
            A("s_waitcnt lgkmcnt(0)")
            for kp in range(2):
                for nu in range(4):
                    for hf in range(2):
                        rr=WO+32*g+16*kp+4*nu+2*hf
                        A(f"ds_read_b64_tr_b16 v[{rr}:{rr+1}], v{hLD} offset:{4*T_STR*hf+512*kp+32*nu}")
            A("s_waitcnt lgkmcnt(0)")
    def combine(acc, dst):
        A(f"v_permlane32_swap_b32 v{acc}, v{acc+1}"); A(f"v_permlane32_swap_b32 v{acc+2}, v{acc+3}")
        A("s_nop 1")
        A(f"v_add_f32_dpp v{dst}, v{acc+1}, v{acc} row_ror:8 row_mask:0xf bank_mask:0xf")
        A(f"v_add_f32_dpp v{dst+1}, v{acc+3}, v{acc+2} row_ror:8 row_mask:0xf bank_mask:0xf")
    def rowsel(dst, srcs):
        for k in range(1,4): A(f"v_mov_b32_dpp v{dst}, v{srcs[k]} quad_perm:[0,1,2,3] row_mask:{1<<k:#x} bank_mask:0xf")

    A("L_buf:")
    A("s_setprio 3")
    A("v_mov_b32 v32, 0"); A("v_mov_b32 v33, 1"); A(f"ds_write_b32 v32, v33 offset:{L_CTL}")
    k_setup()
    A("s_waitcnt lgkmcnt(0)")
    srd(84,6,7,"s35",1<<20)
    A("s_sub_u32 s47, s3, 4"); A("s_lshl_b32 s44, s47, 13")
    A("s_lshl_b32 s47, s47, 3"); A(f"v_add_u32 v{vSW}, s47, v{vSW}")
    bar0(True)
    for i in range(R):
        if i==N0:
            srd_slots()
            A("s_cmp_lg_u32 s3, 5"); A("s_cbranch_scc1 L_notag"); A("s_cmp_lg_u32 s2, 0"); A("s_cbranch_scc1 L_notag")
            C("workgroup 0, wave 5: this launch's tag differs from the one left in d_ws; announced in d_debug[0]")
            srd(92,24,25,"0x100000",256)
            A("s_memrealtime s[62:63]")
            A(f"buffer_load_dword v32, off, s[92:95], 0 {SC}"); A("s_waitcnt vmcnt(0) lgkmcnt(0)")
            A("s_and_b32 s62, s62, 0x7ff"); A("s_add_u32 s62, s62, 1")
            A("v_add_u32 v32, s62, v32"); A("v_and_b32 v32, 0xfff, v32"); A("v_or_b32 v33, 0x1000, v32")
            A("s_mov_b64 exec, 1")
            A(f"buffer_store_dword v33, off, s[56:59], 0 {SC}")
            A(f"buffer_store_dword v32, off, s[92:95], 0 {SC}")
            A("s_mov_b64 exec, -1")
            A("L_notag:")
        if i>=N0: A(f"s_waitcnt vmcnt({N0-1})")
        r=slot(i)
        A(f"buffer_load_dwordx4 v[{r}:{r+3}], v{vK}, s[84:87], s44 offen offset:{128*(i%4)} {SF}")
        if i%4==3: A(f"s_add_u32 s44, s44, {4096 if i%8==3 else 4096+NB*8192}")
    bar0(False)
    STAMP(1)
    A("s_barrier")
    STAMP(2)
    A("s_setprio 0")
    q_read()
    for c in range(R):
        A(f"s_waitcnt vmcnt({R-1-c})")
        pi=c//8
        k_consume(c, None if pi==0 else L_S+8*(NB+1)*(pi-1))
    k_flush(L_S+8*(NB+1)*(NP0-1))
    A("s_sub_u32 s47, s3, 4"); A("s_lshl_b32 s47, s47, 4")
    mx_publish("s47", vR)
    A("s_cmp_eq_u32 s3, 7"); A("s_cbranch_scc1 L_mon")
    A("L_wo:")
    wo_issue(NW)
    STAMP(3)
    A("s_barrier")
    A("s_cmp_eq_u32 s3, 5"); A("s_cbranch_scc1 L_w5")
    A("s_cmp_lg_u32 s3, 6"); A("s_cbranch_scc1 L_tail")
    C("wave 6: softmax denominator, exchange (m,l) with the other half, scale")
    A("v_mov_b32 v4, 0")
    for w in range(4): A(f"ds_read_b128 v[{64+4*w}:{64+4*w+3}], v4 offset:{L_MX+16*w}")
    A(f"v_mul_u32_u24 v5, {S_STR}, v2"); A("v_lshl_add_u32 v5, v3, 7, v5")
    for n in range(8): A(f"ds_read_b128 v[{32+4*n}:{32+4*n+3}], v5 offset:{L_S+16*n}")
    A("s_waitcnt lgkmcnt(8)")
    max16(6,64)
    A("v_mul_f32 v7, s34, v6"); A("v_sub_f32 v7, 0, v7")
    A("s_waitcnt lgkmcnt(0)")
    for k in range(32): A(f"v_fma_f32 v{32+k}, v{32+k}, s34, v7")
    for k in range(32): A(f"v_exp_f32 v{32+k}, v{32+k}")
    for st in (16,8,4,2,1):
        for k in range(st): A(f"v_add_f32 v{32+k}, v{32+k}, v{32+k+st}")
    wave_sum(32,33)
    tag_wait(16)
    C("v6=M v32=l ; four words: 16-bit halves of M and l, each with a 16-bit tag")
    A("v_or_b32 v16, 0xa000, v16"); A("s_mov_b32 s47, 0xffff0000")
    A("v_and_or_b32 v8, v6, s47, v16"); A("v_lshl_or_b32 v9, v6, 16, v16"); A("v_and_or_b32 v10, v32, s47, v16"); A("v_lshl_or_b32 v11, v32, 16, v16")
    A("s_mov_b64 exec, 1")
    A(f"buffer_store_dwordx4 v[8:11], off, s[36:39], 0 offset:3840 {SC}")
    A("s_mov_b64 exec, -1")
    A("s_xor_b32 s48, s32, 1"); A("s_lshl_b32 s48, s48, 12"); A("s_mov_b32 s49, 400000")
    A("L_mlp:")
    A(f"buffer_load_dwordx4 v[12:15], off, s[40:43], s48 offset:3840 {SC}"); A("s_waitcnt vmcnt(0)")
    A("v_xor_b32 v17, v12, v16")
    for r in (13,14,15): A(f"v_bitop3_b32 v17, v{r}, v16, v17 bitop3:0xbe")
    A("v_and_b32 v17, 0xffff, v17")
    A("v_cmp_ne_u32 vcc, 0, v17"); A("s_sub_u32 s49, s49, 1"); A("s_cbranch_scc1 L_mlx")
    A("s_cbranch_vccz L_mlx"); A("s_sleep 8"); A("s_branch L_mlp")
    A("L_mlx:")
    A("v_lshrrev_b32 v13, 16, v13"); A("v_lshrrev_b32 v15, 16, v15"); A("v_and_or_b32 v10, v12, s47, v13"); A("v_and_or_b32 v11, v14, s47, v15")
    A("v_max_f32 v12, v6, v10")
    A("v_sub_f32 v13, v6, v12"); A("v_sub_f32 v14, v10, v12")
    A("v_mul_f32 v13, s34, v13"); A("v_mul_f32 v14, s34, v14")
    A("v_exp_f32 v13, v13"); A("v_exp_f32 v14, v14"); A("s_nop 0")
    A("v_mul_f32 v15, v13, v32"); A("v_fma_f32 v15, v14, v11, v15")
    A("v_rcp_f32 v15, v15"); A("s_nop 0"); A("v_mul_f32 v15, v15, v13")
    A(f"ds_write_b32 v4, v15 offset:{L_SC}")
    A("s_branch L_tail")

    A("L_w5:")
    C("wave 5: tag for the other waves; x and the gathered FFN result for the final step")
    tag_wait(78)
    A("v_mov_b32 v4, 0"); A(f"ds_write_b32 v4, v78 offset:{L_TAG}")
    A("s_cmp_ge_u32 s32, 28"); A("s_cbranch_scc1 L_tail")
    A("s_mul_i32 s47, s30, 896"); srd(88,4,5,"s47",896)
    g_addr(64,65,4)
    A("buffer_load_ushort v66, v65, s[88:91], 0 offen")
    A("s_mov_b32 s49, 400000"); A("s_mov_b32 s47, 65536")
    for r in range(4): A(f"v_mov_b32 v{72+r}, v78")
    A("s_mov_b32 s62, -1"); A("s_mov_b32 s63, 0xffff")
    A("L_bp:")
    if not skipffn:
        g_issue(2048,68,64,40,True)
        g_check(68,76,78,0)
        A("s_sub_u32 s49, s49, 1"); A("s_cbranch_scc1 L_bx"); A("s_cbranch_vccz L_bx"); A("s_sleep 16"); A("s_branch L_bp")
    A("L_bx:")
    A("s_waitcnt vmcnt(0)")
    g_reduce(68,78)
    A("v_cvt_pk_bf16_f32 v67, 0, v68"); A("v_lshlrev_b32 v66, 16, v66")
    A("v_and_b32 v4, 15, v0"); A("v_lshlrev_b32 v4, 3, v4")
    A(f"ds_write_b64 v4, v[66:67] offset:{L_XB}")
    A("s_branch L_tail")

    REFS=[0,6,10,12]
    A("L_mon:")
    C("wave 7: compare this workgroup's progress with four reference workgroups and pick the streamer's depth")
    wo_issue(NW7)
    srd(40,24,25,None,1<<20)
    for k in range(4):
        A(f"s_add_u32 s47, s30, {(2*k+(k>>1))%8 if xb else 0}"); A("s_and_b32 s47, s47, 7"); A("s_lshl_b32 s47, s47, 17"); A(f"s_add_u32 s{12+k}, s47, {4096*REFS[k]+3968}")
    A(f"s_mov_b32 s51, {(~sum(1<<r for r in REFS))&0xffffffff:#x}"); A("s_lshr_b32 s51, s51, s32"); A("s_and_b32 s51, s51, 1")
    tag_wait(5)
    A("v_lshlrev_b32 v5, 16, v5"); A("s_lshl_b32 s96, s96, 16"); A("v_mov_b32 v4, 0"); A("s_mov_b32 s50, 0")
    for ph,pend in (("k",PKEND),("v",PVEND)):
        A(f"L_mon{ph}:")
        A(f"ds_read_b32 v6, v4 offset:{L_PRG}"); A("s_waitcnt lgkmcnt(0)"); A("v_readfirstlane_b32 s47, v6")
        A(f"s_cmp_ge_u32 s47, {pend}"); A(f"s_cbranch_scc1 L_mon{ph}x")
        A("s_cmp_lg_u32 s47, s50"); A(f"s_cbranch_scc1 L_mon{ph}n")
        A(f"s_sleep {msleep}"); A(f"s_branch L_mon{ph}")
        A(f"L_mon{ph}n:")
        A("s_mov_b32 s50, s47")
        A(f"s_and_b32 s48, s47, {PD-1}"); A("s_or_b32 s48, s48, s51"); A(f"s_cbranch_scc1 L_mon{ph}p")
        A("v_or_b32 v6, v5, v6")
        A("s_mov_b64 exec, 1")
        A(f"buffer_store_dword v6, off, s[36:39], 0 offset:3968 {SC}")
        A("s_mov_b64 exec, -1")
        A(f"L_mon{ph}p:")
        if RD>1: A(f"s_and_b32 s48, s47, {RD-1}"); A(f"s_cbranch_scc1 L_mon{ph}")
        for k in range(4): A(f"s_buffer_load_dword s{4+k}, s[40:43], s{12+k} glc")
        A("s_waitcnt lgkmcnt(0)")
        for k in range(4): A(f"s_sub_u32 s{4+k}, s{4+k}, s96")
        A("s_mov_b32 s48, s4"); A("s_mov_b32 s49, s4")
        for k in range(1,4): A(f"s_add_u32 s48, s48, s{4+k}"); A(f"s_max_u32 s49, s49, s{4+k}")
        A("s_cmp_gt_u32 s49, 63"); A(f"s_cbranch_scc1 L_mon{ph}")
        A("s_lshl_b32 s48, s48, 3")
        A("s_lshl_b32 s49, s47, 5"); A(f"s_add_i32 s49, s49, {BIAS-32}"); A("s_sub_i32 s49, s49, s48")
        A(f"s_cmp_gt_i32 s49, {TH}"); A("s_cselect_b32 s48, 0, 1"); A(f"s_cmp_lt_i32 s49, {-TH}"); A("s_cselect_b32 s48, 2, s48")
        A("v_mov_b32 v7, s48"); A(f"ds_write_b32 v4, v7 offset:{L_CTL}")
        A(f"s_branch L_mon{ph}")
        A(f"L_mon{ph}x:")
        if ph=="k": A("s_waitcnt lgkmcnt(0)"); STAMP(3); A("s_barrier")

    A("L_tail:")
    A(f"v_lshrrev_b32 v{hLD}, 4, v0"); A(f"v_lshlrev_b32 v{hLD}, 4, v{hLD}"); A("v_mov_b32 v30, 0")
    A(f"v_lshlrev_b32 v{hAD}, 2, v0")
    A("s_sub_u32 s48, s3, 1"); A("s_lshl_b32 s48, s48, 8")
    A("s_waitcnt vmcnt(0) lgkmcnt(0)")
    STAMP(4)
    A("s_barrier")
    STAMP(5)
    for n in range(8): A(f"ds_read_b128 v[{32+4*n}:{32+4*n+3}], v{hLD} offset:{L_O+64*n}")
    A(f"ds_read_b64 v[10:11], v30 offset:{L_SC}")
    for ka in range(8):
        A(f"s_waitcnt lgkmcnt({8-ka})")
        for nu in range(4):
            a=12+4*nu; w=WO+16*ka+4*nu
            A(f"v_mfma_f32_16x16x32_bf16 v[{a}:{a+3}], v[{32+4*ka}:{32+4*ka+3}], v[{w}:{w+3}], {'0' if ka==0 else f'v[{a}:{a+3}]'}")
    A("s_waitcnt lgkmcnt(0)"); A("s_nop 4")
    rowsel(12,[12,16,20,24])
    A("v_mul_f32 v12, v10, v12"); A("v_add_u32 v12, 0x800, v12"); A("v_and_or_b32 v12, v12, s97, v11")
    A(f"buffer_store_dword v12, v{hAD}, s[36:39], s48 offen {SC}")
    STAMP(6)
    stamp_out()
    A("s_endpgm")

    A("L_help:")
    D0=32
    def layernorm(xr, dup):
        for k in range(4):
            A(f"v_lshlrev_b32 v{8+2*k}, 16, v{xr+k}"); A(f"v_and_b32 v{9+2*k}, 0xffff0000, v{xr+k}")
        A("v_add_f32 v16, v8, v9"); A("v_add_f32 v17, v10, v11"); A("v_add_f32 v18, v12, v13"); A("v_add_f32 v19, v14, v15")
        A("v_add_f32 v16, v16, v17"); A("v_add_f32 v18, v18, v19"); A("v_add_f32 v16, v16, v18")
        wave_sum(16,17)
        A(f"v_mul_f32 v16, {f2u(1.0/448):#x}, v16")
        A("v_cmp_gt_u32 vcc, 56, v0"); A("v_cvt_pk_bf16_f32 v17, 0, v16"); A("s_nop 0")
        A("v_cndmask_b32 v16, 0, v16, vcc")
        A("v_sub_f32 v4, v8, v16"); A("v_mul_f32 v18, v4, v4")
        for k in range(1,8): A(f"v_sub_f32 v4, v{8+k}, v16"); A("v_fmac_f32 v18, v4, v4")
        wave_sum(18,19)
        A(f"v_mul_f32 v18, {f2u(1.0/448):#x}, v18")
        A("v_cvt_pk_bf16_f32 v18, 0, v18")
        A(f"v_add_f32 v18, {f2u(1e-5):#x}, v18")
        A("v_cvt_pk_bf16_f32 v18, 0, v18")
        A("v_sqrt_f32 v18, v18"); A("s_nop 0")
        A("v_cvt_pk_bf16_f32 v18, 0, v18")
        A("v_rcp_f32 v19, v18")
        for k in range(8):
            A(f"v_sub_f32 v{8+k}, v{8+k}, v17"); A(f"v_cvt_pk_bf16_f32 v{8+k}, 0, v{8+k}")
            A(f"v_mul_f32 v4, v{8+k}, v19"); A(f"v_fma_f32 v6, -v4, v18, v{8+k}")
            if dup: A("v_fma_f32 v4, v6, v19, v4"); A(f"v_cvt_pk_bf16_f32 v{8+k}, v4, v4")
            else: A(f"v_fma_f32 v{8+k}, v6, v19, v4")
        if not dup:
            for k in range(4): A(f"v_cvt_pk_bf16_f32 v{8+k}, v{8+2*k}, v{9+2*k}")
    def wq_load(t):
        A(f"buffer_load_dwordx4 v[{D0+4*t}:{D0+4*t+3}], v{hAD}, s[52:55], s48 offen {QF}")
        A("s_add_u32 s48, s48, 65536")
        if rot and t%4==3 and t<55: A(f"s_cmp_ge_u32 s48, {56*65536}"); A("s_cselect_b32 s48, 0, s48")
    def gemv56(bar_at):
        XX=[4,8]; BB=[12,16]
        A("s_waitcnt lgkmcnt(0)")
        A(f"ds_read_b128 v[4:7], v{hLD}"); A(f"ds_read_b128 v[8:11], v{hLD} offset:16")
        def bp(t):
            if t%4==0: A(f"s_waitcnt lgkmcnt({1 if t//4+1<14 else 0})")
            for r in range(4): A(f"v_and_b32 v{BB[t%2]+r}, v{XX[(t//4)%2]+t%4}, v{hM+r}")
            if t%4==3 and t//4+2<14:
                x=XX[(t//4)%2]; A(f"ds_read_b128 v[{x}:{x+3}], v{hLD} offset:{16*(t//4+2)}")
        bp(0)
        for t in range(56):
            if t+1<56: bp(t+1)
            else: A("s_nop 0")
            if t+QD<56: wq_load(t+QD)
            if t+QD==bar_at: A("s_barrier")
            A(f"s_waitcnt vmcnt({min(QD,55-t)})")
            A(f"v_mfma_f32_16x16x32_bf16 v[{hACC}:{hACC+3}], v[{D0+4*t}:{D0+4*t+3}], v[{BB[t%2]}:{BB[t%2]+3}], {'0' if t==0 else f'v[{hACC}:{hACC+3}]'}")
        A("s_nop 7")
        combine(hACC,12)
    def ln_part(wait):
        masks(hM,12,13)
        A(f"s_waitcnt vmcnt({wait})")
        layernorm(4,True)
        C("X'[e][(t - 4*rot) mod 56]")
        A("s_sub_u32 s47, s3, 1"); A(f"s_mul_i32 s47, s47, {X_SZ}"); A(f"s_add_u32 s47, s47, {L_X}")
        A("s_lshl_b32 s50, s51, 2"); A("v_subrev_u32 v5, s50, v0"); A("v_add_u32 v6, 56, v5"); A("v_min_u32 v5, v5, v6")
        A("v_cmp_lt_u32 vcc, 55, v0"); A("s_nop 1"); A("v_cndmask_b32 v5, v5, v0, vcc")
        A("v_lshl_add_u32 v5, v5, 2, s47")
        for k in range(8): A(f"ds_write_b32 v5, v{8+k} offset:{k*X_STR}")
        A(f"v_mul_u32_u24 v{hLD}, {X_STR}, v2"); A(f"v_add_u32 v{hLD}, s47, v{hLD}")
    C("q column block w-1 over all 448 rows of wq, tile order rotated by 4*s51 tiles")
    A("v_lshlrev_b32 v1, 4, v0")
    A(f"v_lshlrev_b32 v{hAD}, 13, v2"); A(f"v_lshl_add_u32 v{hAD}, v3, 4, v{hAD}")
    A("s_mul_i32 s47, s30, 896")
    A("s_lshl_b32 s48, s31, 9"); A("s_sub_u32 s49, s3, 1"); A("s_lshl_b32 s49, s49, 7"); A("s_add_u32 s48, s48, s49"); A(f"s_sub_u32 s49, {448*8192}, s48")
    if rot: A("s_mul_i32 s51, s30, 7"); A("s_lshr_b32 s51, s51, 2")
    else: A("s_mov_b32 s51, 0")
    A("s_waitcnt lgkmcnt(0)")
    srd(88,4,5,"s47",896)
    srd(52,10,11,"s48","s49")
    A("buffer_load_dwordx4 v[4:7], v1, s[88:91], 0 offen")
    A("s_lshl_b32 s48, s51, 18")
    A("s_cmp_eq_u32 s28, 1"); A("s_cbranch_scc1 L_q1")
    for t in range(QD): wq_load(t)
    ln_part(QD); gemv56(55); A("s_branch L_q2")
    A("L_q1:")
    ln_part(0); A("s_barrier")
    for t in range(QD): wq_load(t)
    gemv56(None)
    A("L_q2:")
    C("q -> bf16 -> LDS: addr = m*128 + (4*rowq+hi)*16 + j*2 (+32 for the second register)")
    A("v_cvt_pk_bf16_f32 v12, v12, v13")
    A("v_bfe_u32 v4, v0, 4, 1"); A("v_lshrrev_b32 v5, 5, v0"); A("v_lshl_add_u32 v4, v4, 2, v5"); A("v_lshlrev_b32 v4, 4, v4"); A("v_lshl_add_u32 v4, v3, 1, v4")
    A("s_sub_u32 s47, s3, 1"); A("s_lshl_b32 s47, s47, 7"); A("v_add_u32 v4, s47, v4")
    A("s_mov_b64 exec, s[60:61]")
    A(f"ds_write_b16 v4, v12 offset:{L_Q}"); A(f"ds_write_b16_d16_hi v4, v12 offset:{L_Q+32}")
    A("s_mov_b64 exec, -1")
    A("s_waitcnt lgkmcnt(0)")
    STAMP(1)
    A("s_barrier")
    STAMP(2)
    srd_slots()
    C("FFN: wave 1 of 28 workgroups, slice f of 64 hidden units for all 8 batches")
    A("s_cmp_lg_u32 s3, 1"); A("s_cbranch_scc1 L_wo")
    if skipffn: A("s_branch L_wo")
    A("s_cmp_lg_u32 s28, 1"); A("s_cbranch_scc1 L_wo")
    A("s_mov_b32 s51, s31"); A("s_cmp_eq_u32 s30, s26"); A("s_cbranch_scc1 L_ffn")
    A("s_add_u32 s51, s31, 16"); A("s_xor_b32 s47, s26, 4"); A("s_cmp_lg_u32 s30, s47"); A("s_cbranch_scc1 L_wo")
    A("s_cmp_ge_u32 s51, 28"); A("s_cbranch_scc1 L_wo")
    A("L_ffn:")
    A("s_mov_b32 s50, 3584")
    A("s_lshl_b32 s48, s51, 7"); A(f"s_sub_u32 s49, {448*3584}, s48"); srd(52,16,17,"s48","s49")
    A(f"v_mul_u32_u24 v{hAD}, 3584, v2"); A(f"v_lshl_add_u32 v{hAD}, v3, 4, v{hAD}")
    C("raw x of the 8 batches -> XN, then layernorm in place while the first w1 tiles are in flight")
    srd(88,4,5,None,8*896)
    A(f"v_add_u32 v5, {L_XN}, v1"); A("v_cmp_gt_u32 vcc, 56, v0"); A("v_mov_b32 v6, 0x10000"); A("s_nop 0"); A("v_cndmask_b32 v6, v6, v1, vcc")
    for b in range(8): A(f"buffer_load_dwordx4 v[{224+4*b}:{227+4*b}], v6, s[88:91], 0 offen offset:{896*b}" if 896*b<4096 else f"buffer_load_dwordx4 v[{224+4*b}:{227+4*b}], v6, s[88:91], s50 offen offset:{896*b-3584}")
    A("s_mov_b32 s48, 0")
    def w1_load(t):
        A(f"buffer_load_dwordx4 v[{D0+4*t}:{D0+4*t+3}], v{hAD}, s[52:55], s48 offen {SF}")
        A(f"s_add_u32 s48, s48, {8*3584}")
    for t in range(NF): w1_load(t)
    A(f"s_waitcnt vmcnt({NF})")
    for b in range(8): A(f"ds_write_b128 v5, v[{224+4*b}:{227+4*b}] offset:{XN_STR*b}")
    A("s_mov_b32 s49, 8")
    A("L_ln8:")
    A("s_waitcnt lgkmcnt(0)")
    A("ds_read_b128 v[20:23], v5"); A("s_waitcnt lgkmcnt(0)")
    layernorm(20,False)
    A("ds_write_b128 v5, v[8:11]")
    A(f"v_add_u32 v5, {XN_STR}, v5"); A("s_sub_u32 s49, s49, 1"); A("s_cmp_lg_u32 s49, 0"); A("s_cbranch_scc1 L_ln8")
    for t in range(NF,56):
        A(f"s_waitcnt vmcnt({NF-1})"); w1_load(t)
    A("s_waitcnt vmcnt(0)")
    def transpose4(regs):
        for k in range(4): A(f"ds_write_b128 v{hAD}, v[{regs[k]}:{regs[k]+3}] offset:{T_STR*k}")
        A("s_waitcnt lgkmcnt(0)")
        for nu in range(4):
            for hf in range(2): A(f"ds_read_b64_tr_b16 v[{regs[nu]+2*hf}:{regs[nu]+2*hf+1}], v{hLD} offset:{512*hf+32*nu}")
        A("s_waitcnt lgkmcnt(0)")
    t_addr(hAD,hLD,True)
    for ka in range(14): transpose4([D0+16*ka+4*k for k in range(4)])
    C("A fragments: row i of the MFMA is batch (i&3) (+4 in the second pass)")
    A("v_and_b32 v30, 3, v0"); A(f"v_mul_u32_u24 v30, {XN_STR}, v30"); A("v_lshrrev_b32 v31, 4, v0"); A("v_lshl_add_u32 v30, v31, 4, v30")
    A("v_lshlrev_b32 v1, 1, v0")
    for ps in range(2):
        for ka in range(14):
            A(f"ds_read_b128 v[{20+4*(ka%2)}:{23+4*(ka%2)}], v30 offset:{L_XN+4*XN_STR*ps+64*ka}"); A("s_waitcnt lgkmcnt(0)")
            for nu in range(4):
                a=4+4*nu; w=D0+16*ka+4*nu
                A(f"v_mfma_f32_16x16x32_bf16 v[{a}:{a+3}], v[{20+4*(ka%2)}:{23+4*(ka%2)}], v[{w}:{w+3}], {'0' if ka==0 else f'v[{a}:{a+3}]'}")
        A("s_nop 7")
        for r in range(4):
            rowsel(4+r,[4+r,8+r,12+r,16+r])
        for r in range(4):
            k=4+r
            A(f"v_cvt_pk_bf16_f32 v{k}, 0, v{k}")
            A(f"v_mul_f32 v20, {f2u(-math.log2(math.e)):#x}, v{k}"); A("v_exp_f32 v20, v20"); A("s_nop 0")
            A("v_add_f32 v20, 1.0, v20"); A("v_rcp_f32 v20, v20"); A("s_nop 0")
            A(f"v_mul_f32 v{k}, v{k}, v20"); A(f"v_cvt_pk_bf16_f32 v{k}, v{k}, v{k}")
            A(f"ds_write_b16 v1, v{k} offset:{L_HP+HP_STR*(4*ps+r)}")
    C("w2 rows 64f..64f+63: (block beta, tile t) -> D0 + 32*beta + 4*t")
    A(f"s_mul_i32 s48, s51, {64*896}"); A(f"s_sub_u32 s49, {1792*896}, s48"); srd(52,18,19,"s48","s49")
    A("v_mul_u32_u24 v4, 896, v2"); A("v_lshl_add_u32 v4, v3, 4, v4")
    A("s_mov_b32 s48, 0")
    for t in range(8):
        for be in range(7):
            if 7*t+be>=NF: A(f"s_waitcnt vmcnt({NF-1})")
            rr=D0+32*be+4*t
            A(f"buffer_load_dwordx4 v[{rr}:{rr+3}], v4, s[52:55], s48 offen offset:{128*be} {SF}")
        A("s_add_u32 s48, s48, 7168")
    tag_wait(1)
    for g in range(14): transpose4([D0+16*g+4*k for k in range(4)])
    A("v_and_b32 v30, 3, v0"); A(f"v_mul_u32_u24 v30, {HP_STR}, v30"); A("v_lshrrev_b32 v31, 4, v0"); A("v_lshl_add_u32 v30, v31, 4, v30")
    A("v_lshlrev_b32 v31, 2, v0")
    A("s_lshl_b32 s47, s51, 12"); srd(52,24,25,"s47",1<<20)
    for ps in range(2):
        A(f"ds_read_b128 v[20:23], v30 offset:{L_HP+4*HP_STR*ps}"); A(f"ds_read_b128 v[24:27], v30 offset:{L_HP+4*HP_STR*ps+64}")
        for r in range(4): A(f"s_mov_b32 s{44+r}, {(4*ps+r)<<17}")
        A("s_waitcnt lgkmcnt(0)")
        for be in range(7):
            for ka in range(2):
                for nu in range(4):
                    a=4+4*nu; w=D0+32*be+16*ka+4*nu
                    A(f"v_mfma_f32_16x16x32_bf16 v[{a}:{a+3}], v[{20+4*ka}:{23+4*ka}], v[{w}:{w+3}], {'0' if ka==0 else f'v[{a}:{a+3}]'}")
            A("s_nop 7")
            for r in range(4):
                rowsel(4+r,[4+r,8+r,12+r,16+r])
            for r in range(4):
                A(f"v_add_u32 v{4+r}, 0x800, v{4+r}"); A(f"v_and_or_b32 v{4+r}, v{4+r}, s97, v1")
                A(f"buffer_store_dword v{4+r}, v31, s[52:55], s{44+r} offen offset:{2048+256*be} {SC}")
            A("s_nop 1")
    STAMP(3)
    A("s_barrier")
    wo_issue(NW7)
    A("s_branch L_tail")
    A("L_end:")
    A("s_endpgm")
    body="\n".join(("" if (l.endswith(":") or l.startswith(".")) else "    ")+l for l in L)+"\n"
    head=HEADER+f"; @launch grid=(256,1,1) block=(512,1,1) lds={L_END}\n"
    return head+body+kd(NAME,256,102,256), L_END

if __name__=="__main__":
    kw=eval("dict(%s)"%(sys.argv[2] if len(sys.argv)>2 else ""))
    t,ldsz=gen(**kw)
    out=sys.argv[1]
    if out.endswith(".s"): open(out,"w").write(t)
    else:
        assemble(t+meta([(NAME,256,102,512)]), out); print(f"work/{out}:{NAME},256,512,{ldsz}")
```

```python
import sys, math, struct
from common import *

NAME="parallel_sum__mha_block_cached__dense_activation_silu__decode_kernel"
HEADER=open("parallel_sum__mha_block_cached__dense_activation_silu__decode.s.ref").read().split("; Override launch")[0]

L_Q=0; L_MX=512; L_SC=576; L_TAG=580; L_PRG=584; L_CTL=588; L_XB=640
L_O=768
L_S=1280; S_STR=1040
L_X=L_S+8*S_STR; X_STR=272; X_SZ=8*X_STR
L_XN=L_X+4*X_SZ; XN_STR=1040
L_HP=L_XN+8*XN_STR; HP_STR=144
L_T=L_HP+8*HP_STR; T_STR=1056; T_SZ=8*T_STR
L_END=L_T+7*T_SZ
CEXP=math.log2(math.e)/16.0
def f2u(f): return struct.unpack("<I",struct.pack("<f",f))[0]

def gen(N=24, N0=10, R=48, NF=8, NW=2, NW7=4, QD=12, stamp=False, SC="sc1", HF="", QF="", SF="nt",
        rot=1, ctl=(18,24,30), ctlK=None, TH=6, BIAS=0, PD=2, RD=2, msleep=4, xb=1, dpoll=1, skipwo=0, skipffn=0, NT=None, late=1, pulse=0):
    L=[]; A=L.append
    def C(s): A("    ; "+s)
    lbl=[0]
    def newl(): lbl[0]+=1; return lbl[0]
    def STAMP(i):
        if stamp: A(f"s_memrealtime s[{70+2*i}:{71+2*i}]")
    def srd(d, lo, hi, off, size):
        if off is None: A(f"s_mov_b32 s{d}, s{lo}"); A(f"s_mov_b32 s{d+1}, s{hi}")
        else: A(f"s_add_u32 s{d}, s{lo}, {off}"); A(f"s_addc_u32 s{d+1}, s{hi}, 0")
        A(f"s_mov_b32 s{d+2}, {size}"); A(f"s_mov_b32 s{d+3}, 0x20000")
    def masks(base,t0,t1):
        A(f"v_and_b32 v{t0}, 1, v3"); A(f"v_lshlrev_b32 v{t0}, 4, v{t0}"); A(f"v_mov_b32 v{t1}, 0xffff"); A(f"v_lshlrev_b32 v{t0}, v{t0}, v{t1}")
        A(f"v_lshrrev_b32 v{t1}, 1, v3")
        for r in range(4):
            A(f"v_cmp_eq_u32 vcc, {r}, v{t1}"); A("s_nop 1"); A(f"v_cndmask_b32 v{base+r}, 0, v{t0}, vcc")
    def stamp_out(tmp=4):
        if not stamp: return
        A("s_waitcnt lgkmcnt(0)")
        A("s_mov_b64 exec, 1")
        srd(64,24,25,None,0x40000000)
        A("s_lshl_b32 s68, s2, 3"); A("s_add_u32 s68, s68, s3"); A("s_lshl_b32 s68, s68, 5"); A("s_add_u32 s68, s68, 0x20000000")
        A("s_getreg_b32 s69, hwreg(HW_REG_XCC_ID)")
        for i in range(7): A(f"v_mov_b32 v{tmp+i}, s{70+2*i}")
        A(f"v_mov_b32 v{tmp+7}, s69")
        A(f"buffer_store_dwordx4 v[{tmp}:{tmp+3}], off, s[64:67], s68")
        A(f"buffer_store_dwordx4 v[{tmp+4}:{tmp+7}], off, s[64:67], s68 offset:16")
        A("s_waitcnt vmcnt(0)")
    def srd_slots():
        A("s_lshl_b32 s47, s33, 12"); srd(36,24,25,"s47",4096)
        A("s_lshl_b32 s47, s30, 17"); srd(40,24,25,"s47",131072)
        srd(56,22,23,None,256)
    def tag_wait(t):
        n=newl()
        A("s_mov_b32 s49, 400000")
        A(f"L_cw{n}:")
        A(f"buffer_load_dword v{t}, off, s[56:59], 0 {SC}"); A("s_waitcnt vmcnt(0)")
        A(f"v_cmp_eq_u32 vcc, 0, v{t}"); A("s_sub_u32 s49, s49, 1"); A(f"s_cbranch_scc1 L_cwx{n}")
        A(f"s_cbranch_vccz L_cwx{n}"); A("s_sleep 8"); A(f"s_branch L_cw{n}")
        A(f"L_cwx{n}:")
        A(f"v_and_b32 v{t}, 0xfff, v{t}"); A("s_nop 0"); A(f"v_readfirstlane_b32 s96, v{t}")
    def g_issue(off,b,vad,srdn,only28=False):
        A(f"buffer_load_dwordx4 v[{b}:{b+3}], v{vad}, s[{srdn}:{srdn+3}], 0 offen offset:{off} {SC}")
        if only28: A("s_mov_b64 exec, s[62:63]")
        A(f"buffer_load_dwordx4 v[{b+4}:{b+7}], v{vad}, s[{srdn}:{srdn+3}], s47 offen offset:{off} {SC}")
        if only28: A("s_mov_b64 exec, -1")
    def g_check(b,t,vtag,younger):
        A(f"s_waitcnt vmcnt({younger+1})")
        A(f"v_xor_b32 v{t}, v{b}, v{vtag}")
        for r in range(1,4): A(f"v_bitop3_b32 v{t}, v{b+r}, v{vtag}, v{t} bitop3:0xbe")
        A(f"s_waitcnt vmcnt({younger})")
        for r in range(4,8): A(f"v_bitop3_b32 v{t}, v{b+r}, v{vtag}, v{t} bitop3:0xbe")
        A(f"v_and_b32 v{t}, 0xfff, v{t}")
        A(f"v_cmp_ne_u32 vcc, 0, v{t}")
    def g_reduce(b,vtag):
        for r in range(8): A(f"v_xor_b32 v{b+r}, v{b+r}, v{vtag}")
        for r in range(4): A(f"v_add_f32 v{b+r}, v{b+r}, v{b+4+r}")
        for pat in ["row_ror:4","row_ror:8"]:
            for r in range(4): A(f"v_add_f32_dpp v{b+r}, v{b+r}, v{b+r} {pat} row_mask:0xf bank_mask:0xf")
        for r in range(1,4): A(f"v_mov_b32_dpp v{b}, v{b+r} quad_perm:[0,1,2,3] row_mask:0xf bank_mask:{1<<r:#x}")
        for sw in ["16","32"]:
            A(f"v_mov_b32 v{b+1}, v{b}"); A("s_nop 1"); A(f"v_permlane{sw}_swap_b32 v{b}, v{b+1}"); A(f"v_add_f32 v{b}, v{b}, v{b+1}")
    def g_addr(vad,vcol,t):
        A(f"v_lshrrev_b32 v{vad}, 2, v0"); A(f"v_and_b32 v{t}, 3, v0"); A(f"v_and_b32 v{vcol}, 3, v{vad}")
        A(f"v_lshlrev_b32 v{vad}, 12, v{vad}"); A(f"v_lshl_add_u32 v{vad}, v{t}, 4, v{vad}")
        A("s_lshl_b32 s47, s32, 6"); A(f"v_add_u32 v{vad}, s47, v{vad}")
        A(f"v_lshl_add_u32 v{vcol}, v{t}, 2, v{vcol}"); A("s_lshl_b32 s47, s32, 5"); A(f"v_lshl_add_u32 v{vcol}, v{vcol}, 1, s47")
    def wave_sum(v,t):
        for pat in ["quad_perm:[1,0,3,2]","quad_perm:[2,3,0,1]","row_half_mirror","row_mirror"]:
            A("s_nop 1"); A(f"v_add_f32_dpp v{v}, v{v}, v{v} {pat} row_mask:0xf bank_mask:0xf")
        for sw in ["16","32"]:
            A(f"v_mov_b32 v{t}, v{v}"); A("s_nop 1"); A(f"v_permlane{sw}_swap_b32 v{v}, v{t}"); A(f"v_add_f32 v{v}, v{v}, v{t}")
    def max16(dst,b):
        A(f"v_max3_f32 v{dst}, v{b}, v{b+1}, v{b+2}")
        for k in range(3,15,2): A(f"v_max3_f32 v{dst}, v{dst}, v{b+k}, v{b+k+1}")
        A(f"v_max_f32 v{dst}, v{dst}, v{b+15}")

    A('.amdgcn_target "amdgcn-amd-amdhsa--gfx950"'); A(".text"); A(f".globl {NAME}"); A(".p2align 8"); A(f".type {NAME},@function"); A(f"{NAME}:")
    A("s_cmp_ge_u32 s2, 256"); A("s_cbranch_scc1 L_end")
    STAMP(0)
    A("s_load_dwordx16 s[4:19], s[0:1], 0")
    A("s_load_dwordx4 s[20:23], s[0:1], 64")
    A("s_load_dwordx2 s[24:25], s[0:1], 80")
    A("v_lshrrev_b32 v1, 6, v0"); A("v_and_b32 v0, 63, v0"); A("v_readfirstlane_b32 s3, v1")
    A("s_and_b32 s26, s2, 7"); A("s_lshr_b32 s27, s2, 3"); A("s_and_b32 s28, s27, 1")
    A("s_bfe_u32 s29, s27, 0x10001"); A("s_lshr_b32 s30, s27, 2")
    A("s_lshl_b32 s29, s29, 3"); A("s_add_u32 s31, s26, s29")
    A("s_lshl_b32 s32, s31, 1"); A("s_add_u32 s32, s32, s28")
    A("s_lshl_b32 s33, s30, 5"); A("s_add_u32 s33, s33, s32")
    C("s28=half s30=batch s31=head s32=2*head+half s33=32*batch+s32 ; v2=lane>>3 v3=lane&7")
    A("v_lshrrev_b32 v2, 3, v0"); A("v_and_b32 v3, 7, v0")
    A(f"s_mov_b32 s34, {f2u(CEXP):#x}")
    A("s_mov_b32 s60, 0x00ff00ff"); A("s_mov_b32 s61, 0x00ff00ff"); A("s_mov_b32 s97, 0xfffff000")
    A("s_cmp_eq_u32 s3, 0"); A("s_cbranch_scc1 L_stream")
    A("s_cmp_ge_u32 s3, 5"); A("s_cbranch_scc1 L_buf")
    A("s_branch L_help")

    RING=256-4*R
    vK=4; vV=5; vSW=6; vSR=7; vMX=8; vR=9; vR2=10; vA=[11,12]; vB=[13,14]; vQ=16
    def slot(i): return RING+4*(i%R)
    def k_consume(c, dsoff):
        p=c%8; m=p%4; acc=vA if p<4 else vB; r=slot(c)
        for k in range(4):
            src2 = "0" if (m==0 and k<2) else f"v{acc[k%2]}"
            A(f"v_dot2_f32_bf16 v{acc[k%2]}, v{r+k}, v{vQ+4*m+k}, {src2}")
        prev = dsoff is not None
        if p==0 and prev: A(f"v_add_f32 v{vB[0]}, v{vB[0]}, v{vB[1]}")
        if p==1 and prev: A(f"v_add_f32_dpp v{vR}, v{vB[0]}, v{vB[0]} row_half_mirror row_mask:0xf bank_mask:0xa")
        if p==2 and prev: A(f"v_add_f32_dpp v{vR}, v{vR}, v{vR} quad_perm:[1,0,3,2] row_mask:0xf bank_mask:0xf")
        if p==3 and prev: A(f"v_add_f32_dpp v{vR}, v{vR}, v{vR} quad_perm:[2,3,0,1] row_mask:0xf bank_mask:0xf")
        if p==4:
            if prev: A(f"v_cvt_pk_bf16_f32 v{vR2}, 0, v{vR}")
            A(f"v_add_f32 v{vA[0]}, v{vA[0]}, v{vA[1]}")
        if p==5:
            if prev: A(f"v_max_f32 v{vMX}, v{vMX}, v{vR2}"); A(f"ds_write_b32 v{vSW}, v{vR2} offset:{dsoff}")
            A(f"v_add_f32_dpp v{vR}, v{vA[0]}, v{vA[0]} row_half_mirror row_mask:0xf bank_mask:0x5")
    def k_flush(dsoff):
        A("s_nop 2"); A(f"v_add_f32 v{vB[0]}, v{vB[0]}, v{vB[1]}"); A("s_nop 1")
        A(f"v_add_f32_dpp v{vR}, v{vB[0]}, v{vB[0]} row_half_mirror row_mask:0xf bank_mask:0xa"); A("s_nop 1")
        A(f"v_add_f32_dpp v{vR}, v{vR}, v{vR} quad_perm:[1,0,3,2] row_mask:0xf bank_mask:0xf"); A("s_nop 1")
        A(f"v_add_f32_dpp v{vR}, v{vR}, v{vR} quad_perm:[2,3,0,1] row_mask:0xf bank_mask:0xf")
        A(f"v_cvt_pk_bf16_f32 v{vR2}, 0, v{vR}")
        A(f"v_max_f32 v{vMX}, v{vMX}, v{vR2}"); A(f"ds_write_b32 v{vSW}, v{vR2} offset:{dsoff}")
    def mx_publish(w, tmp):
        A("s_nop 1")
        A(f"v_max_f32_dpp v{vMX}, v{vMX}, v{vMX} row_ror:4 row_mask:0xf bank_mask:0xf"); A("s_nop 1")
        A(f"v_max_f32_dpp v{vMX}, v{vMX}, v{vMX} row_ror:8 row_mask:0xf bank_mask:0xf")
        A(f"v_lshrrev_b32 v{tmp}, 4, v0"); A(f"v_lshlrev_b32 v{tmp}, 2, v{tmp}")
        if isinstance(w,int): A(f"ds_write_b32 v{tmp}, v{vMX} offset:{L_MX+16*w}")
        else: A(f"v_add_u32 v{tmp}, {w}, v{tmp}"); A(f"ds_write_b32 v{tmp}, v{vMX} offset:{L_MX}")
    def k_setup():
        A(f"v_lshlrev_b32 v{vK}, 9, v2"); A(f"v_lshl_add_u32 v{vK}, v3, 4, v{vK}")
        A(f"v_mul_u32_u24 v{vSW}, {S_STR}, v2"); A(f"v_lshrrev_b32 v{vSR}, 2, v3"); A(f"v_lshl_add_u32 v{vSW}, v{vSR}, 2, v{vSW}")
        A(f"v_mov_b32 v{vMX}, 0xff800000")
        A("s_lshl_b32 s35, s33, 20")
    def q_read():
        A(f"v_lshlrev_b32 v{vR}, 4, v3")
        for m in range(4): A(f"ds_read_b128 v[{vQ+4*m}:{vQ+4*m+3}], v{vR} offset:{L_Q+128*m}")
        A("s_waitcnt lgkmcnt(0)")
    def bar0(first):
        n=newl()
        A(f"s_cmp_eq_u32 s28, {1 if first else 0}"); A(f"s_cbranch_scc1 L_b0_{n}"); A("s_barrier"); A(f"L_b0_{n}:")
    NP0=R//8; NB=3
    NKS=1024-NB*R
    NTOT=NKS+1024
    NT=NT or N

    A("L_stream:")
    A("s_setprio 3")
    k_setup()
    A(f"v_lshrrev_b32 v{vV}, 4, v0"); A(f"v_lshlrev_b32 v{vV}, 10, v{vV}"); A(f"v_and_b32 v{vSR}, 15, v0"); A(f"v_lshl_add_u32 v{vV}, v{vSR}, 4, v{vV}")
    vZ=36; vPC=37; vPP=38
    A(f"v_mov_b32 v{vZ}, 0"); A(f"ds_write_b32 v{vZ}, v{vZ} offset:{L_PRG}")
    A("s_waitcnt lgkmcnt(0)")
    srd(36,6,7,"s35",1<<20); srd(40,8,9,"s35",1<<20)
    A("s_mov_b32 s44, 0"); A("s_mov_b32 s45, 0"); A("s_mov_b32 s50, 2")
    def issue(i):
        r=slot(i)
        if i<NKS:
            A(f"buffer_load_dwordx4 v[{r}:{r+3}], v{vK}, s[36:39], s44 offen offset:{128*(i%4)} {SF}")
            if i%4==3: A(f"s_add_u32 s44, s44, {4096+NB*8192 if (i<R and i%8==7) else 4096}")
        elif i<NTOT:
            u=i-NKS
            A(f"buffer_load_dwordx4 v[{r}:{r+3}], v{vV}, s[40:43], s45 offen offset:{256*(u%4)} {SF}")
            if u%4==3: A("s_add_u32 s45, s45, 4096")
    DK=R-1
    bar0(True)
    for i in range(DK):
        if i>=N0: A(f"s_waitcnt vmcnt({N0-1})")
        issue(i)
        if i==N0-1:
            A("s_lshl_b32 s47, s30, 17"); srd(52,24,25,"s47",131072)
            A("s_mul_i32 s47, s30, 896"); srd(92,20,21,"s47",896)
    bar0(False)
    STAMP(1)
    A("s_barrier")
    STAMP(2)
    q_read()
    cur=[None]
    def pair_T(pi): return 2*((NB+1)*pi) if pi<NP0 else 2*((NB+1)*NP0+(pi-NP0))
    def kstep(c, dsbase):
        I=c+DK
        A(f"s_waitcnt vmcnt({min((cur[0] or N)-1,I-c-1)})")
        issue(I)
        pi=c//8
        k_consume(c, None if pi==0 else L_S+4*pair_T(pi-1)-dsbase)
    for c in range(0,2*R): kstep(c,0)
    nK=(NKS-DK-2*R)//R
    A(f"s_mov_b32 s46, {nK}")
    def loop_variants(tag, body, post, zr, cr, pr, lv):
        for v in (1,0,2):
            A(f"L_{tag}{v}:")
            rd=f"ds_read_b32 v{cr}, v{zr} offset:{L_CTL}"
            if not late: A(rd)
            m0=len(L)
            cur[0]=lv[v]; body(); cur[0]=None
            if late:
                w=[i for i in range(m0,len(L)) if L[i].startswith("s_waitcnt vmcnt")]
                assert len(w)==R
                L.insert(w[R-3],rd)
            post()
            A("s_add_u32 s50, s50, 1"); A(f"v_mov_b32 v{pr}, s50")
            A("s_waitcnt lgkmcnt(0)")
            A(f"v_readfirstlane_b32 s48, v{cr}")
            A(f"ds_write_b32 v{zr}, v{pr} offset:{L_PRG}")
            A("s_sub_u32 s46, s46, 1"); A("s_cmp_eq_u32 s46, 0"); A(f"s_cbranch_scc1 L_{tag}x")
            o=[w for w in (0,1,2) if w!=v]
            A(f"s_cmp_eq_u32 s48, {v}"); A(f"s_cbranch_scc1 L_{tag}{v}")
            A(f"s_cmp_eq_u32 s48, {o[0]}"); A(f"s_cbranch_scc1 L_{tag}{o[0]}")
            A(f"s_branch L_{tag}{o[1]}")
        A(f"L_{tag}x:")
    def kbody():
        for c in range(2*R,3*R): kstep(c,0)
    loop_variants("kloop", kbody, lambda: A(f"v_add_u32 v{vSW}, {R}, v{vSW}"), vZ, vPC, vPP, ctlK or ctl)
    dsb=nK*R
    for c in range((2+nK)*R,NKS): kstep(c,dsb)
    k_flush(L_S+4*pair_T(NKS//8-1)-dsb)
    mx_publish(0, vR)
    vM=[12,13,14,15]; vNM=11; vT=9; vP=10; vACC=16; vBB=[32,36]; vSS=[40,44,48]; vTM=52
    masks(vM[0], vTM, vTM+1)
    A(f"v_mul_u32_u24 v{vSR}, {S_STR}, v2")
    A(f"v_mov_b32 v{vT}, 0")
    A("s_waitcnt lgkmcnt(0)")
    STAMP(3)
    A("s_barrier")
    for w in range(4): A(f"ds_read_b128 v[{48+4*w}:{48+4*w+3}], v{vT} offset:{L_MX+16*w}")
    A(f"ds_read_b128 v[{vSS[0]}:{vSS[0]+3}], v{vSR} offset:{L_S}")
    inext=[NKS+DK]
    A(f"s_waitcnt vmcnt({N-1})")
    issue(inext[0]); inext[0]+=1
    for r in range(16): A(f"v_mov_b32 v{vACC+r}, 0")
    A("s_waitcnt lgkmcnt(0)")
    max16(vNM,48)
    A(f"v_mul_f32 v{vNM}, s34, v{vNM}"); A(f"v_sub_f32 v{vNM}, 0, v{vNM}")
    def bprep(tile, part):
        s=vSS[(tile//4)%3]+tile%4; b=vBB[tile%2]
        if part==0: A(f"v_fma_f32 v{vT}, v{s}, s34, v{vNM}")
        if part==1: A(f"v_exp_f32 v{vT}, v{vT}")
        if part==2: A(f"v_cvt_pk_bf16_f32 v{vP}, v{vT}, v{vT}"); A(f"v_and_b32 v{b}, v{vP}, v{vM[0]}")
        if part==3:
            for r in range(1,4): A(f"v_and_b32 v{b+r}, v{vP}, v{vM[r]}")
    bprep(0,0); bprep(0,1); A("s_nop 0"); bprep(0,2); bprep(0,3); A("s_nop 1")
    def vstep(u, srbase, do_issue=True):
        c=NKS+u; I=inext[0]; mark=len(L)
        if do_issue and I<NTOT:
            A(f"s_waitcnt vmcnt({min((cur[0] or N)-1,I-c-1)})")
            assert I-R < c
            issue(I); inext[0]+=1
        else:
            k=I-c-1
            if k<max(N,NT): A(f"s_waitcnt vmcnt({k})")
        tile=u//4; q=u%4; r=slot(c); b=vBB[tile%2]
        if q==0 and tile%4==0 and tile+4<256:
            nb=vSS[(tile//4+1)%3]
            A(f"ds_read_b128 v[{nb}:{nb+3}], v{vSR} offset:{L_S+4*(tile+4)-srbase}")
        if q==0 and tile%4==3 and tile+1<256: A("s_waitcnt lgkmcnt(0)")
        a=vACC+4*q
        if q==0 and len(L)-mark<2: A(f"s_nop {1-(len(L)-mark)}")
        A(f"v_mfma_f32_16x16x32_bf16 v[{a}:{a+3}], v[{r}:{r+3}], v[{b}:{b+3}], v[{a}:{a+3}]")
        if tile+1<256: bprep(tile+1,q)
    u=0; DV=max(max(ctl),NT)
    while True:
        D=inext[0]-(NKS+u)
        if D<=DV and u%R==0: break
        if D>DV:
            vstep(u,0,False); u+=1
            D=inext[0]-(NKS+u)
            if D>DV or u%R!=0: vstep(u,0,True); u+=1
        else:
            vstep(u,0,True); u+=1
    assert inext[0]-(NKS+u)==DV and (R//16)%3==0 and R%16==0
    u0=u; PKEND=2+nK; PV0=(inext[0]+R//2)//R-1
    nV=(1024-DV-u0)//R
    while u0+nV*R+16>1024: nV-=1
    PVEND=PV0+nV
    A(f"s_mov_b32 s46, {nV}"); A("v_mov_b32 v6, 0"); A(f"s_mov_b32 s50, {PV0}")
    i0=inext[0]
    def vbody():
        inext[0]=i0
        for uu in range(u0,u0+R): vstep(uu,0,True)
    loop_variants("vloop", vbody, lambda: A(f"v_add_u32 v{vSR}, {R}, v{vSR}"), 6, 4, 8, ctl)
    inext[0]=i0+nV*R
    cur[0]=NT
    C("addresses for the tail: v4 gather address, v6 output offset, v8 O' address")
    g_addr(4,6,8)
    A("v_lshrrev_b32 v8, 4, v0"); A("v_lshl_add_u32 v8, v8, 3, v3"); A("v_lshlrev_b32 v8, 4, v8")
    A("s_mov_b32 s47, 65536"); A("s_mov_b32 s49, 400000")
    for uu in range(u0+nV*R,1024): vstep(uu,nV*R,True)
    cur[0]=None
    STAMP(4)
    A("v_and_b32 v7, 15, v0"); A("v_lshlrev_b32 v7, 3, v7"); A("v_mov_b32 v5, 0")
    A("s_nop 4")
    for hf in range(2):
        for r in range(4):
            A(f"v_add_f32_dpp v{vTM+4*hf+r}, v{vACC+8+4*hf+r}, v{vACC+4*hf+r} row_ror:8 row_mask:0xf bank_mask:0xf")
    for k in range(4): A(f"v_cvt_pk_bf16_f32 v{vTM+k}, v{vTM+2*k}, v{vTM+2*k+1}")
    A("s_mov_b64 exec, s[60:61]")
    A(f"ds_write_b128 v8, v[{vTM}:{vTM+3}] offset:{L_O}")
    A("s_mov_b64 exec, -1")
    A("s_waitcnt lgkmcnt(0)")
    A("s_barrier")
    STAMP(5)
    A("s_cmp_ge_u32 s32, 28"); A("s_cbranch_scc1 L_sdone")
    C("final: 16 output columns = sum over the 32 workgroups of this batch")
    A(f"ds_read_b32 v12, v5 offset:{L_TAG}")
    A(f"ds_read_b64 v[14:15], v7 offset:{L_XB}")
    g_issue(0,16,4,52)
    if dpoll: A("s_sleep 4"); g_issue(0,32,4,52)
    A("s_waitcnt lgkmcnt(0)")
    A("L_fp:")
    g_check(16,13,12,2 if dpoll else 0)
    A("s_sub_u32 s49, s49, 1"); A("s_cbranch_scc1 L_fa"); A("s_cbranch_vccz L_fa")
    g_issue(0,16,4,52)
    if dpoll:
        g_check(32,13,12,2)
        A("s_cbranch_vccz L_fb")
        g_issue(0,32,4,52)
    A("s_branch L_fp")
    def final(b):
        g_reduce(b,12)
        A(f"v_cvt_pk_bf16_f32 v{b}, 0, v{b}"); A(f"v_add_f32 v{b}, v14, v{b}"); A(f"v_cvt_pk_bf16_f32 v{b}, 0, v{b}"); A(f"v_add_f32 v{b}, v{b}, v15")
        A(f"v_cvt_pk_bf16_f32 v{b}, v{b}, v{b}")
        A("s_mov_b64 exec, 0xffff")
        A(f"buffer_store_short v{b}, v6, s[92:95], 0 offen")
    if dpoll:
        A("L_fb:"); final(32); A("s_branch L_sdone")
    A("L_fa:"); final(16)
    A("L_sdone:")
    STAMP(6)
    stamp_out(48)
    A("s_endpgm")

    hM=20; hACC=24; hAD=28; hLD=29
    WO=128
    def t_addr(vw, vr, natural):
        A("s_sub_u32 s47, s3, 1"); A(f"s_mul_i32 s47, s47, {T_SZ}"); A(f"s_add_u32 s47, s47, {L_T}")
        A(f"v_lshl_add_u32 v{vw}, v0, 4, s47")
        A(f"v_bfe_u32 v{vr}, v0, 2, 2")
        if natural:
            A(f"v_lshlrev_b32 v{vr}, 7, v{vr}"); A(f"v_lshrrev_b32 v31, 4, v0"); A(f"v_mul_u32_u24 v31, {T_STR}, v31")
        else:
            A(f"v_mul_u32_u24 v{vr}, {T_STR}, v{vr}"); A(f"v_lshrrev_b32 v31, 4, v0"); A(f"v_lshlrev_b32 v31, 7, v31")
        A(f"v_add3_u32 v{vr}, v{vr}, v31, s47"); A("v_and_b32 v31, 3, v0"); A(f"v_lshl_add_u32 v{vr}, v31, 3, v{vr}")
    def wo_issue(nw):
        C("wo rows of this head, column block c = wave-1; then transpose into MFMA B fragments")
        A("s_mul_i32 s47, s31, 229376"); A("s_sub_u32 s48, s3, 1"); A("s_lshl_b32 s48, s48, 7"); A("s_add_u32 s47, s47, s48")
        A(f"s_sub_u32 s48, {4096*896}, s47")
        srd(52,12,13,"s47","s48")
        A(f"v_mul_u32_u24 v{hAD}, 896, v2"); A(f"v_lshl_add_u32 v{hAD}, v3, 4, v{hAD}")
        n=0
        for g in range(4):
            for hf in range(2):
                A(f"s_mov_b32 s47, {7168*(16*hf+4*g)}")
                for r in range(4):
                    if skipwo: continue
                    if n>=nw: A(f"s_waitcnt vmcnt({nw-1})")
                    rr=WO+32*g+16*hf+4*r
                    A(f"buffer_load_dwordx4 v[{rr}:{rr+3}], v{hAD}, s[52:55], s47 offen {HF}")
                    if r<3: A("s_add_u32 s47, s47, 7168")
                    n+=1
        t_addr(hAD,hLD,False)
        A("s_waitcnt vmcnt(0)")
        for g in range(4):
            for k in range(8): A(f"ds_write_b128 v{hAD}, v[{WO+32*g+4*k}:{WO+32*g+4*k+3}] offset:{T_STR*k}")
            A("s_waitcnt lgkmcnt(0)")
            for kp in range(2):
                for nu in range(4):
                    for hf in range(2):
                        rr=WO+32*g+16*kp+4*nu+2*hf
                        A(f"ds_read_b64_tr_b16 v[{rr}:{rr+1}], v{hLD} offset:{4*T_STR*hf+512*kp+32*nu}")
            A("s_waitcnt lgkmcnt(0)")
    def combine(acc, dst):
        A(f"v_permlane32_swap_b32 v{acc}, v{acc+1}"); A(f"v_permlane32_swap_b32 v{acc+2}, v{acc+3}")
        A("s_nop 1")
        A(f"v_add_f32_dpp v{dst}, v{acc+1}, v{acc} row_ror:8 row_mask:0xf bank_mask:0xf")
        A(f"v_add_f32_dpp v{dst+1}, v{acc+3}, v{acc+2} row_ror:8 row_mask:0xf bank_mask:0xf")
    def rowsel(dst, srcs):
        for k in range(1,4): A(f"v_mov_b32_dpp v{dst}, v{srcs[k]} quad_perm:[0,1,2,3] row_mask:{1<<k:#x} bank_mask:0xf")

    A("L_buf:")
    A("s_setprio 3")
    A("v_mov_b32 v32, 0"); A("v_mov_b32 v33, 1"); A(f"ds_write_b32 v32, v33 offset:{L_CTL}")
    k_setup()
    A("s_waitcnt lgkmcnt(0)")
    srd(84,6,7,"s35",1<<20)
    A("s_sub_u32 s47, s3, 4"); A("s_lshl_b32 s44, s47, 13")
    A("s_lshl_b32 s47, s47, 3"); A(f"v_add_u32 v{vSW}, s47, v{vSW}")
    bar0(True)
    for i in range(R):
        if i==N0:
            srd_slots()
            A("s_cmp_lg_u32 s3, 5"); A("s_cbranch_scc1 L_notag"); A("s_cmp_lg_u32 s2, 0"); A("s_cbranch_scc1 L_notag")
            C("workgroup 0, wave 5: this launch's tag differs from the one left in d_ws; announced in d_debug[0]")
            srd(92,24,25,"0x100000",256)
            A("s_memrealtime s[62:63]")
            A(f"buffer_load_dword v32, off, s[92:95], 0 {SC}"); A("s_waitcnt vmcnt(0) lgkmcnt(0)")
            A("s_and_b32 s62, s62, 0x7ff"); A("s_add_u32 s62, s62, 1")
            A("v_add_u32 v32, s62, v32"); A("v_and_b32 v32, 0xfff, v32"); A("v_or_b32 v33, 0x1000, v32")
            A("s_mov_b64 exec, 1")
            A(f"buffer_store_dword v33, off, s[56:59], 0 {SC}")
            A(f"buffer_store_dword v32, off, s[92:95], 0 {SC}")
            A("s_mov_b64 exec, -1")
            A("L_notag:")
        if i>=N0: A(f"s_waitcnt vmcnt({N0-1})")
        r=slot(i)
        A(f"buffer_load_dwordx4 v[{r}:{r+3}], v{vK}, s[84:87], s44 offen offset:{128*(i%4)} {SF}")
        if i%4==3: A(f"s_add_u32 s44, s44, {4096 if i%8==3 else 4096+NB*8192}")
    bar0(False)
    STAMP(1)
    A("s_barrier")
    STAMP(2)
    A("s_setprio 0")
    q_read()
    for c in range(R):
        A(f"s_waitcnt vmcnt({R-1-c})")
        pi=c//8
        k_consume(c, None if pi==0 else L_S+8*(NB+1)*(pi-1))
    k_flush(L_S+8*(NB+1)*(NP0-1))
    A("s_sub_u32 s47, s3, 4"); A("s_lshl_b32 s47, s47, 4")
    mx_publish("s47", vR)
    A("s_cmp_eq_u32 s3, 7"); A("s_cbranch_scc1 L_mon")
    A("L_wo:")
    wo_issue(NW)
    STAMP(3)
    A("s_barrier")
    A("s_cmp_eq_u32 s3, 5"); A("s_cbranch_scc1 L_w5")
    A("s_cmp_lg_u32 s3, 6"); A("s_cbranch_scc1 L_tail")
    C("wave 6: softmax denominator, exchange (m,l) with the other half, scale")
    A("v_mov_b32 v4, 0")
    for w in range(4): A(f"ds_read_b128 v[{64+4*w}:{64+4*w+3}], v4 offset:{L_MX+16*w}")
    A(f"v_mul_u32_u24 v5, {S_STR}, v2"); A("v_lshl_add_u32 v5, v3, 7, v5")
    for n in range(8): A(f"ds_read_b128 v[{32+4*n}:{32+4*n+3}], v5 offset:{L_S+16*n}")
    A("s_waitcnt lgkmcnt(8)")
    max16(6,64)
    A("v_mul_f32 v7, s34, v6"); A("v_sub_f32 v7, 0, v7")
    A("s_waitcnt lgkmcnt(0)")
    for k in range(32): A(f"v_fma_f32 v{32+k}, v{32+k}, s34, v7")
    for k in range(32): A(f"v_exp_f32 v{32+k}, v{32+k}")
    for st in (16,8,4,2,1):
        for k in range(st): A(f"v_add_f32 v{32+k}, v{32+k}, v{32+k+st}")
    wave_sum(32,33)
    tag_wait(16)
    C("v6=M v32=l ; four words: 16-bit halves of M and l, each with a 16-bit tag")
    A("v_or_b32 v16, 0xa000, v16"); A("s_mov_b32 s47, 0xffff0000")
    A("v_and_or_b32 v8, v6, s47, v16"); A("v_lshl_or_b32 v9, v6, 16, v16"); A("v_and_or_b32 v10, v32, s47, v16"); A("v_lshl_or_b32 v11, v32, 16, v16")
    A("s_mov_b64 exec, 1")
    A(f"buffer_store_dwordx4 v[8:11], off, s[36:39], 0 offset:3840 {SC}")
    A("s_mov_b64 exec, -1")
    A("s_xor_b32 s48, s32, 1"); A("s_lshl_b32 s48, s48, 12"); A("s_mov_b32 s49, 400000")
    A("L_mlp:")
    A(f"buffer_load_dwordx4 v[12:15], off, s[40:43], s48 offset:3840 {SC}"); A("s_waitcnt vmcnt(0)")
    A("v_xor_b32 v17, v12, v16")
    for r in (13,14,15): A(f"v_bitop3_b32 v17, v{r}, v16, v17 bitop3:0xbe")
    A("v_and_b32 v17, 0xffff, v17")
    A("v_cmp_ne_u32 vcc, 0, v17"); A("s_sub_u32 s49, s49, 1"); A("s_cbranch_scc1 L_mlx")
    A("s_cbranch_vccz L_mlx"); A("s_sleep 8"); A("s_branch L_mlp")
    A("L_mlx:")
    A("v_lshrrev_b32 v13, 16, v13"); A("v_lshrrev_b32 v15, 16, v15"); A("v_and_or_b32 v10, v12, s47, v13"); A("v_and_or_b32 v11, v14, s47, v15")
    A("v_max_f32 v12, v6, v10")
    A("v_sub_f32 v13, v6, v12"); A("v_sub_f32 v14, v10, v12")
    A("v_mul_f32 v13, s34, v13"); A("v_mul_f32 v14, s34, v14")
    A("v_exp_f32 v13, v13"); A("v_exp_f32 v14, v14"); A("s_nop 0")
    A("v_mul_f32 v15, v13, v32"); A("v_fma_f32 v15, v14, v11, v15")
    A("v_rcp_f32 v15, v15"); A("s_nop 0"); A("v_mul_f32 v15, v15, v13")
    A(f"ds_write_b32 v4, v15 offset:{L_SC}")
    A("s_branch L_tail")

    A("L_w5:")
    C("wave 5: tag for the other waves; x and the gathered FFN result for the final step")
    tag_wait(78)
    A("v_mov_b32 v4, 0"); A(f"ds_write_b32 v4, v78 offset:{L_TAG}")
    A("s_cmp_ge_u32 s32, 28"); A("s_cbranch_scc1 L_tail")
    A("s_mul_i32 s47, s30, 896"); srd(88,4,5,"s47",896)
    g_addr(64,65,4)
    A("buffer_load_ushort v66, v65, s[88:91], 0 offen")
    A("s_mov_b32 s49, 400000"); A("s_mov_b32 s47, 65536")
    for r in range(4): A(f"v_mov_b32 v{72+r}, v78")
    A("s_mov_b32 s62, -1"); A("s_mov_b32 s63, 0xffff")
    A("L_bp:")
    if not skipffn:
        g_issue(2048,68,64,40,True)
        g_check(68,76,78,0)
        A("s_sub_u32 s49, s49, 1"); A("s_cbranch_scc1 L_bx"); A("s_cbranch_vccz L_bx"); A("s_sleep 16"); A("s_branch L_bp")
    A("L_bx:")
    A("s_waitcnt vmcnt(0)")
    g_reduce(68,78)
    A("v_cvt_pk_bf16_f32 v67, 0, v68"); A("v_lshlrev_b32 v66, 16, v66")
    A("v_and_b32 v4, 15, v0"); A("v_lshlrev_b32 v4, 3, v4")
    A(f"ds_write_b64 v4, v[66:67] offset:{L_XB}")
    A("s_branch L_tail")

    REFS=[0,6,10,12]
    A("L_mon:")
    C("wave 7: compare this workgroup's progress with four reference workgroups and pick the streamer's depth")
    wo_issue(NW7)
    srd(40,24,25,None,1<<20)
    for k in range(4):
        A(f"s_add_u32 s47, s30, {(2*k+(k>>1))%8 if xb else 0}"); A("s_and_b32 s47, s47, 7"); A("s_lshl_b32 s47, s47, 17"); A(f"s_add_u32 s{12+k}, s47, {4096*REFS[k]+3968}")
    A(f"s_mov_b32 s51, {(~sum(1<<r for r in REFS))&0xffffffff:#x}"); A("s_lshr_b32 s51, s51, s32"); A("s_and_b32 s51, s51, 1")
    tag_wait(5)
    A("v_lshlrev_b32 v5, 16, v5"); A("s_lshl_b32 s96, s96, 16"); A("v_mov_b32 v4, 0"); A("s_mov_b32 s50, 0"); A("s_mov_b32 s100, 0")
    for ph,pend in (("k",PKEND),("v",PVEND)):
        A(f"L_mon{ph}:")
        A(f"ds_read_b32 v6, v4 offset:{L_PRG}"); A("s_waitcnt lgkmcnt(0)"); A("v_readfirstlane_b32 s47, v6")
        A(f"s_cmp_ge_u32 s47, {pend}"); A(f"s_cbranch_scc1 L_mon{ph}x")
        A("s_cmp_lg_u32 s47, s50"); A(f"s_cbranch_scc1 L_mon{ph}n")
        A(f"s_sleep {msleep}"); A(f"s_branch L_mon{ph}")
        A(f"L_mon{ph}n:")
        A("s_mov_b32 s50, s47")
        A(f"s_and_b32 s48, s47, {PD-1}"); A("s_or_b32 s48, s48, s51"); A(f"s_cbranch_scc1 L_mon{ph}p")
        A("v_or_b32 v6, v5, v6")
        A("s_mov_b64 exec, 1")
        A(f"buffer_store_dword v6, off, s[36:39], 0 offset:3968 {SC}")
        A("s_mov_b64 exec, -1")
        A(f"L_mon{ph}p:")
        if RD>1 and not pulse: A(f"s_and_b32 s48, s47, {RD-1}"); A(f"s_cbranch_scc1 L_mon{ph}")
        if RD>1 and pulse:
            A(f"s_and_b32 s48, s47, {RD-1}"); A(f"s_cbranch_scc0 L_mon{ph}r")
            A("s_abs_i32 s48, s100"); A(f"s_cmp_ge_i32 s48, {pulse}"); A(f"s_cbranch_scc1 L_mon{ph}")
            A("v_mov_b32 v7, 1"); A(f"ds_write_b32 v4, v7 offset:{L_CTL}"); A(f"s_branch L_mon{ph}")
            A(f"L_mon{ph}r:")
        for k in range(4): A(f"s_buffer_load_dword s{4+k}, s[40:43], s{12+k} glc")
        A("s_waitcnt lgkmcnt(0)")
        for k in range(4): A(f"s_sub_u32 s{4+k}, s{4+k}, s96")
        A("s_mov_b32 s48, s4"); A("s_mov_b32 s49, s4")
        for k in range(1,4): A(f"s_add_u32 s48, s48, s{4+k}"); A(f"s_max_u32 s49, s49, s{4+k}")
        A("s_cmp_gt_u32 s49, 63"); A(f"s_cbranch_scc1 L_mon{ph}")
        A("s_lshl_b32 s48, s48, 3")
        A("s_lshl_b32 s49, s47, 5"); A(f"s_add_i32 s49, s49, {BIAS-32}"); A("s_sub_i32 s49, s49, s48")
        if pulse: A("s_mov_b32 s100, s49")
        A(f"s_cmp_gt_i32 s49, {TH}"); A("s_cselect_b32 s48, 0, 1"); A(f"s_cmp_lt_i32 s49, {-TH}"); A("s_cselect_b32 s48, 2, s48")
        A("v_mov_b32 v7, s48"); A(f"ds_write_b32 v4, v7 offset:{L_CTL}")
        A(f"s_branch L_mon{ph}")
        A(f"L_mon{ph}x:")
        if ph=="k": A("s_waitcnt lgkmcnt(0)"); STAMP(3); A("s_barrier")

    A("L_tail:")
    A(f"v_lshrrev_b32 v{hLD}, 4, v0"); A(f"v_lshlrev_b32 v{hLD}, 4, v{hLD}"); A("v_mov_b32 v30, 0")
    A(f"v_lshlrev_b32 v{hAD}, 2, v0")
    A("s_sub_u32 s48, s3, 1"); A("s_lshl_b32 s48, s48, 8")
    A("s_waitcnt vmcnt(0) lgkmcnt(0)")
    STAMP(4)
    A("s_barrier")
    STAMP(5)
    for n in range(8): A(f"ds_read_b128 v[{32+4*n}:{32+4*n+3}], v{hLD} offset:{L_O+64*n}")
    A(f"ds_read_b64 v[10:11], v30 offset:{L_SC}")
    for ka in range(8):
        A(f"s_waitcnt lgkmcnt({8-ka})")
        for nu in range(4):
            a=12+4*nu; w=WO+16*ka+4*nu
            A(f"v_mfma_f32_16x16x32_bf16 v[{a}:{a+3}], v[{32+4*ka}:{32+4*ka+3}], v[{w}:{w+3}], {'0' if ka==0 else f'v[{a}:{a+3}]'}")
    A("s_waitcnt lgkmcnt(0)"); A("s_nop 4")
    rowsel(12,[12,16,20,24])
    A("v_mul_f32 v12, v10, v12"); A("v_add_u32 v12, 0x800, v12"); A("v_and_or_b32 v12, v12, s97, v11")
    A(f"buffer_store_dword v12, v{hAD}, s[36:39], s48 offen {SC}")
    STAMP(6)
    stamp_out()
    A("s_endpgm")

    A("L_help:")
    D0=32
    def layernorm(xr, dup):
        for k in range(4):
            A(f"v_lshlrev_b32 v{8+2*k}, 16, v{xr+k}"); A(f"v_and_b32 v{9+2*k}, 0xffff0000, v{xr+k}")
        A("v_add_f32 v16, v8, v9"); A("v_add_f32 v17, v10, v11"); A("v_add_f32 v18, v12, v13"); A("v_add_f32 v19, v14, v15")
        A("v_add_f32 v16, v16, v17"); A("v_add_f32 v18, v18, v19"); A("v_add_f32 v16, v16, v18")
        wave_sum(16,17)
        A(f"v_mul_f32 v16, {f2u(1.0/448):#x}, v16")
        A("v_cmp_gt_u32 vcc, 56, v0"); A("v_cvt_pk_bf16_f32 v17, 0, v16"); A("s_nop 0")
        A("v_cndmask_b32 v16, 0, v16, vcc")
        A("v_sub_f32 v4, v8, v16"); A("v_mul_f32 v18, v4, v4")
        for k in range(1,8): A(f"v_sub_f32 v4, v{8+k}, v16"); A("v_fmac_f32 v18, v4, v4")
        wave_sum(18,19)
        A(f"v_mul_f32 v18, {f2u(1.0/448):#x}, v18")
        A("v_cvt_pk_bf16_f32 v18, 0, v18")
        A(f"v_add_f32 v18, {f2u(1e-5):#x}, v18")
        A("v_cvt_pk_bf16_f32 v18, 0, v18")
        A("v_sqrt_f32 v18, v18"); A("s_nop 0")
        A("v_cvt_pk_bf16_f32 v18, 0, v18")
        A("v_rcp_f32 v19, v18")
        for k in range(8):
            A(f"v_sub_f32 v{8+k}, v{8+k}, v17"); A(f"v_cvt_pk_bf16_f32 v{8+k}, 0, v{8+k}")
            A(f"v_mul_f32 v4, v{8+k}, v19"); A(f"v_fma_f32 v6, -v4, v18, v{8+k}")
            if dup: A("v_fma_f32 v4, v6, v19, v4"); A(f"v_cvt_pk_bf16_f32 v{8+k}, v4, v4")
            else: A(f"v_fma_f32 v{8+k}, v6, v19, v4")
        if not dup:
            for k in range(4): A(f"v_cvt_pk_bf16_f32 v{8+k}, v{8+2*k}, v{9+2*k}")
    def wq_load(t):
        A(f"buffer_load_dwordx4 v[{D0+4*t}:{D0+4*t+3}], v{hAD}, s[52:55], s48 offen {QF}")
        A("s_add_u32 s48, s48, 65536")
        if rot and t%4==3 and t<55: A(f"s_cmp_ge_u32 s48, {56*65536}"); A("s_cselect_b32 s48, 0, s48")
    def gemv56(bar_at):
        XX=[4,8]; BB=[12,16]
        A("s_waitcnt lgkmcnt(0)")
        A(f"ds_read_b128 v[4:7], v{hLD}"); A(f"ds_read_b128 v[8:11], v{hLD} offset:16")
        def bp(t):
            if t%4==0: A(f"s_waitcnt lgkmcnt({1 if t//4+1<14 else 0})")
            for r in range(4): A(f"v_and_b32 v{BB[t%2]+r}, v{XX[(t//4)%2]+t%4}, v{hM+r}")
            if t%4==3 and t//4+2<14:
                x=XX[(t//4)%2]; A(f"ds_read_b128 v[{x}:{x+3}], v{hLD} offset:{16*(t//4+2)}")
        bp(0)
        for t in range(56):
            if t+1<56: bp(t+1)
            else: A("s_nop 0")
            if t+QD<56: wq_load(t+QD)
            if t+QD==bar_at: A("s_barrier")
            A(f"s_waitcnt vmcnt({min(QD,55-t)})")
            A(f"v_mfma_f32_16x16x32_bf16 v[{hACC}:{hACC+3}], v[{D0+4*t}:{D0+4*t+3}], v[{BB[t%2]}:{BB[t%2]+3}], {'0' if t==0 else f'v[{hACC}:{hACC+3}]'}")
        A("s_nop 7")
        combine(hACC,12)
    def ln_part(wait):
        masks(hM,12,13)
        A(f"s_waitcnt vmcnt({wait})")
        layernorm(4,True)
        C("X'[e][(t - 4*rot) mod 56]")
        A("s_sub_u32 s47, s3, 1"); A(f"s_mul_i32 s47, s47, {X_SZ}"); A(f"s_add_u32 s47, s47, {L_X}")
        A("s_lshl_b32 s50, s51, 2"); A("v_subrev_u32 v5, s50, v0"); A("v_add_u32 v6, 56, v5"); A("v_min_u32 v5, v5, v6")
        A("v_cmp_lt_u32 vcc, 55, v0"); A("s_nop 1"); A("v_cndmask_b32 v5, v5, v0, vcc")
        A("v_lshl_add_u32 v5, v5, 2, s47")
        for k in range(8): A(f"ds_write_b32 v5, v{8+k} offset:{k*X_STR}")
        A(f"v_mul_u32_u24 v{hLD}, {X_STR}, v2"); A(f"v_add_u32 v{hLD}, s47, v{hLD}")
    C("q column block w-1 over all 448 rows of wq, tile order rotated by 4*s51 tiles")
    A("v_lshlrev_b32 v1, 4, v0")
    A(f"v_lshlrev_b32 v{hAD}, 13, v2"); A(f"v_lshl_add_u32 v{hAD}, v3, 4, v{hAD}")
    A("s_mul_i32 s47, s30, 896")
    A("s_lshl_b32 s48, s31, 9"); A("s_sub_u32 s49, s3, 1"); A("s_lshl_b32 s49, s49, 7"); A("s_add_u32 s48, s48, s49"); A(f"s_sub_u32 s49, {448*8192}, s48")
    if rot: A("s_mul_i32 s51, s30, 7"); A("s_lshr_b32 s51, s51, 2")
    else: A("s_mov_b32 s51, 0")
    A("s_waitcnt lgkmcnt(0)")
    srd(88,4,5,"s47",896)
    srd(52,10,11,"s48","s49")
    A("buffer_load_dwordx4 v[4:7], v1, s[88:91], 0 offen")
    A("s_lshl_b32 s48, s51, 18")
    A("s_cmp_eq_u32 s28, 1"); A("s_cbranch_scc1 L_q1")
    for t in range(QD): wq_load(t)
    ln_part(QD); gemv56(55); A("s_branch L_q2")
    A("L_q1:")
    ln_part(0); A("s_barrier")
    for t in range(QD): wq_load(t)
    gemv56(None)
    A("L_q2:")
    C("q -> bf16 -> LDS: addr = m*128 + (4*rowq+hi)*16 + j*2 (+32 for the second register)")
    A("v_cvt_pk_bf16_f32 v12, v12, v13")
    A("v_bfe_u32 v4, v0, 4, 1"); A("v_lshrrev_b32 v5, 5, v0"); A("v_lshl_add_u32 v4, v4, 2, v5"); A("v_lshlrev_b32 v4, 4, v4"); A("v_lshl_add_u32 v4, v3, 1, v4")
    A("s_sub_u32 s47, s3, 1"); A("s_lshl_b32 s47, s47, 7"); A("v_add_u32 v4, s47, v4")
    A("s_mov_b64 exec, s[60:61]")
    A(f"ds_write_b16 v4, v12 offset:{L_Q}"); A(f"ds_write_b16_d16_hi v4, v12 offset:{L_Q+32}")
    A("s_mov_b64 exec, -1")
    A("s_waitcnt lgkmcnt(0)")
    STAMP(1)
    A("s_barrier")
    STAMP(2)
    srd_slots()
    C("FFN: wave 1 of 28 workgroups, slice f of 64 hidden units for all 8 batches")
    A("s_cmp_lg_u32 s3, 1"); A("s_cbranch_scc1 L_wo")
    if skipffn: A("s_branch L_wo")
    A("s_cmp_lg_u32 s28, 1"); A("s_cbranch_scc1 L_wo")
    A("s_mov_b32 s51, s31"); A("s_cmp_eq_u32 s30, s26"); A("s_cbranch_scc1 L_ffn")
    A("s_add_u32 s51, s31, 16"); A("s_xor_b32 s47, s26, 4"); A("s_cmp_lg_u32 s30, s47"); A("s_cbranch_scc1 L_wo")
    A("s_cmp_ge_u32 s51, 28"); A("s_cbranch_scc1 L_wo")
    A("L_ffn:")
    A("s_mov_b32 s50, 3584")
    A("s_lshl_b32 s48, s51, 7"); A(f"s_sub_u32 s49, {448*3584}, s48"); srd(52,16,17,"s48","s49")
    A(f"v_mul_u32_u24 v{hAD}, 3584, v2"); A(f"v_lshl_add_u32 v{hAD}, v3, 4, v{hAD}")
    C("raw x of the 8 batches -> XN, then layernorm in place while the first w1 tiles are in flight")
    srd(88,4,5,None,8*896)
    A(f"v_add_u32 v5, {L_XN}, v1"); A("v_cmp_gt_u32 vcc, 56, v0"); A("v_mov_b32 v6, 0x10000"); A("s_nop 0"); A("v_cndmask_b32 v6, v6, v1, vcc")
    for b in range(8): A(f"buffer_load_dwordx4 v[{224+4*b}:{227+4*b}], v6, s[88:91], 0 offen offset:{896*b}" if 896*b<4096 else f"buffer_load_dwordx4 v[{224+4*b}:{227+4*b}], v6, s[88:91], s50 offen offset:{896*b-3584}")
    A("s_mov_b32 s48, 0")
    def w1_load(t):
        A(f"buffer_load_dwordx4 v[{D0+4*t}:{D0+4*t+3}], v{hAD}, s[52:55], s48 offen {SF}")
        A(f"s_add_u32 s48, s48, {8*3584}")
    for t in range(NF): w1_load(t)
    A(f"s_waitcnt vmcnt({NF})")
    for b in range(8): A(f"ds_write_b128 v5, v[{224+4*b}:{227+4*b}] offset:{XN_STR*b}")
    A("s_mov_b32 s49, 8")
    A("L_ln8:")
    A("s_waitcnt lgkmcnt(0)")
    A("ds_read_b128 v[20:23], v5"); A("s_waitcnt lgkmcnt(0)")
    layernorm(20,False)
    A("ds_write_b128 v5, v[8:11]")
    A(f"v_add_u32 v5, {XN_STR}, v5"); A("s_sub_u32 s49, s49, 1"); A("s_cmp_lg_u32 s49, 0"); A("s_cbranch_scc1 L_ln8")
    for t in range(NF,56):
        A(f"s_waitcnt vmcnt({NF-1})"); w1_load(t)
    A("s_waitcnt vmcnt(0)")
    def transpose4(regs):
        for k in range(4): A(f"ds_write_b128 v{hAD}, v[{regs[k]}:{regs[k]+3}] offset:{T_STR*k}")
        A("s_waitcnt lgkmcnt(0)")
        for nu in range(4):
            for hf in range(2): A(f"ds_read_b64_tr_b16 v[{regs[nu]+2*hf}:{regs[nu]+2*hf+1}], v{hLD} offset:{512*hf+32*nu}")
        A("s_waitcnt lgkmcnt(0)")
    t_addr(hAD,hLD,True)
    for ka in range(14): transpose4([D0+16*ka+4*k for k in range(4)])
    C("A fragments: row i of the MFMA is batch (i&3) (+4 in the second pass)")
    A("v_and_b32 v30, 3, v0"); A(f"v_mul_u32_u24 v30, {XN_STR}, v30"); A("v_lshrrev_b32 v31, 4, v0"); A("v_lshl_add_u32 v30, v31, 4, v30")
    A("v_lshlrev_b32 v1, 1, v0")
    for ps in range(2):
        for ka in range(14):
            A(f"ds_read_b128 v[{20+4*(ka%2)}:{23+4*(ka%2)}], v30 offset:{L_XN+4*XN_STR*ps+64*ka}"); A("s_waitcnt lgkmcnt(0)")
            for nu in range(4):
                a=4+4*nu; w=D0+16*ka+4*nu
                A(f"v_mfma_f32_16x16x32_bf16 v[{a}:{a+3}], v[{20+4*(ka%2)}:{23+4*(ka%2)}], v[{w}:{w+3}], {'0' if ka==0 else f'v[{a}:{a+3}]'}")
        A("s_nop 7")
        for r in range(4):
            rowsel(4+r,[4+r,8+r,12+r,16+r])
        for r in range(4):
            k=4+r
            A(f"v_cvt_pk_bf16_f32 v{k}, 0, v{k}")
            A(f"v_mul_f32 v20, {f2u(-math.log2(math.e)):#x}, v{k}"); A("v_exp_f32 v20, v20"); A("s_nop 0")
            A("v_add_f32 v20, 1.0, v20"); A("v_rcp_f32 v20, v20"); A("s_nop 0")
            A(f"v_mul_f32 v{k}, v{k}, v20"); A(f"v_cvt_pk_bf16_f32 v{k}, v{k}, v{k}")
            A(f"ds_write_b16 v1, v{k} offset:{L_HP+HP_STR*(4*ps+r)}")
    C("w2 rows 64f..64f+63: (block beta, tile t) -> D0 + 32*beta + 4*t")
    A(f"s_mul_i32 s48, s51, {64*896}"); A(f"s_sub_u32 s49, {1792*896}, s48"); srd(52,18,19,"s48","s49")
    A("v_mul_u32_u24 v4, 896, v2"); A("v_lshl_add_u32 v4, v3, 4, v4")
    A("s_mov_b32 s48, 0")
    for t in range(8):
        for be in range(7):
            if 7*t+be>=NF: A(f"s_waitcnt vmcnt({NF-1})")
            rr=D0+32*be+4*t
            A(f"buffer_load_dwordx4 v[{rr}:{rr+3}], v4, s[52:55], s48 offen offset:{128*be} {SF}")
        A("s_add_u32 s48, s48, 7168")
    tag_wait(1)
    for g in range(14): transpose4([D0+16*g+4*k for k in range(4)])
    A("v_and_b32 v30, 3, v0"); A(f"v_mul_u32_u24 v30, {HP_STR}, v30"); A("v_lshrrev_b32 v31, 4, v0"); A("v_lshl_add_u32 v30, v31, 4, v30")
    A("v_lshlrev_b32 v31, 2, v0")
    A("s_lshl_b32 s47, s51, 12"); srd(52,24,25,"s47",1<<20)
    for ps in range(2):
        A(f"ds_read_b128 v[20:23], v30 offset:{L_HP+4*HP_STR*ps}"); A(f"ds_read_b128 v[24:27], v30 offset:{L_HP+4*HP_STR*ps+64}")
        for r in range(4): A(f"s_mov_b32 s{44+r}, {(4*ps+r)<<17}")
        A("s_waitcnt lgkmcnt(0)")
        for be in range(7):
            for ka in range(2):
                for nu in range(4):
                    a=4+4*nu; w=D0+32*be+16*ka+4*nu
                    A(f"v_mfma_f32_16x16x32_bf16 v[{a}:{a+3}], v[{20+4*ka}:{23+4*ka}], v[{w}:{w+3}], {'0' if ka==0 else f'v[{a}:{a+3}]'}")
            A("s_nop 7")
            for r in range(4):
                rowsel(4+r,[4+r,8+r,12+r,16+r])
            for r in range(4):
                A(f"v_add_u32 v{4+r}, 0x800, v{4+r}"); A(f"v_and_or_b32 v{4+r}, v{4+r}, s97, v1")
                A(f"buffer_store_dword v{4+r}, v31, s[52:55], s{44+r} offen offset:{2048+256*be} {SC}")
            A("s_nop 1")
    STAMP(3)
    A("s_barrier")
    wo_issue(NW7)
    A("s_branch L_tail")
    A("L_end:")
    A("s_endpgm")
    body="\n".join(("" if (l.endswith(":") or l.startswith(".")) else "    ")+l for l in L)+"\n"
    head=HEADER+f"; @launch grid=(256,1,1) block=(512,1,1) lds={L_END}\n"
    return head+body+kd(NAME,256,102,256), L_END

if __name__=="__main__":
    kw=eval("dict(%s)"%(sys.argv[2] if len(sys.argv)>2 else ""))
    t,ldsz=gen(**kw)
    out=sys.argv[1]
    if out.endswith(".s"): open(out,"w").write(t)
    else:
        assemble(t+meta([(NAME,256,102,512)]), out); print(f"work/{out}:{NAME},256,512,{ldsz}")
```

```python
import sys, math, struct
from common import *

NAME="parallel_sum__mha_block_cached__dense_activation_silu__decode_kernel"
HEADER=open("parallel_sum__mha_block_cached__dense_activation_silu__decode.s.ref").read().split("; Override launch")[0]

L_Q=0; L_MX=512; L_SC=576; L_TAG=580; L_PRG=584; L_CTL=588; L_XB=640
L_O=768
L_S=1280; S_STR=1040
L_X=L_S+8*S_STR; X_STR=272; X_SZ=8*X_STR
L_XN=L_X+4*X_SZ; XN_STR=1040
L_HP=L_XN+8*XN_STR; HP_STR=144
L_T=L_HP+8*HP_STR; T_STR=1056; T_SZ=8*T_STR
L_END=L_T+7*T_SZ
CEXP=math.log2(math.e)/16.0
def f2u(f): return struct.unpack("<I",struct.pack("<f",f))[0]

def gen(N=24, N0=10, R=48, NF=8, NW=2, NW7=4, QD=12, stamp=False, SC="sc1", HF="", QF="", SF="nt",
        rot=1, ctl=(18,24,32), ctlK=None, TH=6, BIAS=0, PD=2, RD=2, msleep=4, xb=1, dpoll=1, skipwo=0, skipffn=0, NT=None, late=1, pulse=0, st0=0, OF='', dual=0, dry=0, TS=8, SD=3):
    L=[]; A=L.append
    def C(s): A("    ; "+s)
    lbl=[0]
    def newl(): lbl[0]+=1; return lbl[0]
    def STAMP(i):
        if stamp: A(f"s_memrealtime s[{70+2*i}:{71+2*i}]")
    def srd(d, lo, hi, off, size):
        if off is None: A(f"s_mov_b32 s{d}, s{lo}"); A(f"s_mov_b32 s{d+1}, s{hi}")
        else: A(f"s_add_u32 s{d}, s{lo}, {off}"); A(f"s_addc_u32 s{d+1}, s{hi}, 0")
        A(f"s_mov_b32 s{d+2}, {size}"); A(f"s_mov_b32 s{d+3}, 0x20000")
    def masks(base,t0,t1):
        A(f"v_and_b32 v{t0}, 1, v3"); A(f"v_lshlrev_b32 v{t0}, 4, v{t0}"); A(f"v_mov_b32 v{t1}, 0xffff"); A(f"v_lshlrev_b32 v{t0}, v{t0}, v{t1}")
        A(f"v_lshrrev_b32 v{t1}, 1, v3")
        for r in range(4):
            A(f"v_cmp_eq_u32 vcc, {r}, v{t1}"); A("s_nop 1"); A(f"v_cndmask_b32 v{base+r}, 0, v{t0}, vcc")
    def stamp_out(tmp=4):
        if not stamp: return
        A("s_waitcnt lgkmcnt(0)")
        A("s_mov_b64 exec, 1")
        srd(64,24,25,None,0x40000000)
        A("s_lshl_b32 s68, s2, 3"); A("s_add_u32 s68, s68, s3"); A("s_lshl_b32 s68, s68, 5"); A("s_add_u32 s68, s68, 0x20000000")
        A("s_getreg_b32 s69, hwreg(HW_REG_XCC_ID)")
        for i in range(7): A(f"v_mov_b32 v{tmp+i}, s{70+2*i}")
        A(f"v_mov_b32 v{tmp+7}, s69")
        A(f"buffer_store_dwordx4 v[{tmp}:{tmp+3}], off, s[64:67], s68")
        A(f"buffer_store_dwordx4 v[{tmp+4}:{tmp+7}], off, s[64:67], s68 offset:16")
        A("s_waitcnt vmcnt(0)")
    def srd_slots():
        A("s_lshl_b32 s47, s33, 12"); srd(36,24,25,"s47",4096)
        A("s_lshl_b32 s47, s30, 17"); srd(40,24,25,"s47",131072)
        srd(56,22,23,None,256)
    def tag_wait(t):
        n=newl()
        A("s_mov_b32 s49, 400000")
        A(f"L_cw{n}:")
        A(f"buffer_load_dword v{t}, off, s[56:59], 0 {SC}"); A("s_waitcnt vmcnt(0)")
        A(f"v_cmp_eq_u32 vcc, 0, v{t}"); A("s_sub_u32 s49, s49, 1"); A(f"s_cbranch_scc1 L_cwx{n}")
        A(f"s_cbranch_vccz L_cwx{n}"); A("s_sleep 8"); A(f"s_branch L_cw{n}")
        A(f"L_cwx{n}:")
        A(f"v_and_b32 v{t}, 0xfff, v{t}"); A("s_nop 0"); A(f"v_readfirstlane_b32 s96, v{t}")
    def g_issue(off,b,vad,srdn,only28=False):
        A(f"buffer_load_dwordx4 v[{b}:{b+3}], v{vad}, s[{srdn}:{srdn+3}], 0 offen offset:{off} {SC}")
        if only28: A("s_mov_b64 exec, s[62:63]")
        A(f"buffer_load_dwordx4 v[{b+4}:{b+7}], v{vad}, s[{srdn}:{srdn+3}], s47 offen offset:{off} {SC}")
        if only28: A("s_mov_b64 exec, -1")
    def g_check(b,t,vtag,younger):
        A(f"s_waitcnt vmcnt({younger+1})")
        A(f"v_xor_b32 v{t}, v{b}, v{vtag}")
        for r in range(1,4): A(f"v_bitop3_b32 v{t}, v{b+r}, v{vtag}, v{t} bitop3:0xbe")
        A(f"s_waitcnt vmcnt({younger})")
        for r in range(4,8): A(f"v_bitop3_b32 v{t}, v{b+r}, v{vtag}, v{t} bitop3:0xbe")
        A(f"v_and_b32 v{t}, 0xfff, v{t}")
        A(f"v_cmp_ne_u32 vcc, 0, v{t}")
    def g_reduce(b,vtag):
        for r in range(8): A(f"v_xor_b32 v{b+r}, v{b+r}, v{vtag}")
        for r in range(4): A(f"v_add_f32 v{b+r}, v{b+r}, v{b+4+r}")
        for pat in ["row_ror:4","row_ror:8"]:
            for r in range(4): A(f"v_add_f32_dpp v{b+r}, v{b+r}, v{b+r} {pat} row_mask:0xf bank_mask:0xf")
        for r in range(1,4): A(f"v_mov_b32_dpp v{b}, v{b+r} quad_perm:[0,1,2,3] row_mask:0xf bank_mask:{1<<r:#x}")
        for sw in ["16","32"]:
            A(f"v_mov_b32 v{b+1}, v{b}"); A("s_nop 1"); A(f"v_permlane{sw}_swap_b32 v{b}, v{b+1}"); A(f"v_add_f32 v{b}, v{b}, v{b+1}")
    def g_addr(vad,vcol,t):
        A(f"v_lshrrev_b32 v{vad}, 2, v0"); A(f"v_and_b32 v{t}, 3, v0"); A(f"v_and_b32 v{vcol}, 3, v{vad}")
        A(f"v_lshlrev_b32 v{vad}, 12, v{vad}"); A(f"v_lshl_add_u32 v{vad}, v{t}, 4, v{vad}")
        A("s_lshl_b32 s47, s32, 6"); A(f"v_add_u32 v{vad}, s47, v{vad}")
        A(f"v_lshl_add_u32 v{vcol}, v{t}, 2, v{vcol}"); A("s_lshl_b32 s47, s32, 5"); A(f"v_lshl_add_u32 v{vcol}, v{vcol}, 1, s47")
    def wave_sum(v,t):
        for pat in ["quad_perm:[1,0,3,2]","quad_perm:[2,3,0,1]","row_half_mirror","row_mirror"]:
            A("s_nop 1"); A(f"v_add_f32_dpp v{v}, v{v}, v{v} {pat} row_mask:0xf bank_mask:0xf")
        for sw in ["16","32"]:
            A(f"v_mov_b32 v{t}, v{v}"); A("s_nop 1"); A(f"v_permlane{sw}_swap_b32 v{v}, v{t}"); A(f"v_add_f32 v{v}, v{v}, v{t}")
    def max16(dst,b):
        A(f"v_max3_f32 v{dst}, v{b}, v{b+1}, v{b+2}")
        for k in range(3,15,2): A(f"v_max3_f32 v{dst}, v{dst}, v{b+k}, v{b+k+1}")
        A(f"v_max_f32 v{dst}, v{dst}, v{b+15}")

    A('.amdgcn_target "amdgcn-amd-amdhsa--gfx950"'); A(".text"); A(f".globl {NAME}"); A(".p2align 8"); A(f".type {NAME},@function"); A(f"{NAME}:")
    A("s_cmp_ge_u32 s2, 256"); A("s_cbranch_scc1 L_end")
    STAMP(0)
    A("s_load_dwordx16 s[4:19], s[0:1], 0")
    A("s_load_dwordx4 s[20:23], s[0:1], 64")
    A("s_load_dwordx2 s[24:25], s[0:1], 80")
    A("v_lshrrev_b32 v1, 6, v0"); A("v_and_b32 v0, 63, v0"); A("v_readfirstlane_b32 s3, v1")
    A("s_and_b32 s26, s2, 7"); A("s_lshr_b32 s27, s2, 3"); A("s_and_b32 s28, s27, 1")
    A("s_bfe_u32 s29, s27, 0x10001"); A("s_lshr_b32 s30, s27, 2")
    A("s_lshl_b32 s29, s29, 3"); A("s_add_u32 s31, s26, s29")
    A("s_lshl_b32 s32, s31, 1"); A("s_add_u32 s32, s32, s28")
    A("s_lshl_b32 s33, s30, 5"); A("s_add_u32 s33, s33, s32")
    C("s28=half s30=batch s31=head s32=2*head+half s33=32*batch+s32 ; v2=lane>>3 v3=lane&7")
    A("v_lshrrev_b32 v2, 3, v0"); A("v_and_b32 v3, 7, v0")
    A(f"s_mov_b32 s34, {f2u(CEXP):#x}")
    A("s_mov_b32 s60, 0x00ff00ff"); A("s_mov_b32 s61, 0x00ff00ff"); A("s_mov_b32 s97, 0xfffff000")
    A("s_cmp_eq_u32 s3, 0"); A("s_cbranch_scc1 L_stream")
    A("s_cmp_ge_u32 s3, 5"); A("s_cbranch_scc1 L_buf")
    A("s_branch L_help")

    RING=256-4*R
    vK=4; vV=5; vSW=6; vSR=7; vMX=8; vR=9; vR2=10; vA=[11,12]; vB=[13,14]; vQ=16
    def slot(i): return RING+4*(i%R)
    def k_consume(c, dsoff):
        p=c%8; m=p%4; acc=vA if p<4 else vB; r=slot(c)
        for k in range(4):
            src2 = "0" if (m==0 and k<2) else f"v{acc[k%2]}"
            A(f"v_dot2_f32_bf16 v{acc[k%2]}, v{r+k}, v{vQ+4*m+k}, {src2}")
        prev = dsoff is not None
        if p==0 and prev: A(f"v_add_f32 v{vB[0]}, v{vB[0]}, v{vB[1]}")
        if p==1 and prev: A(f"v_add_f32_dpp v{vR}, v{vB[0]}, v{vB[0]} row_half_mirror row_mask:0xf bank_mask:0xa")
        if p==2 and prev: A(f"v_add_f32_dpp v{vR}, v{vR}, v{vR} quad_perm:[1,0,3,2] row_mask:0xf bank_mask:0xf")
        if p==3 and prev: A(f"v_add_f32_dpp v{vR}, v{vR}, v{vR} quad_perm:[2,3,0,1] row_mask:0xf bank_mask:0xf")
        if p==4:
            if prev: A(f"v_cvt_pk_bf16_f32 v{vR2}, 0, v{vR}")
            A(f"v_add_f32 v{vA[0]}, v{vA[0]}, v{vA[1]}")
        if p==5:
            if prev: A(f"v_max_f32 v{vMX}, v{vMX}, v{vR2}"); A(f"ds_write_b32 v{vSW}, v{vR2} offset:{dsoff}")
            A(f"v_add_f32_dpp v{vR}, v{vA[0]}, v{vA[0]} row_half_mirror row_mask:0xf bank_mask:0x5")
    def k_flush(dsoff):
        A("s_nop 2"); A(f"v_add_f32 v{vB[0]}, v{vB[0]}, v{vB[1]}"); A("s_nop 1")
        A(f"v_add_f32_dpp v{vR}, v{vB[0]}, v{vB[0]} row_half_mirror row_mask:0xf bank_mask:0xa"); A("s_nop 1")
        A(f"v_add_f32_dpp v{vR}, v{vR}, v{vR} quad_perm:[1,0,3,2] row_mask:0xf bank_mask:0xf"); A("s_nop 1")
        A(f"v_add_f32_dpp v{vR}, v{vR}, v{vR} quad_perm:[2,3,0,1] row_mask:0xf bank_mask:0xf")
        A(f"v_cvt_pk_bf16_f32 v{vR2}, 0, v{vR}")
        A(f"v_max_f32 v{vMX}, v{vMX}, v{vR2}"); A(f"ds_write_b32 v{vSW}, v{vR2} offset:{dsoff}")
    def mx_publish(w, tmp):
        A("s_nop 1")
        A(f"v_max_f32_dpp v{vMX}, v{vMX}, v{vMX} row_ror:4 row_mask:0xf bank_mask:0xf"); A("s_nop 1")
        A(f"v_max_f32_dpp v{vMX}, v{vMX}, v{vMX} row_ror:8 row_mask:0xf bank_mask:0xf")
        A(f"v_lshrrev_b32 v{tmp}, 4, v0"); A(f"v_lshlrev_b32 v{tmp}, 2, v{tmp}")
        if isinstance(w,int): A(f"ds_write_b32 v{tmp}, v{vMX} offset:{L_MX+16*w}")
        else: A(f"v_add_u32 v{tmp}, {w}, v{tmp}"); A(f"ds_write_b32 v{tmp}, v{vMX} offset:{L_MX}")
    def k_setup():
        A(f"v_lshlrev_b32 v{vK}, 9, v2"); A(f"v_lshl_add_u32 v{vK}, v3, 4, v{vK}")
        A(f"v_mul_u32_u24 v{vSW}, {S_STR}, v2"); A(f"v_lshrrev_b32 v{vSR}, 2, v3"); A(f"v_lshl_add_u32 v{vSW}, v{vSR}, 2, v{vSW}")
        A(f"v_mov_b32 v{vMX}, 0xff800000")
        A("s_lshl_b32 s35, s33, 20")
    def q_read():
        A(f"v_lshlrev_b32 v{vR}, 4, v3")
        for m in range(4): A(f"ds_read_b128 v[{vQ+4*m}:{vQ+4*m+3}], v{vR} offset:{L_Q+128*m}")
        A("s_waitcnt lgkmcnt(0)")
    def bar0(first):
        n=newl()
        A(f"s_cmp_eq_u32 s28, {1 if first else 0}"); A(f"s_cbranch_scc1 L_b0_{n}"); A("s_barrier"); A(f"L_b0_{n}:")
    NP0=R//8; NB=3
    NKS=1024-NB*R
    NTOT=NKS+1024
    NT=NT or N

    A("L_stream:")
    A("s_setprio 3")
    k_setup()
    A(f"v_lshrrev_b32 v{vV}, 4, v0"); A(f"v_lshlrev_b32 v{vV}, 10, v{vV}"); A(f"v_and_b32 v{vSR}, 15, v0"); A(f"v_lshl_add_u32 v{vV}, v{vSR}, 4, v{vV}")
    vZ=36; vPC=37; vPP=38
    A(f"v_mov_b32 v{vZ}, 0"); A(f"ds_write_b32 v{vZ}, v{vZ} offset:{L_PRG}")
    A("s_waitcnt lgkmcnt(0)")
    srd(36,6,7,"s35",1<<20); srd(40,8,9,"s35",1<<20)
    A("s_mov_b32 s44, 0"); A("s_mov_b32 s45, 0"); A("s_mov_b32 s50, 2")
    U1=1024-4*TS
    def vmap(u):
        if u<U1: return u//4, u%4
        v=u-U1
        return (256-TS+v//2, 2*(v%2)) if v<2*TS else (256-TS+(v-2*TS)//2, 1+2*(v%2))
    def vgrp(u): return (u//4, u%4, 4) if u<U1 else (U1//4+(u-U1)//2, (u-U1)%2, 2)
    def issue(i):
        r=slot(i)
        if i<NKS:
            A(f"buffer_load_dwordx4 v[{r}:{r+3}], v{vK}, s[36:39], s44 offen offset:{128*(i%4)} {SF}")
            if i%4==3: A(f"s_add_u32 s44, s44, {4096+NB*8192 if (i<R and i%8==7) else 4096}")
        elif i<NTOT:
            u=i-NKS; tile,q=vmap(u)
            A(f"buffer_load_dwordx4 v[{r}:{r+3}], v{vV}, s[40:43], s45 offen offset:{256*q} {SF}")
            if u+1<1024:
                d=vmap(u+1)[0]-tile
                if d>0: A(f"s_add_u32 s45, s45, {4096*d}")
                if d<0: A(f"s_sub_u32 s45, s45, {-4096*d}")
    DK=R-1
    bar0(True)
    for i in range(DK):
        if i>=N0: A(f"s_waitcnt vmcnt({N0-1})")
        issue(i)
        if st0 and i==0: STAMP(1)
        if i==N0-1:
            A("s_lshl_b32 s47, s30, 17"); srd(52,24,25,"s47",131072)
            A("s_mul_i32 s47, s30, 896"); srd(92,20,21,"s47",896)
    bar0(False)
    if not st0: STAMP(1)
    A("s_barrier")
    STAMP(2)
    q_read()
    cur=[None]
    def pair_T(pi): return 2*((NB+1)*pi) if pi<NP0 else 2*((NB+1)*NP0+(pi-NP0))
    def kstep(c, dsbase):
        I=c+DK
        A(f"s_waitcnt vmcnt({min((cur[0] or N)-1,I-c-1)})")
        issue(I)
        pi=c//8
        k_consume(c, None if pi==0 else L_S+4*pair_T(pi-1)-dsbase)
    for c in range(0,2*R): kstep(c,0)
    nK=(NKS-DK-2*R)//R
    A(f"s_mov_b32 s46, {nK}")
    def loop_variants(tag, body, post, zr, cr, pr, lv):
        for v in (1,0,2):
            A(f"L_{tag}{v}:")
            rd=f"ds_read_b32 v{cr}, v{zr} offset:{L_CTL}"
            if not late: A(rd)
            m0=len(L)
            cur[0]=lv[v]; body(); cur[0]=None
            if late:
                w=[i for i in range(m0,len(L)) if L[i].startswith("s_waitcnt vmcnt")]
                assert len(w)==R
                L.insert(w[R-3],rd)
            post()
            A("s_add_u32 s50, s50, 1"); A(f"v_mov_b32 v{pr}, s50")
            A("s_waitcnt lgkmcnt(0)")
            A(f"v_readfirstlane_b32 s48, v{cr}")
            A(f"ds_write_b32 v{zr}, v{pr} offset:{L_PRG}")
            A("s_sub_u32 s46, s46, 1"); A("s_cmp_eq_u32 s46, 0"); A(f"s_cbranch_scc1 L_{tag}x")
            o=[w for w in (0,1,2) if w!=v]
            A(f"s_cmp_eq_u32 s48, {v}"); A(f"s_cbranch_scc1 L_{tag}{v}")
            A(f"s_cmp_eq_u32 s48, {o[0]}"); A(f"s_cbranch_scc1 L_{tag}{o[0]}")
            A(f"s_branch L_{tag}{o[1]}")
        A(f"L_{tag}x:")
    def kbody():
        for c in range(2*R,3*R): kstep(c,0)
    loop_variants("kloop", kbody, lambda: A(f"v_add_u32 v{vSW}, {R}, v{vSW}"), vZ, vPC, vPP, ctlK or ctl)
    dsb=nK*R
    for c in range((2+nK)*R,NKS): kstep(c,dsb)
    k_flush(L_S+4*pair_T(NKS//8-1)-dsb)
    mx_publish(0, vR)
    vM=[12,13,14,15]; vNM=11; vT=9; vP=10; vACC=16; vBB=[32,36]; vSS=[40,44,48]; vTM=52
    masks(vM[0], vTM, vTM+1)
    A(f"v_mul_u32_u24 v{vSR}, {S_STR}, v2")
    A(f"v_mov_b32 v{vT}, 0")
    A("s_waitcnt lgkmcnt(0)")
    STAMP(3)
    A("s_barrier")
    for w in range(4): A(f"ds_read_b128 v[{48+4*w}:{48+4*w+3}], v{vT} offset:{L_MX+16*w}")
    A(f"ds_read_b128 v[{vSS[0]}:{vSS[0]+3}], v{vSR} offset:{L_S}")
    inext=[NKS+DK]
    A(f"s_waitcnt vmcnt({N-1})")
    issue(inext[0]); inext[0]+=1
    for r in range(16): A(f"v_mov_b32 v{vACC+r}, 0")
    A("s_waitcnt lgkmcnt(0)")
    max16(vNM,48)
    A(f"v_mul_f32 v{vNM}, s34, v{vNM}"); A(f"v_sub_f32 v{vNM}, 0, v{vNM}")
    def bprep(tile, part, gi=None):
        s=vSS[(tile//4)%3]+tile%4; b=vBB[(tile if gi is None else gi)%2]
        if part==0: A(f"v_fma_f32 v{vT}, v{s}, s34, v{vNM}")
        if part==1: A(f"v_exp_f32 v{vT}, v{vT}")
        if part==2: A(f"v_cvt_pk_bf16_f32 v{vP}, v{vT}, v{vT}"); A(f"v_and_b32 v{b}, v{vP}, v{vM[0]}")
        if part==3:
            for r in range(1,4): A(f"v_and_b32 v{b+r}, v{vP}, v{vM[r]}")
    bprep(0,0); bprep(0,1); A("s_nop 0"); bprep(0,2); bprep(0,3); A("s_nop 1")
    def o_write(hf):
        for r in range(4):
            A(f"v_add_f32_dpp v{vTM+r}, v{vACC+8+4*hf+r}, v{vACC+4*hf+r} row_ror:8 row_mask:0xf bank_mask:0xf")
        for k in range(2): A(f"v_cvt_pk_bf16_f32 v{vTM+k}, v{vTM+2*k}, v{vTM+2*k+1}")
        A("s_mov_b64 exec, s[60:61]")
        A(f"ds_write_b64 v8, v[{vTM}:{vTM+1}] offset:{L_O+256*hf}")
        A("s_mov_b64 exec, -1")
    def vstep(u, srbase, do_issue=True):
        c=NKS+u; I=inext[0]; mark=len(L)
        if do_issue and I<NTOT:
            A(f"s_waitcnt vmcnt({min((cur[0] or N)-1,I-c-1)})")
            assert I-R < c
            issue(I); inext[0]+=1
        else:
            k=I-c-1
            if k<max(N,NT): A(f"s_waitcnt vmcnt({k})")
        tile,q=vmap(u); gi,pos,n=vgrp(u); r=slot(c); b=vBB[gi%2]
        if q==0 and tile%4==0 and tile+4<256:
            nb=vSS[(tile//4+1)%3]
            A(f"ds_read_b128 v[{nb}:{nb+3}], v{vSR} offset:{L_S+4*(tile+4)-srbase}")
        if q==0 and tile%4==3 and tile+1<256: A("s_waitcnt lgkmcnt(0)")
        a=vACC+4*q
        if pos==0 and len(L)-mark<2: A(f"s_nop {1-(len(L)-mark)}")
        A(f"v_mfma_f32_16x16x32_bf16 v[{a}:{a+3}], v[{r}:{r+3}], v[{b}:{b+3}], v[{a}:{a+3}]")
        un=u-pos+n
        if un<1024:
            for part in ([pos] if n==4 else [2*pos,2*pos+1]): bprep(vmap(un)[0],part,gi+1)
        if u==U1+2*TS-1+SD: o_write(0)
        if u==U1+2*TS+SD: A("s_waitcnt lgkmcnt(0)"); A("s_barrier")
    u=0; DV=max(max(ctl),NT)
    while True:
        D=inext[0]-(NKS+u)
        if D<=DV and u%R==0: break
        if D>DV:
            vstep(u,0,False); u+=1
            D=inext[0]-(NKS+u)
            if D>DV or u%R!=0: vstep(u,0,True); u+=1
        else:
            vstep(u,0,True); u+=1
    assert inext[0]-(NKS+u)==DV and (R//16)%3==0 and R%16==0
    u0=u; PKEND=2+nK; PV0=(inext[0]+R//2)//R-1
    nV=(1024-DV-u0)//R
    while u0+nV*R+16>1024: nV-=1
    PVEND=PV0+nV
    A(f"s_mov_b32 s46, {nV}"); A("v_mov_b32 v6, 0"); A(f"s_mov_b32 s50, {PV0}")
    i0=inext[0]
    def vbody():
        inext[0]=i0
        for uu in range(u0,u0+R): vstep(uu,0,True)
    loop_variants("vloop", vbody, lambda: A(f"v_add_u32 v{vSR}, {R}, v{vSR}"), 6, 4, 8, ctl)
    inext[0]=i0+nV*R
    cur[0]=NT
    C("addresses for the tail: v4 gather address, v6 output offset, v8 O' address")
    g_addr(4,6,8)
    A("v_lshrrev_b32 v8, 4, v0"); A("v_lshlrev_b32 v8, 6, v8"); A("v_and_b32 v52, 3, v0"); A("v_lshl_add_u32 v8, v52, 4, v8"); A("v_bfe_u32 v52, v0, 2, 1"); A("v_lshl_add_u32 v8, v52, 3, v8")
    A("s_mov_b32 s47, 65536"); A("s_mov_b32 s49, 400000")
    for uu in range(u0+nV*R,1024): vstep(uu,nV*R,True)
    cur[0]=None
    STAMP(4)
    A("v_and_b32 v7, 15, v0"); A("v_lshlrev_b32 v7, 3, v7"); A("v_mov_b32 v5, 0")
    A("s_nop 4")
    o_write(1)
    A("s_waitcnt lgkmcnt(0)")
    A("s_barrier")
    STAMP(5)
    A("s_cmp_ge_u32 s32, 28"); A("s_cbranch_scc1 L_sdone")
    C("final: 16 output columns = sum over the 32 workgroups of this batch")
    A(f"ds_read_b32 v12, v5 offset:{L_TAG}")
    A(f"ds_read_b64 v[14:15], v7 offset:{L_XB}")
    g_issue(0,16,4,52)
    if dpoll: A("s_sleep 4"); g_issue(0,32,4,52)
    A("s_waitcnt lgkmcnt(0)")
    A("L_fp:")
    g_check(16,13,12,2 if dpoll else 0)
    A("s_sub_u32 s49, s49, 1"); A("s_cbranch_scc1 L_fa"); A("s_cbranch_vccz L_fa")
    g_issue(0,16,4,52)
    if dpoll:
        g_check(32,13,12,2)
        A("s_cbranch_vccz L_fb")
        g_issue(0,32,4,52)
    A("s_branch L_fp")
    def final(b):
        g_reduce(b,12)
        A(f"v_cvt_pk_bf16_f32 v{b}, 0, v{b}"); A(f"v_add_f32 v{b}, v14, v{b}"); A(f"v_cvt_pk_bf16_f32 v{b}, 0, v{b}"); A(f"v_add_f32 v{b}, v{b}, v15")
        A(f"v_cvt_pk_bf16_f32 v{b}, v{b}, v{b}")
        A("s_mov_b64 exec, 0xffff")
        A(f"buffer_store_short v{b}, v6, s[92:95], 0 offen {OF}")
    if dpoll:
        A("L_fb:"); final(32); A("s_branch L_sdone")
    A("L_fa:"); final(16)
    A("L_sdone:")
    STAMP(6)
    stamp_out(48)
    A("s_endpgm")

    hM=20; hACC=24; hAD=28; hLD=29
    WO=128
    def t_addr(vw, vr, natural):
        A("s_sub_u32 s47, s3, 1"); A(f"s_mul_i32 s47, s47, {T_SZ}"); A(f"s_add_u32 s47, s47, {L_T}")
        A(f"v_lshl_add_u32 v{vw}, v0, 4, s47")
        A(f"v_bfe_u32 v{vr}, v0, 2, 2")
        if natural:
            A(f"v_lshlrev_b32 v{vr}, 7, v{vr}"); A(f"v_lshrrev_b32 v31, 4, v0"); A(f"v_mul_u32_u24 v31, {T_STR}, v31")
        else:
            A(f"v_mul_u32_u24 v{vr}, {T_STR}, v{vr}"); A(f"v_lshrrev_b32 v31, 4, v0"); A(f"v_lshlrev_b32 v31, 7, v31")
        A(f"v_add3_u32 v{vr}, v{vr}, v31, s47"); A("v_and_b32 v31, 3, v0"); A(f"v_lshl_add_u32 v{vr}, v31, 3, v{vr}")
    def wo_issue(nw):
        C("wo rows of this head, column block c = wave-1; then transpose into MFMA B fragments")
        A("s_mul_i32 s47, s31, 229376"); A("s_sub_u32 s48, s3, 1"); A("s_lshl_b32 s48, s48, 7"); A("s_add_u32 s47, s47, s48")
        A(f"s_sub_u32 s48, {4096*896}, s47")
        srd(52,12,13,"s47","s48")
        A(f"v_mul_u32_u24 v{hAD}, 896, v2"); A(f"v_lshl_add_u32 v{hAD}, v3, 4, v{hAD}")
        n=0
        for g in range(4):
            for hf in range(2):
                A(f"s_mov_b32 s47, {7168*(16*hf+4*g)}")
                for r in range(4):
                    if skipwo: continue
                    if n>=nw: A(f"s_waitcnt vmcnt({nw-1})")
                    rr=WO+32*g+16*hf+4*r
                    A(f"buffer_load_dwordx4 v[{rr}:{rr+3}], v{hAD}, s[52:55], s47 offen {HF}")
                    if r<3: A("s_add_u32 s47, s47, 7168")
                    n+=1
        t_addr(hAD,hLD,False)
        A("s_waitcnt vmcnt(0)")
        for g in range(4):
            for k in range(8): A(f"ds_write_b128 v{hAD}, v[{WO+32*g+4*k}:{WO+32*g+4*k+3}] offset:{T_STR*k}")
            A("s_waitcnt lgkmcnt(0)")
            for kp in range(2):
                for nu in range(4):
                    for hf in range(2):
                        rr=WO+32*g+16*hf+4*nu+2*kp
                        A(f"ds_read_b64_tr_b16 v[{rr}:{rr+1}], v{hLD} offset:{4*T_STR*hf+512*kp+32*nu}")
            A("s_waitcnt lgkmcnt(0)")
    def combine(acc, dst):
        A(f"v_permlane32_swap_b32 v{acc}, v{acc+1}"); A(f"v_permlane32_swap_b32 v{acc+2}, v{acc+3}")
        A("s_nop 1")
        A(f"v_add_f32_dpp v{dst}, v{acc+1}, v{acc} row_ror:8 row_mask:0xf bank_mask:0xf")
        A(f"v_add_f32_dpp v{dst+1}, v{acc+3}, v{acc+2} row_ror:8 row_mask:0xf bank_mask:0xf")
    def rowsel(dst, srcs):
        for k in range(1,4): A(f"v_mov_b32_dpp v{dst}, v{srcs[k]} quad_perm:[0,1,2,3] row_mask:{1<<k:#x} bank_mask:0xf")

    A("L_buf:")
    A("s_setprio 3")
    A("v_mov_b32 v32, 0"); A("v_mov_b32 v33, 1"); A(f"ds_write_b32 v32, v33 offset:{L_CTL}")
    k_setup()
    A("s_waitcnt lgkmcnt(0)")
    srd(84,6,7,"s35",1<<20)
    A("s_sub_u32 s47, s3, 4"); A("s_lshl_b32 s44, s47, 13")
    A("s_lshl_b32 s47, s47, 3"); A(f"v_add_u32 v{vSW}, s47, v{vSW}")
    bar0(True)
    for i in range(R):
        if i==N0:
            srd_slots()
            A("s_cmp_lg_u32 s3, 5"); A("s_cbranch_scc1 L_notag"); A("s_cmp_lg_u32 s2, 0"); A("s_cbranch_scc1 L_notag")
            C("workgroup 0, wave 5: this launch's tag differs from the one left in d_ws; announced in d_debug[0]")
            srd(92,24,25,"0x100000",256)
            A("s_memrealtime s[62:63]")
            A(f"buffer_load_dword v32, off, s[92:95], 0 {SC}"); A("s_waitcnt vmcnt(0) lgkmcnt(0)")
            A("s_and_b32 s62, s62, 0x7ff"); A("s_add_u32 s62, s62, 1")
            A("v_add_u32 v32, s62, v32"); A("v_and_b32 v32, 0xfff, v32"); A("v_or_b32 v33, 0x1000, v32")
            A("s_mov_b64 exec, 1")
            A(f"buffer_store_dword v33, off, s[56:59], 0 {SC}")
            A(f"buffer_store_dword v32, off, s[92:95], 0 {SC}")
            A("s_mov_b64 exec, -1")
            A("L_notag:")
        if i>=N0: A(f"s_waitcnt vmcnt({N0-1})")
        r=slot(i)
        A(f"buffer_load_dwordx4 v[{r}:{r+3}], v{vK}, s[84:87], s44 offen offset:{128*(i%4)} {SF}")
        if st0 and i==0: STAMP(1)
        if i%4==3: A(f"s_add_u32 s44, s44, {4096 if i%8==3 else 4096+NB*8192}")
    bar0(False)
    if not st0: STAMP(1)
    A("s_barrier")
    STAMP(2)
    A("s_setprio 0")
    q_read()
    for c in range(R):
        A(f"s_waitcnt vmcnt({R-1-c})")
        pi=c//8
        k_consume(c, None if pi==0 else L_S+8*(NB+1)*(pi-1))
    k_flush(L_S+8*(NB+1)*(NP0-1))
    A("s_sub_u32 s47, s3, 4"); A("s_lshl_b32 s47, s47, 4")
    mx_publish("s47", vR)
    A("s_cmp_eq_u32 s3, 7"); A("s_cbranch_scc1 L_mon")
    A("L_wo:")
    wo_issue(NW)
    STAMP(3)
    A("s_barrier")
    A("s_cmp_eq_u32 s3, 5"); A("s_cbranch_scc1 L_w5")
    A("s_cmp_lg_u32 s3, 6"); A("s_cbranch_scc1 L_tail")
    C("wave 6: softmax denominator, exchange (m,l) with the other half, scale")
    A("v_mov_b32 v4, 0")
    for w in range(4): A(f"ds_read_b128 v[{64+4*w}:{64+4*w+3}], v4 offset:{L_MX+16*w}")
    A(f"v_mul_u32_u24 v5, {S_STR}, v2"); A("v_lshl_add_u32 v5, v3, 7, v5")
    for n in range(8): A(f"ds_read_b128 v[{32+4*n}:{32+4*n+3}], v5 offset:{L_S+16*n}")
    A("s_waitcnt lgkmcnt(8)")
    max16(6,64)
    A("v_mul_f32 v7, s34, v6"); A("v_sub_f32 v7, 0, v7")
    A("s_waitcnt lgkmcnt(0)")
    for k in range(32): A(f"v_fma_f32 v{32+k}, v{32+k}, s34, v7")
    for k in range(32): A(f"v_exp_f32 v{32+k}, v{32+k}")
    for st in (16,8,4,2,1):
        for k in range(st): A(f"v_add_f32 v{32+k}, v{32+k}, v{32+k+st}")
    wave_sum(32,33)
    tag_wait(16)
    C("v6=M v32=l ; four words: 16-bit halves of M and l, each with a 16-bit tag")
    A("v_or_b32 v16, 0xa000, v16"); A("s_mov_b32 s47, 0xffff0000")
    A("v_and_or_b32 v8, v6, s47, v16"); A("v_lshl_or_b32 v9, v6, 16, v16"); A("v_and_or_b32 v10, v32, s47, v16"); A("v_lshl_or_b32 v11, v32, 16, v16")
    A("s_mov_b64 exec, 1")
    A(f"buffer_store_dwordx4 v[8:11], off, s[36:39], 0 offset:3840 {SC}")
    A("s_mov_b64 exec, -1")
    A("s_xor_b32 s48, s32, 1"); A("s_lshl_b32 s48, s48, 12"); A("s_mov_b32 s49, 400000")
    A("L_mlp:")
    A(f"buffer_load_dwordx4 v[12:15], off, s[40:43], s48 offset:3840 {SC}"); A("s_waitcnt vmcnt(0)")
    A("v_xor_b32 v17, v12, v16")
    for r in (13,14,15): A(f"v_bitop3_b32 v17, v{r}, v16, v17 bitop3:0xbe")
    A("v_and_b32 v17, 0xffff, v17")
    A("v_cmp_ne_u32 vcc, 0, v17"); A("s_sub_u32 s49, s49, 1"); A("s_cbranch_scc1 L_mlx")
    A("s_cbranch_vccz L_mlx"); A("s_sleep 8"); A("s_branch L_mlp")
    A("L_mlx:")
    A("v_lshrrev_b32 v13, 16, v13"); A("v_lshrrev_b32 v15, 16, v15"); A("v_and_or_b32 v10, v12, s47, v13"); A("v_and_or_b32 v11, v14, s47, v15")
    A("v_max_f32 v12, v6, v10")
    A("v_sub_f32 v13, v6, v12"); A("v_sub_f32 v14, v10, v12")
    A("v_mul_f32 v13, s34, v13"); A("v_mul_f32 v14, s34, v14")
    A("v_exp_f32 v13, v13"); A("v_exp_f32 v14, v14"); A("s_nop 0")
    A("v_mul_f32 v15, v13, v32"); A("v_fma_f32 v15, v14, v11, v15")
    A("v_rcp_f32 v15, v15"); A("s_nop 0"); A("v_mul_f32 v15, v15, v13")
    A(f"ds_write_b32 v4, v15 offset:{L_SC}")
    A("s_branch L_tail")

    A("L_w5:")
    C("wave 5: tag for the other waves; x and the gathered FFN result for the final step")
    tag_wait(78)
    A("v_mov_b32 v4, 0"); A(f"ds_write_b32 v4, v78 offset:{L_TAG}")
    A("s_cmp_ge_u32 s32, 28"); A("s_cbranch_scc1 L_tail")
    A("s_mul_i32 s47, s30, 896"); srd(88,4,5,"s47",896)
    g_addr(64,65,4)
    A("buffer_load_ushort v66, v65, s[88:91], 0 offen")
    A("s_mov_b32 s49, 400000"); A("s_mov_b32 s47, 65536")
    for r in range(4): A(f"v_mov_b32 v{72+r}, v78")
    A("s_mov_b32 s62, -1"); A("s_mov_b32 s63, 0xffff")
    A("L_bp:")
    if not skipffn:
        g_issue(2048,68,64,40,True)
        g_check(68,76,78,0)
        A("s_sub_u32 s49, s49, 1"); A("s_cbranch_scc1 L_bx"); A("s_cbranch_vccz L_bx"); A("s_sleep 16"); A("s_branch L_bp")
    A("L_bx:")
    A("s_waitcnt vmcnt(0)")
    g_reduce(68,78)
    A("v_cvt_pk_bf16_f32 v67, 0, v68"); A("v_lshlrev_b32 v66, 16, v66")
    A("v_and_b32 v4, 15, v0"); A("v_lshlrev_b32 v4, 3, v4")
    A(f"ds_write_b64 v4, v[66:67] offset:{L_XB}")
    A("s_branch L_tail")

    REFS=[0,6,10,12]
    A("L_mon:")
    C("wave 7: compare this workgroup's progress with four reference workgroups and pick the streamer's depth")
    wo_issue(NW7)
    srd(40,24,25,None,1<<20)
    for k in range(4):
        A(f"s_add_u32 s47, s30, {(2*k+(k>>1))%8 if xb else 0}"); A("s_and_b32 s47, s47, 7"); A("s_lshl_b32 s47, s47, 17"); A(f"s_add_u32 s{12+k}, s47, {4096*REFS[k]+3968}")
    A(f"s_mov_b32 s51, {(~sum(1<<r for r in REFS))&0xffffffff:#x}"); A("s_lshr_b32 s51, s51, s32"); A("s_and_b32 s51, s51, 1")
    tag_wait(5)
    A("v_lshlrev_b32 v5, 16, v5"); A("s_lshl_b32 s96, s96, 16"); A("v_mov_b32 v4, 0"); A("s_mov_b32 s50, 0"); A("s_mov_b32 s100, 0")
    for ph,pend in (("k",PKEND),("v",PVEND)):
        A(f"L_mon{ph}:")
        A(f"ds_read_b32 v6, v4 offset:{L_PRG}"); A("s_waitcnt lgkmcnt(0)"); A("v_readfirstlane_b32 s47, v6")
        A(f"s_cmp_ge_u32 s47, {pend}"); A(f"s_cbranch_scc1 L_mon{ph}x")
        A("s_cmp_lg_u32 s47, s50"); A(f"s_cbranch_scc1 L_mon{ph}n")
        A(f"s_sleep {msleep}"); A(f"s_branch L_mon{ph}")
        A(f"L_mon{ph}n:")
        A("s_mov_b32 s50, s47")
        A(f"s_and_b32 s48, s47, {PD-1}"); A("s_or_b32 s48, s48, s51"); A(f"s_cbranch_scc1 L_mon{ph}p")
        A("v_or_b32 v6, v5, v6")
        A("s_mov_b64 exec, 1")
        A(f"buffer_store_dword v6, off, s[36:39], 0 offset:3968 {SC}")
        A("s_mov_b64 exec, -1")
        A(f"L_mon{ph}p:")
        if RD>1 and not pulse: A(f"s_and_b32 s48, s47, {RD-1}"); A(f"s_cbranch_scc1 L_mon{ph}")
        if RD>1 and pulse:
            A(f"s_and_b32 s48, s47, {RD-1}"); A(f"s_cbranch_scc0 L_mon{ph}r")
            A("s_abs_i32 s48, s100"); A(f"s_cmp_ge_i32 s48, {pulse}"); A(f"s_cbranch_scc1 L_mon{ph}")
            A("v_mov_b32 v7, 1"); A(f"ds_write_b32 v4, v7 offset:{L_CTL}"); A(f"s_branch L_mon{ph}")
            A(f"L_mon{ph}r:")
        for k in range(4): A(f"s_buffer_load_dword s{4+k}, s[40:43], s{12+k} glc")
        A("s_waitcnt lgkmcnt(0)")
        for k in range(4): A(f"s_sub_u32 s{4+k}, s{4+k}, s96")
        A("s_mov_b32 s48, s4"); A("s_mov_b32 s49, s4")
        for k in range(1,4): A(f"s_add_u32 s48, s48, s{4+k}"); A(f"s_max_u32 s49, s49, s{4+k}")
        A("s_cmp_gt_u32 s49, 63"); A(f"s_cbranch_scc1 L_mon{ph}")
        A("s_lshl_b32 s48, s48, 3")
        A("s_lshl_b32 s49, s47, 5"); A(f"s_add_i32 s49, s49, {BIAS-32}"); A("s_sub_i32 s49, s49, s48")
        if pulse: A("s_mov_b32 s100, s49")
        A(f"s_cmp_gt_i32 s49, {TH}"); A("s_cselect_b32 s48, 0, 1"); A(f"s_cmp_lt_i32 s49, {-TH}"); A("s_cselect_b32 s48, 2, s48")
        A("v_mov_b32 v7, s48"); A(f"ds_write_b32 v4, v7 offset:{L_CTL}")
        A(f"s_branch L_mon{ph}")
        A(f"L_mon{ph}x:")
        if ph=="k": A("s_waitcnt lgkmcnt(0)"); STAMP(3); A("s_barrier")

    A("L_tail:")
    A(f"v_lshrrev_b32 v{hLD}, 4, v0"); A(f"v_lshlrev_b32 v{hLD}, 4, v{hLD}"); A("v_mov_b32 v30, 0")
    A(f"v_lshlrev_b32 v{hAD}, 2, v0")
    A("s_sub_u32 s48, s3, 1"); A("s_lshl_b32 s48, s48, 8")
    A("s_waitcnt vmcnt(0) lgkmcnt(0)")
    STAMP(4)
    for hf in range(2):
        A("s_barrier")
        if hf: STAMP(5)
        for g in range(4): A(f"ds_read_b128 v[{32+16*hf+4*g}:{32+16*hf+4*g+3}], v{hLD} offset:{L_O+256*hf+64*g}")
        if hf==0: A(f"ds_read_b64 v[10:11], v30 offset:{L_SC}")
        for g in range(4):
            A(f"s_waitcnt lgkmcnt({(4 if hf==0 else 3)-g})")
            for nu in range(4):
                a=12+4*nu; w=WO+32*g+16*hf+4*nu; x=32+16*hf+4*g
                A(f"v_mfma_f32_16x16x32_bf16 v[{a}:{a+3}], v[{x}:{x+3}], v[{w}:{w+3}], {'0' if (hf==0 and g==0) else f'v[{a}:{a+3}]'}")
    A("s_nop 5")
    rowsel(12,[12,16,20,24])
    A("v_mul_f32 v12, v10, v12"); A("v_add_u32 v12, 0x800, v12"); A("v_and_or_b32 v12, v12, s97, v11")
    A(f"buffer_store_dword v12, v{hAD}, s[36:39], s48 offen {SC}")
    STAMP(6)
    stamp_out()
    A("s_endpgm")

    A("L_help:")
    D0=32
    def layernorm(xr, dup):
        for k in range(4):
            A(f"v_lshlrev_b32 v{8+2*k}, 16, v{xr+k}"); A(f"v_and_b32 v{9+2*k}, 0xffff0000, v{xr+k}")
        A("v_add_f32 v16, v8, v9"); A("v_add_f32 v17, v10, v11"); A("v_add_f32 v18, v12, v13"); A("v_add_f32 v19, v14, v15")
        A("v_add_f32 v16, v16, v17"); A("v_add_f32 v18, v18, v19"); A("v_add_f32 v16, v16, v18")
        wave_sum(16,17)
        A(f"v_mul_f32 v16, {f2u(1.0/448):#x}, v16")
        A("v_cmp_gt_u32 vcc, 56, v0"); A("v_cvt_pk_bf16_f32 v17, 0, v16"); A("s_nop 0")
        A("v_cndmask_b32 v16, 0, v16, vcc")
        A("v_sub_f32 v4, v8, v16"); A("v_mul_f32 v18, v4, v4")
        for k in range(1,8): A(f"v_sub_f32 v4, v{8+k}, v16"); A("v_fmac_f32 v18, v4, v4")
        wave_sum(18,19)
        A(f"v_mul_f32 v18, {f2u(1.0/448):#x}, v18")
        A("v_cvt_pk_bf16_f32 v18, 0, v18")
        A(f"v_add_f32 v18, {f2u(1e-5):#x}, v18")
        A("v_cvt_pk_bf16_f32 v18, 0, v18")
        A("v_sqrt_f32 v18, v18"); A("s_nop 0")
        A("v_cvt_pk_bf16_f32 v18, 0, v18")
        A("v_rcp_f32 v19, v18")
        for k in range(8):
            A(f"v_sub_f32 v{8+k}, v{8+k}, v17"); A(f"v_cvt_pk_bf16_f32 v{8+k}, 0, v{8+k}")
            A(f"v_mul_f32 v4, v{8+k}, v19"); A(f"v_fma_f32 v6, -v4, v18, v{8+k}")
            if dup: A("v_fma_f32 v4, v6, v19, v4"); A(f"v_cvt_pk_bf16_f32 v{8+k}, v4, v4")
            else: A(f"v_fma_f32 v{8+k}, v6, v19, v4")
        if not dup:
            for k in range(4): A(f"v_cvt_pk_bf16_f32 v{8+k}, v{8+2*k}, v{9+2*k}")
    def wq_load(t):
        A(f"buffer_load_dwordx4 v[{D0+4*t}:{D0+4*t+3}], v{hAD}, s[52:55], s48 offen {QF}")
        A("s_add_u32 s48, s48, 65536")
        if rot and t%4==3 and t<55: A(f"s_cmp_ge_u32 s48, {56*65536}"); A("s_cselect_b32 s48, 0, s48")
    def gemv56(bar_at):
        XX=[4,8]; BB=[12,16]
        A("s_waitcnt lgkmcnt(0)")
        A(f"ds_read_b128 v[4:7], v{hLD}"); A(f"ds_read_b128 v[8:11], v{hLD} offset:16")
        def bp(t):
            if t%4==0: A(f"s_waitcnt lgkmcnt({1 if t//4+1<14 else 0})")
            for r in range(4): A(f"v_and_b32 v{BB[t%2]+r}, v{XX[(t//4)%2]+t%4}, v{hM+r}")
            if t%4==3 and t//4+2<14:
                x=XX[(t//4)%2]; A(f"ds_read_b128 v[{x}:{x+3}], v{hLD} offset:{16*(t//4+2)}")
        bp(0)
        for t in range(56):
            if t+1<56: bp(t+1)
            else: A("s_nop 0")
            if t+QD<56: wq_load(t+QD)
            if t+QD==bar_at: A("s_barrier")
            A(f"s_waitcnt vmcnt({min(QD,55-t)})")
            A(f"v_mfma_f32_16x16x32_bf16 v[{hACC}:{hACC+3}], v[{D0+4*t}:{D0+4*t+3}], v[{BB[t%2]}:{BB[t%2]+3}], {'0' if t==0 else f'v[{hACC}:{hACC+3}]'}")
        A("s_nop 7")
        combine(hACC,12)
    def ln_part(wait):
        masks(hM,12,13)
        A(f"s_waitcnt vmcnt({wait})")
        layernorm(4,True)
        C("X'[e][(t - 4*rot) mod 56]")
        A("s_sub_u32 s47, s3, 1"); A(f"s_mul_i32 s47, s47, {X_SZ}"); A(f"s_add_u32 s47, s47, {L_X}")
        A("s_lshl_b32 s50, s51, 2"); A("v_subrev_u32 v5, s50, v0"); A("v_add_u32 v6, 56, v5"); A("v_min_u32 v5, v5, v6")
        A("v_cmp_lt_u32 vcc, 55, v0"); A("s_nop 1"); A("v_cndmask_b32 v5, v5, v0, vcc")
        A("v_lshl_add_u32 v5, v5, 2, s47")
        for k in range(8): A(f"ds_write_b32 v5, v{8+k} offset:{k*X_STR}")
        A(f"v_mul_u32_u24 v{hLD}, {X_STR}, v2"); A(f"v_add_u32 v{hLD}, s47, v{hLD}")
    C("q column block w-1 over all 448 rows of wq, tile order rotated by 4*s51 tiles")
    A("v_lshlrev_b32 v1, 4, v0")
    A(f"v_lshlrev_b32 v{hAD}, 13, v2"); A(f"v_lshl_add_u32 v{hAD}, v3, 4, v{hAD}")
    A("s_mul_i32 s47, s30, 896")
    A("s_lshl_b32 s48, s31, 9"); A("s_sub_u32 s49, s3, 1"); A("s_lshl_b32 s49, s49, 7"); A("s_add_u32 s48, s48, s49"); A(f"s_sub_u32 s49, {448*8192}, s48")
    if rot: A("s_mul_i32 s51, s30, 7"); A("s_lshr_b32 s51, s51, 2")
    else: A("s_mov_b32 s51, 0")
    A("s_waitcnt lgkmcnt(0)")
    srd(88,4,5,"s47",896)
    srd(52,10,11,"s48","s49")
    A("buffer_load_dwordx4 v[4:7], v1, s[88:91], 0 offen")
    if st0: STAMP(1)
    A("s_lshl_b32 s48, s51, 18")
    A("s_cmp_eq_u32 s28, 1"); A("s_cbranch_scc1 L_q1")
    for t in range(QD): wq_load(t)
    ln_part(QD); gemv56(55); A("s_branch L_q2")
    A("L_q1:")
    ln_part(0); A("s_barrier")
    for t in range(QD): wq_load(t)
    gemv56(None)
    A("L_q2:")
    C("q -> bf16 -> LDS: addr = m*128 + (4*rowq+hi)*16 + j*2 (+32 for the second register)")
    A("v_cvt_pk_bf16_f32 v12, v12, v13")
    A("v_bfe_u32 v4, v0, 4, 1"); A("v_lshrrev_b32 v5, 5, v0"); A("v_lshl_add_u32 v4, v4, 2, v5"); A("v_lshlrev_b32 v4, 4, v4"); A("v_lshl_add_u32 v4, v3, 1, v4")
    A("s_sub_u32 s47, s3, 1"); A("s_lshl_b32 s47, s47, 7"); A("v_add_u32 v4, s47, v4")
    A("s_mov_b64 exec, s[60:61]")
    A(f"ds_write_b16 v4, v12 offset:{L_Q}"); A(f"ds_write_b16_d16_hi v4, v12 offset:{L_Q+32}")
    A("s_mov_b64 exec, -1")
    A("s_waitcnt lgkmcnt(0)")
    if not st0: STAMP(1)
    A("s_barrier")
    STAMP(2)
    srd_slots()
    C("FFN: wave 1 of 28 workgroups, slice f of 64 hidden units for all 8 batches")
    A("s_cmp_lg_u32 s3, 1"); A("s_cbranch_scc1 L_wo")
    if skipffn: A("s_branch L_wo")
    A("s_cmp_lg_u32 s28, 1"); A("s_cbranch_scc1 L_wo")
    A("s_mov_b32 s51, s31"); A("s_cmp_eq_u32 s30, s26"); A("s_cbranch_scc1 L_ffn")
    A("s_add_u32 s51, s31, 16"); A("s_xor_b32 s47, s26, 4"); A("s_cmp_lg_u32 s30, s47"); A("s_cbranch_scc1 L_wo")
    A("s_cmp_ge_u32 s51, 28"); A("s_cbranch_scc1 L_wo")
    A("L_ffn:")
    A("s_mov_b32 s50, 3584")
    A("s_lshl_b32 s48, s51, 7"); A(f"s_sub_u32 s49, {448*3584}, s48"); srd(52,16,17,"s48","s49")
    A(f"v_mul_u32_u24 v{hAD}, 3584, v2"); A(f"v_lshl_add_u32 v{hAD}, v3, 4, v{hAD}")
    C("raw x of the 8 batches -> XN, then layernorm in place while the first w1 tiles are in flight")
    srd(88,4,5,None,8*896)
    A(f"v_add_u32 v5, {L_XN}, v1"); A("v_cmp_gt_u32 vcc, 56, v0"); A("v_mov_b32 v6, 0x10000"); A("s_nop 0"); A("v_cndmask_b32 v6, v6, v1, vcc")
    for b in range(8): A(f"buffer_load_dwordx4 v[{224+4*b}:{227+4*b}], v6, s[88:91], 0 offen offset:{896*b}" if 896*b<4096 else f"buffer_load_dwordx4 v[{224+4*b}:{227+4*b}], v6, s[88:91], s50 offen offset:{896*b-3584}")
    A("s_mov_b32 s48, 0")
    def w1_load(t):
        A(f"buffer_load_dwordx4 v[{D0+4*t}:{D0+4*t+3}], v{hAD}, s[52:55], s48 offen {SF}")
        A(f"s_add_u32 s48, s48, {8*3584}")
    for t in range(NF): w1_load(t)
    A(f"s_waitcnt vmcnt({NF})")
    for b in range(8): A(f"ds_write_b128 v5, v[{224+4*b}:{227+4*b}] offset:{XN_STR*b}")
    A("s_mov_b32 s49, 8")
    A("L_ln8:")
    A("s_waitcnt lgkmcnt(0)")
    A("ds_read_b128 v[20:23], v5"); A("s_waitcnt lgkmcnt(0)")
    layernorm(20,False)
    A("ds_write_b128 v5, v[8:11]")
    A(f"v_add_u32 v5, {XN_STR}, v5"); A("s_sub_u32 s49, s49, 1"); A("s_cmp_lg_u32 s49, 0"); A("s_cbranch_scc1 L_ln8")
    for t in range(NF,56):
        A(f"s_waitcnt vmcnt({NF-1})"); w1_load(t)
    A("s_waitcnt vmcnt(0)")
    def transpose4(regs):
        for k in range(4): A(f"ds_write_b128 v{hAD}, v[{regs[k]}:{regs[k]+3}] offset:{T_STR*k}")
        A("s_waitcnt lgkmcnt(0)")
        for nu in range(4):
            for hf in range(2): A(f"ds_read_b64_tr_b16 v[{regs[nu]+2*hf}:{regs[nu]+2*hf+1}], v{hLD} offset:{512*hf+32*nu}")
        A("s_waitcnt lgkmcnt(0)")
    t_addr(hAD,hLD,True)
    for ka in range(14): transpose4([D0+16*ka+4*k for k in range(4)])
    C("A fragments: row i of the MFMA is batch (i&3) (+4 in the second pass)")
    A("v_and_b32 v30, 3, v0"); A(f"v_mul_u32_u24 v30, {XN_STR}, v30"); A("v_lshrrev_b32 v31, 4, v0"); A("v_lshl_add_u32 v30, v31, 4, v30")
    A("v_lshlrev_b32 v1, 1, v0")
    for ps in range(2):
        for ka in range(14):
            A(f"ds_read_b128 v[{20+4*(ka%2)}:{23+4*(ka%2)}], v30 offset:{L_XN+4*XN_STR*ps+64*ka}"); A("s_waitcnt lgkmcnt(0)")
            for nu in range(4):
                a=4+4*nu; w=D0+16*ka+4*nu
                A(f"v_mfma_f32_16x16x32_bf16 v[{a}:{a+3}], v[{20+4*(ka%2)}:{23+4*(ka%2)}], v[{w}:{w+3}], {'0' if ka==0 else f'v[{a}:{a+3}]'}")
        A("s_nop 7")
        for r in range(4):
            rowsel(4+r,[4+r,8+r,12+r,16+r])
        for r in range(4):
            k=4+r
            A(f"v_cvt_pk_bf16_f32 v{k}, 0, v{k}")
            A(f"v_mul_f32 v20, {f2u(-math.log2(math.e)):#x}, v{k}"); A("v_exp_f32 v20, v20"); A("s_nop 0")
            A("v_add_f32 v20, 1.0, v20"); A("v_rcp_f32 v20, v20"); A("s_nop 0")
            A(f"v_mul_f32 v{k}, v{k}, v20"); A(f"v_cvt_pk_bf16_f32 v{k}, v{k}, v{k}")
            A(f"ds_write_b16 v1, v{k} offset:{L_HP+HP_STR*(4*ps+r)}")
    C("w2 rows 64f..64f+63: (block beta, tile t) -> D0 + 32*beta + 4*t")
    A(f"s_mul_i32 s48, s51, {64*896}"); A(f"s_sub_u32 s49, {1792*896}, s48"); srd(52,18,19,"s48","s49")
    A("v_mul_u32_u24 v4, 896, v2"); A("v_lshl_add_u32 v4, v3, 4, v4")
    A("s_mov_b32 s48, 0")
    for t in range(8):
        for be in range(7):
            if 7*t+be>=NF: A(f"s_waitcnt vmcnt({NF-1})")
            rr=D0+32*be+4*t
            A(f"buffer_load_dwordx4 v[{rr}:{rr+3}], v4, s[52:55], s48 offen offset:{128*be} {SF}")
        A("s_add_u32 s48, s48, 7168")
    tag_wait(1)
    for g in range(14): transpose4([D0+16*g+4*k for k in range(4)])
    A("v_and_b32 v30, 3, v0"); A(f"v_mul_u32_u24 v30, {HP_STR}, v30"); A("v_lshrrev_b32 v31, 4, v0"); A("v_lshl_add_u32 v30, v31, 4, v30")
    A("v_lshlrev_b32 v31, 2, v0")
    A("s_lshl_b32 s47, s51, 12"); srd(52,24,25,"s47",1<<20)
    for ps in range(2):
        A(f"ds_read_b128 v[20:23], v30 offset:{L_HP+4*HP_STR*ps}"); A(f"ds_read_b128 v[24:27], v30 offset:{L_HP+4*HP_STR*ps+64}")
        for r in range(4): A(f"s_mov_b32 s{44+r}, {(4*ps+r)<<17}")
        A("s_waitcnt lgkmcnt(0)")
        for be in range(7):
            for ka in range(2):
                for nu in range(4):
                    a=4+4*nu; w=D0+32*be+16*ka+4*nu
                    A(f"v_mfma_f32_16x16x32_bf16 v[{a}:{a+3}], v[{20+4*ka}:{23+4*ka}], v[{w}:{w+3}], {'0' if ka==0 else f'v[{a}:{a+3}]'}")
            A("s_nop 7")
            for r in range(4):
                rowsel(4+r,[4+r,8+r,12+r,16+r])
            for r in range(4):
                A(f"v_add_u32 v{4+r}, 0x800, v{4+r}"); A(f"v_and_or_b32 v{4+r}, v{4+r}, s97, v1")
                A(f"buffer_store_dword v{4+r}, v31, s[52:55], s{44+r} offen offset:{2048+256*be} {SC}")
            A("s_nop 1")
    STAMP(3)
    A("s_barrier")
    wo_issue(NW7)
    A("s_branch L_tail")
    A("L_end:")
    A("s_endpgm")
    body="\n".join(("" if (l.endswith(":") or l.startswith(".")) else "    ")+l for l in L)+"\n"
    head=HEADER+f"; @launch grid=(256,1,1) block=(512,1,1) lds={L_END}\n"
    return head+body+kd(NAME,256,102,256), L_END

if __name__=="__main__":
    kw=eval("dict(%s)"%(sys.argv[2] if len(sys.argv)>2 else ""))
    t,ldsz=gen(**kw)
    out=sys.argv[1]
    if out.endswith(".s"): open(out,"w").write(t)
    else:
        assemble(t+meta([(NAME,256,102,512)]), out); print(f"work/{out}:{NAME},256,512,{ldsz}")
```

```python
import sys, math, struct
from common import *

NAME="parallel_sum__mha_block_cached__dense_activation_silu__decode_kernel"
HEADER=open("parallel_sum__mha_block_cached__dense_activation_silu__decode.s.ref").read().split("; Override launch")[0]

L_Q=0; L_MX=512; L_SC=576; L_TAG=580; L_PRG=584; L_CTL=588; L_XB=640
L_O=768
L_S=1280; S_STR=1040
L_X=L_S+8*S_STR; X_STR=272; X_SZ=8*X_STR
L_XN=L_X+4*X_SZ; XN_STR=1040
L_HP=L_XN+8*XN_STR; HP_STR=144
L_T=L_HP+8*HP_STR; T_STR=1056; T_SZ=8*T_STR
L_END=L_T+7*T_SZ
CEXP=math.log2(math.e)/16.0
def f2u(f): return struct.unpack("<I",struct.pack("<f",f))[0]

def gen(N=24, N0=10, R=48, NF=8, NW=2, NW7=4, QD=12, stamp=False, SC="sc1", HF="", QF="", SF="nt",
        rot=1, ctl=(18,24,32), ctlK=None, TH=6, BIAS=0, PD=2, RD=2, msleep=4, xb=1, dpoll=1, skipwo=0, skipffn=0, NT=None, late=1, pulse=0, st0=0, OF='', dual=0, dry=0, TS=8, SD=3, PF=None, YF=None, dps=4, pb=0, BO=0):
    L=[]; A=L.append
    def C(s): A("    ; "+s)
    lbl=[0]
    def newl(): lbl[0]+=1; return lbl[0]
    def STAMP(i):
        if stamp: A(f"s_memrealtime s[{70+2*i}:{71+2*i}]")
    def srd(d, lo, hi, off, size):
        if off is None: A(f"s_mov_b32 s{d}, s{lo}"); A(f"s_mov_b32 s{d+1}, s{hi}")
        else: A(f"s_add_u32 s{d}, s{lo}, {off}"); A(f"s_addc_u32 s{d+1}, s{hi}, 0")
        A(f"s_mov_b32 s{d+2}, {size}"); A(f"s_mov_b32 s{d+3}, 0x20000")
    def masks(base,t0,t1):
        A(f"v_and_b32 v{t0}, 1, v3"); A(f"v_lshlrev_b32 v{t0}, 4, v{t0}"); A(f"v_mov_b32 v{t1}, 0xffff"); A(f"v_lshlrev_b32 v{t0}, v{t0}, v{t1}")
        A(f"v_lshrrev_b32 v{t1}, 1, v3")
        for r in range(4):
            A(f"v_cmp_eq_u32 vcc, {r}, v{t1}"); A("s_nop 1"); A(f"v_cndmask_b32 v{base+r}, 0, v{t0}, vcc")
    def stamp_out(tmp=4):
        if not stamp: return
        A("s_waitcnt lgkmcnt(0)")
        A("s_mov_b64 exec, 1")
        srd(64,24,25,None,0x40000000)
        A("s_lshl_b32 s68, s2, 3"); A("s_add_u32 s68, s68, s3"); A("s_lshl_b32 s68, s68, 5"); A("s_add_u32 s68, s68, 0x20000000")
        A("s_getreg_b32 s69, hwreg(HW_REG_XCC_ID)")
        for i in range(7): A(f"v_mov_b32 v{tmp+i}, s{70+2*i}")
        A(f"v_mov_b32 v{tmp+7}, s69")
        A(f"buffer_store_dwordx4 v[{tmp}:{tmp+3}], off, s[64:67], s68")
        A(f"buffer_store_dwordx4 v[{tmp+4}:{tmp+7}], off, s[64:67], s68 offset:16")
        A("s_waitcnt vmcnt(0)")
    def srd_slots():
        A("s_lshl_b32 s47, s33, 12"); srd(36,24,25,"s47",4096)
        A("s_lshl_b32 s47, s30, 17"); srd(40,24,25,"s47",131072)
        srd(56,22,23,None,256)
    def tag_wait(t):
        n=newl()
        A("s_mov_b32 s49, 400000")
        A(f"L_cw{n}:")
        A(f"buffer_load_dword v{t}, off, s[56:59], 0 {SC}"); A("s_waitcnt vmcnt(0)")
        A(f"v_cmp_eq_u32 vcc, 0, v{t}"); A("s_sub_u32 s49, s49, 1"); A(f"s_cbranch_scc1 L_cwx{n}")
        A(f"s_cbranch_vccz L_cwx{n}"); A("s_sleep 8"); A(f"s_branch L_cw{n}")
        A(f"L_cwx{n}:")
        A(f"v_and_b32 v{t}, 0xfff, v{t}"); A("s_nop 0"); A(f"v_readfirstlane_b32 s96, v{t}")
    def g_issue(off,b,vad,srdn,only28=False):
        SC=(PF or "sc1") if not only28 else "sc1"
        A(f"buffer_load_dwordx4 v[{b}:{b+3}], v{vad}, s[{srdn}:{srdn+3}], 0 offen offset:{off} {SC}")
        if only28: A("s_mov_b64 exec, s[62:63]")
        A(f"buffer_load_dwordx4 v[{b+4}:{b+7}], v{vad}, s[{srdn}:{srdn+3}], s47 offen offset:{off} {SC}")
        if only28: A("s_mov_b64 exec, -1")
    def g_check(b,t,vtag,younger):
        A(f"s_waitcnt vmcnt({younger+1})")
        A(f"v_xor_b32 v{t}, v{b}, v{vtag}")
        for r in range(1,4): A(f"v_bitop3_b32 v{t}, v{b+r}, v{vtag}, v{t} bitop3:0xbe")
        A(f"s_waitcnt vmcnt({younger})")
        for r in range(4,8): A(f"v_bitop3_b32 v{t}, v{b+r}, v{vtag}, v{t} bitop3:0xbe")
        A(f"v_and_b32 v{t}, 0xfff, v{t}")
        A(f"v_cmp_ne_u32 vcc, 0, v{t}")
    def g_reduce(b,vtag):
        for r in range(8): A(f"v_xor_b32 v{b+r}, v{b+r}, v{vtag}")
        for r in range(4): A(f"v_add_f32 v{b+r}, v{b+r}, v{b+4+r}")
        for pat in ["row_ror:4","row_ror:8"]:
            for r in range(4): A(f"v_add_f32_dpp v{b+r}, v{b+r}, v{b+r} {pat} row_mask:0xf bank_mask:0xf")
        for r in range(1,4): A(f"v_mov_b32_dpp v{b}, v{b+r} quad_perm:[0,1,2,3] row_mask:0xf bank_mask:{1<<r:#x}")
        for sw in ["16","32"]:
            A(f"v_mov_b32 v{b+1}, v{b}"); A("s_nop 1"); A(f"v_permlane{sw}_swap_b32 v{b}, v{b+1}"); A(f"v_add_f32 v{b}, v{b}, v{b+1}")
    def g_addr(vad,vcol,t):
        A(f"v_lshrrev_b32 v{vad}, 2, v0"); A(f"v_and_b32 v{t}, 3, v0"); A(f"v_and_b32 v{vcol}, 3, v{vad}")
        A(f"v_lshlrev_b32 v{vad}, 12, v{vad}"); A(f"v_lshl_add_u32 v{vad}, v{t}, 4, v{vad}")
        A("s_lshl_b32 s47, s32, 6"); A(f"v_add_u32 v{vad}, s47, v{vad}")
        A(f"v_lshl_add_u32 v{vcol}, v{t}, 2, v{vcol}"); A("s_lshl_b32 s47, s32, 5"); A(f"v_lshl_add_u32 v{vcol}, v{vcol}, 1, s47")
    def wave_sum(v,t):
        for pat in ["quad_perm:[1,0,3,2]","quad_perm:[2,3,0,1]","row_half_mirror","row_mirror"]:
            A("s_nop 1"); A(f"v_add_f32_dpp v{v}, v{v}, v{v} {pat} row_mask:0xf bank_mask:0xf")
        for sw in ["16","32"]:
            A(f"v_mov_b32 v{t}, v{v}"); A("s_nop 1"); A(f"v_permlane{sw}_swap_b32 v{v}, v{t}"); A(f"v_add_f32 v{v}, v{v}, v{t}")
    def max16(dst,b):
        A(f"v_max3_f32 v{dst}, v{b}, v{b+1}, v{b+2}")
        for k in range(3,15,2): A(f"v_max3_f32 v{dst}, v{dst}, v{b+k}, v{b+k+1}")
        A(f"v_max_f32 v{dst}, v{dst}, v{b+15}")

    A('.amdgcn_target "amdgcn-amd-amdhsa--gfx950"'); A(".text"); A(f".globl {NAME}"); A(".p2align 8"); A(f".type {NAME},@function"); A(f"{NAME}:")
    A("s_cmp_ge_u32 s2, 256"); A("s_cbranch_scc1 L_end")
    STAMP(0)
    A("s_load_dwordx16 s[4:19], s[0:1], 0")
    A("s_load_dwordx4 s[20:23], s[0:1], 64")
    A("s_load_dwordx2 s[24:25], s[0:1], 80")
    A("v_lshrrev_b32 v1, 6, v0"); A("v_and_b32 v0, 63, v0"); A("v_readfirstlane_b32 s3, v1")
    A("s_and_b32 s26, s2, 7"); A("s_lshr_b32 s27, s2, 3"); A("s_and_b32 s28, s27, 1")
    A("s_bfe_u32 s29, s27, 0x10001"); A("s_lshr_b32 s30, s27, 2")
    A("s_lshl_b32 s29, s29, 3"); A("s_add_u32 s31, s26, s29")
    A("s_lshl_b32 s32, s31, 1"); A("s_add_u32 s32, s32, s28")
    A("s_lshl_b32 s33, s30, 5"); A("s_add_u32 s33, s33, s32")
    C("s28=half s30=batch s31=head s32=2*head+half s33=32*batch+s32 ; v2=lane>>3 v3=lane&7")
    A("v_lshrrev_b32 v2, 3, v0"); A("v_and_b32 v3, 7, v0")
    A(f"s_mov_b32 s34, {f2u(CEXP):#x}")
    A("s_mov_b32 s60, 0x00ff00ff"); A("s_mov_b32 s61, 0x00ff00ff"); A("s_mov_b32 s97, 0xfffff000")
    A("s_cmp_eq_u32 s3, 0"); A("s_cbranch_scc1 L_stream")
    A("s_cmp_ge_u32 s3, 5"); A("s_cbranch_scc1 L_buf")
    A("s_branch L_help")

    RING=256-4*R
    vK=4; vV=5; vSW=6; vSR=7; vMX=8; vR=9; vR2=10; vA=[11,12]; vB=[13,14]; vQ=16
    def slot(i): return RING+4*(i%R)
    def k_consume(c, dsoff):
        p=c%8; m=p%4; acc=vA if p<4 else vB; r=slot(c)
        for k in range(4):
            src2 = "0" if (m==0 and k<2) else f"v{acc[k%2]}"
            A(f"v_dot2_f32_bf16 v{acc[k%2]}, v{r+k}, v{vQ+4*m+k}, {src2}")
        prev = dsoff is not None
        if p==0 and prev: A(f"v_add_f32 v{vB[0]}, v{vB[0]}, v{vB[1]}")
        if p==1 and prev: A(f"v_add_f32_dpp v{vR}, v{vB[0]}, v{vB[0]} row_half_mirror row_mask:0xf bank_mask:0xa")
        if p==2 and prev: A(f"v_add_f32_dpp v{vR}, v{vR}, v{vR} quad_perm:[1,0,3,2] row_mask:0xf bank_mask:0xf")
        if p==3 and prev: A(f"v_add_f32_dpp v{vR}, v{vR}, v{vR} quad_perm:[2,3,0,1] row_mask:0xf bank_mask:0xf")
        if p==4:
            if prev: A(f"v_cvt_pk_bf16_f32 v{vR2}, 0, v{vR}")
            A(f"v_add_f32 v{vA[0]}, v{vA[0]}, v{vA[1]}")
        if p==5:
            if prev: A(f"v_max_f32 v{vMX}, v{vMX}, v{vR2}"); A(f"ds_write_b32 v{vSW}, v{vR2} offset:{dsoff}")
            A(f"v_add_f32_dpp v{vR}, v{vA[0]}, v{vA[0]} row_half_mirror row_mask:0xf bank_mask:0x5")
    def k_flush(dsoff):
        A("s_nop 2"); A(f"v_add_f32 v{vB[0]}, v{vB[0]}, v{vB[1]}"); A("s_nop 1")
        A(f"v_add_f32_dpp v{vR}, v{vB[0]}, v{vB[0]} row_half_mirror row_mask:0xf bank_mask:0xa"); A("s_nop 1")
        A(f"v_add_f32_dpp v{vR}, v{vR}, v{vR} quad_perm:[1,0,3,2] row_mask:0xf bank_mask:0xf"); A("s_nop 1")
        A(f"v_add_f32_dpp v{vR}, v{vR}, v{vR} quad_perm:[2,3,0,1] row_mask:0xf bank_mask:0xf")
        A(f"v_cvt_pk_bf16_f32 v{vR2}, 0, v{vR}")
        A(f"v_max_f32 v{vMX}, v{vMX}, v{vR2}"); A(f"ds_write_b32 v{vSW}, v{vR2} offset:{dsoff}")
    def mx_publish(w, tmp):
        A("s_nop 1")
        A(f"v_max_f32_dpp v{vMX}, v{vMX}, v{vMX} row_ror:4 row_mask:0xf bank_mask:0xf"); A("s_nop 1")
        A(f"v_max_f32_dpp v{vMX}, v{vMX}, v{vMX} row_ror:8 row_mask:0xf bank_mask:0xf")
        A(f"v_lshrrev_b32 v{tmp}, 4, v0"); A(f"v_lshlrev_b32 v{tmp}, 2, v{tmp}")
        if isinstance(w,int): A(f"ds_write_b32 v{tmp}, v{vMX} offset:{L_MX+16*w}")
        else: A(f"v_add_u32 v{tmp}, {w}, v{tmp}"); A(f"ds_write_b32 v{tmp}, v{vMX} offset:{L_MX}")
    def k_setup():
        A(f"v_lshlrev_b32 v{vK}, 9, v2"); A(f"v_lshl_add_u32 v{vK}, v3, 4, v{vK}")
        A(f"v_mul_u32_u24 v{vSW}, {S_STR}, v2"); A(f"v_lshrrev_b32 v{vSR}, 2, v3"); A(f"v_lshl_add_u32 v{vSW}, v{vSR}, 2, v{vSW}")
        A(f"v_mov_b32 v{vMX}, 0xff800000")
        A("s_lshl_b32 s35, s33, 20")
    def q_read():
        A(f"v_lshlrev_b32 v{vR}, 4, v3")
        for m in range(4): A(f"ds_read_b128 v[{vQ+4*m}:{vQ+4*m+3}], v{vR} offset:{L_Q+128*m}")
        A("s_waitcnt lgkmcnt(0)")
    def bar0(first):
        n=newl()
        A(f"s_cmp_eq_u32 s28, {1 if first else 0}"); A(f"s_cbranch_scc1 L_b0_{n}"); A("s_barrier"); A(f"L_b0_{n}:")
    NP0=R//8; NB=3
    NKS=1024-NB*R
    NTOT=NKS+1024
    NT=NT or N

    A("L_stream:")
    A("s_setprio 3")
    k_setup()
    A(f"v_mov_b32 v{vV}, v{vK}")
    vZ=36; vPC=37; vPP=38
    A(f"v_mov_b32 v{vZ}, 0"); A(f"ds_write_b32 v{vZ}, v{vZ} offset:{L_PRG}")
    A("s_waitcnt lgkmcnt(0)")
    srd(36,6,7,"s35",1<<20); srd(40,8,9,"s35",1<<20)
    A("s_mov_b32 s44, 0"); A("s_mov_b32 s45, 0"); A("s_mov_b32 s50, 2")
    U1=1024-4*TS
    def vmap(u):
        if u<U1: return u//4, u%4
        v=u-U1
        return 256-TS+v%TS, v//TS
    def vgrp(u): return (u//4, u%4, 4) if u<U1 else (U1//4+(u-U1), 0, 1)
    def issue(i):
        r=slot(i)
        if i<NKS:
            A(f"buffer_load_dwordx4 v[{r}:{r+3}], v{vK}, s[36:39], s44 offen offset:{128*(i%4)} {SF}")
            if i%4==3: A(f"s_add_u32 s44, s44, {4096+NB*8192 if (i<R and i%8==7) else 4096}")
        elif i<NTOT:
            u=i-NKS; tile,q=vmap(u)
            A(f"buffer_load_dwordx4 v[{r}:{r+3}], v{vV}, s[40:43], s45 offen offset:{128*q} {SF}")
            if u+1<1024:
                d=vmap(u+1)[0]-tile
                if d>0: A(f"s_add_u32 s45, s45, {4096*d}")
                if d<0: A(f"s_sub_u32 s45, s45, {-4096*d}")
    DK=R-1
    bar0(True)
    for i in range(DK):
        if i>=N0: A(f"s_waitcnt vmcnt({N0-1})")
        issue(i)
        if st0 and i==0: STAMP(1)
        if i==N0-1:
            A("s_lshl_b32 s47, s30, 17"); srd(52,24,25,"s47",131072)
            A("s_mul_i32 s47, s30, 896"); srd(92,20,21,"s47",896)
    bar0(False)
    if not st0: STAMP(1)
    A("s_barrier")
    STAMP(2)
    q_read()
    cur=[None]
    def pair_T(pi): return 2*((NB+1)*pi) if pi<NP0 else 2*((NB+1)*NP0+(pi-NP0))
    def kstep(c, dsbase):
        I=c+DK
        A(f"s_waitcnt vmcnt({min((cur[0] or N)-1,I-c-1)})")
        issue(I)
        pi=c//8
        k_consume(c, None if pi==0 else L_S+4*pair_T(pi-1)-dsbase)
    for c in range(0,2*R): kstep(c,0)
    nK=(NKS-DK-2*R)//R
    A(f"s_mov_b32 s46, {nK}")
    def loop_variants(tag, body, post, zr, cr, pr, lv):
        for v in (1,0,2):
            A(f"L_{tag}{v}:")
            rd=f"ds_read_b32 v{cr}, v{zr} offset:{L_CTL}"
            if not late: A(rd)
            m0=len(L)
            cur[0]=lv[v]; body(); cur[0]=None
            if late:
                w=[i for i in range(m0,len(L)) if L[i].startswith("s_waitcnt vmcnt")]
                assert len(w)==R
                L.insert(w[R-3],rd)
            post()
            A("s_add_u32 s50, s50, 1"); A(f"v_mov_b32 v{pr}, s50")
            A("s_waitcnt lgkmcnt(0)")
            A(f"v_readfirstlane_b32 s48, v{cr}")
            A(f"ds_write_b32 v{zr}, v{pr} offset:{L_PRG}")
            A("s_sub_u32 s46, s46, 1"); A("s_cmp_eq_u32 s46, 0"); A(f"s_cbranch_scc1 L_{tag}x")
            o=[w for w in (0,1,2) if w!=v]
            A(f"s_cmp_eq_u32 s48, {v}"); A(f"s_cbranch_scc1 L_{tag}{v}")
            A(f"s_cmp_eq_u32 s48, {o[0]}"); A(f"s_cbranch_scc1 L_{tag}{o[0]}")
            A(f"s_branch L_{tag}{o[1]}")
        A(f"L_{tag}x:")
    def kbody():
        for c in range(2*R,3*R): kstep(c,0)
    loop_variants("kloop", kbody, lambda: A(f"v_add_u32 v{vSW}, {R}, v{vSW}"), vZ, vPC, vPP, ctlK or ctl)
    dsb=nK*R
    for c in range((2+nK)*R,NKS): kstep(c,dsb)
    k_flush(L_S+4*pair_T(NKS//8-1)-dsb)
    mx_publish(0, vR)
    vM=[12,13,14,15]; vNM=11; vT=9; vP=10; vACC=16; vBB=[32,36]; vSS=[40,44,48]; vTM=52
    masks(vM[0], vTM, vTM+1)
    A(f"v_mul_u32_u24 v{vSR}, {S_STR}, v2")
    A(f"v_mov_b32 v{vT}, 0")
    A("s_waitcnt lgkmcnt(0)")
    STAMP(3)
    A("s_barrier")
    for w in range(4): A(f"ds_read_b128 v[{48+4*w}:{48+4*w+3}], v{vT} offset:{L_MX+16*w}")
    A(f"ds_read_b128 v[{vSS[0]}:{vSS[0]+3}], v{vSR} offset:{L_S}")
    inext=[NKS+DK]
    A(f"s_waitcnt vmcnt({N-1})")
    issue(inext[0]); inext[0]+=1
    for r in range(16): A(f"v_mov_b32 v{vACC+r}, 0")
    A("s_waitcnt lgkmcnt(0)")
    max16(vNM,48)
    A(f"v_mul_f32 v{vNM}, s34, v{vNM}"); A(f"v_sub_f32 v{vNM}, 0, v{vNM}")
    def bfree(tile):
        return slot(NTOT+(tile-(256-TS))+BO)
    def bprep(tile, part, gi=None):
        s=vSS[(tile//4)%3]+tile%4; b=vBB[(tile if gi is None else gi)%2]
        if tile>=256-TS: b=bfree(tile)
        if part==0: A(f"v_fma_f32 v{vT}, v{s}, s34, v{vNM}")
        if part==1: A(f"v_exp_f32 v{vT}, v{vT}")
        if part==2: A(f"v_cvt_pk_bf16_f32 v{vP}, v{vT}, v{vT}"); A(f"v_and_b32 v{b}, v{vP}, v{vM[0]}")
        if part==3:
            for r in range(1,4): A(f"v_and_b32 v{b+r}, v{vP}, v{vM[r]}")
    bprep(0,0); bprep(0,1); A("s_nop 0"); bprep(0,2); bprep(0,3); A("s_nop 1")
    def o_write(q):
        a=vACC+4*q
        A(f"v_permlane32_swap_b32 v{a}, v{a+1}"); A(f"v_permlane32_swap_b32 v{a+2}, v{a+3}")
        A("s_nop 1")
        A(f"v_add_f32_dpp v{vTM}, v{a+1}, v{a} row_ror:8 row_mask:0xf bank_mask:0xf")
        A(f"v_add_f32_dpp v{vTM+1}, v{a+3}, v{a+2} row_ror:8 row_mask:0xf bank_mask:0xf")
        A(f"v_cvt_pk_bf16_f32 v{vTM}, v{vTM}, v{vTM+1}")
        A("s_mov_b64 exec, s[60:61]")
        A(f"ds_write_b32 v8, v{vTM} offset:{L_O+128*q}")
        A("s_mov_b64 exec, -1")
    def vstep(u, srbase, do_issue=True):
        c=NKS+u; I=inext[0]; mark=len(L)
        if do_issue and I<NTOT:
            A(f"s_waitcnt vmcnt({min((cur[0] or N)-1,I-c-1)})")
            assert I-R < c
            issue(I); inext[0]+=1
        else:
            k=I-c-1
            if k<max(N,NT): A(f"s_waitcnt vmcnt({k})")
        tile,q=vmap(u); gi,pos,n=vgrp(u); r=slot(c); b=vBB[gi%2]
        if tile>=256-TS:
            b=bfree(tile)
        if q==0 and tile%4==0 and tile+4<256:
            nb=vSS[(tile//4+1)%3]
            A(f"ds_read_b128 v[{nb}:{nb+3}], v{vSR} offset:{L_S+4*(tile+4)-srbase}")
        if q==0 and tile%4==3 and tile+1<256: A("s_waitcnt lgkmcnt(0)")
        a=vACC+4*q
        if pos==0 and len(L)-mark<2: A(f"s_nop {1-(len(L)-mark)}")
        A(f"v_mfma_f32_16x16x32_bf16 v[{a}:{a+3}], v[{r}:{r+3}], v[{b}:{b+3}], v[{a}:{a+3}]")
        un=u-pos+n
        if un<1024:
            if n==4: bprep(vmap(un)[0],pos,gi+1)
            elif vmap(un)[1]==0:
                for part in range(4):
                    bprep(vmap(un)[0],part,gi+1)
                    if part==1: A("s_nop 0")
        for qq in range(3):
            if u==U1+(qq+1)*TS-1+SD: o_write(qq)
            if u==U1+(qq+1)*TS+SD: A("s_waitcnt lgkmcnt(0)"); A("s_barrier")
    u=0; DV=max(max(ctl),NT)
    while True:
        D=inext[0]-(NKS+u)
        if D<=DV and u%R==0: break
        if D>DV:
            vstep(u,0,False); u+=1
            D=inext[0]-(NKS+u)
            if D>DV or u%R!=0: vstep(u,0,True); u+=1
        else:
            vstep(u,0,True); u+=1
    assert inext[0]-(NKS+u)==DV and (R//16)%3==0 and R%16==0
    u0=u; PKEND=2+nK; PV0=(inext[0]+R//2)//R-1
    nV=(1024-DV-u0)//R
    while u0+nV*R+16>1024: nV-=1
    PVEND=PV0+nV
    A(f"s_mov_b32 s46, {nV}"); A("v_mov_b32 v6, 0"); A(f"s_mov_b32 s50, {PV0}")
    i0=inext[0]
    def vbody():
        inext[0]=i0
        for uu in range(u0,u0+R): vstep(uu,0,True)
    loop_variants("vloop", vbody, lambda: A(f"v_add_u32 v{vSR}, {R}, v{vSR}"), 6, 4, 8, ctl)
    inext[0]=i0+nV*R
    cur[0]=NT
    C("addresses for the tail: v4 gather address, v6 output offset, v8 O' address")
    g_addr(4,6,8)
    A("v_bfe_u32 v8, v0, 4, 1"); A("v_lshlrev_b32 v8, 6, v8"); A("v_lshrrev_b32 v52, 5, v0"); A("v_lshl_add_u32 v8, v52, 5, v8"); A("v_lshl_add_u32 v8, v3, 2, v8")
    A("s_mov_b32 s47, 65536"); A("s_mov_b32 s49, 400000")
    for uu in range(u0+nV*R,1024): vstep(uu,nV*R,True)
    cur[0]=None
    STAMP(4)
    A("v_and_b32 v7, 15, v0"); A("v_lshlrev_b32 v7, 3, v7"); A("v_mov_b32 v5, 0")
    A("s_nop 4")
    o_write(3)
    A("s_waitcnt lgkmcnt(0)")
    A("s_barrier")
    STAMP(5)
    A("s_cmp_ge_u32 s32, 28"); A("s_cbranch_scc1 L_sdone")
    C("final: 16 output columns = sum over the 32 workgroups of this batch")
    A(f"ds_read_b32 v12, v5 offset:{L_TAG}")
    A(f"ds_read_b64 v[14:15], v7 offset:{L_XB}")
    if pb: A("s_barrier")
    g_issue(0,16,4,52)
    if dpoll: A(f"s_sleep {dps}"); g_issue(0,32,4,52)
    A("s_waitcnt lgkmcnt(0)")
    A("L_fp:")
    g_check(16,13,12,2 if dpoll else 0)
    A("s_sub_u32 s49, s49, 1"); A("s_cbranch_scc1 L_fa"); A("s_cbranch_vccz L_fa")
    g_issue(0,16,4,52)
    if dpoll:
        g_check(32,13,12,2)
        A("s_cbranch_vccz L_fb")
        g_issue(0,32,4,52)
    A("s_branch L_fp")
    def final(b):
        g_reduce(b,12)
        A(f"v_cvt_pk_bf16_f32 v{b}, 0, v{b}"); A(f"v_add_f32 v{b}, v14, v{b}"); A(f"v_cvt_pk_bf16_f32 v{b}, 0, v{b}"); A(f"v_add_f32 v{b}, v{b}, v15")
        A(f"v_cvt_pk_bf16_f32 v{b}, v{b}, v{b}")
        A("s_mov_b64 exec, 0xffff")
        A(f"buffer_store_short v{b}, v6, s[92:95], 0 offen {OF}")
    if dpoll:
        A("L_fb:"); final(32); A("s_branch L_sdone")
    A("L_fa:"); final(16)
    A("L_sdone:")
    STAMP(6)
    stamp_out(48)
    A("s_endpgm")

    hM=20; hACC=24; hAD=28; hLD=29
    WO=128
    def t_addr(vw, vr, natural):
        A("s_sub_u32 s47, s3, 1"); A(f"s_mul_i32 s47, s47, {T_SZ}"); A(f"s_add_u32 s47, s47, {L_T}")
        A(f"v_lshl_add_u32 v{vw}, v0, 4, s47")
        A(f"v_bfe_u32 v{vr}, v0, 2, 2")
        if natural:
            A(f"v_lshlrev_b32 v{vr}, 7, v{vr}"); A(f"v_lshrrev_b32 v31, 4, v0"); A(f"v_mul_u32_u24 v31, {T_STR}, v31")
        else:
            A(f"v_lshrrev_b32 v31, 1, v{vr}"); A(f"v_and_b32 v{vr}, 1, v{vr}"); A(f"v_lshlrev_b32 v{vr}, 1, v{vr}"); A(f"v_lshlrev_b32 v31, 7, v31")
            A("v_lshrrev_b32 v30, 5, v0"); A(f"v_add_u32 v{vr}, v{vr}, v30"); A(f"v_mul_u32_u24 v{vr}, {T_STR}, v{vr}")
            A("v_bfe_u32 v30, v0, 4, 1"); A("v_lshl_add_u32 v31, v30, 9, v31")
        A(f"v_add3_u32 v{vr}, v{vr}, v31, s47"); A("v_and_b32 v31, 3, v0"); A(f"v_lshl_add_u32 v{vr}, v31, 3, v{vr}")
    def wo_issue(nw):
        C("wo rows of this head, column block c = wave-1; then transpose into MFMA B fragments")
        A("s_mul_i32 s47, s31, 229376"); A("s_sub_u32 s48, s3, 1"); A("s_lshl_b32 s48, s48, 7"); A("s_add_u32 s47, s47, s48")
        A(f"s_sub_u32 s48, {4096*896}, s47")
        srd(52,12,13,"s47","s48")
        A(f"v_mul_u32_u24 v{hAD}, 896, v2"); A(f"v_lshl_add_u32 v{hAD}, v3, 4, v{hAD}")
        n=0
        for g in range(4):
            for hf in range(2):
                A(f"s_mov_b32 s47, {7168*(8*g+4*hf)}")
                for r in range(4):
                    if skipwo: continue
                    if n>=nw: A(f"s_waitcnt vmcnt({nw-1})")
                    rr=WO+32*g+16*hf+4*r
                    A(f"buffer_load_dwordx4 v[{rr}:{rr+3}], v{hAD}, s[52:55], s47 offen {HF}")
                    if r<3: A("s_add_u32 s47, s47, 7168")
                    n+=1
        t_addr(hAD,hLD,False)
        A("s_waitcnt vmcnt(0)")
        for g in range(4):
            for k in range(8): A(f"ds_write_b128 v{hAD}, v[{WO+32*g+4*k}:{WO+32*g+4*k+3}] offset:{T_STR*k}")
            A("s_waitcnt lgkmcnt(0)")
            for kp in range(2):
                for nu in range(4):
                    for hf in range(2):
                        rr=WO+32*g+16*kp+4*nu+2*hf
                        A(f"ds_read_b64_tr_b16 v[{rr}:{rr+1}], v{hLD} offset:{4*T_STR*kp+256*hf+32*nu}")
            A("s_waitcnt lgkmcnt(0)")
    def combine(acc, dst):
        A(f"v_permlane32_swap_b32 v{acc}, v{acc+1}"); A(f"v_permlane32_swap_b32 v{acc+2}, v{acc+3}")
        A("s_nop 1")
        A(f"v_add_f32_dpp v{dst}, v{acc+1}, v{acc} row_ror:8 row_mask:0xf bank_mask:0xf")
        A(f"v_add_f32_dpp v{dst+1}, v{acc+3}, v{acc+2} row_ror:8 row_mask:0xf bank_mask:0xf")
    def rowsel(dst, srcs):
        for k in range(1,4): A(f"v_mov_b32_dpp v{dst}, v{srcs[k]} quad_perm:[0,1,2,3] row_mask:{1<<k:#x} bank_mask:0xf")

    A("L_buf:")
    A("s_setprio 3")
    A("v_mov_b32 v32, 0"); A("v_mov_b32 v33, 1"); A(f"ds_write_b32 v32, v33 offset:{L_CTL}")
    k_setup()
    A("s_waitcnt lgkmcnt(0)")
    srd(84,6,7,"s35",1<<20)
    A("s_sub_u32 s47, s3, 4"); A("s_lshl_b32 s44, s47, 13")
    A("s_lshl_b32 s47, s47, 3"); A(f"v_add_u32 v{vSW}, s47, v{vSW}")
    bar0(True)
    for i in range(R):
        if i==N0:
            srd_slots()
            A("s_cmp_lg_u32 s3, 5"); A("s_cbranch_scc1 L_notag"); A("s_cmp_lg_u32 s2, 0"); A("s_cbranch_scc1 L_notag")
            C("workgroup 0, wave 5: this launch's tag differs from the one left in d_ws; announced in d_debug[0]")
            srd(92,24,25,"0x100000",256)
            A("s_memrealtime s[62:63]")
            A(f"buffer_load_dword v32, off, s[92:95], 0 {SC}"); A("s_waitcnt vmcnt(0) lgkmcnt(0)")
            A("s_and_b32 s62, s62, 0x7ff"); A("s_add_u32 s62, s62, 1")
            A("v_add_u32 v32, s62, v32"); A("v_and_b32 v32, 0xfff, v32"); A("v_or_b32 v33, 0x1000, v32")
            A("s_mov_b64 exec, 1")
            A(f"buffer_store_dword v33, off, s[56:59], 0 {SC}")
            A(f"buffer_store_dword v32, off, s[92:95], 0 {SC}")
            A("s_mov_b64 exec, -1")
            A("L_notag:")
        if i>=N0: A(f"s_waitcnt vmcnt({N0-1})")
        r=slot(i)
        A(f"buffer_load_dwordx4 v[{r}:{r+3}], v{vK}, s[84:87], s44 offen offset:{128*(i%4)} {SF}")
        if st0 and i==0: STAMP(1)
        if i%4==3: A(f"s_add_u32 s44, s44, {4096 if i%8==3 else 4096+NB*8192}")
    bar0(False)
    if not st0: STAMP(1)
    A("s_barrier")
    STAMP(2)
    A("s_setprio 0")
    q_read()
    for c in range(R):
        A(f"s_waitcnt vmcnt({R-1-c})")
        pi=c//8
        k_consume(c, None if pi==0 else L_S+8*(NB+1)*(pi-1))
    k_flush(L_S+8*(NB+1)*(NP0-1))
    A("s_sub_u32 s47, s3, 4"); A("s_lshl_b32 s47, s47, 4")
    mx_publish("s47", vR)
    A("s_cmp_eq_u32 s3, 7"); A("s_cbranch_scc1 L_mon")
    A("L_wo:")
    wo_issue(NW)
    STAMP(3)
    A("s_barrier")
    A("s_cmp_eq_u32 s3, 5"); A("s_cbranch_scc1 L_w5")
    A("s_cmp_lg_u32 s3, 6"); A("s_cbranch_scc1 L_tail")
    C("wave 6: softmax denominator, exchange (m,l) with the other half, scale")
    A("v_mov_b32 v4, 0")
    for w in range(4): A(f"ds_read_b128 v[{64+4*w}:{64+4*w+3}], v4 offset:{L_MX+16*w}")
    A(f"v_mul_u32_u24 v5, {S_STR}, v2"); A("v_lshl_add_u32 v5, v3, 7, v5")
    for n in range(8): A(f"ds_read_b128 v[{32+4*n}:{32+4*n+3}], v5 offset:{L_S+16*n}")
    A("s_waitcnt lgkmcnt(8)")
    max16(6,64)
    A("v_mul_f32 v7, s34, v6"); A("v_sub_f32 v7, 0, v7")
    A("s_waitcnt lgkmcnt(0)")
    for k in range(32): A(f"v_fma_f32 v{32+k}, v{32+k}, s34, v7")
    for k in range(32): A(f"v_exp_f32 v{32+k}, v{32+k}")
    for st in (16,8,4,2,1):
        for k in range(st): A(f"v_add_f32 v{32+k}, v{32+k}, v{32+k+st}")
    wave_sum(32,33)
    tag_wait(16)
    C("v6=M v32=l ; four words: 16-bit halves of M and l, each with a 16-bit tag")
    A("v_or_b32 v16, 0xa000, v16"); A("s_mov_b32 s47, 0xffff0000")
    A("v_and_or_b32 v8, v6, s47, v16"); A("v_lshl_or_b32 v9, v6, 16, v16"); A("v_and_or_b32 v10, v32, s47, v16"); A("v_lshl_or_b32 v11, v32, 16, v16")
    A("s_mov_b64 exec, 1")
    A(f"buffer_store_dwordx4 v[8:11], off, s[36:39], 0 offset:3840 {SC}")
    A("s_mov_b64 exec, -1")
    A("s_xor_b32 s48, s32, 1"); A("s_lshl_b32 s48, s48, 12"); A("s_mov_b32 s49, 400000")
    A("L_mlp:")
    A(f"buffer_load_dwordx4 v[12:15], off, s[40:43], s48 offset:3840 {SC}"); A("s_waitcnt vmcnt(0)")
    A("v_xor_b32 v17, v12, v16")
    for r in (13,14,15): A(f"v_bitop3_b32 v17, v{r}, v16, v17 bitop3:0xbe")
    A("v_and_b32 v17, 0xffff, v17")
    A("v_cmp_ne_u32 vcc, 0, v17"); A("s_sub_u32 s49, s49, 1"); A("s_cbranch_scc1 L_mlx")
    A("s_cbranch_vccz L_mlx"); A("s_sleep 8"); A("s_branch L_mlp")
    A("L_mlx:")
    A("v_lshrrev_b32 v13, 16, v13"); A("v_lshrrev_b32 v15, 16, v15"); A("v_and_or_b32 v10, v12, s47, v13"); A("v_and_or_b32 v11, v14, s47, v15")
    A("v_max_f32 v12, v6, v10")
    A("v_sub_f32 v13, v6, v12"); A("v_sub_f32 v14, v10, v12")
    A("v_mul_f32 v13, s34, v13"); A("v_mul_f32 v14, s34, v14")
    A("v_exp_f32 v13, v13"); A("v_exp_f32 v14, v14"); A("s_nop 0")
    A("v_mul_f32 v15, v13, v32"); A("v_fma_f32 v15, v14, v11, v15")
    A("v_rcp_f32 v15, v15"); A("s_nop 0"); A("v_mul_f32 v15, v15, v13")
    A(f"ds_write_b32 v4, v15 offset:{L_SC}")
    A("s_branch L_tail")

    A("L_w5:")
    C("wave 5: tag for the other waves; x and the gathered FFN result for the final step")
    tag_wait(78)
    A("v_mov_b32 v4, 0"); A(f"ds_write_b32 v4, v78 offset:{L_TAG}")
    A("s_cmp_ge_u32 s32, 28"); A("s_cbranch_scc1 L_tail")
    A("s_mul_i32 s47, s30, 896"); srd(88,4,5,"s47",896)
    g_addr(64,65,4)
    A("buffer_load_ushort v66, v65, s[88:91], 0 offen")
    A("s_mov_b32 s49, 400000"); A("s_mov_b32 s47, 65536")
    for r in range(4): A(f"v_mov_b32 v{72+r}, v78")
    A("s_mov_b32 s62, -1"); A("s_mov_b32 s63, 0xffff")
    A("L_bp:")
    if not skipffn:
        g_issue(2048,68,64,40,True)
        g_check(68,76,78,0)
        A("s_sub_u32 s49, s49, 1"); A("s_cbranch_scc1 L_bx"); A("s_cbranch_vccz L_bx"); A("s_sleep 16"); A("s_branch L_bp")
    A("L_bx:")
    A("s_waitcnt vmcnt(0)")
    g_reduce(68,78)
    A("v_cvt_pk_bf16_f32 v67, 0, v68"); A("v_lshlrev_b32 v66, 16, v66")
    A("v_and_b32 v4, 15, v0"); A("v_lshlrev_b32 v4, 3, v4")
    A(f"ds_write_b64 v4, v[66:67] offset:{L_XB}")
    A("s_branch L_tail")

    REFS=[0,6,10,12]
    A("L_mon:")
    C("wave 7: compare this workgroup's progress with four reference workgroups and pick the streamer's depth")
    wo_issue(NW7)
    srd(40,24,25,None,1<<20)
    for k in range(4):
        A(f"s_add_u32 s47, s30, {(2*k+(k>>1))%8 if xb else 0}"); A("s_and_b32 s47, s47, 7"); A("s_lshl_b32 s47, s47, 17"); A(f"s_add_u32 s{12+k}, s47, {4096*REFS[k]+3968}")
    A(f"s_mov_b32 s51, {(~sum(1<<r for r in REFS))&0xffffffff:#x}"); A("s_lshr_b32 s51, s51, s32"); A("s_and_b32 s51, s51, 1")
    tag_wait(5)
    A("v_lshlrev_b32 v5, 16, v5"); A("s_lshl_b32 s96, s96, 16"); A("v_mov_b32 v4, 0"); A("s_mov_b32 s50, 0"); A("s_mov_b32 s100, 0")
    for ph,pend in (("k",PKEND),("v",PVEND)):
        A(f"L_mon{ph}:")
        A(f"ds_read_b32 v6, v4 offset:{L_PRG}"); A("s_waitcnt lgkmcnt(0)"); A("v_readfirstlane_b32 s47, v6")
        A(f"s_cmp_ge_u32 s47, {pend}"); A(f"s_cbranch_scc1 L_mon{ph}x")
        A("s_cmp_lg_u32 s47, s50"); A(f"s_cbranch_scc1 L_mon{ph}n")
        A(f"s_sleep {msleep}"); A(f"s_branch L_mon{ph}")
        A(f"L_mon{ph}n:")
        A("s_mov_b32 s50, s47")
        A(f"s_and_b32 s48, s47, {PD-1}"); A("s_or_b32 s48, s48, s51"); A(f"s_cbranch_scc1 L_mon{ph}p")
        A("v_or_b32 v6, v5, v6")
        A("s_mov_b64 exec, 1")
        A(f"buffer_store_dword v6, off, s[36:39], 0 offset:3968 {SC}")
        A("s_mov_b64 exec, -1")
        A(f"L_mon{ph}p:")
        if RD>1 and not pulse: A(f"s_and_b32 s48, s47, {RD-1}"); A(f"s_cbranch_scc1 L_mon{ph}")
        if RD>1 and pulse:
            A(f"s_and_b32 s48, s47, {RD-1}"); A(f"s_cbranch_scc0 L_mon{ph}r")
            A("s_abs_i32 s48, s100"); A(f"s_cmp_ge_i32 s48, {pulse}"); A(f"s_cbranch_scc1 L_mon{ph}")
            A("v_mov_b32 v7, 1"); A(f"ds_write_b32 v4, v7 offset:{L_CTL}"); A(f"s_branch L_mon{ph}")
            A(f"L_mon{ph}r:")
        for k in range(4): A(f"s_buffer_load_dword s{4+k}, s[40:43], s{12+k} glc")
        A("s_waitcnt lgkmcnt(0)")
        for k in range(4): A(f"s_sub_u32 s{4+k}, s{4+k}, s96")
        A("s_mov_b32 s48, s4"); A("s_mov_b32 s49, s4")
        for k in range(1,4): A(f"s_add_u32 s48, s48, s{4+k}"); A(f"s_max_u32 s49, s49, s{4+k}")
        A("s_cmp_gt_u32 s49, 63"); A(f"s_cbranch_scc1 L_mon{ph}")
        A("s_lshl_b32 s48, s48, 3")
        A("s_lshl_b32 s49, s47, 5"); A(f"s_add_i32 s49, s49, {BIAS-32}"); A("s_sub_i32 s49, s49, s48")
        if pulse: A("s_mov_b32 s100, s49")
        A(f"s_cmp_gt_i32 s49, {TH}"); A("s_cselect_b32 s48, 0, 1"); A(f"s_cmp_lt_i32 s49, {-TH}"); A("s_cselect_b32 s48, 2, s48")
        A("v_mov_b32 v7, s48"); A(f"ds_write_b32 v4, v7 offset:{L_CTL}")
        A(f"s_branch L_mon{ph}")
        A(f"L_mon{ph}x:")
        if ph=="k": A("s_waitcnt lgkmcnt(0)"); STAMP(3); A("s_barrier")

    A("L_tail:")
    A(f"v_lshrrev_b32 v{hLD}, 4, v0"); A(f"v_lshlrev_b32 v{hLD}, 4, v{hLD}"); A("v_mov_b32 v30, 0")
    A(f"v_lshlrev_b32 v{hAD}, 2, v0")
    A("s_sub_u32 s48, s3, 1"); A("s_lshl_b32 s48, s48, 8")
    A("s_waitcnt vmcnt(0) lgkmcnt(0)")
    STAMP(4)
    for q in range(4):
        A("s_barrier")
        if q==3: STAMP(5)
        for ka in range(2): A(f"ds_read_b128 v[{32+8*q+4*ka}:{32+8*q+4*ka+3}], v{hLD} offset:{L_O+128*q+64*ka}")
        if q==0: A(f"ds_read_b64 v[10:11], v30 offset:{L_SC}")
        for ka in range(2):
            A(f"s_waitcnt lgkmcnt({(2 if q==0 else 1)-ka})")
            for nu in range(4):
                a=12+4*nu; w=WO+32*q+16*ka+4*nu; x=32+8*q+4*ka
                A(f"v_mfma_f32_16x16x32_bf16 v[{a}:{a+3}], v[{x}:{x+3}], v[{w}:{w+3}], {'0' if (q==0 and ka==0) else f'v[{a}:{a+3}]'}")
    A("s_nop 5")
    rowsel(12,[12,16,20,24])
    A("v_mul_f32 v12, v10, v12"); A("v_add_u32 v12, 0x800, v12"); A("v_and_or_b32 v12, v12, s97, v11")
    A(f"buffer_store_dword v12, v{hAD}, s[36:39], s48 offen {YF or SC}")
    STAMP(6)
    if pb: A("s_cmp_ge_u32 s32, 28"); A("s_cbranch_scc1 L_tend"); A("s_barrier"); A("L_tend:")
    stamp_out()
    A("s_endpgm")

    A("L_help:")
    D0=32
    def layernorm(xr, dup):
        for k in range(4):
            A(f"v_lshlrev_b32 v{8+2*k}, 16, v{xr+k}"); A(f"v_and_b32 v{9+2*k}, 0xffff0000, v{xr+k}")
        A("v_add_f32 v16, v8, v9"); A("v_add_f32 v17, v10, v11"); A("v_add_f32 v18, v12, v13"); A("v_add_f32 v19, v14, v15")
        A("v_add_f32 v16, v16, v17"); A("v_add_f32 v18, v18, v19"); A("v_add_f32 v16, v16, v18")
        wave_sum(16,17)
        A(f"v_mul_f32 v16, {f2u(1.0/448):#x}, v16")
        A("v_cmp_gt_u32 vcc, 56, v0"); A("v_cvt_pk_bf16_f32 v17, 0, v16"); A("s_nop 0")
        A("v_cndmask_b32 v16, 0, v16, vcc")
        A("v_sub_f32 v4, v8, v16"); A("v_mul_f32 v18, v4, v4")
        for k in range(1,8): A(f"v_sub_f32 v4, v{8+k}, v16"); A("v_fmac_f32 v18, v4, v4")
        wave_sum(18,19)
        A(f"v_mul_f32 v18, {f2u(1.0/448):#x}, v18")
        A("v_cvt_pk_bf16_f32 v18, 0, v18")
        A(f"v_add_f32 v18, {f2u(1e-5):#x}, v18")
        A("v_cvt_pk_bf16_f32 v18, 0, v18")
        A("v_sqrt_f32 v18, v18"); A("s_nop 0")
        A("v_cvt_pk_bf16_f32 v18, 0, v18")
        A("v_rcp_f32 v19, v18")
        for k in range(8):
            A(f"v_sub_f32 v{8+k}, v{8+k}, v17"); A(f"v_cvt_pk_bf16_f32 v{8+k}, 0, v{8+k}")
            A(f"v_mul_f32 v4, v{8+k}, v19"); A(f"v_fma_f32 v6, -v4, v18, v{8+k}")
            if dup: A("v_fma_f32 v4, v6, v19, v4"); A(f"v_cvt_pk_bf16_f32 v{8+k}, v4, v4")
            else: A(f"v_fma_f32 v{8+k}, v6, v19, v4")
        if not dup:
            for k in range(4): A(f"v_cvt_pk_bf16_f32 v{8+k}, v{8+2*k}, v{9+2*k}")
    def wq_load(t):
        A(f"buffer_load_dwordx4 v[{D0+4*t}:{D0+4*t+3}], v{hAD}, s[52:55], s48 offen {QF}")
        A("s_add_u32 s48, s48, 65536")
        if rot and t%4==3 and t<55: A(f"s_cmp_ge_u32 s48, {56*65536}"); A("s_cselect_b32 s48, 0, s48")
    def gemv56(bar_at):
        XX=[4,8]; BB=[12,16]
        A("s_waitcnt lgkmcnt(0)")
        A(f"ds_read_b128 v[4:7], v{hLD}"); A(f"ds_read_b128 v[8:11], v{hLD} offset:16")
        def bp(t):
            if t%4==0: A(f"s_waitcnt lgkmcnt({1 if t//4+1<14 else 0})")
            for r in range(4): A(f"v_and_b32 v{BB[t%2]+r}, v{XX[(t//4)%2]+t%4}, v{hM+r}")
            if t%4==3 and t//4+2<14:
                x=XX[(t//4)%2]; A(f"ds_read_b128 v[{x}:{x+3}], v{hLD} offset:{16*(t//4+2)}")
        bp(0)
        for t in range(56):
            if t+1<56: bp(t+1)
            else: A("s_nop 0")
            if t+QD<56: wq_load(t+QD)
            if t+QD==bar_at: A("s_barrier")
            A(f"s_waitcnt vmcnt({min(QD,55-t)})")
            A(f"v_mfma_f32_16x16x32_bf16 v[{hACC}:{hACC+3}], v[{D0+4*t}:{D0+4*t+3}], v[{BB[t%2]}:{BB[t%2]+3}], {'0' if t==0 else f'v[{hACC}:{hACC+3}]'}")
        A("s_nop 7")
        combine(hACC,12)
    def ln_part(wait):
        masks(hM,12,13)
        A(f"s_waitcnt vmcnt({wait})")
        layernorm(4,True)
        C("X'[e][(t - 4*rot) mod 56]")
        A("s_sub_u32 s47, s3, 1"); A(f"s_mul_i32 s47, s47, {X_SZ}"); A(f"s_add_u32 s47, s47, {L_X}")
        A("s_lshl_b32 s50, s51, 2"); A("v_subrev_u32 v5, s50, v0"); A("v_add_u32 v6, 56, v5"); A("v_min_u32 v5, v5, v6")
        A("v_cmp_lt_u32 vcc, 55, v0"); A("s_nop 1"); A("v_cndmask_b32 v5, v5, v0, vcc")
        A("v_lshl_add_u32 v5, v5, 2, s47")
        for k in range(8): A(f"ds_write_b32 v5, v{8+k} offset:{k*X_STR}")
        A(f"v_mul_u32_u24 v{hLD}, {X_STR}, v2"); A(f"v_add_u32 v{hLD}, s47, v{hLD}")
    C("q column block w-1 over all 448 rows of wq, tile order rotated by 4*s51 tiles")
    A("v_lshlrev_b32 v1, 4, v0")
    A(f"v_lshlrev_b32 v{hAD}, 13, v2"); A(f"v_lshl_add_u32 v{hAD}, v3, 4, v{hAD}")
    A("s_mul_i32 s47, s30, 896")
    A("s_lshl_b32 s48, s31, 9"); A("s_sub_u32 s49, s3, 1"); A("s_lshl_b32 s49, s49, 7"); A("s_add_u32 s48, s48, s49"); A(f"s_sub_u32 s49, {448*8192}, s48")
    if rot: A("s_mul_i32 s51, s30, 7"); A("s_lshr_b32 s51, s51, 2")
    else: A("s_mov_b32 s51, 0")
    A("s_waitcnt lgkmcnt(0)")
    srd(88,4,5,"s47",896)
    srd(52,10,11,"s48","s49")
    A("buffer_load_dwordx4 v[4:7], v1, s[88:91], 0 offen")
    if st0: STAMP(1)
    A("s_lshl_b32 s48, s51, 18")
    A("s_cmp_eq_u32 s28, 1"); A("s_cbranch_scc1 L_q1")
    for t in range(QD): wq_load(t)
    ln_part(QD); gemv56(55); A("s_branch L_q2")
    A("L_q1:")
    ln_part(0); A("s_barrier")
    for t in range(QD): wq_load(t)
    gemv56(None)
    A("L_q2:")
    C("q -> bf16 -> LDS: addr = m*128 + (4*rowq+hi)*16 + j*2 (+32 for the second register)")
    A("v_cvt_pk_bf16_f32 v12, v12, v13")
    A("v_bfe_u32 v4, v0, 4, 1"); A("v_lshrrev_b32 v5, 5, v0"); A("v_lshl_add_u32 v4, v4, 2, v5"); A("v_lshlrev_b32 v4, 4, v4"); A("v_lshl_add_u32 v4, v3, 1, v4")
    A("s_sub_u32 s47, s3, 1"); A("s_lshl_b32 s47, s47, 7"); A("v_add_u32 v4, s47, v4")
    A("s_mov_b64 exec, s[60:61]")
    A(f"ds_write_b16 v4, v12 offset:{L_Q}"); A(f"ds_write_b16_d16_hi v4, v12 offset:{L_Q+32}")
    A("s_mov_b64 exec, -1")
    A("s_waitcnt lgkmcnt(0)")
    if not st0: STAMP(1)
    A("s_barrier")
    STAMP(2)
    srd_slots()
    C("FFN: wave 1 of 28 workgroups, slice f of 64 hidden units for all 8 batches")
    A("s_cmp_lg_u32 s3, 1"); A("s_cbranch_scc1 L_wo")
    if skipffn: A("s_branch L_wo")
    A("s_cmp_lg_u32 s28, 1"); A("s_cbranch_scc1 L_wo")
    A("s_mov_b32 s51, s31"); A("s_cmp_eq_u32 s30, s26"); A("s_cbranch_scc1 L_ffn")
    A("s_add_u32 s51, s31, 16"); A("s_xor_b32 s47, s26, 4"); A("s_cmp_lg_u32 s30, s47"); A("s_cbranch_scc1 L_wo")
    A("s_cmp_ge_u32 s51, 28"); A("s_cbranch_scc1 L_wo")
    A("L_ffn:")
    A("s_mov_b32 s50, 3584")
    A("s_lshl_b32 s48, s51, 7"); A(f"s_sub_u32 s49, {448*3584}, s48"); srd(52,16,17,"s48","s49")
    A(f"v_mul_u32_u24 v{hAD}, 3584, v2"); A(f"v_lshl_add_u32 v{hAD}, v3, 4, v{hAD}")
    C("raw x of the 8 batches -> XN, then layernorm in place while the first w1 tiles are in flight")
    srd(88,4,5,None,8*896)
    A(f"v_add_u32 v5, {L_XN}, v1"); A("v_cmp_gt_u32 vcc, 56, v0"); A("v_mov_b32 v6, 0x10000"); A("s_nop 0"); A("v_cndmask_b32 v6, v6, v1, vcc")
    for b in range(8): A(f"buffer_load_dwordx4 v[{224+4*b}:{227+4*b}], v6, s[88:91], 0 offen offset:{896*b}" if 896*b<4096 else f"buffer_load_dwordx4 v[{224+4*b}:{227+4*b}], v6, s[88:91], s50 offen offset:{896*b-3584}")
    A("s_mov_b32 s48, 0")
    def w1_load(t):
        A(f"buffer_load_dwordx4 v[{D0+4*t}:{D0+4*t+3}], v{hAD}, s[52:55], s48 offen {SF}")
        A(f"s_add_u32 s48, s48, {8*3584}")
    for t in range(NF): w1_load(t)
    A(f"s_waitcnt vmcnt({NF})")
    for b in range(8): A(f"ds_write_b128 v5, v[{224+4*b}:{227+4*b}] offset:{XN_STR*b}")
    A("s_mov_b32 s49, 8")
    A("L_ln8:")
    A("s_waitcnt lgkmcnt(0)")
    A("ds_read_b128 v[20:23], v5"); A("s_waitcnt lgkmcnt(0)")
    layernorm(20,False)
    A("ds_write_b128 v5, v[8:11]")
    A(f"v_add_u32 v5, {XN_STR}, v5"); A("s_sub_u32 s49, s49, 1"); A("s_cmp_lg_u32 s49, 0"); A("s_cbranch_scc1 L_ln8")
    for t in range(NF,56):
        A(f"s_waitcnt vmcnt({NF-1})"); w1_load(t)
    A("s_waitcnt vmcnt(0)")
    def transpose4(regs):
        for k in range(4): A(f"ds_write_b128 v{hAD}, v[{regs[k]}:{regs[k]+3}] offset:{T_STR*k}")
        A("s_waitcnt lgkmcnt(0)")
        for nu in range(4):
            for hf in range(2): A(f"ds_read_b64_tr_b16 v[{regs[nu]+2*hf}:{regs[nu]+2*hf+1}], v{hLD} offset:{512*hf+32*nu}")
        A("s_waitcnt lgkmcnt(0)")
    t_addr(hAD,hLD,True)
    for ka in range(14): transpose4([D0+16*ka+4*k for k in range(4)])
    C("A fragments: row i of the MFMA is batch (i&3) (+4 in the second pass)")
    A("v_and_b32 v30, 3, v0"); A(f"v_mul_u32_u24 v30, {XN_STR}, v30"); A("v_lshrrev_b32 v31, 4, v0"); A("v_lshl_add_u32 v30, v31, 4, v30")
    A("v_lshlrev_b32 v1, 1, v0")
    for ps in range(2):
        for ka in range(14):
            A(f"ds_read_b128 v[{20+4*(ka%2)}:{23+4*(ka%2)}], v30 offset:{L_XN+4*XN_STR*ps+64*ka}"); A("s_waitcnt lgkmcnt(0)")
            for nu in range(4):
                a=4+4*nu; w=D0+16*ka+4*nu
                A(f"v_mfma_f32_16x16x32_bf16 v[{a}:{a+3}], v[{20+4*(ka%2)}:{23+4*(ka%2)}], v[{w}:{w+3}], {'0' if ka==0 else f'v[{a}:{a+3}]'}")
        A("s_nop 7")
        for r in range(4):
            rowsel(4+r,[4+r,8+r,12+r,16+r])
        for r in range(4):
            k=4+r
            A(f"v_cvt_pk_bf16_f32 v{k}, 0, v{k}")
            A(f"v_mul_f32 v20, {f2u(-math.log2(math.e)):#x}, v{k}"); A("v_exp_f32 v20, v20"); A("s_nop 0")
            A("v_add_f32 v20, 1.0, v20"); A("v_rcp_f32 v20, v20"); A("s_nop 0")
            A(f"v_mul_f32 v{k}, v{k}, v20"); A(f"v_cvt_pk_bf16_f32 v{k}, v{k}, v{k}")
            A(f"ds_write_b16 v1, v{k} offset:{L_HP+HP_STR*(4*ps+r)}")
    C("w2 rows 64f..64f+63: (block beta, tile t) -> D0 + 32*beta + 4*t")
    A(f"s_mul_i32 s48, s51, {64*896}"); A(f"s_sub_u32 s49, {1792*896}, s48"); srd(52,18,19,"s48","s49")
    A("v_mul_u32_u24 v4, 896, v2"); A("v_lshl_add_u32 v4, v3, 4, v4")
    A("s_mov_b32 s48, 0")
    for t in range(8):
        for be in range(7):
            if 7*t+be>=NF: A(f"s_waitcnt vmcnt({NF-1})")
            rr=D0+32*be+4*t
            A(f"buffer_load_dwordx4 v[{rr}:{rr+3}], v4, s[52:55], s48 offen offset:{128*be} {SF}")
        A("s_add_u32 s48, s48, 7168")
    tag_wait(1)
    for g in range(14): transpose4([D0+16*g+4*k for k in range(4)])
    A("v_and_b32 v30, 3, v0"); A(f"v_mul_u32_u24 v30, {HP_STR}, v30"); A("v_lshrrev_b32 v31, 4, v0"); A("v_lshl_add_u32 v30, v31, 4, v30")
    A("v_lshlrev_b32 v31, 2, v0")
    A("s_lshl_b32 s47, s51, 12"); srd(52,24,25,"s47",1<<20)
    for ps in range(2):
        A(f"ds_read_b128 v[20:23], v30 offset:{L_HP+4*HP_STR*ps}"); A(f"ds_read_b128 v[24:27], v30 offset:{L_HP+4*HP_STR*ps+64}")
        for r in range(4): A(f"s_mov_b32 s{44+r}, {(4*ps+r)<<17}")
        A("s_waitcnt lgkmcnt(0)")
        for be in range(7):
            for ka in range(2):
                for nu in range(4):
                    a=4+4*nu; w=D0+32*be+16*ka+4*nu
                    A(f"v_mfma_f32_16x16x32_bf16 v[{a}:{a+3}], v[{20+4*ka}:{23+4*ka}], v[{w}:{w+3}], {'0' if ka==0 else f'v[{a}:{a+3}]'}")
            A("s_nop 7")
            for r in range(4):
                rowsel(4+r,[4+r,8+r,12+r,16+r])
            for r in range(4):
                A(f"v_add_u32 v{4+r}, 0x800, v{4+r}"); A(f"v_and_or_b32 v{4+r}, v{4+r}, s97, v1")
                A(f"buffer_store_dword v{4+r}, v31, s[52:55], s{44+r} offen offset:{2048+256*be} {SC}")
            A("s_nop 1")
    STAMP(3)
    A("s_barrier")
    wo_issue(NW7)
    A("s_branch L_tail")
    A("L_end:")
    A("s_endpgm")
    body="\n".join(("" if (l.endswith(":") or l.startswith(".")) else "    ")+l for l in L)+"\n"
    head=HEADER+f"; @launch grid=(256,1,1) block=(512,1,1) lds={L_END}\n"
    return head+body+kd(NAME,256,102,256), L_END

if __name__=="__main__":
    kw=eval("dict(%s)"%(sys.argv[2] if len(sys.argv)>2 else ""))
    t,ldsz=gen(**kw)
    out=sys.argv[1]
    if out.endswith(".s"): open(out,"w").write(t)
    else:
        assemble(t+meta([(NAME,256,102,512)]), out); print(f"work/{out}:{NAME},256,512,{ldsz}")
```

```python
import sys, math, struct
from common import *

NAME="parallel_sum__mha_block_cached__dense_activation_silu__decode_kernel"
HEADER=open("parallel_sum__mha_block_cached__dense_activation_silu__decode.s.ref").read().split("; Override launch")[0]

L_Q=0; L_MX=512; L_SC=576; L_TAG=580; L_PRG=584; L_CTL=588; L_XB=640
L_O=768
L_S=1280; S_STR=1040
L_X=L_S+8*S_STR; X_STR=272; X_SZ=8*X_STR
L_XN=L_X+4*X_SZ; XN_STR=1040
L_HP=L_XN+8*XN_STR; HP_STR=144
L_T=L_HP+8*HP_STR; T_STR=1056; T_SZ=8*T_STR
L_END=L_T+7*T_SZ
CEXP=math.log2(math.e)/16.0
def f2u(f): return struct.unpack("<I",struct.pack("<f",f))[0]

def gen(N=24, N0=10, R=48, NF=8, NW=1, NW7=4, QD=12, stamp=False, SC="sc1", HF="", QF="", SF="nt",
        rot=1, ctl=(18,24,32), ctlK=None, TH=6, BIAS=0, PD=2, RD=2, msleep=4, xb=1, dpoll=1, skipwo=0, skipffn=0, NT=None, late=1, pulse=0, st0=0, OF='', dual=0, dry=0, TS=8, SD=3, PF=None, YF=None, dps=4, pb=1, BO=0, BF=None, WF='nt', wrot=0, wsplit=1):
    L=[]; A=L.append
    def C(s): A("    ; "+s)
    lbl=[0]
    def newl(): lbl[0]+=1; return lbl[0]
    def STAMP(i):
        if stamp: A(f"s_memrealtime s[{70+2*i}:{71+2*i}]")
    def srd(d, lo, hi, off, size):
        if off is None: A(f"s_mov_b32 s{d}, s{lo}"); A(f"s_mov_b32 s{d+1}, s{hi}")
        else: A(f"s_add_u32 s{d}, s{lo}, {off}"); A(f"s_addc_u32 s{d+1}, s{hi}, 0")
        A(f"s_mov_b32 s{d+2}, {size}"); A(f"s_mov_b32 s{d+3}, 0x20000")
    def masks(base,t0,t1):
        A(f"v_and_b32 v{t0}, 1, v3"); A(f"v_lshlrev_b32 v{t0}, 4, v{t0}"); A(f"v_mov_b32 v{t1}, 0xffff"); A(f"v_lshlrev_b32 v{t0}, v{t0}, v{t1}")
        A(f"v_lshrrev_b32 v{t1}, 1, v3")
        for r in range(4):
            A(f"v_cmp_eq_u32 vcc, {r}, v{t1}"); A("s_nop 1"); A(f"v_cndmask_b32 v{base+r}, 0, v{t0}, vcc")
    def stamp_out(tmp=4):
        if not stamp: return
        A("s_waitcnt lgkmcnt(0)")
        A("s_mov_b64 exec, 1")
        srd(64,24,25,None,0x40000000)
        A("s_lshl_b32 s68, s2, 3"); A("s_add_u32 s68, s68, s3"); A("s_lshl_b32 s68, s68, 5"); A("s_add_u32 s68, s68, 0x20000000")
        A("s_getreg_b32 s69, hwreg(HW_REG_XCC_ID)")
        for i in range(7): A(f"v_mov_b32 v{tmp+i}, s{70+2*i}")
        A(f"v_mov_b32 v{tmp+7}, s69")
        A(f"buffer_store_dwordx4 v[{tmp}:{tmp+3}], off, s[64:67], s68")
        A(f"buffer_store_dwordx4 v[{tmp+4}:{tmp+7}], off, s[64:67], s68 offset:16")
        A("s_waitcnt vmcnt(0)")
    def srd_slots():
        A("s_lshl_b32 s47, s33, 12"); srd(36,24,25,"s47",4096)
        A("s_lshl_b32 s47, s30, 17"); srd(40,24,25,"s47",131072)
        srd(56,22,23,None,256)
    def tag_wait(t):
        n=newl()
        A("s_mov_b32 s49, 400000")
        A(f"L_cw{n}:")
        A(f"buffer_load_dword v{t}, off, s[56:59], 0 {SC}"); A("s_waitcnt vmcnt(0)")
        A(f"v_cmp_eq_u32 vcc, 0, v{t}"); A("s_sub_u32 s49, s49, 1"); A(f"s_cbranch_scc1 L_cwx{n}")
        A(f"s_cbranch_vccz L_cwx{n}"); A("s_sleep 8"); A(f"s_branch L_cw{n}")
        A(f"L_cwx{n}:")
        A(f"v_and_b32 v{t}, 0xfff, v{t}"); A("s_nop 0"); A(f"v_readfirstlane_b32 s96, v{t}")
    def g_issue(off,b,vad,srdn,only28=False):
        SC=(PF or "sc1") if not only28 else "sc1"
        A(f"buffer_load_dwordx4 v[{b}:{b+3}], v{vad}, s[{srdn}:{srdn+3}], 0 offen offset:{off} {SC}")
        if only28: A("s_mov_b64 exec, s[62:63]")
        A(f"buffer_load_dwordx4 v[{b+4}:{b+7}], v{vad}, s[{srdn}:{srdn+3}], s47 offen offset:{off} {SC}")
        if only28: A("s_mov_b64 exec, -1")
    def g_check(b,t,vtag,younger):
        A(f"s_waitcnt vmcnt({younger+1})")
        A(f"v_xor_b32 v{t}, v{b}, v{vtag}")
        for r in range(1,4): A(f"v_bitop3_b32 v{t}, v{b+r}, v{vtag}, v{t} bitop3:0xbe")
        A(f"s_waitcnt vmcnt({younger})")
        for r in range(4,8): A(f"v_bitop3_b32 v{t}, v{b+r}, v{vtag}, v{t} bitop3:0xbe")
        A(f"v_and_b32 v{t}, 0xfff, v{t}")
        A(f"v_cmp_ne_u32 vcc, 0, v{t}")
    def g_reduce(b,vtag):
        for r in range(8): A(f"v_xor_b32 v{b+r}, v{b+r}, v{vtag}")
        for r in range(4): A(f"v_add_f32 v{b+r}, v{b+r}, v{b+4+r}")
        for pat in ["row_ror:4","row_ror:8"]:
            for r in range(4): A(f"v_add_f32_dpp v{b+r}, v{b+r}, v{b+r} {pat} row_mask:0xf bank_mask:0xf")
        for r in range(1,4): A(f"v_mov_b32_dpp v{b}, v{b+r} quad_perm:[0,1,2,3] row_mask:0xf bank_mask:{1<<r:#x}")
        for sw in ["16","32"]:
            A(f"v_mov_b32 v{b+1}, v{b}"); A("s_nop 1"); A(f"v_permlane{sw}_swap_b32 v{b}, v{b+1}"); A(f"v_add_f32 v{b}, v{b}, v{b+1}")
    def g_addr(vad,vcol,t):
        A(f"v_lshrrev_b32 v{vad}, 2, v0"); A(f"v_and_b32 v{t}, 3, v0"); A(f"v_and_b32 v{vcol}, 3, v{vad}")
        A(f"v_lshlrev_b32 v{vad}, 12, v{vad}"); A(f"v_lshl_add_u32 v{vad}, v{t}, 4, v{vad}")
        A("s_lshl_b32 s47, s32, 6"); A(f"v_add_u32 v{vad}, s47, v{vad}")
        A(f"v_lshl_add_u32 v{vcol}, v{t}, 2, v{vcol}"); A("s_lshl_b32 s47, s32, 5"); A(f"v_lshl_add_u32 v{vcol}, v{vcol}, 1, s47")
    def wave_sum(v,t):
        for pat in ["quad_perm:[1,0,3,2]","quad_perm:[2,3,0,1]","row_half_mirror","row_mirror"]:
            A("s_nop 1"); A(f"v_add_f32_dpp v{v}, v{v}, v{v} {pat} row_mask:0xf bank_mask:0xf")
        for sw in ["16","32"]:
            A(f"v_mov_b32 v{t}, v{v}"); A("s_nop 1"); A(f"v_permlane{sw}_swap_b32 v{v}, v{t}"); A(f"v_add_f32 v{v}, v{v}, v{t}")
    def max16(dst,b):
        A(f"v_max3_f32 v{dst}, v{b}, v{b+1}, v{b+2}")
        for k in range(3,15,2): A(f"v_max3_f32 v{dst}, v{dst}, v{b+k}, v{b+k+1}")
        A(f"v_max_f32 v{dst}, v{dst}, v{b+15}")

    A('.amdgcn_target "amdgcn-amd-amdhsa--gfx950"'); A(".text"); A(f".globl {NAME}"); A(".p2align 8"); A(f".type {NAME},@function"); A(f"{NAME}:")
    A("s_cmp_ge_u32 s2, 256"); A("s_cbranch_scc1 L_end")
    STAMP(0)
    A("s_load_dwordx16 s[4:19], s[0:1], 0")
    A("s_load_dwordx4 s[20:23], s[0:1], 64")
    A("s_load_dwordx2 s[24:25], s[0:1], 80")
    A("v_lshrrev_b32 v1, 6, v0"); A("v_and_b32 v0, 63, v0"); A("v_readfirstlane_b32 s3, v1")
    A("s_and_b32 s26, s2, 7"); A("s_lshr_b32 s27, s2, 3"); A("s_and_b32 s28, s27, 1")
    A("s_bfe_u32 s29, s27, 0x10001"); A("s_lshr_b32 s30, s27, 2")
    A("s_lshl_b32 s29, s29, 3"); A("s_add_u32 s31, s26, s29")
    A("s_lshl_b32 s32, s31, 1"); A("s_add_u32 s32, s32, s28")
    A("s_lshl_b32 s33, s30, 5"); A("s_add_u32 s33, s33, s32")
    C("s28=half s30=batch s31=head s32=2*head+half s33=32*batch+s32 ; v2=lane>>3 v3=lane&7")
    A("v_lshrrev_b32 v2, 3, v0"); A("v_and_b32 v3, 7, v0")
    A(f"s_mov_b32 s34, {f2u(CEXP):#x}")
    A("s_mov_b32 s60, 0x00ff00ff"); A("s_mov_b32 s61, 0x00ff00ff"); A("s_mov_b32 s97, 0xfffff000")
    if wrot==1: A("s_and_b32 s99, s30, 3")
    if wrot==2: A("s_lshr_b32 s99, s30, 1")
    if wrot==3: A("s_lshl_b32 s99, s28, 1"); A("s_add_u32 s99, s99, s30"); A("s_and_b32 s99, s99, 3")
    A("s_cmp_eq_u32 s3, 0"); A("s_cbranch_scc1 L_stream")
    A("s_cmp_ge_u32 s3, 5"); A("s_cbranch_scc1 L_buf")
    A("s_branch L_help")

    RING=256-4*R
    vK=4; vV=5; vSW=6; vSR=7; vMX=8; vR=9; vR2=10; vA=[11,12]; vB=[13,14]; vQ=16
    def slot(i): return RING+4*(i%R)
    def k_consume(c, dsoff):
        p=c%8; m=p%4; acc=vA if p<4 else vB; r=slot(c)
        for k in range(4):
            src2 = "0" if (m==0 and k<2) else f"v{acc[k%2]}"
            A(f"v_dot2_f32_bf16 v{acc[k%2]}, v{r+k}, v{vQ+4*m+k}, {src2}")
        prev = dsoff is not None
        if p==0 and prev: A(f"v_add_f32 v{vB[0]}, v{vB[0]}, v{vB[1]}")
        if p==1 and prev: A(f"v_add_f32_dpp v{vR}, v{vB[0]}, v{vB[0]} row_half_mirror row_mask:0xf bank_mask:0xa")
        if p==2 and prev: A(f"v_add_f32_dpp v{vR}, v{vR}, v{vR} quad_perm:[1,0,3,2] row_mask:0xf bank_mask:0xf")
        if p==3 and prev: A(f"v_add_f32_dpp v{vR}, v{vR}, v{vR} quad_perm:[2,3,0,1] row_mask:0xf bank_mask:0xf")
        if p==4:
            if prev: A(f"v_cvt_pk_bf16_f32 v{vR2}, 0, v{vR}")
            A(f"v_add_f32 v{vA[0]}, v{vA[0]}, v{vA[1]}")
        if p==5:
            if prev: A(f"v_max_f32 v{vMX}, v{vMX}, v{vR2}"); A(f"ds_write_b32 v{vSW}, v{vR2} offset:{dsoff}")
            A(f"v_add_f32_dpp v{vR}, v{vA[0]}, v{vA[0]} row_half_mirror row_mask:0xf bank_mask:0x5")
    def k_flush(dsoff):
        A("s_nop 2"); A(f"v_add_f32 v{vB[0]}, v{vB[0]}, v{vB[1]}"); A("s_nop 1")
        A(f"v_add_f32_dpp v{vR}, v{vB[0]}, v{vB[0]} row_half_mirror row_mask:0xf bank_mask:0xa"); A("s_nop 1")
        A(f"v_add_f32_dpp v{vR}, v{vR}, v{vR} quad_perm:[1,0,3,2] row_mask:0xf bank_mask:0xf"); A("s_nop 1")
        A(f"v_add_f32_dpp v{vR}, v{vR}, v{vR} quad_perm:[2,3,0,1] row_mask:0xf bank_mask:0xf")
        A(f"v_cvt_pk_bf16_f32 v{vR2}, 0, v{vR}")
        A(f"v_max_f32 v{vMX}, v{vMX}, v{vR2}"); A(f"ds_write_b32 v{vSW}, v{vR2} offset:{dsoff}")
    def mx_publish(w, tmp):
        A("s_nop 1")
        A(f"v_max_f32_dpp v{vMX}, v{vMX}, v{vMX} row_ror:4 row_mask:0xf bank_mask:0xf"); A("s_nop 1")
        A(f"v_max_f32_dpp v{vMX}, v{vMX}, v{vMX} row_ror:8 row_mask:0xf bank_mask:0xf")
        A(f"v_lshrrev_b32 v{tmp}, 4, v0"); A(f"v_lshlrev_b32 v{tmp}, 2, v{tmp}")
        if isinstance(w,int): A(f"ds_write_b32 v{tmp}, v{vMX} offset:{L_MX+16*w}")
        else: A(f"v_add_u32 v{tmp}, {w}, v{tmp}"); A(f"ds_write_b32 v{tmp}, v{vMX} offset:{L_MX}")
    def k_setup():
        A(f"v_lshlrev_b32 v{vK}, 9, v2"); A(f"v_lshl_add_u32 v{vK}, v3, 4, v{vK}")
        A(f"v_mul_u32_u24 v{vSW}, {S_STR}, v2"); A(f"v_lshrrev_b32 v{vSR}, 2, v3"); A(f"v_lshl_add_u32 v{vSW}, v{vSR}, 2, v{vSW}")
        A(f"v_mov_b32 v{vMX}, 0xff800000")
        A("s_lshl_b32 s35, s33, 20")
    def q_read():
        A(f"v_lshlrev_b32 v{vR}, 4, v3")
        for m in range(4): A(f"ds_read_b128 v[{vQ+4*m}:{vQ+4*m+3}], v{vR} offset:{L_Q+128*m}")
        A("s_waitcnt lgkmcnt(0)")
    def bar0(first):
        n=newl()
        A(f"s_cmp_eq_u32 s28, {1 if first else 0}"); A(f"s_cbranch_scc1 L_b0_{n}"); A("s_barrier"); A(f"L_b0_{n}:")
    NP0=R//8; NB=3
    NKS=1024-NB*R
    NTOT=NKS+1024
    NT=NT or N

    A("L_stream:")
    A("s_setprio 3")
    k_setup()
    A(f"v_mov_b32 v{vV}, v{vK}")
    vVq=[60,61,62,63]
    if wrot:
        C("logical quarter g of d is physical quarter (g + s99) & 3")
        for q in range(4):
            A(f"s_add_u32 s47, s99, {q}"); A("s_and_b32 s47, s47, 3"); A("s_lshl_b32 s47, s47, 7"); A(f"v_add_u32 v{vVq[q]}, s47, v{vK}")
    vZ=36; vPC=37; vPP=38
    A(f"v_mov_b32 v{vZ}, 0"); A(f"ds_write_b32 v{vZ}, v{vZ} offset:{L_PRG}")
    A("s_waitcnt lgkmcnt(0)")
    srd(36,6,7,"s35",1<<20); srd(40,8,9,"s35",1<<20)
    A("s_mov_b32 s44, 0"); A("s_mov_b32 s45, 0"); A("s_mov_b32 s50, 2")
    U1=1024-4*TS
    def vmap(u):
        if u<U1: return u//4, u%4
        v=u-U1
        return 256-TS+v%TS, v//TS
    def vgrp(u): return (u//4, u%4, 4) if u<U1 else (U1//4+(u-U1), 0, 1)
    def issue(i):
        r=slot(i)
        if i<NKS:
            A(f"buffer_load_dwordx4 v[{r}:{r+3}], v{vK}, s[36:39], s44 offen offset:{128*(i%4)} {SF}")
            if i%4==3: A(f"s_add_u32 s44, s44, {4096+NB*8192 if (i<R and i%8==7) else 4096}")
        elif i<NTOT:
            u=i-NKS; tile,q=vmap(u)
            if wrot: A(f"buffer_load_dwordx4 v[{r}:{r+3}], v{vVq[q]}, s[40:43], s45 offen {SF}")
            else: A(f"buffer_load_dwordx4 v[{r}:{r+3}], v{vV}, s[40:43], s45 offen offset:{128*q} {SF}")
            if u+1<1024:
                d=vmap(u+1)[0]-tile
                if d>0: A(f"s_add_u32 s45, s45, {4096*d}")
                if d<0: A(f"s_sub_u32 s45, s45, {-4096*d}")
    DK=R-1
    bar0(True)
    for i in range(DK):
        if i>=N0: A(f"s_waitcnt vmcnt({N0-1})")
        issue(i)
        if st0 and i==0: STAMP(1)
        if i==N0-1:
            A("s_lshl_b32 s47, s30, 17"); srd(52,24,25,"s47",131072)
            A("s_mul_i32 s47, s30, 896"); srd(92,20,21,"s47",896)
    bar0(False)
    if not st0: STAMP(1)
    A("s_barrier")
    STAMP(2)
    q_read()
    cur=[None]
    def pair_T(pi): return 2*((NB+1)*pi) if pi<NP0 else 2*((NB+1)*NP0+(pi-NP0))
    def kstep(c, dsbase):
        I=c+DK
        A(f"s_waitcnt vmcnt({min((cur[0] or N)-1,I-c-1)})")
        issue(I)
        pi=c//8
        k_consume(c, None if pi==0 else L_S+4*pair_T(pi-1)-dsbase)
    for c in range(0,2*R): kstep(c,0)
    nK=(NKS-DK-2*R)//R
    A(f"s_mov_b32 s46, {nK}")
    def loop_variants(tag, body, post, zr, cr, pr, lv):
        for v in (1,0,2):
            A(f"L_{tag}{v}:")
            rd=f"ds_read_b32 v{cr}, v{zr} offset:{L_CTL}"
            if not late: A(rd)
            m0=len(L)
            cur[0]=lv[v]; body(); cur[0]=None
            if late:
                w=[i for i in range(m0,len(L)) if L[i].startswith("s_waitcnt vmcnt")]
                assert len(w)==R
                L.insert(w[R-3],rd)
            post()
            A("s_add_u32 s50, s50, 1"); A(f"v_mov_b32 v{pr}, s50")
            A("s_waitcnt lgkmcnt(0)")
            A(f"v_readfirstlane_b32 s48, v{cr}")
            A(f"ds_write_b32 v{zr}, v{pr} offset:{L_PRG}")
            A("s_sub_u32 s46, s46, 1"); A("s_cmp_eq_u32 s46, 0"); A(f"s_cbranch_scc1 L_{tag}x")
            o=[w for w in (0,1,2) if w!=v]
            A(f"s_cmp_eq_u32 s48, {v}"); A(f"s_cbranch_scc1 L_{tag}{v}")
            A(f"s_cmp_eq_u32 s48, {o[0]}"); A(f"s_cbranch_scc1 L_{tag}{o[0]}")
            A(f"s_branch L_{tag}{o[1]}")
        A(f"L_{tag}x:")
    def kbody():
        for c in range(2*R,3*R): kstep(c,0)
    loop_variants("kloop", kbody, lambda: A(f"v_add_u32 v{vSW}, {R}, v{vSW}"), vZ, vPC, vPP, ctlK or ctl)
    dsb=nK*R
    for c in range((2+nK)*R,NKS): kstep(c,dsb)
    k_flush(L_S+4*pair_T(NKS//8-1)-dsb)
    mx_publish(0, vR)
    vM=[12,13,14,15]; vNM=11; vT=9; vP=10; vACC=16; vBB=[32,36]; vSS=[40,44,48]; vTM=52
    masks(vM[0], vTM, vTM+1)
    A(f"v_mul_u32_u24 v{vSR}, {S_STR}, v2")
    A(f"v_mov_b32 v{vT}, 0")
    A("s_waitcnt lgkmcnt(0)")
    STAMP(3)
    A("s_barrier")
    for w in range(4): A(f"ds_read_b128 v[{16+4*w}:{16+4*w+3}], v{vT} offset:{L_MX+16*w}")
    A(f"ds_read_b128 v[{vSS[0]}:{vSS[0]+3}], v{vSR} offset:{L_S}")
    inext=[NKS+DK]
    A(f"s_waitcnt vmcnt({N-1})")
    issue(inext[0]); inext[0]+=1
    A("s_waitcnt lgkmcnt(0)")
    max16(vNM,16)
    A(f"v_mul_f32 v{vNM}, s34, v{vNM}"); A(f"v_sub_f32 v{vNM}, 0, v{vNM}")
    for r in range(16): A(f"v_mov_b32 v{vACC+r}, 0")
    def bfree(tile):
        return slot(NTOT+(tile-(256-TS))+BO)
    def bprep(tile, part, gi=None):
        s=vSS[(tile//4)%3]+tile%4; b=vBB[(tile if gi is None else gi)%2]
        if tile>=256-TS: b=bfree(tile)
        if part==0: A(f"v_fma_f32 v{vT}, v{s}, s34, v{vNM}")
        if part==1: A(f"v_exp_f32 v{vT}, v{vT}")
        if part==2: A(f"v_cvt_pk_bf16_f32 v{vP}, v{vT}, v{vT}"); A(f"v_and_b32 v{b}, v{vP}, v{vM[0]}")
        if part==3:
            for r in range(1,4): A(f"v_and_b32 v{b+r}, v{vP}, v{vM[r]}")
    bprep(0,0); bprep(0,1); A("s_nop 0"); bprep(0,2); bprep(0,3); A("s_nop 1")
    def o_write(q):
        a=vACC+4*q
        A(f"v_permlane32_swap_b32 v{a}, v{a+1}"); A(f"v_permlane32_swap_b32 v{a+2}, v{a+3}")
        A("s_nop 1")
        A(f"v_add_f32_dpp v{vTM}, v{a+1}, v{a} row_ror:8 row_mask:0xf bank_mask:0xf")
        A(f"v_add_f32_dpp v{vTM+1}, v{a+3}, v{a+2} row_ror:8 row_mask:0xf bank_mask:0xf")
        A(f"v_cvt_pk_bf16_f32 v{vTM}, v{vTM}, v{vTM+1}")
        A("s_mov_b64 exec, s[60:61]")
        A(f"ds_write_b32 v8, v{vTM} offset:{L_O+128*q}")
        A("s_mov_b64 exec, -1")
    def vstep(u, srbase, do_issue=True):
        c=NKS+u; I=inext[0]; mark=len(L)
        if do_issue and I<NTOT:
            A(f"s_waitcnt vmcnt({min((cur[0] or N)-1,I-c-1)})")
            assert I-R < c
            issue(I); inext[0]+=1
        else:
            k=I-c-1
            if k<max(N,NT): A(f"s_waitcnt vmcnt({k})")
        tile,q=vmap(u); gi,pos,n=vgrp(u); r=slot(c); b=vBB[gi%2]
        if tile>=256-TS:
            b=bfree(tile)
        if q==0 and tile%4==0 and tile+4<256:
            nb=vSS[(tile//4+1)%3]
            A(f"ds_read_b128 v[{nb}:{nb+3}], v{vSR} offset:{L_S+4*(tile+4)-srbase}")
        if q==0 and tile%4==3 and tile+1<256: A("s_waitcnt lgkmcnt(0)")
        a=vACC+4*q
        if pos==0 and len(L)-mark<2: A(f"s_nop {1-(len(L)-mark)}")
        A(f"v_mfma_f32_16x16x32_bf16 v[{a}:{a+3}], v[{r}:{r+3}], v[{b}:{b+3}], v[{a}:{a+3}]")
        un=u-pos+n
        if un<1024:
            if n==4: bprep(vmap(un)[0],pos,gi+1)
            elif vmap(un)[1]==0:
                for part in range(4):
                    bprep(vmap(un)[0],part,gi+1)
                    if part==1: A("s_nop 0")
        for qq in range(3):
            if u==U1+(qq+1)*TS-1+SD: o_write(qq)
            if u==U1+(qq+1)*TS+SD: A("s_waitcnt lgkmcnt(0)"); A("s_barrier")
    u=0; DV=max(max(ctl),NT)
    while True:
        D=inext[0]-(NKS+u)
        if D<=DV and u%R==0: break
        if D>DV:
            vstep(u,0,False); u+=1
            D=inext[0]-(NKS+u)
            if D>DV or u%R!=0: vstep(u,0,True); u+=1
        else:
            vstep(u,0,True); u+=1
    assert inext[0]-(NKS+u)==DV and (R//16)%3==0 and R%16==0
    u0=u; PKEND=2+nK; PV0=(inext[0]+R//2)//R-1
    nV=(1024-DV-u0)//R
    while u0+nV*R+16>1024: nV-=1
    PVEND=PV0+nV
    A(f"s_mov_b32 s46, {nV}"); A("v_mov_b32 v6, 0"); A(f"s_mov_b32 s50, {PV0}")
    i0=inext[0]
    def vbody():
        inext[0]=i0
        for uu in range(u0,u0+R): vstep(uu,0,True)
    loop_variants("vloop", vbody, lambda: A(f"v_add_u32 v{vSR}, {R}, v{vSR}"), 6, 4, 8, ctl)
    inext[0]=i0+nV*R
    cur[0]=NT
    C("addresses for the tail: v4 gather address, v6 output offset, v8 O' address")
    g_addr(4,6,8)
    A("v_bfe_u32 v8, v0, 4, 1"); A("v_lshlrev_b32 v8, 6, v8"); A("v_lshrrev_b32 v52, 5, v0"); A("v_lshl_add_u32 v8, v52, 5, v8"); A("v_lshl_add_u32 v8, v3, 2, v8")
    A("s_mov_b32 s47, 65536"); A("s_mov_b32 s49, 400000")
    for uu in range(u0+nV*R,1024): vstep(uu,nV*R,True)
    cur[0]=None
    STAMP(4)
    A("v_and_b32 v7, 15, v0"); A("v_lshlrev_b32 v7, 3, v7"); A("v_mov_b32 v5, 0")
    A("s_nop 4")
    o_write(3)
    A("s_waitcnt lgkmcnt(0)")
    A("s_barrier")
    STAMP(5)
    A("s_cmp_ge_u32 s32, 28"); A("s_cbranch_scc1 L_sdone")
    C("final: 16 output columns = sum over the 32 workgroups of this batch")
    A(f"ds_read_b32 v12, v5 offset:{L_TAG}")
    A(f"ds_read_b64 v[14:15], v7 offset:{L_XB}")
    if pb: A("s_barrier")
    g_issue(0,16,4,52)
    if dpoll: A(f"s_sleep {dps}"); g_issue(0,32,4,52)
    A("s_waitcnt lgkmcnt(0)")
    A("L_fp:")
    g_check(16,13,12,2 if dpoll else 0)
    A("s_sub_u32 s49, s49, 1"); A("s_cbranch_scc1 L_fa"); A("s_cbranch_vccz L_fa")
    g_issue(0,16,4,52)
    if dpoll:
        g_check(32,13,12,2)
        A("s_cbranch_vccz L_fb")
        g_issue(0,32,4,52)
    A("s_branch L_fp")
    def final(b):
        g_reduce(b,12)
        A(f"v_cvt_pk_bf16_f32 v{b}, 0, v{b}"); A(f"v_add_f32 v{b}, v14, v{b}"); A(f"v_cvt_pk_bf16_f32 v{b}, 0, v{b}"); A(f"v_add_f32 v{b}, v{b}, v15")
        A(f"v_cvt_pk_bf16_f32 v{b}, v{b}, v{b}")
        A("s_mov_b64 exec, 0xffff")
        A(f"buffer_store_short v{b}, v6, s[92:95], 0 offen {OF}")
    if dpoll:
        A("L_fb:"); final(32); A("s_branch L_sdone")
    A("L_fa:"); final(16)
    A("L_sdone:")
    STAMP(6)
    stamp_out(48)
    A("s_endpgm")

    hM=20; hACC=24; hAD=28; hLD=29
    WO=128
    def t_addr(vw, vr, natural):
        A("s_sub_u32 s47, s3, 1"); A(f"s_mul_i32 s47, s47, {T_SZ}"); A(f"s_add_u32 s47, s47, {L_T}")
        A(f"v_lshl_add_u32 v{vw}, v0, 4, s47")
        A(f"v_bfe_u32 v{vr}, v0, 2, 2")
        if natural:
            A(f"v_lshlrev_b32 v{vr}, 7, v{vr}"); A(f"v_lshrrev_b32 v31, 4, v0"); A(f"v_mul_u32_u24 v31, {T_STR}, v31")
        else:
            A(f"v_lshrrev_b32 v31, 1, v{vr}"); A(f"v_and_b32 v{vr}, 1, v{vr}"); A(f"v_lshlrev_b32 v{vr}, 1, v{vr}"); A(f"v_lshlrev_b32 v31, 7, v31")
            A("v_lshrrev_b32 v30, 5, v0"); A(f"v_add_u32 v{vr}, v{vr}, v30"); A(f"v_mul_u32_u24 v{vr}, {T_STR}, v{vr}")
            A("v_bfe_u32 v30, v0, 4, 1"); A("v_lshl_add_u32 v31, v30, 9, v31")
        A(f"v_add3_u32 v{vr}, v{vr}, v31, s47"); A("v_and_b32 v31, 3, v0"); A(f"v_lshl_add_u32 v{vr}, v31, 3, v{vr}")
    def wo_issue(nw, gs=(0,1,2,3)):
        C("wo rows of this head, column block c = wave-1; then transpose into MFMA B fragments")
        A("s_mul_i32 s47, s31, 229376"); A("s_sub_u32 s48, s3, 1"); A("s_lshl_b32 s48, s48, 7"); A("s_add_u32 s47, s47, s48")
        A(f"s_sub_u32 s48, {4096*896}, s47")
        srd(52,12,13,"s47","s48")
        A(f"v_mul_u32_u24 v{hAD}, 896, v2"); A(f"v_lshl_add_u32 v{hAD}, v3, 4, v{hAD}")
        n=0
        for g in gs:
            for hf in range(2):
                if not wrot: A(f"s_mov_b32 s47, {7168*(8*g+4*hf)}")
                elif hf==0: A(f"s_add_u32 s47, s99, {g}"); A("s_and_b32 s47, s47, 3"); A(f"s_mul_i32 s47, s47, {7168*8}")
                else: A("s_add_u32 s47, s47, 7168")
                for r in range(4):
                    if skipwo: continue
                    if n>=nw: A(f"s_waitcnt vmcnt({nw-1})")
                    rr=WO+32*g+16*hf+4*r
                    A(f"buffer_load_dwordx4 v[{rr}:{rr+3}], v{hAD}, s[52:55], s47 offen {HF}")
                    if r<3: A("s_add_u32 s47, s47, 7168")
                    n+=1
        t_addr(hAD,hLD,False)
        A("s_waitcnt vmcnt(0)")
        for g in gs:
            for k in range(8): A(f"ds_write_b128 v{hAD}, v[{WO+32*g+4*k}:{WO+32*g+4*k+3}] offset:{T_STR*k}")
            A("s_waitcnt lgkmcnt(0)")
            for kp in range(2):
                for nu in range(4):
                    for hf in range(2):
                        rr=WO+32*g+16*kp+4*nu+2*hf
                        A(f"ds_read_b64_tr_b16 v[{rr}:{rr+1}], v{hLD} offset:{4*T_STR*kp+256*hf+32*nu}")
            A("s_waitcnt lgkmcnt(0)")
    def combine(acc, dst):
        A(f"v_permlane32_swap_b32 v{acc}, v{acc+1}"); A(f"v_permlane32_swap_b32 v{acc+2}, v{acc+3}")
        A("s_nop 1")
        A(f"v_add_f32_dpp v{dst}, v{acc+1}, v{acc} row_ror:8 row_mask:0xf bank_mask:0xf")
        A(f"v_add_f32_dpp v{dst+1}, v{acc+3}, v{acc+2} row_ror:8 row_mask:0xf bank_mask:0xf")
    def rowsel(dst, srcs):
        for k in range(1,4): A(f"v_mov_b32_dpp v{dst}, v{srcs[k]} quad_perm:[0,1,2,3] row_mask:{1<<k:#x} bank_mask:0xf")

    A("L_buf:")
    A("s_setprio 3")
    A("v_mov_b32 v32, 0"); A("v_mov_b32 v33, 1"); A(f"ds_write_b32 v32, v33 offset:{L_CTL}")
    k_setup()
    A("s_waitcnt lgkmcnt(0)")
    srd(84,6,7,"s35",1<<20)
    A("s_sub_u32 s47, s3, 4"); A("s_lshl_b32 s44, s47, 13")
    A("s_lshl_b32 s47, s47, 3"); A(f"v_add_u32 v{vSW}, s47, v{vSW}")
    bar0(True)
    for i in range(R):
        if i==N0:
            srd_slots()
            A("s_cmp_lg_u32 s3, 5"); A("s_cbranch_scc1 L_notag"); A("s_cmp_lg_u32 s2, 0"); A("s_cbranch_scc1 L_notag")
            C("workgroup 0, wave 5: this launch's tag differs from the one left in d_ws; announced in d_debug[0]")
            srd(92,24,25,"0x100000",256)
            A("s_memrealtime s[62:63]")
            A(f"buffer_load_dword v32, off, s[92:95], 0 {SC}"); A("s_waitcnt vmcnt(0) lgkmcnt(0)")
            A("s_and_b32 s62, s62, 0x7ff"); A("s_add_u32 s62, s62, 1")
            A("v_add_u32 v32, s62, v32"); A("v_and_b32 v32, 0xfff, v32"); A("v_or_b32 v33, 0x1000, v32")
            A("s_mov_b64 exec, 1")
            A(f"buffer_store_dword v33, off, s[56:59], 0 {SC}")
            A(f"buffer_store_dword v32, off, s[92:95], 0 {SC}")
            A("s_mov_b64 exec, -1")
            A("L_notag:")
        if i>=N0: A(f"s_waitcnt vmcnt({N0-1})")
        r=slot(i)
        A(f"buffer_load_dwordx4 v[{r}:{r+3}], v{vK}, s[84:87], s44 offen offset:{128*(i%4)} {SF}")
        if st0 and i==0: STAMP(1)
        if i%4==3: A(f"s_add_u32 s44, s44, {4096 if i%8==3 else 4096+NB*8192}")
    bar0(False)
    if not st0: STAMP(1)
    A("s_barrier")
    STAMP(2)
    A("s_setprio 0")
    q_read()
    for c in range(R):
        A(f"s_waitcnt vmcnt({R-1-c})")
        pi=c//8
        k_consume(c, None if pi==0 else L_S+8*(NB+1)*(pi-1))
    k_flush(L_S+8*(NB+1)*(NP0-1))
    A("s_sub_u32 s47, s3, 4"); A("s_lshl_b32 s47, s47, 4")
    mx_publish("s47", vR)
    A("s_cmp_eq_u32 s3, 7"); A("s_cbranch_scc1 L_mon")
    A("L_wo:")
    wo_issue(NW,(0,1) if wsplit else (0,1,2,3))
    STAMP(3)
    A("s_barrier")
    A("s_cmp_eq_u32 s3, 5"); A("s_cbranch_scc1 L_w5")
    A("s_cmp_lg_u32 s3, 6"); A("s_cbranch_scc1 L_wo2")
    C("wave 6: softmax denominator, exchange (m,l) with the other half, scale")
    A("v_mov_b32 v4, 0")
    for w in range(4): A(f"ds_read_b128 v[{64+4*w}:{64+4*w+3}], v4 offset:{L_MX+16*w}")
    A(f"v_mul_u32_u24 v5, {S_STR}, v2"); A("v_lshl_add_u32 v5, v3, 7, v5")
    for n in range(8): A(f"ds_read_b128 v[{32+4*n}:{32+4*n+3}], v5 offset:{L_S+16*n}")
    A("s_waitcnt lgkmcnt(8)")
    max16(6,64)
    A("v_mul_f32 v7, s34, v6"); A("v_sub_f32 v7, 0, v7")
    A("s_waitcnt lgkmcnt(0)")
    for k in range(32): A(f"v_fma_f32 v{32+k}, v{32+k}, s34, v7")
    for k in range(32): A(f"v_exp_f32 v{32+k}, v{32+k}")
    for st in (16,8,4,2,1):
        for k in range(st): A(f"v_add_f32 v{32+k}, v{32+k}, v{32+k+st}")
    wave_sum(32,33)
    tag_wait(16)
    C("v6=M v32=l ; four words: 16-bit halves of M and l, each with a 16-bit tag")
    A("v_or_b32 v16, 0xa000, v16"); A("s_mov_b32 s47, 0xffff0000")
    A("v_and_or_b32 v8, v6, s47, v16"); A("v_lshl_or_b32 v9, v6, 16, v16"); A("v_and_or_b32 v10, v32, s47, v16"); A("v_lshl_or_b32 v11, v32, 16, v16")
    A("s_mov_b64 exec, 1")
    A(f"buffer_store_dwordx4 v[8:11], off, s[36:39], 0 offset:3840 {SC}")
    A("s_mov_b64 exec, -1")
    A("s_xor_b32 s48, s32, 1"); A("s_lshl_b32 s48, s48, 12"); A("s_mov_b32 s49, 400000")
    A("L_mlp:")
    A(f"buffer_load_dwordx4 v[12:15], off, s[40:43], s48 offset:3840 {SC}"); A("s_waitcnt vmcnt(0)")
    A("v_xor_b32 v17, v12, v16")
    for r in (13,14,15): A(f"v_bitop3_b32 v17, v{r}, v16, v17 bitop3:0xbe")
    A("v_and_b32 v17, 0xffff, v17")
    A("v_cmp_ne_u32 vcc, 0, v17"); A("s_sub_u32 s49, s49, 1"); A("s_cbranch_scc1 L_mlx")
    A("s_cbranch_vccz L_mlx"); A("s_sleep 8"); A("s_branch L_mlp")
    A("L_mlx:")
    A("v_lshrrev_b32 v13, 16, v13"); A("v_lshrrev_b32 v15, 16, v15"); A("v_and_or_b32 v10, v12, s47, v13"); A("v_and_or_b32 v11, v14, s47, v15")
    A("v_max_f32 v12, v6, v10")
    A("v_sub_f32 v13, v6, v12"); A("v_sub_f32 v14, v10, v12")
    A("v_mul_f32 v13, s34, v13"); A("v_mul_f32 v14, s34, v14")
    A("v_exp_f32 v13, v13"); A("v_exp_f32 v14, v14"); A("s_nop 0")
    A("v_mul_f32 v15, v13, v32"); A("v_fma_f32 v15, v14, v11, v15")
    A("v_rcp_f32 v15, v15"); A("s_nop 0"); A("v_mul_f32 v15, v15, v13")
    A(f"ds_write_b32 v4, v15 offset:{L_SC}")
    A("s_branch L_wo2")

    A("L_w5:")
    C("wave 5: tag for the other waves; x and the gathered FFN result for the final step")
    tag_wait(78)
    A("v_mov_b32 v4, 0"); A(f"ds_write_b32 v4, v78 offset:{L_TAG}")
    A("s_cmp_ge_u32 s32, 28"); A("s_cbranch_scc1 L_wo2")
    A("s_mul_i32 s47, s30, 896"); srd(88,4,5,"s47",896)
    g_addr(64,65,4)
    A("buffer_load_ushort v66, v65, s[88:91], 0 offen")
    A("s_mov_b32 s49, 400000"); A("s_mov_b32 s47, 65536")
    for r in range(4): A(f"v_mov_b32 v{72+r}, v78")
    A("s_mov_b32 s62, -1"); A("s_mov_b32 s63, 0xffff")
    A("L_bp:")
    if skipffn not in (1,2):
        g_issue(2048,68,64,40,True)
        g_check(68,76,78,0)
        A("s_sub_u32 s49, s49, 1"); A("s_cbranch_scc1 L_bx"); A("s_cbranch_vccz L_bx"); A("s_sleep 16"); A("s_branch L_bp")
    A("L_bx:")
    A("s_waitcnt vmcnt(0)")
    g_reduce(68,78)
    A("v_cvt_pk_bf16_f32 v67, 0, v68"); A("v_lshlrev_b32 v66, 16, v66")
    A("v_and_b32 v4, 15, v0"); A("v_lshlrev_b32 v4, 3, v4")
    A(f"ds_write_b64 v4, v[66:67] offset:{L_XB}")
    A("L_wo2:")
    if wsplit: wo_issue(NW,(2,3))
    A("s_branch L_tail")

    REFS=[0,6,10,12]
    A("L_mon:")
    C("wave 7: compare this workgroup's progress with four reference workgroups and pick the streamer's depth")
    wo_issue(NW7)
    srd(40,24,25,None,1<<20)
    for k in range(4):
        A(f"s_add_u32 s47, s30, {(2*k+(k>>1))%8 if xb else 0}"); A("s_and_b32 s47, s47, 7"); A("s_lshl_b32 s47, s47, 17"); A(f"s_add_u32 s{12+k}, s47, {4096*REFS[k]+3968}")
    A(f"s_mov_b32 s51, {(~sum(1<<r for r in REFS))&0xffffffff:#x}"); A("s_lshr_b32 s51, s51, s32"); A("s_and_b32 s51, s51, 1")
    tag_wait(5)
    A("v_lshlrev_b32 v5, 16, v5"); A("s_lshl_b32 s96, s96, 16"); A("v_mov_b32 v4, 0"); A("s_mov_b32 s50, 0"); A("s_mov_b32 s100, 0")
    for ph,pend in (("k",PKEND),("v",PVEND)):
        A(f"L_mon{ph}:")
        A(f"ds_read_b32 v6, v4 offset:{L_PRG}"); A("s_waitcnt lgkmcnt(0)"); A("v_readfirstlane_b32 s47, v6")
        A(f"s_cmp_ge_u32 s47, {pend}"); A(f"s_cbranch_scc1 L_mon{ph}x")
        A("s_cmp_lg_u32 s47, s50"); A(f"s_cbranch_scc1 L_mon{ph}n")
        A(f"s_sleep {msleep}"); A(f"s_branch L_mon{ph}")
        A(f"L_mon{ph}n:")
        A("s_mov_b32 s50, s47")
        A(f"s_and_b32 s48, s47, {PD-1}"); A("s_or_b32 s48, s48, s51"); A(f"s_cbranch_scc1 L_mon{ph}p")
        A("v_or_b32 v6, v5, v6")
        A("s_mov_b64 exec, 1")
        A(f"buffer_store_dword v6, off, s[36:39], 0 offset:3968 {SC}")
        A("s_mov_b64 exec, -1")
        A(f"L_mon{ph}p:")
        if RD>1 and not pulse: A(f"s_and_b32 s48, s47, {RD-1}"); A(f"s_cbranch_scc1 L_mon{ph}")
        if RD>1 and pulse:
            A(f"s_and_b32 s48, s47, {RD-1}"); A(f"s_cbranch_scc0 L_mon{ph}r")
            A("s_abs_i32 s48, s100"); A(f"s_cmp_ge_i32 s48, {pulse}"); A(f"s_cbranch_scc1 L_mon{ph}")
            A("v_mov_b32 v7, 1"); A(f"ds_write_b32 v4, v7 offset:{L_CTL}"); A(f"s_branch L_mon{ph}")
            A(f"L_mon{ph}r:")
        for k in range(4): A(f"s_buffer_load_dword s{4+k}, s[40:43], s{12+k} glc")
        A("s_waitcnt lgkmcnt(0)")
        for k in range(4): A(f"s_sub_u32 s{4+k}, s{4+k}, s96")
        A("s_mov_b32 s48, s4"); A("s_mov_b32 s49, s4")
        for k in range(1,4): A(f"s_add_u32 s48, s48, s{4+k}"); A(f"s_max_u32 s49, s49, s{4+k}")
        A("s_cmp_gt_u32 s49, 63"); A(f"s_cbranch_scc1 L_mon{ph}")
        A("s_lshl_b32 s48, s48, 3")
        A("s_lshl_b32 s49, s47, 5"); A(f"s_add_i32 s49, s49, {BIAS-32}"); A("s_sub_i32 s49, s49, s48")
        if pulse: A("s_mov_b32 s100, s49")
        A(f"s_cmp_gt_i32 s49, {TH}"); A("s_cselect_b32 s48, 0, 1"); A(f"s_cmp_lt_i32 s49, {-TH}"); A("s_cselect_b32 s48, 2, s48")
        A("v_mov_b32 v7, s48"); A(f"ds_write_b32 v4, v7 offset:{L_CTL}")
        A(f"s_branch L_mon{ph}")
        A(f"L_mon{ph}x:")
        if ph=="k": A("s_waitcnt lgkmcnt(0)"); STAMP(3); A("s_barrier")

    A("L_tail:")
    A(f"v_lshrrev_b32 v{hLD}, 4, v0"); A(f"v_lshlrev_b32 v{hLD}, 4, v{hLD}"); A("v_mov_b32 v30, 0")
    A(f"v_lshlrev_b32 v{hAD}, 2, v0")
    A("s_sub_u32 s48, s3, 1"); A("s_lshl_b32 s48, s48, 8")
    A("s_waitcnt vmcnt(0) lgkmcnt(0)")
    STAMP(4)
    for q in range(4):
        A("s_barrier")
        if q==3: STAMP(5)
        for ka in range(2): A(f"ds_read_b128 v[{32+8*q+4*ka}:{32+8*q+4*ka+3}], v{hLD} offset:{L_O+128*q+64*ka}")
        if q==0: A(f"ds_read_b64 v[10:11], v30 offset:{L_SC}")
        for ka in range(2):
            A(f"s_waitcnt lgkmcnt({(2 if q==0 else 1)-ka})")
            for nu in range(4):
                a=12+4*nu; w=WO+32*q+16*ka+4*nu; x=32+8*q+4*ka
                A(f"v_mfma_f32_16x16x32_bf16 v[{a}:{a+3}], v[{x}:{x+3}], v[{w}:{w+3}], {'0' if (q==0 and ka==0) else f'v[{a}:{a+3}]'}")
    A("s_nop 5")
    rowsel(12,[12,16,20,24])
    A("v_mul_f32 v12, v10, v12"); A("v_add_u32 v12, 0x800, v12"); A("v_and_or_b32 v12, v12, s97, v11")
    A(f"buffer_store_dword v12, v{hAD}, s[36:39], s48 offen {YF or SC}")
    STAMP(6)
    if pb: A("s_cmp_ge_u32 s32, 28"); A("s_cbranch_scc1 L_tend"); A("s_barrier"); A("L_tend:")
    stamp_out()
    A("s_endpgm")

    A("L_help:")
    D0=32
    def layernorm(xr, dup):
        for k in range(4):
            A(f"v_lshlrev_b32 v{8+2*k}, 16, v{xr+k}"); A(f"v_and_b32 v{9+2*k}, 0xffff0000, v{xr+k}")
        A("v_add_f32 v16, v8, v9"); A("v_add_f32 v17, v10, v11"); A("v_add_f32 v18, v12, v13"); A("v_add_f32 v19, v14, v15")
        A("v_add_f32 v16, v16, v17"); A("v_add_f32 v18, v18, v19"); A("v_add_f32 v16, v16, v18")
        wave_sum(16,17)
        A(f"v_mul_f32 v16, {f2u(1.0/448):#x}, v16")
        A("v_cmp_gt_u32 vcc, 56, v0"); A("v_cvt_pk_bf16_f32 v17, 0, v16"); A("s_nop 0")
        A("v_cndmask_b32 v16, 0, v16, vcc")
        A("v_sub_f32 v4, v8, v16"); A("v_mul_f32 v18, v4, v4")
        for k in range(1,8): A(f"v_sub_f32 v4, v{8+k}, v16"); A("v_fmac_f32 v18, v4, v4")
        wave_sum(18,19)
        A(f"v_mul_f32 v18, {f2u(1.0/448):#x}, v18")
        A("v_cvt_pk_bf16_f32 v18, 0, v18")
        A(f"v_add_f32 v18, {f2u(1e-5):#x}, v18")
        A("v_cvt_pk_bf16_f32 v18, 0, v18")
        A("v_sqrt_f32 v18, v18"); A("s_nop 0")
        A("v_cvt_pk_bf16_f32 v18, 0, v18")
        A("v_rcp_f32 v19, v18")
        for k in range(8):
            A(f"v_sub_f32 v{8+k}, v{8+k}, v17"); A(f"v_cvt_pk_bf16_f32 v{8+k}, 0, v{8+k}")
            A(f"v_mul_f32 v4, v{8+k}, v19"); A(f"v_fma_f32 v6, -v4, v18, v{8+k}")
            if dup: A("v_fma_f32 v4, v6, v19, v4"); A(f"v_cvt_pk_bf16_f32 v{8+k}, v4, v4")
            else: A(f"v_fma_f32 v{8+k}, v6, v19, v4")
        if not dup:
            for k in range(4): A(f"v_cvt_pk_bf16_f32 v{8+k}, v{8+2*k}, v{9+2*k}")
    def wq_load(t):
        A(f"buffer_load_dwordx4 v[{D0+4*t}:{D0+4*t+3}], v{hAD}, s[52:55], s48 offen {QF}")
        A("s_add_u32 s48, s48, 65536")
        if rot and t%4==3 and t<55: A(f"s_cmp_ge_u32 s48, {56*65536}"); A("s_cselect_b32 s48, 0, s48")
    def gemv56(bar_at):
        XX=[4,8]; BB=[12,16]
        A("s_waitcnt lgkmcnt(0)")
        A(f"ds_read_b128 v[4:7], v{hLD}"); A(f"ds_read_b128 v[8:11], v{hLD} offset:16")
        def bp(t):
            if t%4==0: A(f"s_waitcnt lgkmcnt({1 if t//4+1<14 else 0})")
            for r in range(4): A(f"v_and_b32 v{BB[t%2]+r}, v{XX[(t//4)%2]+t%4}, v{hM+r}")
            if t%4==3 and t//4+2<14:
                x=XX[(t//4)%2]; A(f"ds_read_b128 v[{x}:{x+3}], v{hLD} offset:{16*(t//4+2)}")
        bp(0)
        for t in range(56):
            if t+1<56: bp(t+1)
            else: A("s_nop 0")
            if t+QD<56: wq_load(t+QD)
            if t+QD==bar_at: A("s_barrier")
            A(f"s_waitcnt vmcnt({min(QD,55-t)})")
            A(f"v_mfma_f32_16x16x32_bf16 v[{hACC}:{hACC+3}], v[{D0+4*t}:{D0+4*t+3}], v[{BB[t%2]}:{BB[t%2]+3}], {'0' if t==0 else f'v[{hACC}:{hACC+3}]'}")
        A("s_nop 7")
        combine(hACC,12)
    def ln_part(wait):
        masks(hM,12,13)
        A(f"s_waitcnt vmcnt({wait})")
        layernorm(4,True)
        C("X'[e][(t - 4*rot) mod 56]")
        A("s_sub_u32 s47, s3, 1"); A(f"s_mul_i32 s47, s47, {X_SZ}"); A(f"s_add_u32 s47, s47, {L_X}")
        A("s_lshl_b32 s50, s51, 2"); A("v_subrev_u32 v5, s50, v0"); A("v_add_u32 v6, 56, v5"); A("v_min_u32 v5, v5, v6")
        A("v_cmp_lt_u32 vcc, 55, v0"); A("s_nop 1"); A("v_cndmask_b32 v5, v5, v0, vcc")
        A("v_lshl_add_u32 v5, v5, 2, s47")
        for k in range(8): A(f"ds_write_b32 v5, v{8+k} offset:{k*X_STR}")
        A(f"v_mul_u32_u24 v{hLD}, {X_STR}, v2"); A(f"v_add_u32 v{hLD}, s47, v{hLD}")
    C("q column block w-1 over all 448 rows of wq, tile order rotated by 4*s51 tiles")
    A("v_lshlrev_b32 v1, 4, v0")
    A(f"v_lshlrev_b32 v{hAD}, 13, v2"); A(f"v_lshl_add_u32 v{hAD}, v3, 4, v{hAD}")
    A("s_mul_i32 s47, s30, 896")
    A("s_lshl_b32 s48, s31, 9"); A("s_sub_u32 s49, s3, 1"); A("s_lshl_b32 s49, s49, 7"); A("s_add_u32 s48, s48, s49"); A(f"s_sub_u32 s49, {448*8192}, s48")
    if rot: A("s_mul_i32 s51, s30, 7"); A("s_lshr_b32 s51, s51, 2")
    else: A("s_mov_b32 s51, 0")
    A("s_waitcnt lgkmcnt(0)")
    srd(88,4,5,"s47",896)
    srd(52,10,11,"s48","s49")
    A("buffer_load_dwordx4 v[4:7], v1, s[88:91], 0 offen")
    if st0: STAMP(1)
    A("s_lshl_b32 s48, s51, 18")
    A("s_cmp_eq_u32 s28, 1"); A("s_cbranch_scc1 L_q1")
    for t in range(QD): wq_load(t)
    ln_part(QD); gemv56(55); A("s_branch L_q2")
    A("L_q1:")
    ln_part(0); A("s_barrier")
    for t in range(QD): wq_load(t)
    gemv56(None)
    A("L_q2:")
    C("q -> bf16 -> LDS: addr = m*128 + (4*rowq+hi)*16 + j*2 (+32 for the second register)")
    A("v_cvt_pk_bf16_f32 v12, v12, v13")
    A("v_bfe_u32 v4, v0, 4, 1"); A("v_lshrrev_b32 v5, 5, v0"); A("v_lshl_add_u32 v4, v4, 2, v5"); A("v_lshlrev_b32 v4, 4, v4"); A("v_lshl_add_u32 v4, v3, 1, v4")
    A("s_sub_u32 s47, s3, 1"); A("s_lshl_b32 s47, s47, 7"); A("v_add_u32 v4, s47, v4")
    A("s_mov_b64 exec, s[60:61]")
    A(f"ds_write_b16 v4, v12 offset:{L_Q}"); A(f"ds_write_b16_d16_hi v4, v12 offset:{L_Q+32}")
    A("s_mov_b64 exec, -1")
    A("s_waitcnt lgkmcnt(0)")
    if not st0: STAMP(1)
    A("s_barrier")
    STAMP(2)
    srd_slots()
    C("FFN: wave 1 of 28 workgroups, slice f of 64 hidden units for all 8 batches")
    A("s_cmp_lg_u32 s3, 1"); A("s_cbranch_scc1 L_wo")
    if skipffn==1: A("s_branch L_wo")
    A("s_cmp_lg_u32 s28, 1"); A("s_cbranch_scc1 L_wo")
    A("s_mov_b32 s51, s31"); A("s_cmp_eq_u32 s30, s26"); A("s_cbranch_scc1 L_ffn")
    A("s_add_u32 s51, s31, 16"); A("s_xor_b32 s47, s26, 4"); A("s_cmp_lg_u32 s30, s47"); A("s_cbranch_scc1 L_wo")
    A("s_cmp_ge_u32 s51, 28"); A("s_cbranch_scc1 L_wo")
    A("L_ffn:")
    A("s_mov_b32 s50, 3584")
    A("s_lshl_b32 s48, s51, 7"); A(f"s_sub_u32 s49, {448*3584}, s48"); srd(52,16,17,"s48","s49")
    A(f"v_mul_u32_u24 v{hAD}, 3584, v2"); A(f"v_lshl_add_u32 v{hAD}, v3, 4, v{hAD}")
    C("raw x of the 8 batches -> XN, then layernorm in place while the first w1 tiles are in flight")
    srd(88,4,5,None,8*896)
    A(f"v_add_u32 v5, {L_XN}, v1"); A("v_cmp_gt_u32 vcc, 56, v0"); A("v_mov_b32 v6, 0x10000"); A("s_nop 0"); A("v_cndmask_b32 v6, v6, v1, vcc")
    for b in range(8): A(f"buffer_load_dwordx4 v[{224+4*b}:{227+4*b}], v6, s[88:91], 0 offen offset:{896*b}" if 896*b<4096 else f"buffer_load_dwordx4 v[{224+4*b}:{227+4*b}], v6, s[88:91], s50 offen offset:{896*b-3584}")
    A("s_mov_b32 s48, 0")
    def w1_load(t):
        if skipffn not in (3,4): A(f"buffer_load_dwordx4 v[{D0+4*t}:{D0+4*t+3}], v{hAD}, s[52:55], s48 offen {WF}")
        A(f"s_add_u32 s48, s48, {8*3584}")
    for t in range(NF): w1_load(t)
    A(f"s_waitcnt vmcnt({NF})")
    for b in range(8): A(f"ds_write_b128 v5, v[{224+4*b}:{227+4*b}] offset:{XN_STR*b}")
    A("s_mov_b32 s49, 8")
    A("L_ln8:")
    A("s_waitcnt lgkmcnt(0)")
    A("ds_read_b128 v[20:23], v5"); A("s_waitcnt lgkmcnt(0)")
    layernorm(20,False)
    A("ds_write_b128 v5, v[8:11]")
    A(f"v_add_u32 v5, {XN_STR}, v5"); A("s_sub_u32 s49, s49, 1"); A("s_cmp_lg_u32 s49, 0"); A("s_cbranch_scc1 L_ln8")
    for t in range(NF,56):
        A(f"s_waitcnt vmcnt({NF-1})"); w1_load(t)
    A("s_waitcnt vmcnt(0)")
    def transpose4(regs):
        for k in range(4): A(f"ds_write_b128 v{hAD}, v[{regs[k]}:{regs[k]+3}] offset:{T_STR*k}")
        A("s_waitcnt lgkmcnt(0)")
        for nu in range(4):
            for hf in range(2): A(f"ds_read_b64_tr_b16 v[{regs[nu]+2*hf}:{regs[nu]+2*hf+1}], v{hLD} offset:{512*hf+32*nu}")
        A("s_waitcnt lgkmcnt(0)")
    t_addr(hAD,hLD,True)
    for ka in range(14): transpose4([D0+16*ka+4*k for k in range(4)])
    C("A fragments: row i of the MFMA is batch (i&3) (+4 in the second pass)")
    A("v_and_b32 v30, 3, v0"); A(f"v_mul_u32_u24 v30, {XN_STR}, v30"); A("v_lshrrev_b32 v31, 4, v0"); A("v_lshl_add_u32 v30, v31, 4, v30")
    A("v_lshlrev_b32 v1, 1, v0")
    for ps in range(2):
        for ka in range(14):
            A(f"ds_read_b128 v[{20+4*(ka%2)}:{23+4*(ka%2)}], v30 offset:{L_XN+4*XN_STR*ps+64*ka}"); A("s_waitcnt lgkmcnt(0)")
            for nu in range(4):
                a=4+4*nu; w=D0+16*ka+4*nu
                A(f"v_mfma_f32_16x16x32_bf16 v[{a}:{a+3}], v[{20+4*(ka%2)}:{23+4*(ka%2)}], v[{w}:{w+3}], {'0' if ka==0 else f'v[{a}:{a+3}]'}")
        A("s_nop 7")
        for r in range(4):
            rowsel(4+r,[4+r,8+r,12+r,16+r])
        for r in range(4):
            k=4+r
            A(f"v_cvt_pk_bf16_f32 v{k}, 0, v{k}")
            A(f"v_mul_f32 v20, {f2u(-math.log2(math.e)):#x}, v{k}"); A("v_exp_f32 v20, v20"); A("s_nop 0")
            A("v_add_f32 v20, 1.0, v20"); A("v_rcp_f32 v20, v20"); A("s_nop 0")
            A(f"v_mul_f32 v{k}, v{k}, v20"); A(f"v_cvt_pk_bf16_f32 v{k}, v{k}, v{k}")
            A(f"ds_write_b16 v1, v{k} offset:{L_HP+HP_STR*(4*ps+r)}")
    C("w2 rows 64f..64f+63: (block beta, tile t) -> D0 + 32*beta + 4*t")
    A(f"s_mul_i32 s48, s51, {64*896}"); A(f"s_sub_u32 s49, {1792*896}, s48"); srd(52,18,19,"s48","s49")
    A("v_mul_u32_u24 v4, 896, v2"); A("v_lshl_add_u32 v4, v3, 4, v4")
    A("s_mov_b32 s48, 0")
    for t in range(8):
        for be in range(7):
            if 7*t+be>=NF: A(f"s_waitcnt vmcnt({NF-1})")
            rr=D0+32*be+4*t
            if skipffn not in (3,5): A(f"buffer_load_dwordx4 v[{rr}:{rr+3}], v4, s[52:55], s48 offen offset:{128*be} {WF}")
        A("s_add_u32 s48, s48, 7168")
    tag_wait(1)
    for g in range(14): transpose4([D0+16*g+4*k for k in range(4)])
    A("v_and_b32 v30, 3, v0"); A(f"v_mul_u32_u24 v30, {HP_STR}, v30"); A("v_lshrrev_b32 v31, 4, v0"); A("v_lshl_add_u32 v30, v31, 4, v30")
    A("v_lshlrev_b32 v31, 2, v0")
    A("s_lshl_b32 s47, s51, 12"); srd(52,24,25,"s47",1<<20)
    for ps in range(2):
        A(f"ds_read_b128 v[20:23], v30 offset:{L_HP+4*HP_STR*ps}"); A(f"ds_read_b128 v[24:27], v30 offset:{L_HP+4*HP_STR*ps+64}")
        for r in range(4): A(f"s_mov_b32 s{44+r}, {(4*ps+r)<<17}")
        A("s_waitcnt lgkmcnt(0)")
        for be in range(7):
            for ka in range(2):
                for nu in range(4):
                    a=4+4*nu; w=D0+32*be+16*ka+4*nu
                    A(f"v_mfma_f32_16x16x32_bf16 v[{a}:{a+3}], v[{20+4*ka}:{23+4*ka}], v[{w}:{w+3}], {'0' if ka==0 else f'v[{a}:{a+3}]'}")
            A("s_nop 7")
            for r in range(4):
                rowsel(4+r,[4+r,8+r,12+r,16+r])
            for r in range(4):
                A(f"v_add_u32 v{4+r}, 0x800, v{4+r}"); A(f"v_and_or_b32 v{4+r}, v{4+r}, s97, v1")
                if skipffn!=2: A(f"buffer_store_dword v{4+r}, v31, s[52:55], s{44+r} offen offset:{2048+256*be} {BF or SC}")
            A("s_nop 1")
    STAMP(3)
    A("s_barrier")
    wo_issue(NW7)
    A("s_branch L_tail")
    A("L_end:")
    A("s_endpgm")
    body="\n".join(("" if (l.endswith(":") or l.startswith(".")) else "    ")+l for l in L)+"\n"
    head=HEADER+f"; @launch grid=(256,1,1) block=(512,1,1) lds={L_END}\n"
    return head+body+kd(NAME,256,102,256), L_END

if __name__=="__main__":
    kw=eval("dict(%s)"%(sys.argv[2] if len(sys.argv)>2 else ""))
    t,ldsz=gen(**kw)
    out=sys.argv[1]
    if out.endswith(".s"): open(out,"w").write(t)
    else:
        assemble(t+meta([(NAME,256,102,512)]), out); print(f"work/{out}:{NAME},256,512,{ldsz}")
```

```python
import sys, math, struct
from common import *

NAME="parallel_sum__mha_block_cached__dense_activation_silu__decode_kernel"
HEADER=open("parallel_sum__mha_block_cached__dense_activation_silu__decode.s.ref").read().split("; Override launch")[0]

L_Q=0; L_MX=512; L_SC=576; L_TAG=580; L_PRG=584; L_CTL=588; L_XB=640
L_O=768
L_S=1280; S_STR=1040
L_X=L_S+8*S_STR; X_STR=272; X_SZ=8*X_STR
L_XN=L_X+4*X_SZ; XN_STR=1040
L_HP=L_XN+8*XN_STR; HP_STR=144
L_T=L_HP+8*HP_STR; T_STR=1056; T_SZ=8*T_STR
L_END=L_T+7*T_SZ
CEXP=math.log2(math.e)/16.0
def f2u(f): return struct.unpack("<I",struct.pack("<f",f))[0]

def gen(N=24, N0=10, R=48, NF=8, NW=1, NW7=4, QD=12, stamp=False, SC="sc1", HF="", QF="", SF="nt",
        rot=1, ctl=(18,24,32), ctlK=None, TH=6, BIAS=0, PD=2, RD=2, msleep=4, xb=1, dpoll=1, skipwo=0, skipffn=0, NT=None, late=1, pulse=0, st0=0, OF='', dual=0, dry=0, TS=8, SD=3, PF=None, YF=None, dps=4, pb=1, BO=0, BF=None, WF='nt', wrot=0, wsplit=1):
    L=[]; A=L.append
    def C(s): A("    ; "+s)
    lbl=[0]
    def newl(): lbl[0]+=1; return lbl[0]
    def STAMP(i):
        if stamp: A(f"s_memrealtime s[{70+2*i}:{71+2*i}]")
    def srd(d, lo, hi, off, size):
        if off is None: A(f"s_mov_b32 s{d}, s{lo}"); A(f"s_mov_b32 s{d+1}, s{hi}")
        else: A(f"s_add_u32 s{d}, s{lo}, {off}"); A(f"s_addc_u32 s{d+1}, s{hi}, 0")
        A(f"s_mov_b32 s{d+2}, {size}"); A(f"s_mov_b32 s{d+3}, 0x20000")
    def masks(base,t0,t1):
        A(f"v_and_b32 v{t0}, 1, v3"); A(f"v_lshlrev_b32 v{t0}, 4, v{t0}"); A(f"v_mov_b32 v{t1}, 0xffff"); A(f"v_lshlrev_b32 v{t0}, v{t0}, v{t1}")
        A(f"v_lshrrev_b32 v{t1}, 1, v3")
        for r in range(4):
            A(f"v_cmp_eq_u32 vcc, {r}, v{t1}"); A("s_nop 1"); A(f"v_cndmask_b32 v{base+r}, 0, v{t0}, vcc")
    def stamp_out(tmp=4):
        if not stamp: return
        A("s_waitcnt lgkmcnt(0)")
        A("s_mov_b64 exec, 1")
        srd(64,24,25,None,0x40000000)
        A("s_lshl_b32 s68, s2, 3"); A("s_add_u32 s68, s68, s3"); A("s_lshl_b32 s68, s68, 5"); A("s_add_u32 s68, s68, 0x20000000")
        A("s_getreg_b32 s69, hwreg(HW_REG_XCC_ID)")
        for i in range(7): A(f"v_mov_b32 v{tmp+i}, s{70+2*i}")
        A(f"v_mov_b32 v{tmp+7}, s69")
        A(f"buffer_store_dwordx4 v[{tmp}:{tmp+3}], off, s[64:67], s68")
        A(f"buffer_store_dwordx4 v[{tmp+4}:{tmp+7}], off, s[64:67], s68 offset:16")
        A("s_waitcnt vmcnt(0)")
    def srd_slots():
        A("s_lshl_b32 s47, s33, 12"); srd(36,24,25,"s47",4096)
        A("s_lshl_b32 s47, s30, 17"); srd(40,24,25,"s47",131072)
        srd(56,22,23,None,256)
    def tag_wait(t):
        n=newl()
        A("s_mov_b32 s49, 400000")
        A(f"L_cw{n}:")
        A(f"buffer_load_dword v{t}, off, s[56:59], 0 {SC}"); A("s_waitcnt vmcnt(0)")
        A(f"v_cmp_eq_u32 vcc, 0, v{t}"); A("s_sub_u32 s49, s49, 1"); A(f"s_cbranch_scc1 L_cwx{n}")
        A(f"s_cbranch_vccz L_cwx{n}"); A("s_sleep 8"); A(f"s_branch L_cw{n}")
        A(f"L_cwx{n}:")
        A(f"v_and_b32 v{t}, 0xfff, v{t}"); A("s_nop 0"); A(f"v_readfirstlane_b32 s96, v{t}")
    def g_issue(off,b,vad,srdn,only28=False):
        SC=(PF or "sc1") if not only28 else "sc1"
        A(f"buffer_load_dwordx4 v[{b}:{b+3}], v{vad}, s[{srdn}:{srdn+3}], 0 offen offset:{off} {SC}")
        if only28: A("s_mov_b64 exec, s[62:63]")
        A(f"buffer_load_dwordx4 v[{b+4}:{b+7}], v{vad}, s[{srdn}:{srdn+3}], s47 offen offset:{off} {SC}")
        if only28: A("s_mov_b64 exec, -1")
    def g_check(b,t,vtag,younger):
        A(f"s_waitcnt vmcnt({younger+1})")
        A(f"v_xor_b32 v{t}, v{b}, v{vtag}")
        for r in range(1,4): A(f"v_bitop3_b32 v{t}, v{b+r}, v{vtag}, v{t} bitop3:0xbe")
        A(f"s_waitcnt vmcnt({younger})")
        for r in range(4,8): A(f"v_bitop3_b32 v{t}, v{b+r}, v{vtag}, v{t} bitop3:0xbe")
        A(f"v_and_b32 v{t}, 0xfff, v{t}")
        A(f"v_cmp_ne_u32 vcc, 0, v{t}")
    def g_reduce(b,vtag):
        for r in range(8): A(f"v_xor_b32 v{b+r}, v{b+r}, v{vtag}")
        for r in range(4): A(f"v_add_f32 v{b+r}, v{b+r}, v{b+4+r}")
        for pat in ["row_ror:4","row_ror:8"]:
            for r in range(4): A(f"v_add_f32_dpp v{b+r}, v{b+r}, v{b+r} {pat} row_mask:0xf bank_mask:0xf")
        for r in range(1,4): A(f"v_mov_b32_dpp v{b}, v{b+r} quad_perm:[0,1,2,3] row_mask:0xf bank_mask:{1<<r:#x}")
        for sw in ["16","32"]:
            A(f"v_mov_b32 v{b+1}, v{b}"); A("s_nop 1"); A(f"v_permlane{sw}_swap_b32 v{b}, v{b+1}"); A(f"v_add_f32 v{b}, v{b}, v{b+1}")
    def g_addr(vad,vcol,t):
        A(f"v_lshrrev_b32 v{vad}, 2, v0"); A(f"v_and_b32 v{t}, 3, v0"); A(f"v_and_b32 v{vcol}, 3, v{vad}")
        A(f"v_lshlrev_b32 v{vad}, 12, v{vad}"); A(f"v_lshl_add_u32 v{vad}, v{t}, 4, v{vad}")
        A("s_lshl_b32 s47, s32, 6"); A(f"v_add_u32 v{vad}, s47, v{vad}")
        A(f"v_lshl_add_u32 v{vcol}, v{t}, 2, v{vcol}"); A("s_lshl_b32 s47, s32, 5"); A(f"v_lshl_add_u32 v{vcol}, v{vcol}, 1, s47")
    def wave_sum(v,t):
        for pat in ["quad_perm:[1,0,3,2]","quad_perm:[2,3,0,1]","row_half_mirror","row_mirror"]:
            A("s_nop 1"); A(f"v_add_f32_dpp v{v}, v{v}, v{v} {pat} row_mask:0xf bank_mask:0xf")
        for sw in ["16","32"]:
            A(f"v_mov_b32 v{t}, v{v}"); A("s_nop 1"); A(f"v_permlane{sw}_swap_b32 v{v}, v{t}"); A(f"v_add_f32 v{v}, v{v}, v{t}")
    def max16(dst,b):
        A(f"v_max3_f32 v{dst}, v{b}, v{b+1}, v{b+2}")
        for k in range(3,15,2): A(f"v_max3_f32 v{dst}, v{dst}, v{b+k}, v{b+k+1}")
        A(f"v_max_f32 v{dst}, v{dst}, v{b+15}")

    A('.amdgcn_target "amdgcn-amd-amdhsa--gfx950"'); A(".text"); A(f".globl {NAME}"); A(".p2align 8"); A(f".type {NAME},@function"); A(f"{NAME}:")
    A("s_cmp_ge_u32 s2, 256"); A("s_cbranch_scc1 L_end")
    STAMP(0)
    A("s_load_dwordx16 s[4:19], s[0:1], 0")
    A("s_load_dwordx4 s[20:23], s[0:1], 64")
    A("s_load_dwordx2 s[24:25], s[0:1], 80")
    A("v_lshrrev_b32 v1, 6, v0"); A("v_and_b32 v0, 63, v0"); A("v_readfirstlane_b32 s3, v1")
    A("s_and_b32 s26, s2, 7"); A("s_lshr_b32 s27, s2, 3"); A("s_and_b32 s28, s27, 1")
    A("s_bfe_u32 s29, s27, 0x10001"); A("s_lshr_b32 s30, s27, 2")
    A("s_lshl_b32 s29, s29, 3"); A("s_add_u32 s31, s26, s29")
    A("s_lshl_b32 s32, s31, 1"); A("s_add_u32 s32, s32, s28")
    A("s_lshl_b32 s33, s30, 5"); A("s_add_u32 s33, s33, s32")
    C("s28=half s30=batch s31=head s32=2*head+half s33=32*batch+s32 ; v2=lane>>3 v3=lane&7")
    A("v_lshrrev_b32 v2, 3, v0"); A("v_and_b32 v3, 7, v0")
    A(f"s_mov_b32 s34, {f2u(CEXP):#x}")
    A("s_mov_b32 s60, 0x00ff00ff"); A("s_mov_b32 s61, 0x00ff00ff"); A("s_mov_b32 s97, 0xfffff000")
    if wrot==1: A("s_and_b32 s99, s30, 3")
    if wrot==2: A("s_lshr_b32 s99, s30, 1")
    if wrot==3: A("s_lshl_b32 s99, s28, 1"); A("s_add_u32 s99, s99, s30"); A("s_and_b32 s99, s99, 3")
    A("s_cmp_eq_u32 s3, 0"); A("s_cbranch_scc1 L_stream")
    A("s_cmp_ge_u32 s3, 5"); A("s_cbranch_scc1 L_buf")
    A("s_branch L_help")

    RING=256-4*R
    vK=4; vV=5; vSW=6; vSR=7; vMX=8; vR=9; vR2=10; vA=[11,12]; vB=[13,14]; vQ=16
    def slot(i): return RING+4*(i%R)
    def k_consume(c, dsoff):
        p=c%8; m=p%4; acc=vA if p<4 else vB; r=slot(c)
        for k in range(4):
            src2 = "0" if (m==0 and k<2) else f"v{acc[k%2]}"
            A(f"v_dot2_f32_bf16 v{acc[k%2]}, v{r+k}, v{vQ+4*m+k}, {src2}")
        prev = dsoff is not None
        if p==0 and prev: A(f"v_add_f32 v{vB[0]}, v{vB[0]}, v{vB[1]}")
        if p==1 and prev: A(f"v_add_f32_dpp v{vR}, v{vB[0]}, v{vB[0]} row_half_mirror row_mask:0xf bank_mask:0xa")
        if p==2 and prev: A(f"v_add_f32_dpp v{vR}, v{vR}, v{vR} quad_perm:[1,0,3,2] row_mask:0xf bank_mask:0xf")
        if p==3 and prev: A(f"v_add_f32_dpp v{vR}, v{vR}, v{vR} quad_perm:[2,3,0,1] row_mask:0xf bank_mask:0xf")
        if p==4:
            if prev: A(f"v_cvt_pk_bf16_f32 v{vR2}, 0, v{vR}")
            A(f"v_add_f32 v{vA[0]}, v{vA[0]}, v{vA[1]}")
        if p==5:
            if prev: A(f"v_max_f32 v{vMX}, v{vMX}, v{vR2}"); A(f"ds_write_b32 v{vSW}, v{vR2} offset:{dsoff}")
            A(f"v_add_f32_dpp v{vR}, v{vA[0]}, v{vA[0]} row_half_mirror row_mask:0xf bank_mask:0x5")
    def k_flush(dsoff):
        A("s_nop 2"); A(f"v_add_f32 v{vB[0]}, v{vB[0]}, v{vB[1]}"); A("s_nop 1")
        A(f"v_add_f32_dpp v{vR}, v{vB[0]}, v{vB[0]} row_half_mirror row_mask:0xf bank_mask:0xa"); A("s_nop 1")
        A(f"v_add_f32_dpp v{vR}, v{vR}, v{vR} quad_perm:[1,0,3,2] row_mask:0xf bank_mask:0xf"); A("s_nop 1")
        A(f"v_add_f32_dpp v{vR}, v{vR}, v{vR} quad_perm:[2,3,0,1] row_mask:0xf bank_mask:0xf")
        A(f"v_cvt_pk_bf16_f32 v{vR2}, 0, v{vR}")
        A(f"v_max_f32 v{vMX}, v{vMX}, v{vR2}"); A(f"ds_write_b32 v{vSW}, v{vR2} offset:{dsoff}")
    def mx_publish(w, tmp):
        A("s_nop 1")
        A(f"v_max_f32_dpp v{vMX}, v{vMX}, v{vMX} row_ror:4 row_mask:0xf bank_mask:0xf"); A("s_nop 1")
        A(f"v_max_f32_dpp v{vMX}, v{vMX}, v{vMX} row_ror:8 row_mask:0xf bank_mask:0xf")
        A(f"v_lshrrev_b32 v{tmp}, 4, v0"); A(f"v_lshlrev_b32 v{tmp}, 2, v{tmp}")
        if isinstance(w,int): A(f"ds_write_b32 v{tmp}, v{vMX} offset:{L_MX+16*w}")
        else: A(f"v_add_u32 v{tmp}, {w}, v{tmp}"); A(f"ds_write_b32 v{tmp}, v{vMX} offset:{L_MX}")
    def k_setup():
        A(f"v_lshlrev_b32 v{vK}, 9, v2"); A(f"v_lshl_add_u32 v{vK}, v3, 4, v{vK}")
        A(f"v_mul_u32_u24 v{vSW}, {S_STR}, v2"); A(f"v_lshrrev_b32 v{vSR}, 2, v3"); A(f"v_lshl_add_u32 v{vSW}, v{vSR}, 2, v{vSW}")
        A(f"v_mov_b32 v{vMX}, 0xff800000")
        A("s_lshl_b32 s35, s33, 20")
    def q_read():
        A(f"v_lshlrev_b32 v{vR}, 4, v3")
        for m in range(4): A(f"ds_read_b128 v[{vQ+4*m}:{vQ+4*m+3}], v{vR} offset:{L_Q+128*m}")
        A("s_waitcnt lgkmcnt(0)")
    def bar0(first):
        n=newl()
        A(f"s_cmp_eq_u32 s28, {1 if first else 0}"); A(f"s_cbranch_scc1 L_b0_{n}"); A("s_barrier"); A(f"L_b0_{n}:")
    NP0=R//8; NB=3
    NKS=1024-NB*R
    NTOT=NKS+1024
    NT=NT or N

    A("L_stream:")
    A("s_setprio 3")
    k_setup()
    A(f"v_mov_b32 v{vV}, v{vK}")
    vVq=[60,61,62,63]
    if wrot:
        C("logical quarter g of d is physical quarter (g + s99) & 3")
        for q in range(4):
            A(f"s_add_u32 s47, s99, {q}"); A("s_and_b32 s47, s47, 3"); A("s_lshl_b32 s47, s47, 7"); A(f"v_add_u32 v{vVq[q]}, s47, v{vK}")
    vZ=36; vPC=37; vPP=38
    A(f"v_mov_b32 v{vZ}, 0"); A(f"ds_write_b32 v{vZ}, v{vZ} offset:{L_PRG}")
    A("s_waitcnt lgkmcnt(0)")
    srd(36,6,7,"s35",1<<20); srd(40,8,9,"s35",1<<20)
    A("s_mov_b32 s44, 0"); A("s_mov_b32 s45, 0"); A("s_mov_b32 s50, 2")
    U1=1024-4*TS
    def vmap(u):
        if u<U1: return u//4, u%4
        v=u-U1
        return 256-TS+v%TS, v//TS
    def vgrp(u): return (u//4, u%4, 4) if u<U1 else (U1//4+(u-U1), 0, 1)
    def issue(i):
        r=slot(i)
        if i<NKS:
            A(f"buffer_load_dwordx4 v[{r}:{r+3}], v{vK}, s[36:39], s44 offen offset:{128*(i%4)} {SF}")
            if i%4==3: A(f"s_add_u32 s44, s44, {4096+NB*8192 if (i<R and i%8==7) else 4096}")
        elif i<NTOT:
            u=i-NKS; tile,q=vmap(u)
            if wrot: A(f"buffer_load_dwordx4 v[{r}:{r+3}], v{vVq[q]}, s[40:43], s45 offen {SF}")
            else: A(f"buffer_load_dwordx4 v[{r}:{r+3}], v{vV}, s[40:43], s45 offen offset:{128*q} {SF}")
            if u+1<1024:
                d=vmap(u+1)[0]-tile
                if d>0: A(f"s_add_u32 s45, s45, {4096*d}")
                if d<0: A(f"s_sub_u32 s45, s45, {-4096*d}")
    DK=R-1
    bar0(True)
    for i in range(DK):
        if i>=N0: A(f"s_waitcnt vmcnt({N0-1})")
        issue(i)
        if st0 and i==0: STAMP(1)
        if i==N0-1:
            A("s_lshl_b32 s47, s30, 17"); srd(52,24,25,"s47",131072)
            A("s_mul_i32 s47, s30, 896"); srd(92,20,21,"s47",896)
    bar0(False)
    if not st0: STAMP(1)
    A("s_barrier")
    STAMP(2)
    q_read()
    cur=[None]
    def pair_T(pi): return 2*((NB+1)*pi) if pi<NP0 else 2*((NB+1)*NP0+(pi-NP0))
    def kstep(c, dsbase):
        I=c+DK
        A(f"s_waitcnt vmcnt({min((cur[0] or N)-1,I-c-1)})")
        issue(I)
        pi=c//8
        k_consume(c, None if pi==0 else L_S+4*pair_T(pi-1)-dsbase)
    for c in range(0,2*R): kstep(c,0)
    nK=(NKS-DK-2*R)//R
    A(f"s_mov_b32 s46, {nK}")
    def loop_variants(tag, body, post, zr, cr, pr, lv):
        for v in (1,0,2):
            A(f"L_{tag}{v}:")
            rd=f"ds_read_b32 v{cr}, v{zr} offset:{L_CTL}"
            if not late: A(rd)
            m0=len(L)
            cur[0]=lv[v]; body(); cur[0]=None
            if late:
                w=[i for i in range(m0,len(L)) if L[i].startswith("s_waitcnt vmcnt")]
                assert len(w)==R
                L.insert(w[R-3],rd)
            post()
            A("s_add_u32 s50, s50, 1"); A(f"v_mov_b32 v{pr}, s50")
            A("s_waitcnt lgkmcnt(0)")
            A(f"v_readfirstlane_b32 s48, v{cr}")
            A(f"ds_write_b32 v{zr}, v{pr} offset:{L_PRG}")
            A("s_sub_u32 s46, s46, 1"); A("s_cmp_eq_u32 s46, 0"); A(f"s_cbranch_scc1 L_{tag}x")
            o=[w for w in (0,1,2) if w!=v]
            A(f"s_cmp_eq_u32 s48, {v}"); A(f"s_cbranch_scc1 L_{tag}{v}")
            A(f"s_cmp_eq_u32 s48, {o[0]}"); A(f"s_cbranch_scc1 L_{tag}{o[0]}")
            A(f"s_branch L_{tag}{o[1]}")
        A(f"L_{tag}x:")
    def kbody():
        for c in range(2*R,3*R): kstep(c,0)
    loop_variants("kloop", kbody, lambda: A(f"v_add_u32 v{vSW}, {R}, v{vSW}"), vZ, vPC, vPP, ctlK or ctl)
    dsb=nK*R
    for c in range((2+nK)*R,NKS): kstep(c,dsb)
    k_flush(L_S+4*pair_T(NKS//8-1)-dsb)
    mx_publish(0, vR)
    vM=[12,13,14,15]; vNM=11; vT=9; vP=10; vACC=16; vBB=[32,36]; vSS=[40,44,48]; vTM=52
    masks(vM[0], vTM, vTM+1)
    A(f"v_mul_u32_u24 v{vSR}, {S_STR}, v2")
    A(f"v_mov_b32 v{vT}, 0")
    A("s_waitcnt lgkmcnt(0)")
    STAMP(3)
    A("s_barrier")
    for w in range(4): A(f"ds_read_b128 v[{16+4*w}:{16+4*w+3}], v{vT} offset:{L_MX+16*w}")
    A(f"ds_read_b128 v[{vSS[0]}:{vSS[0]+3}], v{vSR} offset:{L_S}")
    inext=[NKS+DK]
    A(f"s_waitcnt vmcnt({N-1})")
    issue(inext[0]); inext[0]+=1
    A("s_waitcnt lgkmcnt(0)")
    max16(vNM,16)
    A(f"v_mul_f32 v{vNM}, s34, v{vNM}"); A(f"v_sub_f32 v{vNM}, 0, v{vNM}")
    for r in range(16): A(f"v_mov_b32 v{vACC+r}, 0")
    def bfree(tile):
        return slot(NTOT+(tile-(256-TS))+BO)
    def bprep(tile, part, gi=None):
        s=vSS[(tile//4)%3]+tile%4; b=vBB[(tile if gi is None else gi)%2]
        if tile>=256-TS: b=bfree(tile)
        if part==0: A(f"v_fma_f32 v{vT}, v{s}, s34, v{vNM}")
        if part==1: A(f"v_exp_f32 v{vT}, v{vT}")
        if part==2: A(f"v_cvt_pk_bf16_f32 v{vP}, v{vT}, v{vT}"); A(f"v_and_b32 v{b}, v{vP}, v{vM[0]}")
        if part==3:
            for r in range(1,4): A(f"v_and_b32 v{b+r}, v{vP}, v{vM[r]}")
    bprep(0,0); bprep(0,1); A("s_nop 0"); bprep(0,2); bprep(0,3); A("s_nop 1")
    def o_write(q):
        a=vACC+4*q
        A(f"v_permlane32_swap_b32 v{a}, v{a+1}"); A(f"v_permlane32_swap_b32 v{a+2}, v{a+3}")
        A("s_nop 1")
        A(f"v_add_f32_dpp v{vTM}, v{a+1}, v{a} row_ror:8 row_mask:0xf bank_mask:0xf")
        A(f"v_add_f32_dpp v{vTM+1}, v{a+3}, v{a+2} row_ror:8 row_mask:0xf bank_mask:0xf")
        A(f"v_cvt_pk_bf16_f32 v{vTM}, v{vTM}, v{vTM+1}")
        A("s_mov_b64 exec, s[60:61]")
        A(f"ds_write_b32 v8, v{vTM} offset:{L_O+128*q}")
        A("s_mov_b64 exec, -1")
    def vstep(u, srbase, do_issue=True):
        c=NKS+u; I=inext[0]; mark=len(L)
        if do_issue and I<NTOT:
            A(f"s_waitcnt vmcnt({min((cur[0] or N)-1,I-c-1)})")
            assert I-R < c
            issue(I); inext[0]+=1
        else:
            k=I-c-1
            if k<max(N,NT): A(f"s_waitcnt vmcnt({k})")
        tile,q=vmap(u); gi,pos,n=vgrp(u); r=slot(c); b=vBB[gi%2]
        if tile>=256-TS:
            b=bfree(tile)
        if q==0 and tile%4==0 and tile+4<256:
            nb=vSS[(tile//4+1)%3]
            A(f"ds_read_b128 v[{nb}:{nb+3}], v{vSR} offset:{L_S+4*(tile+4)-srbase}")
        if q==0 and tile%4==3 and tile+1<256: A("s_waitcnt lgkmcnt(0)")
        a=vACC+4*q
        if pos==0 and len(L)-mark<2: A(f"s_nop {1-(len(L)-mark)}")
        A(f"v_mfma_f32_16x16x32_bf16 v[{a}:{a+3}], v[{r}:{r+3}], v[{b}:{b+3}], v[{a}:{a+3}]")
        un=u-pos+n
        if un<1024:
            if n==4: bprep(vmap(un)[0],pos,gi+1)
            elif vmap(un)[1]==0:
                for part in range(4):
                    bprep(vmap(un)[0],part,gi+1)
                    if part==1: A("s_nop 0")
        for qq in range(3):
            if u==U1+(qq+1)*TS-1+SD: o_write(qq)
            if u==U1+(qq+1)*TS+SD: A("s_waitcnt lgkmcnt(0)"); A("s_barrier")
    u=0; DV=max(max(ctl),NT)
    while True:
        D=inext[0]-(NKS+u)
        if D<=DV and u%R==0: break
        if D>DV:
            vstep(u,0,False); u+=1
            D=inext[0]-(NKS+u)
            if D>DV or u%R!=0: vstep(u,0,True); u+=1
        else:
            vstep(u,0,True); u+=1
    assert inext[0]-(NKS+u)==DV and (R//16)%3==0 and R%16==0
    u0=u; PKEND=2+nK; PV0=(inext[0]+R//2)//R-1
    nV=(1024-DV-u0)//R
    while u0+nV*R+16>1024: nV-=1
    PVEND=PV0+nV
    A(f"s_mov_b32 s46, {nV}"); A("v_mov_b32 v6, 0"); A(f"s_mov_b32 s50, {PV0}")
    i0=inext[0]
    def vbody():
        inext[0]=i0
        for uu in range(u0,u0+R): vstep(uu,0,True)
    loop_variants("vloop", vbody, lambda: A(f"v_add_u32 v{vSR}, {R}, v{vSR}"), 6, 4, 8, ctl)
    inext[0]=i0+nV*R
    cur[0]=NT
    C("addresses for the tail: v4 gather address, v6 output offset, v8 O' address")
    g_addr(4,6,8)
    A("v_bfe_u32 v8, v0, 4, 1"); A("v_lshlrev_b32 v8, 6, v8"); A("v_lshrrev_b32 v52, 5, v0"); A("v_lshl_add_u32 v8, v52, 5, v8"); A("v_lshl_add_u32 v8, v3, 2, v8")
    A("s_mov_b32 s47, 65536"); A("s_mov_b32 s49, 400000")
    for uu in range(u0+nV*R,1024): vstep(uu,nV*R,True)
    cur[0]=None
    STAMP(4)
    A("v_and_b32 v7, 15, v0"); A("v_lshlrev_b32 v7, 3, v7"); A("v_mov_b32 v5, 0")
    A("s_nop 4")
    o_write(3)
    A("s_waitcnt lgkmcnt(0)")
    A("s_barrier")
    STAMP(5)
    A("s_cmp_ge_u32 s32, 28"); A("s_cbranch_scc1 L_sdone")
    C("final: 16 output columns = sum over the 32 workgroups of this batch")
    A(f"ds_read_b32 v12, v5 offset:{L_TAG}")
    A(f"ds_read_b64 v[14:15], v7 offset:{L_XB}")
    if pb: A("s_barrier")
    g_issue(0,16,4,52)
    if dpoll: A(f"s_sleep {dps}"); g_issue(0,32,4,52)
    A("s_waitcnt lgkmcnt(0)")
    A("L_fp:")
    g_check(16,13,12,2 if dpoll else 0)
    A("s_sub_u32 s49, s49, 1"); A("s_cbranch_scc1 L_fa"); A("s_cbranch_vccz L_fa")
    g_issue(0,16,4,52)
    if dpoll:
        g_check(32,13,12,2)
        A("s_cbranch_vccz L_fb")
        g_issue(0,32,4,52)
    A("s_branch L_fp")
    def final(b):
        g_reduce(b,12)
        A(f"v_cvt_pk_bf16_f32 v{b}, 0, v{b}"); A(f"v_add_f32 v{b}, v14, v{b}"); A(f"v_cvt_pk_bf16_f32 v{b}, 0, v{b}"); A(f"v_add_f32 v{b}, v{b}, v15")
        A(f"v_cvt_pk_bf16_f32 v{b}, v{b}, v{b}")
        A("s_mov_b64 exec, 0xffff")
        A(f"buffer_store_short v{b}, v6, s[92:95], 0 offen {OF}")
    if dpoll:
        A("L_fb:"); final(32); A("s_branch L_sdone")
    A("L_fa:"); final(16)
    A("L_sdone:")
    STAMP(6)
    stamp_out(48)
    A("s_endpgm")

    hM=20; hACC=24; hAD=28; hLD=29
    WO=128
    def t_addr(vw, vr, natural):
        A("s_sub_u32 s47, s3, 1"); A(f"s_mul_i32 s47, s47, {T_SZ}"); A(f"s_add_u32 s47, s47, {L_T}")
        A(f"v_lshl_add_u32 v{vw}, v0, 4, s47")
        A(f"v_bfe_u32 v{vr}, v0, 2, 2")
        if natural:
            A(f"v_lshlrev_b32 v{vr}, 7, v{vr}"); A(f"v_lshrrev_b32 v31, 4, v0"); A(f"v_mul_u32_u24 v31, {T_STR}, v31")
        else:
            A(f"v_lshrrev_b32 v31, 1, v{vr}"); A(f"v_and_b32 v{vr}, 1, v{vr}"); A(f"v_lshlrev_b32 v{vr}, 1, v{vr}"); A(f"v_lshlrev_b32 v31, 7, v31")
            A("v_lshrrev_b32 v30, 5, v0"); A(f"v_add_u32 v{vr}, v{vr}, v30"); A(f"v_mul_u32_u24 v{vr}, {T_STR}, v{vr}")
            A("v_bfe_u32 v30, v0, 4, 1"); A("v_lshl_add_u32 v31, v30, 9, v31")
        A(f"v_add3_u32 v{vr}, v{vr}, v31, s47"); A("v_and_b32 v31, 3, v0"); A(f"v_lshl_add_u32 v{vr}, v31, 3, v{vr}")
    def wo_issue(nw, gs=(0,1,2,3)):
        C("wo rows of this head, column block c = wave-1; then transpose into MFMA B fragments")
        A("s_mul_i32 s47, s31, 229376"); A("s_sub_u32 s48, s3, 1"); A("s_lshl_b32 s48, s48, 7"); A("s_add_u32 s47, s47, s48")
        A(f"s_sub_u32 s48, {4096*896}, s47")
        srd(52,12,13,"s47","s48")
        A(f"v_mul_u32_u24 v{hAD}, 896, v2"); A(f"v_lshl_add_u32 v{hAD}, v3, 4, v{hAD}")
        n=0
        for g in gs:
            for hf in range(2):
                if not wrot: A(f"s_mov_b32 s47, {7168*(8*g+4*hf)}")
                elif hf==0: A(f"s_add_u32 s47, s99, {g}"); A("s_and_b32 s47, s47, 3"); A(f"s_mul_i32 s47, s47, {7168*8}")
                else: A("s_add_u32 s47, s47, 7168")
                for r in range(4):
                    if skipwo: continue
                    if n>=nw: A(f"s_waitcnt vmcnt({nw-1})")
                    rr=WO+32*g+16*hf+4*r
                    A(f"buffer_load_dwordx4 v[{rr}:{rr+3}], v{hAD}, s[52:55], s47 offen {HF}")
                    if r<3: A("s_add_u32 s47, s47, 7168")
                    n+=1
        t_addr(hAD,hLD,False)
        A("s_waitcnt vmcnt(0)")
        for g in gs:
            for k in range(8): A(f"ds_write_b128 v{hAD}, v[{WO+32*g+4*k}:{WO+32*g+4*k+3}] offset:{T_STR*k}")
            A("s_waitcnt lgkmcnt(0)")
            for kp in range(2):
                for nu in range(4):
                    for hf in range(2):
                        rr=WO+32*g+16*kp+4*nu+2*hf
                        A(f"ds_read_b64_tr_b16 v[{rr}:{rr+1}], v{hLD} offset:{4*T_STR*kp+256*hf+32*nu}")
            A("s_waitcnt lgkmcnt(0)")
    def combine(acc, dst):
        A(f"v_permlane32_swap_b32 v{acc}, v{acc+1}"); A(f"v_permlane32_swap_b32 v{acc+2}, v{acc+3}")
        A("s_nop 1")
        A(f"v_add_f32_dpp v{dst}, v{acc+1}, v{acc} row_ror:8 row_mask:0xf bank_mask:0xf")
        A(f"v_add_f32_dpp v{dst+1}, v{acc+3}, v{acc+2} row_ror:8 row_mask:0xf bank_mask:0xf")
    def rowsel(dst, srcs):
        for k in range(1,4): A(f"v_mov_b32_dpp v{dst}, v{srcs[k]} quad_perm:[0,1,2,3] row_mask:{1<<k:#x} bank_mask:0xf")

    A("L_buf:")
    A("s_setprio 3")
    A("v_mov_b32 v32, 0"); A("v_mov_b32 v33, 1"); A(f"ds_write_b32 v32, v33 offset:{L_CTL}")
    k_setup()
    A("s_waitcnt lgkmcnt(0)")
    srd(84,6,7,"s35",1<<20)
    A("s_sub_u32 s47, s3, 4"); A("s_lshl_b32 s44, s47, 13")
    A("s_lshl_b32 s47, s47, 3"); A(f"v_add_u32 v{vSW}, s47, v{vSW}")
    bar0(True)
    for i in range(R):
        if i==N0:
            srd_slots()
            A("s_cmp_lg_u32 s3, 5"); A("s_cbranch_scc1 L_notag"); A("s_cmp_lg_u32 s2, 0"); A("s_cbranch_scc1 L_notag")
            C("workgroup 0, wave 5: this launch's tag differs from the one left in d_ws; announced in d_debug[0]")
            srd(92,24,25,"0x100000",256)
            A("s_memrealtime s[62:63]")
            A(f"buffer_load_dword v32, off, s[92:95], 0 {SC}"); A("s_waitcnt vmcnt(0) lgkmcnt(0)")
            A("s_and_b32 s62, s62, 0x7ff"); A("s_add_u32 s62, s62, 1")
            A("v_add_u32 v32, s62, v32"); A("v_and_b32 v32, 0xfff, v32"); A("v_or_b32 v33, 0x1000, v32")
            A("s_mov_b64 exec, 1")
            A(f"buffer_store_dword v33, off, s[56:59], 0 {SC}")
            A(f"buffer_store_dword v32, off, s[92:95], 0 {SC}")
            A("s_mov_b64 exec, -1")
            A("L_notag:")
        if i>=N0: A(f"s_waitcnt vmcnt({N0-1})")
        r=slot(i)
        A(f"buffer_load_dwordx4 v[{r}:{r+3}], v{vK}, s[84:87], s44 offen offset:{128*(i%4)} {SF}")
        if st0 and i==0: STAMP(1)
        if i%4==3: A(f"s_add_u32 s44, s44, {4096 if i%8==3 else 4096+NB*8192}")
    bar0(False)
    if not st0: STAMP(1)
    A("s_barrier")
    STAMP(2)
    A("s_setprio 0")
    q_read()
    for c in range(R):
        A(f"s_waitcnt vmcnt({R-1-c})")
        pi=c//8
        k_consume(c, None if pi==0 else L_S+8*(NB+1)*(pi-1))
    k_flush(L_S+8*(NB+1)*(NP0-1))
    A("s_sub_u32 s47, s3, 4"); A("s_lshl_b32 s47, s47, 4")
    mx_publish("s47", vR)
    A("s_cmp_eq_u32 s3, 7"); A("s_cbranch_scc1 L_mon")
    A("L_wo:")
    wo_issue(NW,(0,1) if wsplit else (0,1,2,3))
    STAMP(3)
    A("s_barrier")
    A("s_cmp_eq_u32 s3, 5"); A("s_cbranch_scc1 L_w5")
    A("s_cmp_lg_u32 s3, 6"); A("s_cbranch_scc1 L_wo2")
    C("wave 6: softmax denominator, exchange (m,l) with the other half, scale")
    A("v_mov_b32 v4, 0")
    for w in range(4): A(f"ds_read_b128 v[{64+4*w}:{64+4*w+3}], v4 offset:{L_MX+16*w}")
    A(f"v_mul_u32_u24 v5, {S_STR}, v2"); A("v_lshl_add_u32 v5, v3, 7, v5")
    for n in range(8): A(f"ds_read_b128 v[{32+4*n}:{32+4*n+3}], v5 offset:{L_S+16*n}")
    A("s_waitcnt lgkmcnt(8)")
    max16(6,64)
    A("v_mul_f32 v7, s34, v6"); A("v_sub_f32 v7, 0, v7")
    A("s_waitcnt lgkmcnt(0)")
    for k in range(32): A(f"v_fma_f32 v{32+k}, v{32+k}, s34, v7")
    for k in range(32): A(f"v_exp_f32 v{32+k}, v{32+k}")
    for st in (16,8,4,2,1):
        for k in range(st): A(f"v_add_f32 v{32+k}, v{32+k}, v{32+k+st}")
    wave_sum(32,33)
    tag_wait(16)
    C("v6=M v32=l ; four words: 16-bit halves of M and l, each with a 16-bit tag")
    A("v_or_b32 v16, 0xa000, v16"); A("s_mov_b32 s47, 0xffff0000")
    A("v_and_or_b32 v8, v6, s47, v16"); A("v_lshl_or_b32 v9, v6, 16, v16"); A("v_and_or_b32 v10, v32, s47, v16"); A("v_lshl_or_b32 v11, v32, 16, v16")
    A("s_mov_b64 exec, 1")
    A(f"buffer_store_dwordx4 v[8:11], off, s[36:39], 0 offset:3840 {SC}")
    A("s_mov_b64 exec, -1")
    A("s_xor_b32 s48, s32, 1"); A("s_lshl_b32 s48, s48, 12"); A("s_mov_b32 s49, 400000")
    A("L_mlp:")
    A(f"buffer_load_dwordx4 v[12:15], off, s[40:43], s48 offset:3840 {SC}"); A("s_waitcnt vmcnt(0)")
    A("v_xor_b32 v17, v12, v16")
    for r in (13,14,15): A(f"v_bitop3_b32 v17, v{r}, v16, v17 bitop3:0xbe")
    A("v_and_b32 v17, 0xffff, v17")
    A("v_cmp_ne_u32 vcc, 0, v17"); A("s_sub_u32 s49, s49, 1"); A("s_cbranch_scc1 L_mlx")
    A("s_cbranch_vccz L_mlx"); A("s_sleep 8"); A("s_branch L_mlp")
    A("L_mlx:")
    A("v_lshrrev_b32 v13, 16, v13"); A("v_lshrrev_b32 v15, 16, v15"); A("v_and_or_b32 v10, v12, s47, v13"); A("v_and_or_b32 v11, v14, s47, v15")
    A("v_max_f32 v12, v6, v10")
    A("v_sub_f32 v13, v6, v12"); A("v_sub_f32 v14, v10, v12")
    A("v_mul_f32 v13, s34, v13"); A("v_mul_f32 v14, s34, v14")
    A("v_exp_f32 v13, v13"); A("v_exp_f32 v14, v14"); A("s_nop 0")
    A("v_mul_f32 v15, v13, v32"); A("v_fma_f32 v15, v14, v11, v15")
    A("v_rcp_f32 v15, v15"); A("s_nop 0"); A("v_mul_f32 v15, v15, v13")
    A(f"ds_write_b32 v4, v15 offset:{L_SC}")
    A("s_branch L_wo2")

    A("L_w5:")
    C("wave 5: tag for the other waves; x and the gathered FFN result for the final step")
    tag_wait(78)
    A("v_mov_b32 v4, 0"); A(f"ds_write_b32 v4, v78 offset:{L_TAG}")
    A("s_cmp_ge_u32 s32, 28"); A("s_cbranch_scc1 L_wo2")
    A("s_mul_i32 s47, s30, 896"); srd(88,4,5,"s47",896)
    g_addr(64,65,4)
    A("buffer_load_ushort v66, v65, s[88:91], 0 offen")
    A("s_mov_b32 s49, 400000"); A("s_mov_b32 s47, 65536")
    for r in range(8): A(f"v_mov_b32 v{68+r}, v78")
    A("L_bp:")
    if skipffn!=1:
        A("s_mov_b64 exec, 0xffff")
        A(f"buffer_load_dwordx4 v[68:71], v64, s[40:43], 0 offen offset:2048 {SC}")
        A("s_mov_b64 exec, -1"); A("s_waitcnt vmcnt(0)")
        g_check(68,76,78,0)
        A("s_sub_u32 s49, s49, 1"); A("s_cbranch_scc1 L_bx"); A("s_cbranch_vccz L_bx"); A("s_sleep 16"); A("s_branch L_bp")
    A("L_bx:")
    A("s_waitcnt vmcnt(0)")
    g_reduce(68,78)
    A("v_cvt_pk_bf16_f32 v67, 0, v68"); A("v_lshlrev_b32 v66, 16, v66")
    A("v_and_b32 v4, 15, v0"); A("v_lshlrev_b32 v4, 3, v4")
    A(f"ds_write_b64 v4, v[66:67] offset:{L_XB}")
    A("L_wo2:")
    if wsplit: wo_issue(NW,(2,3))
    A("s_branch L_tail")

    REFS=[0,6,10,12]
    A("L_mon:")
    C("wave 7: compare this workgroup's progress with four reference workgroups and pick the streamer's depth")
    wo_issue(NW7)
    srd(40,24,25,None,1<<20)
    for k in range(4):
        A(f"s_add_u32 s47, s30, {(2*k+(k>>1))%8 if xb else 0}"); A("s_and_b32 s47, s47, 7"); A("s_lshl_b32 s47, s47, 17"); A(f"s_add_u32 s{12+k}, s47, {4096*REFS[k]+3968}")
    A(f"s_mov_b32 s51, {(~sum(1<<r for r in REFS))&0xffffffff:#x}"); A("s_lshr_b32 s51, s51, s32"); A("s_and_b32 s51, s51, 1")
    tag_wait(5)
    A("v_lshlrev_b32 v5, 16, v5"); A("s_lshl_b32 s96, s96, 16"); A("v_mov_b32 v4, 0"); A("s_mov_b32 s50, 0"); A("s_mov_b32 s100, 0")
    for ph,pend in (("k",PKEND),("v",PVEND)):
        A(f"L_mon{ph}:")
        A(f"ds_read_b32 v6, v4 offset:{L_PRG}"); A("s_waitcnt lgkmcnt(0)"); A("v_readfirstlane_b32 s47, v6")
        A(f"s_cmp_ge_u32 s47, {pend}"); A(f"s_cbranch_scc1 L_mon{ph}x")
        A("s_cmp_lg_u32 s47, s50"); A(f"s_cbranch_scc1 L_mon{ph}n")
        A(f"s_sleep {msleep}"); A(f"s_branch L_mon{ph}")
        A(f"L_mon{ph}n:")
        A("s_mov_b32 s50, s47")
        A(f"s_and_b32 s48, s47, {PD-1}"); A("s_or_b32 s48, s48, s51"); A(f"s_cbranch_scc1 L_mon{ph}p")
        A("v_or_b32 v6, v5, v6")
        A("s_mov_b64 exec, 1")
        A(f"buffer_store_dword v6, off, s[36:39], 0 offset:3968 {SC}")
        A("s_mov_b64 exec, -1")
        A(f"L_mon{ph}p:")
        if RD>1 and not pulse: A(f"s_and_b32 s48, s47, {RD-1}"); A(f"s_cbranch_scc1 L_mon{ph}")
        if RD>1 and pulse:
            A(f"s_and_b32 s48, s47, {RD-1}"); A(f"s_cbranch_scc0 L_mon{ph}r")
            A("s_abs_i32 s48, s100"); A(f"s_cmp_ge_i32 s48, {pulse}"); A(f"s_cbranch_scc1 L_mon{ph}")
            A("v_mov_b32 v7, 1"); A(f"ds_write_b32 v4, v7 offset:{L_CTL}"); A(f"s_branch L_mon{ph}")
            A(f"L_mon{ph}r:")
        for k in range(4): A(f"s_buffer_load_dword s{4+k}, s[40:43], s{12+k} glc")
        A("s_waitcnt lgkmcnt(0)")
        for k in range(4): A(f"s_sub_u32 s{4+k}, s{4+k}, s96")
        A("s_mov_b32 s48, s4"); A("s_mov_b32 s49, s4")
        for k in range(1,4): A(f"s_add_u32 s48, s48, s{4+k}"); A(f"s_max_u32 s49, s49, s{4+k}")
        A("s_cmp_gt_u32 s49, 63"); A(f"s_cbranch_scc1 L_mon{ph}")
        A("s_lshl_b32 s48, s48, 3")
        A("s_lshl_b32 s49, s47, 5"); A(f"s_add_i32 s49, s49, {BIAS-32}"); A("s_sub_i32 s49, s49, s48")
        if pulse: A("s_mov_b32 s100, s49")
        A(f"s_cmp_gt_i32 s49, {TH}"); A("s_cselect_b32 s48, 0, 1"); A(f"s_cmp_lt_i32 s49, {-TH}"); A("s_cselect_b32 s48, 2, s48")
        A("v_mov_b32 v7, s48"); A(f"ds_write_b32 v4, v7 offset:{L_CTL}")
        A(f"s_branch L_mon{ph}")
        A(f"L_mon{ph}x:")
        if ph=="k": A("s_waitcnt lgkmcnt(0)"); STAMP(3); A("s_barrier")

    A("L_tail:")
    A(f"v_lshrrev_b32 v{hLD}, 4, v0"); A(f"v_lshlrev_b32 v{hLD}, 4, v{hLD}"); A("v_mov_b32 v30, 0")
    A(f"v_lshlrev_b32 v{hAD}, 2, v0")
    A("s_sub_u32 s48, s3, 1"); A("s_lshl_b32 s48, s48, 8")
    A("s_waitcnt vmcnt(0) lgkmcnt(0)")
    STAMP(4)
    for q in range(4):
        A("s_barrier")
        if q==3: STAMP(5)
        for ka in range(2): A(f"ds_read_b128 v[{32+8*q+4*ka}:{32+8*q+4*ka+3}], v{hLD} offset:{L_O+128*q+64*ka}")
        if q==0: A(f"ds_read_b64 v[10:11], v30 offset:{L_SC}")
        for ka in range(2):
            A(f"s_waitcnt lgkmcnt({(2 if q==0 else 1)-ka})")
            for nu in range(4):
                a=12+4*nu; w=WO+32*q+16*ka+4*nu; x=32+8*q+4*ka
                A(f"v_mfma_f32_16x16x32_bf16 v[{a}:{a+3}], v[{x}:{x+3}], v[{w}:{w+3}], {'0' if (q==0 and ka==0) else f'v[{a}:{a+3}]'}")
    A("s_nop 5")
    rowsel(12,[12,16,20,24])
    A("v_mul_f32 v12, v10, v12"); A("v_add_u32 v12, 0x800, v12"); A("v_and_or_b32 v12, v12, s97, v11")
    A(f"buffer_store_dword v12, v{hAD}, s[36:39], s48 offen {YF or SC}")
    STAMP(6)
    if pb: A("s_cmp_ge_u32 s32, 28"); A("s_cbranch_scc1 L_tend"); A("s_barrier"); A("L_tend:")
    stamp_out()
    A("s_endpgm")

    A("L_help:")
    D0=32
    def layernorm(xr, dup):
        for k in range(4):
            A(f"v_lshlrev_b32 v{8+2*k}, 16, v{xr+k}"); A(f"v_and_b32 v{9+2*k}, 0xffff0000, v{xr+k}")
        A("v_add_f32 v16, v8, v9"); A("v_add_f32 v17, v10, v11"); A("v_add_f32 v18, v12, v13"); A("v_add_f32 v19, v14, v15")
        A("v_add_f32 v16, v16, v17"); A("v_add_f32 v18, v18, v19"); A("v_add_f32 v16, v16, v18")
        wave_sum(16,17)
        A(f"v_mul_f32 v16, {f2u(1.0/448):#x}, v16")
        A("v_cmp_gt_u32 vcc, 56, v0"); A("v_cvt_pk_bf16_f32 v17, 0, v16"); A("s_nop 0")
        A("v_cndmask_b32 v16, 0, v16, vcc")
        A("v_sub_f32 v4, v8, v16"); A("v_mul_f32 v18, v4, v4")
        for k in range(1,8): A(f"v_sub_f32 v4, v{8+k}, v16"); A("v_fmac_f32 v18, v4, v4")
        wave_sum(18,19)
        A(f"v_mul_f32 v18, {f2u(1.0/448):#x}, v18")
        A("v_cvt_pk_bf16_f32 v18, 0, v18")
        A(f"v_add_f32 v18, {f2u(1e-5):#x}, v18")
        A("v_cvt_pk_bf16_f32 v18, 0, v18")
        A("v_sqrt_f32 v18, v18"); A("s_nop 0")
        A("v_cvt_pk_bf16_f32 v18, 0, v18")
        A("v_rcp_f32 v19, v18")
        for k in range(8):
            A(f"v_sub_f32 v{8+k}, v{8+k}, v17"); A(f"v_cvt_pk_bf16_f32 v{8+k}, 0, v{8+k}")
            A(f"v_mul_f32 v4, v{8+k}, v19"); A(f"v_fma_f32 v6, -v4, v18, v{8+k}")
            if dup: A("v_fma_f32 v4, v6, v19, v4"); A(f"v_cvt_pk_bf16_f32 v{8+k}, v4, v4")
            else: A(f"v_fma_f32 v{8+k}, v6, v19, v4")
        if not dup:
            for k in range(4): A(f"v_cvt_pk_bf16_f32 v{8+k}, v{8+2*k}, v{9+2*k}")
    def wq_load(t):
        A(f"buffer_load_dwordx4 v[{D0+4*t}:{D0+4*t+3}], v{hAD}, s[52:55], s48 offen {QF}")
        A("s_add_u32 s48, s48, 65536")
        if rot and t%4==3 and t<55: A(f"s_cmp_ge_u32 s48, {56*65536}"); A("s_cselect_b32 s48, 0, s48")
    def gemv56(bar_at):
        XX=[4,8]; BB=[12,16]
        A("s_waitcnt lgkmcnt(0)")
        A(f"ds_read_b128 v[4:7], v{hLD}"); A(f"ds_read_b128 v[8:11], v{hLD} offset:16")
        def bp(t):
            if t%4==0: A(f"s_waitcnt lgkmcnt({1 if t//4+1<14 else 0})")
            for r in range(4): A(f"v_and_b32 v{BB[t%2]+r}, v{XX[(t//4)%2]+t%4}, v{hM+r}")
            if t%4==3 and t//4+2<14:
                x=XX[(t//4)%2]; A(f"ds_read_b128 v[{x}:{x+3}], v{hLD} offset:{16*(t//4+2)}")
        bp(0)
        for t in range(56):
            if t+1<56: bp(t+1)
            else: A("s_nop 0")
            if t+QD<56: wq_load(t+QD)
            if t+QD==bar_at: A("s_barrier")
            A(f"s_waitcnt vmcnt({min(QD,55-t)})")
            A(f"v_mfma_f32_16x16x32_bf16 v[{hACC}:{hACC+3}], v[{D0+4*t}:{D0+4*t+3}], v[{BB[t%2]}:{BB[t%2]+3}], {'0' if t==0 else f'v[{hACC}:{hACC+3}]'}")
        A("s_nop 7")
        combine(hACC,12)
    def ln_part(wait):
        masks(hM,12,13)
        A(f"s_waitcnt vmcnt({wait})")
        layernorm(4,True)
        C("X'[e][(t - 4*rot) mod 56]")
        A("s_sub_u32 s47, s3, 1"); A(f"s_mul_i32 s47, s47, {X_SZ}"); A(f"s_add_u32 s47, s47, {L_X}")
        A("s_lshl_b32 s50, s51, 2"); A("v_subrev_u32 v5, s50, v0"); A("v_add_u32 v6, 56, v5"); A("v_min_u32 v5, v5, v6")
        A("v_cmp_lt_u32 vcc, 55, v0"); A("s_nop 1"); A("v_cndmask_b32 v5, v5, v0, vcc")
        A("v_lshl_add_u32 v5, v5, 2, s47")
        for k in range(8): A(f"ds_write_b32 v5, v{8+k} offset:{k*X_STR}")
        A(f"v_mul_u32_u24 v{hLD}, {X_STR}, v2"); A(f"v_add_u32 v{hLD}, s47, v{hLD}")
    C("q column block w-1 over all 448 rows of wq, tile order rotated by 4*s51 tiles")
    A("v_lshlrev_b32 v1, 4, v0")
    A(f"v_lshlrev_b32 v{hAD}, 13, v2"); A(f"v_lshl_add_u32 v{hAD}, v3, 4, v{hAD}")
    A("s_mul_i32 s47, s30, 896")
    A("s_lshl_b32 s48, s31, 9"); A("s_sub_u32 s49, s3, 1"); A("s_lshl_b32 s49, s49, 7"); A("s_add_u32 s48, s48, s49"); A(f"s_sub_u32 s49, {448*8192}, s48")
    if rot: A("s_mul_i32 s51, s30, 7"); A("s_lshr_b32 s51, s51, 2")
    else: A("s_mov_b32 s51, 0")
    A("s_waitcnt lgkmcnt(0)")
    srd(88,4,5,"s47",896)
    srd(52,10,11,"s48","s49")
    A("buffer_load_dwordx4 v[4:7], v1, s[88:91], 0 offen")
    if st0: STAMP(1)
    A("s_lshl_b32 s48, s51, 18")
    A("s_cmp_eq_u32 s28, 1"); A("s_cbranch_scc1 L_q1")
    for t in range(QD): wq_load(t)
    ln_part(QD); gemv56(55); A("s_branch L_q2")
    A("L_q1:")
    ln_part(0); A("s_barrier")
    for t in range(QD): wq_load(t)
    gemv56(None)
    A("L_q2:")
    C("q -> bf16 -> LDS: addr = m*128 + (4*rowq+hi)*16 + j*2 (+32 for the second register)")
    A("v_cvt_pk_bf16_f32 v12, v12, v13")
    A("v_bfe_u32 v4, v0, 4, 1"); A("v_lshrrev_b32 v5, 5, v0"); A("v_lshl_add_u32 v4, v4, 2, v5"); A("v_lshlrev_b32 v4, 4, v4"); A("v_lshl_add_u32 v4, v3, 1, v4")
    A("s_sub_u32 s47, s3, 1"); A("s_lshl_b32 s47, s47, 7"); A("v_add_u32 v4, s47, v4")
    A("s_mov_b64 exec, s[60:61]")
    A(f"ds_write_b16 v4, v12 offset:{L_Q}"); A(f"ds_write_b16_d16_hi v4, v12 offset:{L_Q+32}")
    A("s_mov_b64 exec, -1")
    A("s_waitcnt lgkmcnt(0)")
    if not st0: STAMP(1)
    A("s_barrier")
    STAMP(2)
    srd_slots()
    C("FFN, wave 1 of 2 x 28 workgroups, all 8 batches at once. Stage 0 (s50=0): h = silu(xn . w1[:, 64f..64f+63])")
    C("stage 1 (s50=1): partial result h[448r..448r+447] . w2[448r.., 64c..64c+63], f = 7r + c")
    A("s_cmp_lg_u32 s3, 1"); A("s_cbranch_scc1 L_wo")
    if skipffn==1: A("s_branch L_wo")
    A("s_cmp_lg_u32 s28, 1"); A("s_cbranch_scc1 L_wo")
    A("s_xor_b32 s47, s30, s26"); A("s_and_b32 s48, s47, 1"); A("s_cbranch_scc1 L_wo")
    A("s_bfe_u32 s50, s47, 0x10001"); A("s_lshr_b32 s47, s47, 2"); A("s_lshl_b32 s47, s47, 4"); A("s_add_u32 s51, s31, s47")
    A("s_cmp_ge_u32 s51, 28"); A("s_cbranch_scc1 L_wo")
    A("s_mul_i32 s62, s51, 37"); A("s_lshr_b32 s62, s62, 8"); A("s_mul_i32 s63, s62, 7"); A("s_sub_u32 s63, s51, s63")
    C("s62 = r, s63 = c")
    A("s_cmp_eq_u32 s50, 1"); A("s_cbranch_scc1 L_f1a")
    A("s_lshl_b32 s48, s51, 7"); A(f"s_sub_u32 s49, {448*3584}, s48"); srd(52,16,17,"s48","s49")
    A("s_mov_b32 s46, 3584")
    C("raw x of the 8 batches -> XN, then layernorm in place while the first tiles are in flight")
    srd(88,4,5,None,8*896)
    A(f"v_add_u32 v5, {L_XN}, v1"); A("v_cmp_gt_u32 vcc, 56, v0"); A("v_mov_b32 v6, 0x10000"); A("s_nop 0"); A("v_cndmask_b32 v6, v6, v1, vcc")
    for b in range(8): A(f"buffer_load_dwordx4 v[{224+4*b}:{227+4*b}], v6, s[88:91], 0 offen offset:{896*b}" if 896*b<4096 else f"buffer_load_dwordx4 v[{224+4*b}:{227+4*b}], v6, s[88:91], s46 offen offset:{896*b-3584}")
    A("s_branch L_f1b")
    A("L_f1a:")
    A(f"s_mul_i32 s48, s62, {448*896}"); A("s_lshl_b32 s49, s63, 7"); A("s_add_u32 s48, s48, s49"); A(f"s_sub_u32 s49, {1792*896}, s48"); srd(52,18,19,"s48","s49")
    A("s_mov_b32 s46, 896")
    A("L_f1b:")
    A(f"v_mul_u32_u24 v{hAD}, s46, v2"); A(f"v_lshl_add_u32 v{hAD}, v3, 4, v{hAD}")
    A("s_lshl_b32 s46, s46, 3"); A("s_mov_b32 s48, 0")
    def w_load(t):
        A(f"buffer_load_dwordx4 v[{D0+4*t}:{D0+4*t+3}], v{hAD}, s[52:55], s48 offen {WF}")
        A("s_add_u32 s48, s48, s46")
    for t in range(NF): w_load(t)
    A("s_cmp_eq_u32 s50, 1"); A("s_cbranch_scc1 L_f2")
    A(f"s_waitcnt vmcnt({NF})")
    for b in range(8): A(f"ds_write_b128 v5, v[{224+4*b}:{227+4*b}] offset:{XN_STR*b}")
    A("s_mov_b32 s49, 8")
    A("L_ln8:")
    A("s_waitcnt lgkmcnt(0)")
    A("ds_read_b128 v[20:23], v5"); A("s_waitcnt lgkmcnt(0)")
    layernorm(20,False)
    A("ds_write_b128 v5, v[8:11]")
    A(f"v_add_u32 v5, {XN_STR}, v5"); A("s_sub_u32 s49, s49, 1"); A("s_cmp_lg_u32 s49, 0"); A("s_cbranch_scc1 L_ln8")
    A("L_f2:")
    for t in range(NF,56):
        A(f"s_waitcnt vmcnt({NF-1})"); w_load(t)
    A("s_waitcnt vmcnt(0)")
    def transpose4(regs):
        for k in range(4): A(f"ds_write_b128 v{hAD}, v[{regs[k]}:{regs[k]+3}] offset:{T_STR*k}")
        A("s_waitcnt lgkmcnt(0)")
        for nu in range(4):
            for hf in range(2): A(f"ds_read_b64_tr_b16 v[{regs[nu]+2*hf}:{regs[nu]+2*hf+1}], v{hLD} offset:{512*hf+32*nu}")
        A("s_waitcnt lgkmcnt(0)")
    t_addr(hAD,hLD,True)
    for ka in range(14): transpose4([D0+16*ka+4*k for k in range(4)])
    tag_wait(1)
    A("v_or_b32 v7, 0xa000, v1")
    srd(52,24,25,None,1<<20)
    A("s_lshl_b32 s47, s51, 12"); A("s_add_u32 s47, s47, 1792")
    A("s_cmp_eq_u32 s50, 0"); A("s_cbranch_scc1 L_f3")
    C("gather h: 7 slices x 8 batches, one bf16 and a 16-bit tag per word")
    A("v_lshrrev_b32 v5, 4, v0"); A("v_and_b32 v6, 15, v0"); A("v_lshlrev_b32 v4, 17, v5"); A("v_lshl_add_u32 v4, v6, 4, v4")
    A(f"s_mul_i32 s47, s62, {7*4096}"); A("s_add_u32 s47, s47, 1792"); A("v_add_u32 v4, s47, v4")
    A(f"v_mul_u32_u24 v5, {XN_STR}, v5"); A("v_lshl_add_u32 v5, v6, 3, v5")
    A("s_mov_b32 s49, 400000"); A("s_mov_b32 s63, 0x07060302")
    items=[(ps,sl) for ps in range(2) for sl in range(7)]
    for rd,grp in enumerate((items[0:5],items[5:10],items[10:14])):
        A(f"L_hg{rd}:")
        for k,(ps,sl) in enumerate(grp):
            A(f"s_mov_b32 s47, {ps*4*131072+sl*4096}")
            A(f"buffer_load_dwordx4 v[{8+4*k}:{11+4*k}], v4, s[52:55], s47 offen {SC}")
        A("s_waitcnt vmcnt(0)")
        A("v_xor_b32 v6, v8, v7")
        for r in range(1,4*len(grp)): A(f"v_bitop3_b32 v6, v{8+r}, v7, v6 bitop3:0xbe")
        A("v_and_b32 v6, 0xffff, v6"); A("v_cmp_ne_u32 vcc, 0, v6")
        A("s_sub_u32 s49, s49, 1"); A(f"s_cbranch_scc1 L_hx{rd}"); A(f"s_cbranch_vccz L_hx{rd}"); A("s_sleep 16"); A(f"s_branch L_hg{rd}")
        A(f"L_hx{rd}:")
        for k,(ps,sl) in enumerate(grp):
            A(f"v_perm_b32 v{8+4*k}, v{9+4*k}, v{8+4*k}, s63"); A(f"v_perm_b32 v{9+4*k}, v{11+4*k}, v{10+4*k}, s63")
            A(f"ds_write_b64 v5, v[{8+4*k}:{9+4*k}] offset:{L_XN+4*XN_STR*ps+128*sl}")
        A("s_waitcnt lgkmcnt(0)")
    A("s_mul_i32 s63, s62, 7"); A("s_sub_u32 s63, s51, s63")
    A("s_lshl_b32 s47, s62, 12"); A("s_lshl_b32 s48, s63, 8"); A("s_add_u32 s47, s47, s48"); A("s_add_u32 s47, s47, 2048")
    A("L_f3:")
    C("A fragments: row i of the MFMA is batch (i&3) (+4 in the second pass)")
    A("v_and_b32 v30, 3, v0"); A(f"v_mul_u32_u24 v30, {XN_STR}, v30"); A("v_lshrrev_b32 v31, 4, v0"); A("v_lshl_add_u32 v30, v31, 4, v30")
    A("v_lshl_add_u32 v31, v0, 2, s47")
    for ps in range(2):
        for ka in range(14):
            A(f"ds_read_b128 v[{20+4*(ka%2)}:{23+4*(ka%2)}], v30 offset:{L_XN+4*XN_STR*ps+64*ka}"); A("s_waitcnt lgkmcnt(0)")
            for nu in range(4):
                a=4+4*nu; w=D0+16*ka+4*nu
                A(f"v_mfma_f32_16x16x32_bf16 v[{a}:{a+3}], v[{20+4*(ka%2)}:{23+4*(ka%2)}], v[{w}:{w+3}], {'0' if ka==0 else f'v[{a}:{a+3}]'}")
        for r in range(4): A(f"s_mov_b32 s{44+r}, {(4*ps+r)<<17}")
        A("s_nop 7")
        for r in range(4):
            rowsel(4+r,[4+r,8+r,12+r,16+r])
        A("s_cmp_eq_u32 s50, 1"); A(f"s_cbranch_scc1 L_f4{ps}")
        A("v_or_b32 v21, 0xa000, v1")
        for r in range(4):
            k=4+r
            A(f"v_cvt_pk_bf16_f32 v{k}, 0, v{k}")
            A(f"v_mul_f32 v20, {f2u(-math.log2(math.e)):#x}, v{k}"); A("v_exp_f32 v20, v20"); A("s_nop 0")
            A("v_add_f32 v20, 1.0, v20"); A("v_rcp_f32 v20, v20"); A("s_nop 0")
            A(f"v_mul_f32 v{k}, v{k}, v20"); A(f"v_cvt_pk_bf16_f32 v{k}, 0, v{k}"); A(f"v_or_b32 v{k}, v{k}, v21")
        A(f"s_branch L_f5{ps}")
        A(f"L_f4{ps}:")
        for r in range(4): A(f"v_add_u32 v{4+r}, 0x800, v{4+r}"); A(f"v_and_or_b32 v{4+r}, v{4+r}, s97, v1")
        A(f"L_f5{ps}:")
        for r in range(4): A(f"buffer_store_dword v{4+r}, v31, s[52:55], s{44+r} offen {SC}")
        A("s_nop 1")
    STAMP(3)
    A("s_barrier")
    wo_issue(NW7)
    A("s_branch L_tail")
    A("L_end:")
    A("s_endpgm")
    body="\n".join(("" if (l.endswith(":") or l.startswith(".")) else "    ")+l for l in L)+"\n"
    head=HEADER+f"; @launch grid=(256,1,1) block=(512,1,1) lds={L_END}\n"
    return head+body+kd(NAME,256,102,256), L_END

if __name__=="__main__":
    kw=eval("dict(%s)"%(sys.argv[2] if len(sys.argv)>2 else ""))
    t,ldsz=gen(**kw)
    out=sys.argv[1]
    if out.endswith(".s"): open(out,"w").write(t)
    else:
        assemble(t+meta([(NAME,256,102,512)]), out); print(f"work/{out}:{NAME},256,512,{ldsz}")
```

```python
import sys, math, struct
from common import *

NAME="parallel_sum__mha_block_cached__dense_activation_silu__decode_kernel"
HEADER=open("parallel_sum__mha_block_cached__dense_activation_silu__decode.s.ref").read().split("; Override launch")[0]

L_Q=0; L_MX=512; L_SC=576; L_TAG=580; L_PRG=584; L_CTL=588; L_XB=640
L_O=768
L_S=1280; S_STR=1040
L_X=L_S+8*S_STR; X_STR=272; X_SZ=8*X_STR
L_XN=L_X+4*X_SZ; XN_STR=1040
L_HP=L_XN+8*XN_STR; HP_STR=144
L_T=L_HP+8*HP_STR; T_STR=1056; T_SZ=8*T_STR
L_END=L_T+7*T_SZ
CEXP=math.log2(math.e)/16.0
def f2u(f): return struct.unpack("<I",struct.pack("<f",f))[0]

def gen(N=24, N0=10, R=48, NF=8, NW=1, NW7=4, QD=12, stamp=False, SC="sc1", HF="", QF="", SF="nt",
        rot=1, ctl=(18,24,32), ctlK=None, TH=6, BIAS=0, PD=2, RD=2, msleep=4, xb=1, dpoll=1, skipwo=0, skipffn=0, NT=None, late=1, pulse=0, st0=0, OF='', dual=0, dry=0, TS=8, SD=3, PF=None, YF=None, dps=4, pb=1, BO=0, BF=None, WF='nt', wrot=0, wsplit=1, stag=0, RV=0, PS=24, TH4=None):
    L=[]; A=L.append
    def C(s): A("    ; "+s)
    lbl=[0]
    def newl(): lbl[0]+=1; return lbl[0]
    def STAMP(i):
        if stamp: A(f"s_memrealtime s[{70+2*i}:{71+2*i}]")
    def srd(d, lo, hi, off, size):
        if off is None: A(f"s_mov_b32 s{d}, s{lo}"); A(f"s_mov_b32 s{d+1}, s{hi}")
        else: A(f"s_add_u32 s{d}, s{lo}, {off}"); A(f"s_addc_u32 s{d+1}, s{hi}, 0")
        A(f"s_mov_b32 s{d+2}, {size}"); A(f"s_mov_b32 s{d+3}, 0x20000")
    def masks(base,t0,t1):
        A(f"v_and_b32 v{t0}, 1, v3"); A(f"v_lshlrev_b32 v{t0}, 4, v{t0}"); A(f"v_mov_b32 v{t1}, 0xffff"); A(f"v_lshlrev_b32 v{t0}, v{t0}, v{t1}")
        A(f"v_lshrrev_b32 v{t1}, 1, v3")
        for r in range(4):
            A(f"v_cmp_eq_u32 vcc, {r}, v{t1}"); A("s_nop 1"); A(f"v_cndmask_b32 v{base+r}, 0, v{t0}, vcc")
    def stamp_out(tmp=4):
        if not stamp: return
        A("s_waitcnt lgkmcnt(0)")
        A("s_mov_b64 exec, 1")
        srd(64,24,25,None,0x40000000)
        A("s_lshl_b32 s68, s2, 3"); A("s_add_u32 s68, s68, s3"); A("s_lshl_b32 s68, s68, 5"); A("s_add_u32 s68, s68, 0x20000000")
        A("s_getreg_b32 s69, hwreg(HW_REG_XCC_ID)")
        for i in range(7): A(f"v_mov_b32 v{tmp+i}, s{70+2*i}")
        A(f"v_mov_b32 v{tmp+7}, s69")
        A(f"buffer_store_dwordx4 v[{tmp}:{tmp+3}], off, s[64:67], s68")
        A(f"buffer_store_dwordx4 v[{tmp+4}:{tmp+7}], off, s[64:67], s68 offset:16")
        A("s_waitcnt vmcnt(0)")
    def srd_slots():
        A("s_lshl_b32 s47, s33, 12"); srd(36,24,25,"s47",4096)
        A("s_lshl_b32 s47, s30, 17"); srd(40,24,25,"s47",131072)
        srd(56,22,23,None,256)
    def tag_wait(t):
        n=newl()
        A("s_mov_b32 s49, 400000")
        A(f"L_cw{n}:")
        A(f"buffer_load_dword v{t}, off, s[56:59], 0 {SC}"); A("s_waitcnt vmcnt(0)")
        A(f"v_cmp_eq_u32 vcc, 0, v{t}"); A("s_sub_u32 s49, s49, 1"); A(f"s_cbranch_scc1 L_cwx{n}")
        A(f"s_cbranch_vccz L_cwx{n}"); A("s_sleep 8"); A(f"s_branch L_cw{n}")
        A(f"L_cwx{n}:")
        A(f"v_and_b32 v{t}, 0xfff, v{t}"); A("s_nop 0"); A(f"v_readfirstlane_b32 s96, v{t}")
    def g_issue(off,b,vad,srdn,only28=False):
        SC=(PF or "sc1") if not only28 else "sc1"
        A(f"buffer_load_dwordx4 v[{b}:{b+3}], v{vad}, s[{srdn}:{srdn+3}], 0 offen offset:{off} {SC}")
        if only28: A("s_mov_b64 exec, s[62:63]")
        A(f"buffer_load_dwordx4 v[{b+4}:{b+7}], v{vad}, s[{srdn}:{srdn+3}], s47 offen offset:{off} {SC}")
        if only28: A("s_mov_b64 exec, -1")
    def g_check(b,t,vtag,younger):
        A(f"s_waitcnt vmcnt({younger+1})")
        A(f"v_xor_b32 v{t}, v{b}, v{vtag}")
        for r in range(1,4): A(f"v_bitop3_b32 v{t}, v{b+r}, v{vtag}, v{t} bitop3:0xbe")
        A(f"s_waitcnt vmcnt({younger})")
        for r in range(4,8): A(f"v_bitop3_b32 v{t}, v{b+r}, v{vtag}, v{t} bitop3:0xbe")
        A(f"v_and_b32 v{t}, 0xfff, v{t}")
        A(f"v_cmp_ne_u32 vcc, 0, v{t}")
    def g_reduce(b,vtag):
        for r in range(8): A(f"v_xor_b32 v{b+r}, v{b+r}, v{vtag}")
        for r in range(4): A(f"v_add_f32 v{b+r}, v{b+r}, v{b+4+r}")
        for pat in ["row_ror:4","row_ror:8"]:
            for r in range(4): A(f"v_add_f32_dpp v{b+r}, v{b+r}, v{b+r} {pat} row_mask:0xf bank_mask:0xf")
        for r in range(1,4): A(f"v_mov_b32_dpp v{b}, v{b+r} quad_perm:[0,1,2,3] row_mask:0xf bank_mask:{1<<r:#x}")
        for sw in ["16","32"]:
            A(f"v_mov_b32 v{b+1}, v{b}"); A("s_nop 1"); A(f"v_permlane{sw}_swap_b32 v{b}, v{b+1}"); A(f"v_add_f32 v{b}, v{b}, v{b+1}")
    def g_addr(vad,vcol,t):
        A(f"v_lshrrev_b32 v{vad}, 2, v0"); A(f"v_and_b32 v{t}, 3, v0"); A(f"v_and_b32 v{vcol}, 3, v{vad}")
        A(f"v_lshlrev_b32 v{vad}, 12, v{vad}"); A(f"v_lshl_add_u32 v{vad}, v{t}, 4, v{vad}")
        A("s_lshl_b32 s47, s32, 6"); A(f"v_add_u32 v{vad}, s47, v{vad}")
        A(f"v_lshl_add_u32 v{vcol}, v{t}, 2, v{vcol}"); A("s_lshl_b32 s47, s32, 5"); A(f"v_lshl_add_u32 v{vcol}, v{vcol}, 1, s47")
    def wave_sum(v,t):
        for pat in ["quad_perm:[1,0,3,2]","quad_perm:[2,3,0,1]","row_half_mirror","row_mirror"]:
            A("s_nop 1"); A(f"v_add_f32_dpp v{v}, v{v}, v{v} {pat} row_mask:0xf bank_mask:0xf")
        for sw in ["16","32"]:
            A(f"v_mov_b32 v{t}, v{v}"); A("s_nop 1"); A(f"v_permlane{sw}_swap_b32 v{v}, v{t}"); A(f"v_add_f32 v{v}, v{v}, v{t}")
    def max16(dst,b):
        A(f"v_max3_f32 v{dst}, v{b}, v{b+1}, v{b+2}")
        for k in range(3,15,2): A(f"v_max3_f32 v{dst}, v{dst}, v{b+k}, v{b+k+1}")
        A(f"v_max_f32 v{dst}, v{dst}, v{b+15}")

    A('.amdgcn_target "amdgcn-amd-amdhsa--gfx950"'); A(".text"); A(f".globl {NAME}"); A(".p2align 8"); A(f".type {NAME},@function"); A(f"{NAME}:")
    A("s_cmp_ge_u32 s2, 256"); A("s_cbranch_scc1 L_end")
    STAMP(0)
    A("s_load_dwordx16 s[4:19], s[0:1], 0")
    A("s_load_dwordx4 s[20:23], s[0:1], 64")
    A("s_load_dwordx2 s[24:25], s[0:1], 80")
    A("v_lshrrev_b32 v1, 6, v0"); A("v_and_b32 v0, 63, v0"); A("v_readfirstlane_b32 s3, v1")
    A("s_and_b32 s26, s2, 7"); A("s_lshr_b32 s27, s2, 3"); A("s_and_b32 s28, s27, 1")
    A("s_bfe_u32 s29, s27, 0x10001"); A("s_lshr_b32 s30, s27, 2")
    A("s_lshl_b32 s29, s29, 3"); A("s_add_u32 s31, s26, s29")
    A("s_lshl_b32 s32, s31, 1"); A("s_add_u32 s32, s32, s28")
    A("s_lshl_b32 s33, s30, 5"); A("s_add_u32 s33, s33, s32")
    C("s28=half s30=batch s31=head s32=2*head+half s33=32*batch+s32 ; v2=lane>>3 v3=lane&7")
    A("v_lshrrev_b32 v2, 3, v0"); A("v_and_b32 v3, 7, v0")
    A(f"s_mov_b32 s34, {f2u(CEXP):#x}")
    A("s_mov_b32 s60, 0x00ff00ff"); A("s_mov_b32 s61, 0x00ff00ff"); A("s_mov_b32 s97, 0xfffff000")
    if wrot==1: A("s_and_b32 s99, s30, 3")
    if wrot==2: A("s_lshr_b32 s99, s30, 1")
    if wrot==3: A("s_lshl_b32 s99, s28, 1"); A("s_add_u32 s99, s99, s30"); A("s_and_b32 s99, s99, 3")
    A("s_cmp_eq_u32 s3, 0"); A("s_cbranch_scc1 L_stream")
    A("s_cmp_ge_u32 s3, 5"); A("s_cbranch_scc1 L_buf")
    A("s_branch L_help")

    RING=256-4*R
    vK=4; vV=5; vSW=6; vSR=7; vMX=8; vR=9; vR2=10; vA=[11,12]; vB=[13,14]; vQ=16
    def slot(i): return RING+4*(i%R)
    def k_consume(c, dsoff):
        p=c%8; m=p%4; acc=vA if p<4 else vB; r=slot(c)
        for k in range(4):
            src2 = "0" if (m==0 and k<2) else f"v{acc[k%2]}"
            A(f"v_dot2_f32_bf16 v{acc[k%2]}, v{r+k}, v{vQ+4*m+k}, {src2}")
        prev = dsoff is not None
        if p==0 and prev: A(f"v_add_f32 v{vB[0]}, v{vB[0]}, v{vB[1]}")
        if p==1 and prev: A(f"v_add_f32_dpp v{vR}, v{vB[0]}, v{vB[0]} row_half_mirror row_mask:0xf bank_mask:0xa")
        if p==2 and prev: A(f"v_add_f32_dpp v{vR}, v{vR}, v{vR} quad_perm:[1,0,3,2] row_mask:0xf bank_mask:0xf")
        if p==3 and prev: A(f"v_add_f32_dpp v{vR}, v{vR}, v{vR} quad_perm:[2,3,0,1] row_mask:0xf bank_mask:0xf")
        if p==4:
            if prev: A(f"v_cvt_pk_bf16_f32 v{vR2}, 0, v{vR}")
            A(f"v_add_f32 v{vA[0]}, v{vA[0]}, v{vA[1]}")
        if p==5:
            if prev: A(f"v_max_f32 v{vMX}, v{vMX}, v{vR2}"); A(f"ds_write_b32 v{vSW}, v{vR2} offset:{dsoff}")
            A(f"v_add_f32_dpp v{vR}, v{vA[0]}, v{vA[0]} row_half_mirror row_mask:0xf bank_mask:0x5")
    def k_flush(dsoff):
        A("s_nop 2"); A(f"v_add_f32 v{vB[0]}, v{vB[0]}, v{vB[1]}"); A("s_nop 1")
        A(f"v_add_f32_dpp v{vR}, v{vB[0]}, v{vB[0]} row_half_mirror row_mask:0xf bank_mask:0xa"); A("s_nop 1")
        A(f"v_add_f32_dpp v{vR}, v{vR}, v{vR} quad_perm:[1,0,3,2] row_mask:0xf bank_mask:0xf"); A("s_nop 1")
        A(f"v_add_f32_dpp v{vR}, v{vR}, v{vR} quad_perm:[2,3,0,1] row_mask:0xf bank_mask:0xf")
        A(f"v_cvt_pk_bf16_f32 v{vR2}, 0, v{vR}")
        A(f"v_max_f32 v{vMX}, v{vMX}, v{vR2}"); A(f"ds_write_b32 v{vSW}, v{vR2} offset:{dsoff}")
    def mx_publish(w, tmp):
        A("s_nop 1")
        A(f"v_max_f32_dpp v{vMX}, v{vMX}, v{vMX} row_ror:4 row_mask:0xf bank_mask:0xf"); A("s_nop 1")
        A(f"v_max_f32_dpp v{vMX}, v{vMX}, v{vMX} row_ror:8 row_mask:0xf bank_mask:0xf")
        A(f"v_lshrrev_b32 v{tmp}, 4, v0"); A(f"v_lshlrev_b32 v{tmp}, 2, v{tmp}")
        if isinstance(w,int): A(f"ds_write_b32 v{tmp}, v{vMX} offset:{L_MX+16*w}")
        else: A(f"v_add_u32 v{tmp}, {w}, v{tmp}"); A(f"ds_write_b32 v{tmp}, v{vMX} offset:{L_MX}")
    def k_setup():
        A(f"v_lshlrev_b32 v{vK}, 9, v2"); A(f"v_lshl_add_u32 v{vK}, v3, 4, v{vK}")
        A(f"v_mul_u32_u24 v{vSW}, {S_STR}, v2"); A(f"v_lshrrev_b32 v{vSR}, 2, v3"); A(f"v_lshl_add_u32 v{vSW}, v{vSR}, 2, v{vSW}")
        A(f"v_mov_b32 v{vMX}, 0xff800000")
        A("s_lshl_b32 s35, s33, 20")
    def q_read():
        A(f"v_lshlrev_b32 v{vR}, 4, v3")
        for m in range(4): A(f"ds_read_b128 v[{vQ+4*m}:{vQ+4*m+3}], v{vR} offset:{L_Q+128*m}")
        A("s_waitcnt lgkmcnt(0)")
    def bar0(first):
        n=newl()
        A(f"s_cmp_eq_u32 s28, {1 if first else 0}"); A(f"s_cbranch_scc1 L_b0_{n}"); A("s_barrier"); A(f"L_b0_{n}:")
    NP0=R//8; NB=3
    NKS=1024-NB*R
    NTOT=NKS+1024
    NT=NT or N

    A("L_stream:")
    A("s_setprio 3")
    k_setup()
    A(f"v_mov_b32 v{vV}, v{vK}")
    vVq=[60,61,62,63]
    if wrot:
        C("logical quarter g of d is physical quarter (g + s99) & 3")
        for q in range(4):
            A(f"s_add_u32 s47, s99, {q}"); A("s_and_b32 s47, s47, 3"); A("s_lshl_b32 s47, s47, 7"); A(f"v_add_u32 v{vVq[q]}, s47, v{vK}")
    vZ=36; vPC=37; vPP=38
    A(f"v_mov_b32 v{vZ}, 0"); A(f"ds_write_b32 v{vZ}, v{vZ} offset:{L_PRG}")
    A("s_waitcnt lgkmcnt(0)")
    srd(36,6,7,"s35",1<<20); srd(40,8,9,"s35",1<<20)
    A("s_mov_b32 s44, 0"); A("s_mov_b32 s45, 0"); A("s_mov_b32 s50, 2")
    U1=1024-4*TS
    def vmap(u):
        if u<U1: return u//4, u%4
        v=u-U1
        return 256-TS+v%TS, v//TS
    def vgrp(u): return (u//4, u%4, 4) if u<U1 else (U1//4+(u-U1), 0, 1)
    def issue(i):
        r=slot(i)
        if i<NKS:
            A(f"buffer_load_dwordx4 v[{r}:{r+3}], v{vK}, s[36:39], s44 offen offset:{128*(i%4)} {SF}")
            if i%4==3: A(f"s_add_u32 s44, s44, {4096+NB*8192 if (i<R and i%8==7) else 4096}")
        elif i<NTOT:
            u=i-NKS; tile,q=vmap(u)
            if wrot: A(f"buffer_load_dwordx4 v[{r}:{r+3}], v{vVq[q]}, s[40:43], s45 offen {SF}")
            else: A(f"buffer_load_dwordx4 v[{r}:{r+3}], v{vV}, s[40:43], s45 offen offset:{128*q} {SF}")
            if u+1<1024:
                d=vmap(u+1)[0]-tile
                if d>0: A(f"s_add_u32 s45, s45, {4096*d}")
                if d<0: A(f"s_sub_u32 s45, s45, {-4096*d}")
    DK=R-1
    bar0(True)
    for i in range(DK):
        if i>=N0: A(f"s_waitcnt vmcnt({N0-1})")
        issue(i)
        if st0 and i==0: STAMP(1)
        if i==N0-1:
            A("s_lshl_b32 s47, s30, 17"); srd(52,24,25,"s47",131072)
            A("s_mul_i32 s47, s30, 896"); srd(92,20,21,"s47",896)
    bar0(False)
    if not st0: STAMP(1)
    A("s_barrier")
    STAMP(2)
    q_read()
    cur=[None]
    def pair_T(pi): return 2*((NB+1)*pi) if pi<NP0 else 2*((NB+1)*NP0+(pi-NP0))
    def kstep(c, dsbase):
        I=c+DK
        A(f"s_waitcnt vmcnt({min((cur[0] or N)-1,I-c-1)})")
        issue(I)
        pi=c//8
        k_consume(c, None if pi==0 else L_S+4*pair_T(pi-1)-dsbase)
    for c in range(0,2*R): kstep(c,0)
    nK=(NKS-DK-2*R)//R
    A(f"s_mov_b32 s46, {nK}")
    def loop_variants(tag, body, post, zr, cr, pr, lv):
        for v in (1,0,2):
            A(f"L_{tag}{v}:")
            rd=f"ds_read_b32 v{cr}, v{zr} offset:{L_CTL}"
            if not late: A(rd)
            m0=len(L)
            cur[0]=lv[v]; body(); cur[0]=None
            if late:
                w=[i for i in range(m0,len(L)) if L[i].startswith("s_waitcnt vmcnt")]
                assert len(w)==R
                L.insert(w[R-3],rd)
            post()
            A("s_add_u32 s50, s50, 1"); A(f"v_mov_b32 v{pr}, s50")
            A("s_waitcnt lgkmcnt(0)")
            A(f"v_readfirstlane_b32 s48, v{cr}")
            A(f"ds_write_b32 v{zr}, v{pr} offset:{L_PRG}")
            A("s_sub_u32 s46, s46, 1"); A("s_cmp_eq_u32 s46, 0"); A(f"s_cbranch_scc1 L_{tag}x")
            o=[w for w in (0,1,2) if w!=v]
            A(f"s_cmp_eq_u32 s48, {v}"); A(f"s_cbranch_scc1 L_{tag}{v}")
            A(f"s_cmp_eq_u32 s48, {o[0]}"); A(f"s_cbranch_scc1 L_{tag}{o[0]}")
            A(f"s_branch L_{tag}{o[1]}")
        A(f"L_{tag}x:")
    def kbody():
        for c in range(2*R,3*R): kstep(c,0)
    loop_variants("kloop", kbody, lambda: A(f"v_add_u32 v{vSW}, {R}, v{vSW}"), vZ, vPC, vPP, ctlK or ctl)
    dsb=nK*R
    for c in range((2+nK)*R,NKS): kstep(c,dsb)
    k_flush(L_S+4*pair_T(NKS//8-1)-dsb)
    mx_publish(0, vR)
    vM=[12,13,14,15]; vNM=11; vT=9; vP=10; vACC=16; vBB=[32,36]; vSS=[40,44,48]; vTM=52
    masks(vM[0], vTM, vTM+1)
    A(f"v_mul_u32_u24 v{vSR}, {S_STR}, v2")
    A(f"v_mov_b32 v{vT}, 0")
    A("s_waitcnt lgkmcnt(0)")
    STAMP(3)
    A("s_barrier")
    for w in range(4): A(f"ds_read_b128 v[{16+4*w}:{16+4*w+3}], v{vT} offset:{L_MX+16*w}")
    A(f"ds_read_b128 v[{vSS[0]}:{vSS[0]+3}], v{vSR} offset:{L_S}")
    inext=[NKS+DK]
    A(f"s_waitcnt vmcnt({N-1})")
    issue(inext[0]); inext[0]+=1
    A("s_waitcnt lgkmcnt(0)")
    max16(vNM,16)
    A(f"v_mul_f32 v{vNM}, s34, v{vNM}"); A(f"v_sub_f32 v{vNM}, 0, v{vNM}")
    for r in range(16): A(f"v_mov_b32 v{vACC+r}, 0")
    def bfree(tile):
        return slot(NTOT+(tile-(256-TS))+BO)
    def bprep(tile, part, gi=None):
        s=vSS[(tile//4)%3]+tile%4; b=vBB[(tile if gi is None else gi)%2]
        if tile>=256-TS: b=bfree(tile)
        if part==0: A(f"v_fma_f32 v{vT}, v{s}, s34, v{vNM}")
        if part==1: A(f"v_exp_f32 v{vT}, v{vT}")
        if part==2: A(f"v_cvt_pk_bf16_f32 v{vP}, v{vT}, v{vT}"); A(f"v_and_b32 v{b}, v{vP}, v{vM[0]}")
        if part==3:
            for r in range(1,4): A(f"v_and_b32 v{b+r}, v{vP}, v{vM[r]}")
    bprep(0,0); bprep(0,1); A("s_nop 0"); bprep(0,2); bprep(0,3); A("s_nop 1")
    def o_write(q):
        a=vACC+4*q
        A(f"v_permlane32_swap_b32 v{a}, v{a+1}"); A(f"v_permlane32_swap_b32 v{a+2}, v{a+3}")
        A("s_nop 1")
        A(f"v_add_f32_dpp v{vTM}, v{a+1}, v{a} row_ror:8 row_mask:0xf bank_mask:0xf")
        A(f"v_add_f32_dpp v{vTM+1}, v{a+3}, v{a+2} row_ror:8 row_mask:0xf bank_mask:0xf")
        A(f"v_cvt_pk_bf16_f32 v{vTM}, v{vTM}, v{vTM+1}")
        A("s_mov_b64 exec, s[60:61]")
        A(f"ds_write_b32 v8, v{vTM} offset:{L_O+128*q}")
        A("s_mov_b64 exec, -1")
    def vstep(u, srbase, do_issue=True):
        c=NKS+u; I=inext[0]; mark=len(L)
        if do_issue and I<NTOT:
            A(f"s_waitcnt vmcnt({min((cur[0] or N)-1,I-c-1)})")
            assert I-R < c
            issue(I); inext[0]+=1
        else:
            k=I-c-1
            if k<max(N,NT): A(f"s_waitcnt vmcnt({k})")
        tile,q=vmap(u); gi,pos,n=vgrp(u); r=slot(c); b=vBB[gi%2]
        if tile>=256-TS:
            b=bfree(tile)
        if q==0 and tile%4==0 and tile+4<256:
            nb=vSS[(tile//4+1)%3]
            A(f"ds_read_b128 v[{nb}:{nb+3}], v{vSR} offset:{L_S+4*(tile+4)-srbase}")
        if q==0 and tile%4==3 and tile+1<256: A("s_waitcnt lgkmcnt(0)")
        a=vACC+4*q
        if pos==0 and len(L)-mark<2: A(f"s_nop {1-(len(L)-mark)}")
        A(f"v_mfma_f32_16x16x32_bf16 v[{a}:{a+3}], v[{r}:{r+3}], v[{b}:{b+3}], v[{a}:{a+3}]")
        un=u-pos+n
        if un<1024:
            if n==4: bprep(vmap(un)[0],pos,gi+1)
            elif vmap(un)[1]==0:
                for part in range(4):
                    bprep(vmap(un)[0],part,gi+1)
                    if part==1: A("s_nop 0")
        for qq in range(3):
            if u==U1+(qq+1)*TS-1+SD: o_write(qq)
            if u==U1+(qq+1)*TS+SD: A("s_waitcnt lgkmcnt(0)"); A("s_barrier")
    u=0; DV=max(max(ctl),NT)
    while True:
        D=inext[0]-(NKS+u)
        if D<=DV and u%R==0: break
        if D>DV:
            vstep(u,0,False); u+=1
            D=inext[0]-(NKS+u)
            if D>DV or u%R!=0: vstep(u,0,True); u+=1
        else:
            vstep(u,0,True); u+=1
    assert inext[0]-(NKS+u)==DV and (R//16)%3==0 and R%16==0
    u0=u; PKEND=2+nK; PV0=(inext[0]+R//2)//R-1
    nV=(1024-DV-u0)//R
    while u0+nV*R+16>1024: nV-=1
    PVEND=PV0+nV
    A(f"s_mov_b32 s46, {nV}"); A("v_mov_b32 v6, 0"); A(f"s_mov_b32 s50, {PV0}")
    i0=inext[0]
    def vbody():
        inext[0]=i0
        for uu in range(u0,u0+R): vstep(uu,0,True)
    loop_variants("vloop", vbody, lambda: A(f"v_add_u32 v{vSR}, {R}, v{vSR}"), 6, 4, 8, ctl)
    inext[0]=i0+nV*R
    cur[0]=NT
    C("addresses for the tail: v4 gather address, v6 output offset, v8 O' address")
    g_addr(4,6,8)
    A("v_bfe_u32 v8, v0, 4, 1"); A("v_lshlrev_b32 v8, 6, v8"); A("v_lshrrev_b32 v52, 5, v0"); A("v_lshl_add_u32 v8, v52, 5, v8"); A("v_lshl_add_u32 v8, v3, 2, v8")
    A("s_mov_b32 s47, 65536"); A("s_mov_b32 s49, 400000")
    for uu in range(u0+nV*R,1024): vstep(uu,nV*R,True)
    cur[0]=None
    STAMP(4)
    A("v_and_b32 v7, 15, v0"); A("v_lshlrev_b32 v7, 3, v7"); A("v_mov_b32 v5, 0")
    A("s_nop 4")
    o_write(3)
    A("s_waitcnt lgkmcnt(0)")
    A("s_barrier")
    STAMP(5)
    A("s_cmp_ge_u32 s32, 28"); A("s_cbranch_scc1 L_sdone")
    C("final: 16 output columns = sum over the 32 workgroups of this batch")
    A(f"ds_read_b32 v12, v5 offset:{L_TAG}")
    A(f"ds_read_b64 v[14:15], v7 offset:{L_XB}")
    if pb: A("s_barrier")
    g_issue(0,16,4,52)
    if dpoll: A(f"s_sleep {dps}"); g_issue(0,32,4,52)
    A("s_waitcnt lgkmcnt(0)")
    A("L_fp:")
    g_check(16,13,12,2 if dpoll else 0)
    A("s_sub_u32 s49, s49, 1"); A("s_cbranch_scc1 L_fa"); A("s_cbranch_vccz L_fa")
    g_issue(0,16,4,52)
    if dpoll:
        g_check(32,13,12,2)
        A("s_cbranch_vccz L_fb")
        g_issue(0,32,4,52)
    A("s_branch L_fp")
    def final(b):
        g_reduce(b,12)
        A(f"v_cvt_pk_bf16_f32 v{b}, 0, v{b}"); A(f"v_add_f32 v{b}, v14, v{b}"); A(f"v_cvt_pk_bf16_f32 v{b}, 0, v{b}"); A(f"v_add_f32 v{b}, v{b}, v15")
        A(f"v_cvt_pk_bf16_f32 v{b}, v{b}, v{b}")
        A("s_mov_b64 exec, 0xffff")
        A(f"buffer_store_short v{b}, v6, s[92:95], 0 offen {OF}")
    if dpoll:
        A("L_fb:"); final(32); A("s_branch L_sdone")
    A("L_fa:"); final(16)
    A("L_sdone:")
    STAMP(6)
    stamp_out(48)
    A("s_endpgm")

    hM=20; hACC=24; hAD=28; hLD=29
    WO=128
    def t_addr(vw, vr, natural):
        A("s_sub_u32 s47, s3, 1"); A(f"s_mul_i32 s47, s47, {T_SZ}"); A(f"s_add_u32 s47, s47, {L_T}")
        A(f"v_lshl_add_u32 v{vw}, v0, 4, s47")
        A(f"v_bfe_u32 v{vr}, v0, 2, 2")
        if natural:
            A(f"v_lshlrev_b32 v{vr}, 7, v{vr}"); A(f"v_lshrrev_b32 v31, 4, v0"); A(f"v_mul_u32_u24 v31, {T_STR}, v31")
        else:
            A(f"v_lshrrev_b32 v31, 1, v{vr}"); A(f"v_and_b32 v{vr}, 1, v{vr}"); A(f"v_lshlrev_b32 v{vr}, 1, v{vr}"); A(f"v_lshlrev_b32 v31, 7, v31")
            A("v_lshrrev_b32 v30, 5, v0"); A(f"v_add_u32 v{vr}, v{vr}, v30"); A(f"v_mul_u32_u24 v{vr}, {T_STR}, v{vr}")
            A("v_bfe_u32 v30, v0, 4, 1"); A("v_lshl_add_u32 v31, v30, 9, v31")
        A(f"v_add3_u32 v{vr}, v{vr}, v31, s47"); A("v_and_b32 v31, 3, v0"); A(f"v_lshl_add_u32 v{vr}, v31, 3, v{vr}")
    def wo_issue(nw, gs=(0,1,2,3)):
        C("wo rows of this head, column block c = wave-1; then transpose into MFMA B fragments")
        A("s_mul_i32 s47, s31, 229376"); A("s_sub_u32 s48, s3, 1"); A("s_lshl_b32 s48, s48, 7"); A("s_add_u32 s47, s47, s48")
        A(f"s_sub_u32 s48, {4096*896}, s47")
        srd(52,12,13,"s47","s48")
        A(f"v_mul_u32_u24 v{hAD}, 896, v2"); A(f"v_lshl_add_u32 v{hAD}, v3, 4, v{hAD}")
        n=0
        for g in gs:
            for hf in range(2):
                if not wrot: A(f"s_mov_b32 s47, {7168*(8*g+4*hf)}")
                elif hf==0: A(f"s_add_u32 s47, s99, {g}"); A("s_and_b32 s47, s47, 3"); A(f"s_mul_i32 s47, s47, {7168*8}")
                else: A("s_add_u32 s47, s47, 7168")
                for r in range(4):
                    if skipwo: continue
                    if n>=nw: A(f"s_waitcnt vmcnt({nw-1})")
                    rr=WO+32*g+16*hf+4*r
                    A(f"buffer_load_dwordx4 v[{rr}:{rr+3}], v{hAD}, s[52:55], s47 offen {HF}")
                    if r<3: A("s_add_u32 s47, s47, 7168")
                    n+=1
        t_addr(hAD,hLD,False)
        A("s_waitcnt vmcnt(0)")
        for g in gs:
            for k in range(8): A(f"ds_write_b128 v{hAD}, v[{WO+32*g+4*k}:{WO+32*g+4*k+3}] offset:{T_STR*k}")
            A("s_waitcnt lgkmcnt(0)")
            for kp in range(2):
                for nu in range(4):
                    for hf in range(2):
                        rr=WO+32*g+16*kp+4*nu+2*hf
                        A(f"ds_read_b64_tr_b16 v[{rr}:{rr+1}], v{hLD} offset:{4*T_STR*kp+256*hf+32*nu}")
            A("s_waitcnt lgkmcnt(0)")
    def combine(acc, dst):
        A(f"v_permlane32_swap_b32 v{acc}, v{acc+1}"); A(f"v_permlane32_swap_b32 v{acc+2}, v{acc+3}")
        A("s_nop 1")
        A(f"v_add_f32_dpp v{dst}, v{acc+1}, v{acc} row_ror:8 row_mask:0xf bank_mask:0xf")
        A(f"v_add_f32_dpp v{dst+1}, v{acc+3}, v{acc+2} row_ror:8 row_mask:0xf bank_mask:0xf")
    def rowsel(dst, srcs):
        for k in range(1,4): A(f"v_mov_b32_dpp v{dst}, v{srcs[k]} quad_perm:[0,1,2,3] row_mask:{1<<k:#x} bank_mask:0xf")

    A("L_buf:")
    A("s_setprio 3")
    A("v_mov_b32 v32, 0"); A("v_mov_b32 v33, 1"); A(f"ds_write_b32 v32, v33 offset:{L_CTL}")
    k_setup()
    A("s_waitcnt lgkmcnt(0)")
    srd(84,6,7,"s35",1<<20)
    A("s_sub_u32 s47, s3, 4"); A("s_lshl_b32 s44, s47, 13")
    A("s_lshl_b32 s47, s47, 3"); A(f"v_add_u32 v{vSW}, s47, v{vSW}")
    bar0(True)
    for i in range(R):
        if i==N0:
            srd_slots()
            A("s_cmp_lg_u32 s3, 5"); A("s_cbranch_scc1 L_notag"); A("s_cmp_lg_u32 s2, 0"); A("s_cbranch_scc1 L_notag")
            C("workgroup 0, wave 5: this launch's tag differs from the one left in d_ws; announced in d_debug[0]")
            srd(92,24,25,"0x100000",256)
            A("s_memrealtime s[62:63]")
            A(f"buffer_load_dword v32, off, s[92:95], 0 {SC}"); A("s_waitcnt vmcnt(0) lgkmcnt(0)")
            A("s_and_b32 s62, s62, 0x7ff"); A("s_add_u32 s62, s62, 1")
            A("v_add_u32 v32, s62, v32"); A("v_and_b32 v32, 0xfff, v32"); A("v_or_b32 v33, 0x1000, v32")
            A("s_mov_b64 exec, 1")
            A(f"buffer_store_dword v33, off, s[56:59], 0 {SC}")
            A(f"buffer_store_dword v32, off, s[92:95], 0 {SC}")
            A("s_mov_b64 exec, -1")
            A("L_notag:")
        if i>=N0: A(f"s_waitcnt vmcnt({N0-1})")
        r=slot(i)
        A(f"buffer_load_dwordx4 v[{r}:{r+3}], v{vK}, s[84:87], s44 offen offset:{128*(i%4)} {SF}")
        if st0 and i==0: STAMP(1)
        if i%4==3: A(f"s_add_u32 s44, s44, {4096 if i%8==3 else 4096+NB*8192}")
    bar0(False)
    if not st0: STAMP(1)
    A("s_barrier")
    STAMP(2)
    A("s_setprio 0")
    q_read()
    for c in range(R):
        A(f"s_waitcnt vmcnt({R-1-c})")
        pi=c//8
        k_consume(c, None if pi==0 else L_S+8*(NB+1)*(pi-1))
    k_flush(L_S+8*(NB+1)*(NP0-1))
    A("s_sub_u32 s47, s3, 4"); A("s_lshl_b32 s47, s47, 4")
    mx_publish("s47", vR)
    A("s_cmp_eq_u32 s3, 7"); A("s_cbranch_scc1 L_mon")
    A("L_wo:")
    wo_issue(NW,(0,1) if wsplit else (0,1,2,3))
    STAMP(3)
    A("s_barrier")
    A("s_cmp_eq_u32 s3, 5"); A("s_cbranch_scc1 L_w5")
    A("s_cmp_lg_u32 s3, 6"); A("s_cbranch_scc1 L_wo2")
    C("wave 6: softmax denominator, exchange (m,l) with the other half, scale")
    A("v_mov_b32 v4, 0")
    for w in range(4): A(f"ds_read_b128 v[{64+4*w}:{64+4*w+3}], v4 offset:{L_MX+16*w}")
    A(f"v_mul_u32_u24 v5, {S_STR}, v2"); A("v_lshl_add_u32 v5, v3, 7, v5")
    for n in range(8): A(f"ds_read_b128 v[{32+4*n}:{32+4*n+3}], v5 offset:{L_S+16*n}")
    A("s_waitcnt lgkmcnt(8)")
    max16(6,64)
    A("v_mul_f32 v7, s34, v6"); A("v_sub_f32 v7, 0, v7")
    A("s_waitcnt lgkmcnt(0)")
    for k in range(32): A(f"v_fma_f32 v{32+k}, v{32+k}, s34, v7")
    for k in range(32): A(f"v_exp_f32 v{32+k}, v{32+k}")
    for st in (16,8,4,2,1):
        for k in range(st): A(f"v_add_f32 v{32+k}, v{32+k}, v{32+k+st}")
    wave_sum(32,33)
    tag_wait(16)
    C("v6=M v32=l ; four words: 16-bit halves of M and l, each with a 16-bit tag")
    A("v_or_b32 v16, 0xa000, v16"); A("s_mov_b32 s47, 0xffff0000")
    A("v_and_or_b32 v8, v6, s47, v16"); A("v_lshl_or_b32 v9, v6, 16, v16"); A("v_and_or_b32 v10, v32, s47, v16"); A("v_lshl_or_b32 v11, v32, 16, v16")
    A("s_mov_b64 exec, 1")
    A(f"buffer_store_dwordx4 v[8:11], off, s[36:39], 0 offset:3840 {SC}")
    A("s_mov_b64 exec, -1")
    A("s_xor_b32 s48, s32, 1"); A("s_lshl_b32 s48, s48, 12"); A("s_mov_b32 s49, 400000")
    A("L_mlp:")
    A(f"buffer_load_dwordx4 v[12:15], off, s[40:43], s48 offset:3840 {SC}"); A("s_waitcnt vmcnt(0)")
    A("v_xor_b32 v17, v12, v16")
    for r in (13,14,15): A(f"v_bitop3_b32 v17, v{r}, v16, v17 bitop3:0xbe")
    A("v_and_b32 v17, 0xffff, v17")
    A("v_cmp_ne_u32 vcc, 0, v17"); A("s_sub_u32 s49, s49, 1"); A("s_cbranch_scc1 L_mlx")
    A("s_cbranch_vccz L_mlx"); A("s_sleep 8"); A("s_branch L_mlp")
    A("L_mlx:")
    A("v_lshrrev_b32 v13, 16, v13"); A("v_lshrrev_b32 v15, 16, v15"); A("v_and_or_b32 v10, v12, s47, v13"); A("v_and_or_b32 v11, v14, s47, v15")
    A("v_max_f32 v12, v6, v10")
    A("v_sub_f32 v13, v6, v12"); A("v_sub_f32 v14, v10, v12")
    A("v_mul_f32 v13, s34, v13"); A("v_mul_f32 v14, s34, v14")
    A("v_exp_f32 v13, v13"); A("v_exp_f32 v14, v14"); A("s_nop 0")
    A("v_mul_f32 v15, v13, v32"); A("v_fma_f32 v15, v14, v11, v15")
    A("v_rcp_f32 v15, v15"); A("s_nop 0"); A("v_mul_f32 v15, v15, v13")
    A(f"ds_write_b32 v4, v15 offset:{L_SC}")
    A("s_branch L_wo2")

    A("L_w5:")
    C("wave 5: tag for the other waves; x and the gathered FFN result for the final step")
    tag_wait(78)
    A("v_mov_b32 v4, 0"); A(f"ds_write_b32 v4, v78 offset:{L_TAG}")
    A("s_cmp_ge_u32 s32, 28"); A("s_cbranch_scc1 L_wo2")
    A("s_mul_i32 s47, s30, 896"); srd(88,4,5,"s47",896)
    g_addr(64,65,4)
    A("buffer_load_ushort v66, v65, s[88:91], 0 offen")
    A("s_mov_b32 s49, 400000"); A("s_mov_b32 s47, 65536")
    for r in range(8): A(f"v_mov_b32 v{68+r}, v78")
    A("L_bp:")
    if skipffn!=1:
        A("s_mov_b64 exec, 0xffff")
        A(f"buffer_load_dwordx4 v[68:71], v64, s[40:43], 0 offen offset:2048 {SC}")
        A("s_mov_b64 exec, -1"); A("s_waitcnt vmcnt(0)")
        g_check(68,76,78,0)
        A("s_sub_u32 s49, s49, 1"); A("s_cbranch_scc1 L_bx"); A("s_cbranch_vccz L_bx"); A("s_sleep 16"); A("s_branch L_bp")
    A("L_bx:")
    A("s_waitcnt vmcnt(0)")
    g_reduce(68,78)
    A("v_cvt_pk_bf16_f32 v67, 0, v68"); A("v_lshlrev_b32 v66, 16, v66")
    A("v_and_b32 v4, 15, v0"); A("v_lshlrev_b32 v4, 3, v4")
    A(f"ds_write_b64 v4, v[66:67] offset:{L_XB}")
    A("L_wo2:")
    if wsplit: wo_issue(NW,(2,3))
    A("s_branch L_tail")

    REFS=[0,6,10,12]
    A("L_mon:")
    C("wave 7: compare this workgroup's progress with four reference workgroups and pick the streamer's depth")
    wo_issue(NW7)
    srd(40,24,25,None,1<<20)
    for k in range(4):
        A(f"s_add_u32 s47, s30, {(2*k+(k>>1))%8 if xb else 0}"); A("s_and_b32 s47, s47, 7"); A("s_lshl_b32 s47, s47, 17"); A(f"s_add_u32 s{12+k}, s47, {4096*REFS[k]+3968}")
    A(f"s_mov_b32 s51, {(~sum(1<<r for r in REFS))&0xffffffff:#x}"); A("s_lshr_b32 s51, s51, s32"); A("s_and_b32 s51, s51, 1")
    tag_wait(5)
    A("v_lshlrev_b32 v5, 16, v5"); A("s_lshl_b32 s96, s96, 16"); A("v_mov_b32 v4, 0"); A("s_mov_b32 s50, 0"); A("s_mov_b32 s100, 0")
    if stag: A("s_bfe_u32 s16, s32, 0x10002"); A("s_bfe_u32 s17, s32, 0x10003"); A("s_xor_b32 s16, s16, s17")
    for ph,pend in (("k",PKEND),("v",PVEND)):
        A(f"L_mon{ph}:")
        A(f"ds_read_b32 v6, v4 offset:{L_PRG}"); A("s_waitcnt lgkmcnt(0)"); A("v_readfirstlane_b32 s47, v6")
        A(f"s_cmp_ge_u32 s47, {pend}"); A(f"s_cbranch_scc1 L_mon{ph}x")
        A("s_cmp_lg_u32 s47, s50"); A(f"s_cbranch_scc1 L_mon{ph}n")
        A(f"s_sleep {msleep}"); A(f"s_branch L_mon{ph}")
        A(f"L_mon{ph}n:")
        A("s_mov_b32 s50, s47")
        if PS:
            C("every fourth period up to PS, every second one after it")
            A(f"s_cmp_le_u32 s47, {PS}"); A("s_cselect_b32 s17, 3, 1"); A(f"s_cselect_b32 s18, {64-BIAS}, {32-BIAS}"); A(f"s_cselect_b32 s19, {TH4 or TH}, {TH}")
            A("s_and_b32 s48, s47, s17"); A(f"s_cbranch_scc1 L_mon{ph}")
        elif stag: A("s_add_u32 s48, s47, s16"); A(f"s_and_b32 s48, s48, {PD-1}")
        else: A(f"s_and_b32 s48, s47, {PD-1}")
        A("s_or_b32 s48, s48, s51"); A(f"s_cbranch_scc1 L_mon{ph}p")
        A("v_or_b32 v6, v5, v6")
        A("s_mov_b64 exec, 1")
        A(f"buffer_store_dword v6, off, s[36:39], 0 offset:3968 {SC}")
        A("s_mov_b64 exec, -1")
        A(f"L_mon{ph}p:")
        if RD>1 and not pulse and not PS:
            if RV and ph=="v": A(f"s_cmp_ge_u32 s47, {RV}"); A(f"s_cbranch_scc1 L_mon{ph}r")
            A(f"s_and_b32 s48, s47, {RD-1}"); A(f"s_cbranch_scc1 L_mon{ph}")
            if RV and ph=="v": A(f"L_mon{ph}r:")
        if RD>1 and pulse:
            A(f"s_and_b32 s48, s47, {RD-1}"); A(f"s_cbranch_scc0 L_mon{ph}r")
            A("s_abs_i32 s48, s100"); A(f"s_cmp_ge_i32 s48, {pulse}"); A(f"s_cbranch_scc1 L_mon{ph}")
            A("v_mov_b32 v7, 1"); A(f"ds_write_b32 v4, v7 offset:{L_CTL}"); A(f"s_branch L_mon{ph}")
            A(f"L_mon{ph}r:")
        for k in range(4): A(f"s_buffer_load_dword s{4+k}, s[40:43], s{12+k} glc")
        A("s_waitcnt lgkmcnt(0)")
        for k in range(4): A(f"s_sub_u32 s{4+k}, s{4+k}, s96")
        A("s_mov_b32 s48, s4"); A("s_mov_b32 s49, s4")
        for k in range(1,4): A(f"s_add_u32 s48, s48, s{4+k}"); A(f"s_max_u32 s49, s49, s{4+k}")
        A("s_cmp_gt_u32 s49, 63"); A(f"s_cbranch_scc1 L_mon{ph}")
        A("s_lshl_b32 s48, s48, 3")
        A("s_lshl_b32 s49, s47, 5"); A("s_sub_i32 s49, s49, s18" if PS else f"s_add_i32 s49, s49, {BIAS-32}"); A("s_sub_i32 s49, s49, s48")
        if pulse: A("s_mov_b32 s100, s49")
        if PS: A("s_cmp_gt_i32 s49, s19"); A("s_cselect_b32 s48, 0, 1"); A("s_add_i32 s49, s49, s19"); A("s_cmp_lt_i32 s49, 0"); A("s_cselect_b32 s48, 2, s48")
        else: A(f"s_cmp_gt_i32 s49, {TH}"); A("s_cselect_b32 s48, 0, 1"); A(f"s_cmp_lt_i32 s49, {-TH}"); A("s_cselect_b32 s48, 2, s48")
        A("v_mov_b32 v7, s48"); A(f"ds_write_b32 v4, v7 offset:{L_CTL}")
        A(f"s_branch L_mon{ph}")
        A(f"L_mon{ph}x:")
        if ph=="k": A("s_waitcnt lgkmcnt(0)"); STAMP(3); A("s_barrier")

    A("L_tail:")
    A(f"v_lshrrev_b32 v{hLD}, 4, v0"); A(f"v_lshlrev_b32 v{hLD}, 4, v{hLD}"); A("v_mov_b32 v30, 0")
    A(f"v_lshlrev_b32 v{hAD}, 2, v0")
    A("s_sub_u32 s48, s3, 1"); A("s_lshl_b32 s48, s48, 8")
    A("s_waitcnt vmcnt(0) lgkmcnt(0)")
    STAMP(4)
    for q in range(4):
        A("s_barrier")
        if q==3: STAMP(5)
        for ka in range(2): A(f"ds_read_b128 v[{32+8*q+4*ka}:{32+8*q+4*ka+3}], v{hLD} offset:{L_O+128*q+64*ka}")
        if q==0: A(f"ds_read_b64 v[10:11], v30 offset:{L_SC}")
        for ka in range(2):
            A(f"s_waitcnt lgkmcnt({(2 if q==0 else 1)-ka})")
            for nu in range(4):
                a=12+4*nu; w=WO+32*q+16*ka+4*nu; x=32+8*q+4*ka
                A(f"v_mfma_f32_16x16x32_bf16 v[{a}:{a+3}], v[{x}:{x+3}], v[{w}:{w+3}], {'0' if (q==0 and ka==0) else f'v[{a}:{a+3}]'}")
    A("s_nop 5")
    rowsel(12,[12,16,20,24])
    A("v_mul_f32 v12, v10, v12"); A("v_add_u32 v12, 0x800, v12"); A("v_and_or_b32 v12, v12, s97, v11")
    A(f"buffer_store_dword v12, v{hAD}, s[36:39], s48 offen {YF or SC}")
    STAMP(6)
    if pb: A("s_cmp_ge_u32 s32, 28"); A("s_cbranch_scc1 L_tend"); A("s_barrier"); A("L_tend:")
    stamp_out()
    A("s_endpgm")

    A("L_help:")
    D0=32
    def layernorm(xr, dup):
        for k in range(4):
            A(f"v_lshlrev_b32 v{8+2*k}, 16, v{xr+k}"); A(f"v_and_b32 v{9+2*k}, 0xffff0000, v{xr+k}")
        A("v_add_f32 v16, v8, v9"); A("v_add_f32 v17, v10, v11"); A("v_add_f32 v18, v12, v13"); A("v_add_f32 v19, v14, v15")
        A("v_add_f32 v16, v16, v17"); A("v_add_f32 v18, v18, v19"); A("v_add_f32 v16, v16, v18")
        wave_sum(16,17)
        A(f"v_mul_f32 v16, {f2u(1.0/448):#x}, v16")
        A("v_cmp_gt_u32 vcc, 56, v0"); A("v_cvt_pk_bf16_f32 v17, 0, v16"); A("s_nop 0")
        A("v_cndmask_b32 v16, 0, v16, vcc")
        A("v_sub_f32 v4, v8, v16"); A("v_mul_f32 v18, v4, v4")
        for k in range(1,8): A(f"v_sub_f32 v4, v{8+k}, v16"); A("v_fmac_f32 v18, v4, v4")
        wave_sum(18,19)
        A(f"v_mul_f32 v18, {f2u(1.0/448):#x}, v18")
        A("v_cvt_pk_bf16_f32 v18, 0, v18")
        A(f"v_add_f32 v18, {f2u(1e-5):#x}, v18")
        A("v_cvt_pk_bf16_f32 v18, 0, v18")
        A("v_sqrt_f32 v18, v18"); A("s_nop 0")
        A("v_cvt_pk_bf16_f32 v18, 0, v18")
        A("v_rcp_f32 v19, v18")
        for k in range(8):
            A(f"v_sub_f32 v{8+k}, v{8+k}, v17"); A(f"v_cvt_pk_bf16_f32 v{8+k}, 0, v{8+k}")
            A(f"v_mul_f32 v4, v{8+k}, v19"); A(f"v_fma_f32 v6, -v4, v18, v{8+k}")
            if dup: A("v_fma_f32 v4, v6, v19, v4"); A(f"v_cvt_pk_bf16_f32 v{8+k}, v4, v4")
            else: A(f"v_fma_f32 v{8+k}, v6, v19, v4")
        if not dup:
            for k in range(4): A(f"v_cvt_pk_bf16_f32 v{8+k}, v{8+2*k}, v{9+2*k}")
    def wq_load(t):
        A(f"buffer_load_dwordx4 v[{D0+4*t}:{D0+4*t+3}], v{hAD}, s[52:55], s48 offen {QF}")
        A("s_add_u32 s48, s48, 65536")
        if rot and t%4==3 and t<55: A(f"s_cmp_ge_u32 s48, {56*65536}"); A("s_cselect_b32 s48, 0, s48")
    def gemv56(bar_at):
        XX=[4,8]; BB=[12,16]
        A("s_waitcnt lgkmcnt(0)")
        A(f"ds_read_b128 v[4:7], v{hLD}"); A(f"ds_read_b128 v[8:11], v{hLD} offset:16")
        def bp(t):
            if t%4==0: A(f"s_waitcnt lgkmcnt({1 if t//4+1<14 else 0})")
            for r in range(4): A(f"v_and_b32 v{BB[t%2]+r}, v{XX[(t//4)%2]+t%4}, v{hM+r}")
            if t%4==3 and t//4+2<14:
                x=XX[(t//4)%2]; A(f"ds_read_b128 v[{x}:{x+3}], v{hLD} offset:{16*(t//4+2)}")
        bp(0)
        for t in range(56):
            if t+1<56: bp(t+1)
            else: A("s_nop 0")
            if t+QD<56: wq_load(t+QD)
            if t+QD==bar_at: A("s_barrier")
            A(f"s_waitcnt vmcnt({min(QD,55-t)})")
            A(f"v_mfma_f32_16x16x32_bf16 v[{hACC}:{hACC+3}], v[{D0+4*t}:{D0+4*t+3}], v[{BB[t%2]}:{BB[t%2]+3}], {'0' if t==0 else f'v[{hACC}:{hACC+3}]'}")
        A("s_nop 7")
        combine(hACC,12)
    def ln_part(wait):
        masks(hM,12,13)
        A(f"s_waitcnt vmcnt({wait})")
        layernorm(4,True)
        C("X'[e][(t - 4*rot) mod 56]")
        A("s_sub_u32 s47, s3, 1"); A(f"s_mul_i32 s47, s47, {X_SZ}"); A(f"s_add_u32 s47, s47, {L_X}")
        A("s_lshl_b32 s50, s51, 2"); A("v_subrev_u32 v5, s50, v0"); A("v_add_u32 v6, 56, v5"); A("v_min_u32 v5, v5, v6")
        A("v_cmp_lt_u32 vcc, 55, v0"); A("s_nop 1"); A("v_cndmask_b32 v5, v5, v0, vcc")
        A("v_lshl_add_u32 v5, v5, 2, s47")
        for k in range(8): A(f"ds_write_b32 v5, v{8+k} offset:{k*X_STR}")
        A(f"v_mul_u32_u24 v{hLD}, {X_STR}, v2"); A(f"v_add_u32 v{hLD}, s47, v{hLD}")
    C("q column block w-1 over all 448 rows of wq, tile order rotated by 4*s51 tiles")
    A("v_lshlrev_b32 v1, 4, v0")
    A(f"v_lshlrev_b32 v{hAD}, 13, v2"); A(f"v_lshl_add_u32 v{hAD}, v3, 4, v{hAD}")
    A("s_mul_i32 s47, s30, 896")
    A("s_lshl_b32 s48, s31, 9"); A("s_sub_u32 s49, s3, 1"); A("s_lshl_b32 s49, s49, 7"); A("s_add_u32 s48, s48, s49"); A(f"s_sub_u32 s49, {448*8192}, s48")
    if rot: A("s_mul_i32 s51, s30, 7"); A("s_lshr_b32 s51, s51, 2")
    else: A("s_mov_b32 s51, 0")
    A("s_waitcnt lgkmcnt(0)")
    srd(88,4,5,"s47",896)
    srd(52,10,11,"s48","s49")
    A("buffer_load_dwordx4 v[4:7], v1, s[88:91], 0 offen")
    if st0: STAMP(1)
    A("s_lshl_b32 s48, s51, 18")
    A("s_cmp_eq_u32 s28, 1"); A("s_cbranch_scc1 L_q1")
    for t in range(QD): wq_load(t)
    ln_part(QD); gemv56(55); A("s_branch L_q2")
    A("L_q1:")
    ln_part(0); A("s_barrier")
    for t in range(QD): wq_load(t)
    gemv56(None)
    A("L_q2:")
    C("q -> bf16 -> LDS: addr = m*128 + (4*rowq+hi)*16 + j*2 (+32 for the second register)")
    A("v_cvt_pk_bf16_f32 v12, v12, v13")
    A("v_bfe_u32 v4, v0, 4, 1"); A("v_lshrrev_b32 v5, 5, v0"); A("v_lshl_add_u32 v4, v4, 2, v5"); A("v_lshlrev_b32 v4, 4, v4"); A("v_lshl_add_u32 v4, v3, 1, v4")
    A("s_sub_u32 s47, s3, 1"); A("s_lshl_b32 s47, s47, 7"); A("v_add_u32 v4, s47, v4")
    A("s_mov_b64 exec, s[60:61]")
    A(f"ds_write_b16 v4, v12 offset:{L_Q}"); A(f"ds_write_b16_d16_hi v4, v12 offset:{L_Q+32}")
    A("s_mov_b64 exec, -1")
    A("s_waitcnt lgkmcnt(0)")
    if not st0: STAMP(1)
    A("s_barrier")
    STAMP(2)
    srd_slots()
    C("FFN, wave 1 of 2 x 28 workgroups, all 8 batches at once. Stage 0 (s50=0): h = silu(xn . w1[:, 64f..64f+63])")
    C("stage 1 (s50=1): partial result h[448r..448r+447] . w2[448r.., 64c..64c+63], f = 7r + c")
    A("s_cmp_lg_u32 s3, 1"); A("s_cbranch_scc1 L_wo")
    if skipffn==1: A("s_branch L_wo")
    A("s_cmp_lg_u32 s28, 1"); A("s_cbranch_scc1 L_wo")
    A("s_xor_b32 s47, s30, s26"); A("s_and_b32 s48, s47, 1"); A("s_cbranch_scc1 L_wo")
    A("s_bfe_u32 s50, s47, 0x10001"); A("s_lshr_b32 s47, s47, 2"); A("s_lshl_b32 s47, s47, 4"); A("s_add_u32 s51, s31, s47")
    A("s_cmp_ge_u32 s51, 28"); A("s_cbranch_scc1 L_wo")
    A("s_mul_i32 s62, s51, 37"); A("s_lshr_b32 s62, s62, 8"); A("s_mul_i32 s63, s62, 7"); A("s_sub_u32 s63, s51, s63")
    C("s62 = r, s63 = c")
    A("s_cmp_eq_u32 s50, 1"); A("s_cbranch_scc1 L_f1a")
    A("s_lshl_b32 s48, s51, 7"); A(f"s_sub_u32 s49, {448*3584}, s48"); srd(52,16,17,"s48","s49")
    A("s_mov_b32 s46, 3584")
    C("raw x of the 8 batches -> XN, then layernorm in place while the first tiles are in flight")
    srd(88,4,5,None,8*896)
    A(f"v_add_u32 v5, {L_XN}, v1"); A("v_cmp_gt_u32 vcc, 56, v0"); A("v_mov_b32 v6, 0x10000"); A("s_nop 0"); A("v_cndmask_b32 v6, v6, v1, vcc")
    for b in range(8): A(f"buffer_load_dwordx4 v[{224+4*b}:{227+4*b}], v6, s[88:91], 0 offen offset:{896*b}" if 896*b<4096 else f"buffer_load_dwordx4 v[{224+4*b}:{227+4*b}], v6, s[88:91], s46 offen offset:{896*b-3584}")
    A("s_branch L_f1b")
    A("L_f1a:")
    A(f"s_mul_i32 s48, s62, {448*896}"); A("s_lshl_b32 s49, s63, 7"); A("s_add_u32 s48, s48, s49"); A(f"s_sub_u32 s49, {1792*896}, s48"); srd(52,18,19,"s48","s49")
    A("s_mov_b32 s46, 896")
    A("L_f1b:")
    A(f"v_mul_u32_u24 v{hAD}, s46, v2"); A(f"v_lshl_add_u32 v{hAD}, v3, 4, v{hAD}")
    A("s_lshl_b32 s46, s46, 3"); A("s_mov_b32 s48, 0")
    def w_load(t):
        A(f"buffer_load_dwordx4 v[{D0+4*t}:{D0+4*t+3}], v{hAD}, s[52:55], s48 offen {WF}")
        A("s_add_u32 s48, s48, s46")
    for t in range(NF): w_load(t)
    A("s_cmp_eq_u32 s50, 1"); A("s_cbranch_scc1 L_f2")
    A(f"s_waitcnt vmcnt({NF})")
    for b in range(8): A(f"ds_write_b128 v5, v[{224+4*b}:{227+4*b}] offset:{XN_STR*b}")
    A("s_mov_b32 s49, 8")
    A("L_ln8:")
    A("s_waitcnt lgkmcnt(0)")
    A("ds_read_b128 v[20:23], v5"); A("s_waitcnt lgkmcnt(0)")
    layernorm(20,False)
    A("ds_write_b128 v5, v[8:11]")
    A(f"v_add_u32 v5, {XN_STR}, v5"); A("s_sub_u32 s49, s49, 1"); A("s_cmp_lg_u32 s49, 0"); A("s_cbranch_scc1 L_ln8")
    A("L_f2:")
    for t in range(NF,56):
        A(f"s_waitcnt vmcnt({NF-1})"); w_load(t)
    A("s_waitcnt vmcnt(0)")
    def transpose4(regs):
        for k in range(4): A(f"ds_write_b128 v{hAD}, v[{regs[k]}:{regs[k]+3}] offset:{T_STR*k}")
        A("s_waitcnt lgkmcnt(0)")
        for nu in range(4):
            for hf in range(2): A(f"ds_read_b64_tr_b16 v[{regs[nu]+2*hf}:{regs[nu]+2*hf+1}], v{hLD} offset:{512*hf+32*nu}")
        A("s_waitcnt lgkmcnt(0)")
    t_addr(hAD,hLD,True)
    for ka in range(14): transpose4([D0+16*ka+4*k for k in range(4)])
    tag_wait(1)
    A("v_or_b32 v7, 0xa000, v1")
    srd(52,24,25,None,1<<20)
    A("s_lshl_b32 s47, s51, 12"); A("s_add_u32 s47, s47, 1792")
    A("s_cmp_eq_u32 s50, 0"); A("s_cbranch_scc1 L_f3")
    C("gather h: 7 slices x 8 batches, one bf16 and a 16-bit tag per word")
    A("v_lshrrev_b32 v5, 4, v0"); A("v_and_b32 v6, 15, v0"); A("v_lshlrev_b32 v4, 17, v5"); A("v_lshl_add_u32 v4, v6, 4, v4")
    A(f"s_mul_i32 s47, s62, {7*4096}"); A("s_add_u32 s47, s47, 1792"); A("v_add_u32 v4, s47, v4")
    A(f"v_mul_u32_u24 v5, {XN_STR}, v5"); A("v_lshl_add_u32 v5, v6, 3, v5")
    A("s_mov_b32 s63, 0x07060302")
    items=[(ps,sl) for ps in range(2) for sl in range(7)]
    for rd,grp in enumerate((items[0:5],items[5:10],items[10:14])):
        A("s_mov_b32 s49, 400000")
        A(f"L_hg{rd}:")
        for k,(ps,sl) in enumerate(grp):
            A(f"s_mov_b32 s47, {ps*4*131072+sl*4096}")
            A(f"buffer_load_dwordx4 v[{8+4*k}:{11+4*k}], v4, s[52:55], s47 offen {SC}")
        A("s_waitcnt vmcnt(0)")
        A("v_xor_b32 v6, v8, v7")
        for r in range(1,4*len(grp)): A(f"v_bitop3_b32 v6, v{8+r}, v7, v6 bitop3:0xbe")
        A("v_and_b32 v6, 0xffff, v6"); A("v_cmp_ne_u32 vcc, 0, v6")
        A("s_sub_u32 s49, s49, 1"); A(f"s_cbranch_scc1 L_hx{rd}"); A(f"s_cbranch_vccz L_hx{rd}"); A("s_sleep 16"); A(f"s_branch L_hg{rd}")
        A(f"L_hx{rd}:")
        for k,(ps,sl) in enumerate(grp):
            A(f"v_perm_b32 v{8+4*k}, v{9+4*k}, v{8+4*k}, s63"); A(f"v_perm_b32 v{9+4*k}, v{11+4*k}, v{10+4*k}, s63")
            A(f"ds_write_b64 v5, v[{8+4*k}:{9+4*k}] offset:{L_XN+4*XN_STR*ps+128*sl}")
        A("s_waitcnt lgkmcnt(0)")
    A("s_mul_i32 s63, s62, 7"); A("s_sub_u32 s63, s51, s63")
    A("s_lshl_b32 s47, s62, 12"); A("s_lshl_b32 s48, s63, 8"); A("s_add_u32 s47, s47, s48"); A("s_add_u32 s47, s47, 2048")
    A("L_f3:")
    C("A fragments: row i of the MFMA is batch (i&3) (+4 in the second pass)")
    A("v_and_b32 v30, 3, v0"); A(f"v_mul_u32_u24 v30, {XN_STR}, v30"); A("v_lshrrev_b32 v31, 4, v0"); A("v_lshl_add_u32 v30, v31, 4, v30")
    A("v_lshl_add_u32 v31, v0, 2, s47")
    for ps in range(2):
        for ka in range(14):
            A(f"ds_read_b128 v[{20+4*(ka%2)}:{23+4*(ka%2)}], v30 offset:{L_XN+4*XN_STR*ps+64*ka}"); A("s_waitcnt lgkmcnt(0)")
            for nu in range(4):
                a=4+4*nu; w=D0+16*ka+4*nu
                A(f"v_mfma_f32_16x16x32_bf16 v[{a}:{a+3}], v[{20+4*(ka%2)}:{23+4*(ka%2)}], v[{w}:{w+3}], {'0' if ka==0 else f'v[{a}:{a+3}]'}")
        for r in range(4): A(f"s_mov_b32 s{44+r}, {(4*ps+r)<<17}")
        A("s_nop 7")
        for r in range(4):
            rowsel(4+r,[4+r,8+r,12+r,16+r])
        A("s_cmp_eq_u32 s50, 1"); A(f"s_cbranch_scc1 L_f4{ps}")
        A("v_or_b32 v21, 0xa000, v1")
        for r in range(4):
            k=4+r
            A(f"v_cvt_pk_bf16_f32 v{k}, 0, v{k}")
            A(f"v_mul_f32 v20, {f2u(-math.log2(math.e)):#x}, v{k}"); A("v_exp_f32 v20, v20"); A("s_nop 0")
            A("v_add_f32 v20, 1.0, v20"); A("v_rcp_f32 v20, v20"); A("s_nop 0")
            A(f"v_mul_f32 v{k}, v{k}, v20"); A(f"v_cvt_pk_bf16_f32 v{k}, 0, v{k}"); A(f"v_or_b32 v{k}, v{k}, v21")
        A(f"s_branch L_f5{ps}")
        A(f"L_f4{ps}:")
        for r in range(4): A(f"v_add_u32 v{4+r}, 0x800, v{4+r}"); A(f"v_and_or_b32 v{4+r}, v{4+r}, s97, v1")
        A(f"L_f5{ps}:")
        for r in range(4): A(f"buffer_store_dword v{4+r}, v31, s[52:55], s{44+r} offen {SC}")
        A("s_nop 1")
    STAMP(3)
    A("s_barrier")
    wo_issue(NW7)
    A("s_branch L_tail")
    A("L_end:")
    A("s_endpgm")
    body="\n".join(("" if (l.endswith(":") or l.startswith(".")) else "    ")+l for l in L)+"\n"
    head=HEADER+f"; @launch grid=(256,1,1) block=(512,1,1) lds={L_END}\n"
    return head+body+kd(NAME,256,102,256), L_END

if __name__=="__main__":
    kw=eval("dict(%s)"%(sys.argv[2] if len(sys.argv)>2 else ""))
    t,ldsz=gen(**kw)
    out=sys.argv[1]
    if out.endswith(".s"): open(out,"w").write(t)
    else:
        assemble(t+meta([(NAME,256,102,512)]), out); print(f"work/{out}:{NAME},256,512,{ldsz}")
```

```python
import sys, math, struct
from common import *

NAME="parallel_sum__mha_block_cached__dense_activation_silu__decode_kernel"
HEADER=open("parallel_sum__mha_block_cached__dense_activation_silu__decode.s.ref").read().split("; Override launch")[0]

L_Q=0; L_MX=512; L_SC=576; L_TAG=580; L_PRG=584; L_CTL=588; L_XB=640
L_O=768
L_S=1280; S_STR=1040
L_X=L_S+8*S_STR; X_STR=272; X_SZ=8*X_STR
L_XN=L_X+4*X_SZ; XN_STR=1040
L_HP=L_XN+8*XN_STR; HP_STR=144
L_T=L_HP+8*HP_STR; T_STR=1056; T_SZ=8*T_STR
L_END=L_T+7*T_SZ
CEXP=math.log2(math.e)/16.0
def f2u(f): return struct.unpack("<I",struct.pack("<f",f))[0]

def gen(N=24, N0=10, R=48, NF=8, NW=1, NW7=4, QD=12, stamp=False, SC="sc1", HF="", QF="", SF="nt",
        rot=1, ctl=(18,24,32), ctlK=None, TH=6, BIAS=0, PD=2, RD=2, msleep=4, xb=1, dpoll=1, skipwo=0, skipffn=0, NT=None, late=1, pulse=0, st0=0, OF='', dual=0, dry=0, TS=8, SD=3, PF=None, YF=None, dps=4, pb=1, BO=0, BF=None, WF='nt', wrot=0, wsplit=1, stag=0, RV=0, PS=24, TH4=None, MS=0):
    L=[]; A=L.append
    def C(s): A("    ; "+s)
    lbl=[0]
    def newl(): lbl[0]+=1; return lbl[0]
    def STAMP(i):
        if stamp: A(f"s_memrealtime s[{70+2*i}:{71+2*i}]")
    def srd(d, lo, hi, off, size):
        if off is None: A(f"s_mov_b32 s{d}, s{lo}"); A(f"s_mov_b32 s{d+1}, s{hi}")
        else: A(f"s_add_u32 s{d}, s{lo}, {off}"); A(f"s_addc_u32 s{d+1}, s{hi}, 0")
        A(f"s_mov_b32 s{d+2}, {size}"); A(f"s_mov_b32 s{d+3}, 0x20000")
    def masks(base,t0,t1):
        A(f"v_and_b32 v{t0}, 1, v3"); A(f"v_lshlrev_b32 v{t0}, 4, v{t0}"); A(f"v_mov_b32 v{t1}, 0xffff"); A(f"v_lshlrev_b32 v{t0}, v{t0}, v{t1}")
        A(f"v_lshrrev_b32 v{t1}, 1, v3")
        for r in range(4):
            A(f"v_cmp_eq_u32 vcc, {r}, v{t1}"); A("s_nop 1"); A(f"v_cndmask_b32 v{base+r}, 0, v{t0}, vcc")
    def stamp_out(tmp=4):
        if not stamp: return
        A("s_waitcnt lgkmcnt(0)")
        A("s_mov_b64 exec, 1")
        srd(64,24,25,None,0x40000000)
        A("s_lshl_b32 s68, s2, 3"); A("s_add_u32 s68, s68, s3"); A("s_lshl_b32 s68, s68, 5"); A("s_add_u32 s68, s68, 0x20000000")
        A("s_getreg_b32 s69, hwreg(HW_REG_XCC_ID)")
        for i in range(7): A(f"v_mov_b32 v{tmp+i}, s{70+2*i}")
        A(f"v_mov_b32 v{tmp+7}, s69")
        A(f"buffer_store_dwordx4 v[{tmp}:{tmp+3}], off, s[64:67], s68")
        A(f"buffer_store_dwordx4 v[{tmp+4}:{tmp+7}], off, s[64:67], s68 offset:16")
        A("s_waitcnt vmcnt(0)")
    def srd_slots():
        A("s_lshl_b32 s47, s33, 12"); srd(36,24,25,"s47",4096)
        A("s_lshl_b32 s47, s30, 17"); srd(40,24,25,"s47",131072)
        srd(56,22,23,None,256)
    def tag_wait(t):
        n=newl()
        A("s_mov_b32 s49, 400000")
        A(f"L_cw{n}:")
        A(f"buffer_load_dword v{t}, off, s[56:59], 0 {SC}"); A("s_waitcnt vmcnt(0)")
        A(f"v_cmp_eq_u32 vcc, 0, v{t}"); A("s_sub_u32 s49, s49, 1"); A(f"s_cbranch_scc1 L_cwx{n}")
        A(f"s_cbranch_vccz L_cwx{n}"); A("s_sleep 8"); A(f"s_branch L_cw{n}")
        A(f"L_cwx{n}:")
        A(f"v_and_b32 v{t}, 0xfff, v{t}"); A("s_nop 0"); A(f"v_readfirstlane_b32 s96, v{t}")
    def g_issue(off,b,vad,srdn,only28=False):
        SC=(PF or "sc1") if not only28 else "sc1"
        A(f"buffer_load_dwordx4 v[{b}:{b+3}], v{vad}, s[{srdn}:{srdn+3}], 0 offen offset:{off} {SC}")
        if only28: A("s_mov_b64 exec, s[62:63]")
        A(f"buffer_load_dwordx4 v[{b+4}:{b+7}], v{vad}, s[{srdn}:{srdn+3}], s47 offen offset:{off} {SC}")
        if only28: A("s_mov_b64 exec, -1")
    def g_check(b,t,vtag,younger):
        A(f"s_waitcnt vmcnt({younger+1})")
        A(f"v_xor_b32 v{t}, v{b}, v{vtag}")
        for r in range(1,4): A(f"v_bitop3_b32 v{t}, v{b+r}, v{vtag}, v{t} bitop3:0xbe")
        A(f"s_waitcnt vmcnt({younger})")
        for r in range(4,8): A(f"v_bitop3_b32 v{t}, v{b+r}, v{vtag}, v{t} bitop3:0xbe")
        A(f"v_and_b32 v{t}, 0xfff, v{t}")
        A(f"v_cmp_ne_u32 vcc, 0, v{t}")
    def g_reduce(b,vtag):
        for r in range(8): A(f"v_xor_b32 v{b+r}, v{b+r}, v{vtag}")
        for r in range(4): A(f"v_add_f32 v{b+r}, v{b+r}, v{b+4+r}")
        for pat in ["row_ror:4","row_ror:8"]:
            for r in range(4): A(f"v_add_f32_dpp v{b+r}, v{b+r}, v{b+r} {pat} row_mask:0xf bank_mask:0xf")
        for r in range(1,4): A(f"v_mov_b32_dpp v{b}, v{b+r} quad_perm:[0,1,2,3] row_mask:0xf bank_mask:{1<<r:#x}")
        for sw in ["16","32"]:
            A(f"v_mov_b32 v{b+1}, v{b}"); A("s_nop 1"); A(f"v_permlane{sw}_swap_b32 v{b}, v{b+1}"); A(f"v_add_f32 v{b}, v{b}, v{b+1}")
    def g_addr(vad,vcol,t):
        A(f"v_lshrrev_b32 v{vad}, 2, v0"); A(f"v_and_b32 v{t}, 3, v0"); A(f"v_and_b32 v{vcol}, 3, v{vad}")
        A(f"v_lshlrev_b32 v{vad}, 12, v{vad}"); A(f"v_lshl_add_u32 v{vad}, v{t}, 4, v{vad}")
        A("s_lshl_b32 s47, s32, 6"); A(f"v_add_u32 v{vad}, s47, v{vad}")
        A(f"v_lshl_add_u32 v{vcol}, v{t}, 2, v{vcol}"); A("s_lshl_b32 s47, s32, 5"); A(f"v_lshl_add_u32 v{vcol}, v{vcol}, 1, s47")
    def wave_sum(v,t):
        for pat in ["quad_perm:[1,0,3,2]","quad_perm:[2,3,0,1]","row_half_mirror","row_mirror"]:
            A("s_nop 1"); A(f"v_add_f32_dpp v{v}, v{v}, v{v} {pat} row_mask:0xf bank_mask:0xf")
        for sw in ["16","32"]:
            A(f"v_mov_b32 v{t}, v{v}"); A("s_nop 1"); A(f"v_permlane{sw}_swap_b32 v{v}, v{t}"); A(f"v_add_f32 v{v}, v{v}, v{t}")
    def max16(dst,b):
        A(f"v_max3_f32 v{dst}, v{b}, v{b+1}, v{b+2}")
        for k in range(3,15,2): A(f"v_max3_f32 v{dst}, v{dst}, v{b+k}, v{b+k+1}")
        A(f"v_max_f32 v{dst}, v{dst}, v{b+15}")

    A('.amdgcn_target "amdgcn-amd-amdhsa--gfx950"'); A(".text"); A(f".globl {NAME}"); A(".p2align 8"); A(f".type {NAME},@function"); A(f"{NAME}:")
    A("s_cmp_ge_u32 s2, 256"); A("s_cbranch_scc1 L_end")
    STAMP(0)
    A("s_load_dwordx16 s[4:19], s[0:1], 0")
    A("s_load_dwordx4 s[20:23], s[0:1], 64")
    A("s_load_dwordx2 s[24:25], s[0:1], 80")
    A("v_lshrrev_b32 v1, 6, v0"); A("v_and_b32 v0, 63, v0"); A("v_readfirstlane_b32 s3, v1")
    A("s_and_b32 s26, s2, 7"); A("s_lshr_b32 s27, s2, 3"); A("s_and_b32 s28, s27, 1")
    A("s_bfe_u32 s29, s27, 0x10001"); A("s_lshr_b32 s30, s27, 2")
    A("s_lshl_b32 s29, s29, 3"); A("s_add_u32 s31, s26, s29")
    A("s_lshl_b32 s32, s31, 1"); A("s_add_u32 s32, s32, s28")
    A("s_lshl_b32 s33, s30, 5"); A("s_add_u32 s33, s33, s32")
    C("s28=half s30=batch s31=head s32=2*head+half s33=32*batch+s32 ; v2=lane>>3 v3=lane&7")
    A("v_lshrrev_b32 v2, 3, v0"); A("v_and_b32 v3, 7, v0")
    A(f"s_mov_b32 s34, {f2u(CEXP):#x}")
    A("s_mov_b32 s60, 0x00ff00ff"); A("s_mov_b32 s61, 0x00ff00ff"); A("s_mov_b32 s97, 0xfffff000")
    if wrot==1: A("s_and_b32 s99, s30, 3")
    if wrot==2: A("s_lshr_b32 s99, s30, 1")
    if wrot==3: A("s_lshl_b32 s99, s28, 1"); A("s_add_u32 s99, s99, s30"); A("s_and_b32 s99, s99, 3")
    A("s_cmp_eq_u32 s3, 0"); A("s_cbranch_scc1 L_stream")
    A("s_cmp_ge_u32 s3, 5"); A("s_cbranch_scc1 L_buf")
    A("s_branch L_help")

    RING=256-4*R
    vK=4; vV=5; vSW=6; vSR=7; vMX=8; vR=9; vR2=10; vA=[11,12]; vB=[13,14]; vQ=16
    def slot(i): return RING+4*(i%R)
    def k_consume(c, dsoff):
        p=c%8; m=p%4; acc=vA if p<4 else vB; r=slot(c)
        for k in range(4):
            src2 = "0" if (m==0 and k<2) else f"v{acc[k%2]}"
            A(f"v_dot2_f32_bf16 v{acc[k%2]}, v{r+k}, v{vQ+4*m+k}, {src2}")
        prev = dsoff is not None
        if p==0 and prev: A(f"v_add_f32 v{vB[0]}, v{vB[0]}, v{vB[1]}")
        if p==1 and prev: A(f"v_add_f32_dpp v{vR}, v{vB[0]}, v{vB[0]} row_half_mirror row_mask:0xf bank_mask:0xa")
        if p==2 and prev: A(f"v_add_f32_dpp v{vR}, v{vR}, v{vR} quad_perm:[1,0,3,2] row_mask:0xf bank_mask:0xf")
        if p==3 and prev: A(f"v_add_f32_dpp v{vR}, v{vR}, v{vR} quad_perm:[2,3,0,1] row_mask:0xf bank_mask:0xf")
        if p==4:
            if prev: A(f"v_cvt_pk_bf16_f32 v{vR2}, 0, v{vR}")
            A(f"v_add_f32 v{vA[0]}, v{vA[0]}, v{vA[1]}")
        if p==5:
            if prev: A(f"v_max_f32 v{vMX}, v{vMX}, v{vR2}"); A(f"ds_write_b32 v{vSW}, v{vR2} offset:{dsoff}")
            A(f"v_add_f32_dpp v{vR}, v{vA[0]}, v{vA[0]} row_half_mirror row_mask:0xf bank_mask:0x5")
    def k_flush(dsoff):
        A("s_nop 2"); A(f"v_add_f32 v{vB[0]}, v{vB[0]}, v{vB[1]}"); A("s_nop 1")
        A(f"v_add_f32_dpp v{vR}, v{vB[0]}, v{vB[0]} row_half_mirror row_mask:0xf bank_mask:0xa"); A("s_nop 1")
        A(f"v_add_f32_dpp v{vR}, v{vR}, v{vR} quad_perm:[1,0,3,2] row_mask:0xf bank_mask:0xf"); A("s_nop 1")
        A(f"v_add_f32_dpp v{vR}, v{vR}, v{vR} quad_perm:[2,3,0,1] row_mask:0xf bank_mask:0xf")
        A(f"v_cvt_pk_bf16_f32 v{vR2}, 0, v{vR}")
        A(f"v_max_f32 v{vMX}, v{vMX}, v{vR2}"); A(f"ds_write_b32 v{vSW}, v{vR2} offset:{dsoff}")
    def mx_publish(w, tmp):
        A("s_nop 1")
        A(f"v_max_f32_dpp v{vMX}, v{vMX}, v{vMX} row_ror:4 row_mask:0xf bank_mask:0xf"); A("s_nop 1")
        A(f"v_max_f32_dpp v{vMX}, v{vMX}, v{vMX} row_ror:8 row_mask:0xf bank_mask:0xf")
        A(f"v_lshrrev_b32 v{tmp}, 4, v0"); A(f"v_lshlrev_b32 v{tmp}, 2, v{tmp}")
        if isinstance(w,int): A(f"ds_write_b32 v{tmp}, v{vMX} offset:{L_MX+16*w}")
        else: A(f"v_add_u32 v{tmp}, {w}, v{tmp}"); A(f"ds_write_b32 v{tmp}, v{vMX} offset:{L_MX}")
    def k_setup():
        A(f"v_lshlrev_b32 v{vK}, 9, v2"); A(f"v_lshl_add_u32 v{vK}, v3, 4, v{vK}")
        A(f"v_mul_u32_u24 v{vSW}, {S_STR}, v2"); A(f"v_lshrrev_b32 v{vSR}, 2, v3"); A(f"v_lshl_add_u32 v{vSW}, v{vSR}, 2, v{vSW}")
        A(f"v_mov_b32 v{vMX}, 0xff800000")
        A("s_lshl_b32 s35, s33, 20")
    def q_read():
        A(f"v_lshlrev_b32 v{vR}, 4, v3")
        for m in range(4): A(f"ds_read_b128 v[{vQ+4*m}:{vQ+4*m+3}], v{vR} offset:{L_Q+128*m}")
        A("s_waitcnt lgkmcnt(0)")
    def bar0(first):
        n=newl()
        A(f"s_cmp_eq_u32 s28, {1 if first else 0}"); A(f"s_cbranch_scc1 L_b0_{n}"); A("s_barrier"); A(f"L_b0_{n}:")
    NP0=R//8; NB=3
    NKS=1024-NB*R
    NTOT=NKS+1024
    NT=NT or N

    A("L_stream:")
    A("s_setprio 3")
    k_setup()
    A(f"v_mov_b32 v{vV}, v{vK}")
    vVq=[60,61,62,63]
    if wrot:
        C("logical quarter g of d is physical quarter (g + s99) & 3")
        for q in range(4):
            A(f"s_add_u32 s47, s99, {q}"); A("s_and_b32 s47, s47, 3"); A("s_lshl_b32 s47, s47, 7"); A(f"v_add_u32 v{vVq[q]}, s47, v{vK}")
    vZ=36; vPC=37; vPP=38
    A(f"v_mov_b32 v{vZ}, 0"); A(f"ds_write_b32 v{vZ}, v{vZ} offset:{L_PRG}")
    A("s_waitcnt lgkmcnt(0)")
    srd(36,6,7,"s35",1<<20); srd(40,8,9,"s35",1<<20)
    A("s_mov_b32 s44, 0"); A("s_mov_b32 s45, 0"); A("s_mov_b32 s50, 2")
    U1=1024-4*TS
    def vmap(u):
        if u<U1: return u//4, u%4
        v=u-U1
        return 256-TS+v%TS, v//TS
    def vgrp(u): return (u//4, u%4, 4) if u<U1 else (U1//4+(u-U1), 0, 1)
    def issue(i):
        r=slot(i)
        if i<NKS:
            A(f"buffer_load_dwordx4 v[{r}:{r+3}], v{vK}, s[36:39], s44 offen offset:{128*(i%4)} {SF}")
            if i%4==3: A(f"s_add_u32 s44, s44, {4096+NB*8192 if (i<R and i%8==7) else 4096}")
        elif i<NTOT:
            u=i-NKS; tile,q=vmap(u)
            if wrot: A(f"buffer_load_dwordx4 v[{r}:{r+3}], v{vVq[q]}, s[40:43], s45 offen {SF}")
            else: A(f"buffer_load_dwordx4 v[{r}:{r+3}], v{vV}, s[40:43], s45 offen offset:{128*q} {SF}")
            if u+1<1024:
                d=vmap(u+1)[0]-tile
                if d>0: A(f"s_add_u32 s45, s45, {4096*d}")
                if d<0: A(f"s_sub_u32 s45, s45, {-4096*d}")
    DK=R-1
    bar0(True)
    for i in range(DK):
        if i>=N0: A(f"s_waitcnt vmcnt({N0-1})")
        issue(i)
        if st0 and i==0: STAMP(1)
        if i==N0-1:
            A("s_lshl_b32 s47, s30, 17"); srd(52,24,25,"s47",131072)
            A("s_mul_i32 s47, s30, 896"); srd(92,20,21,"s47",896)
    bar0(False)
    if not st0: STAMP(1)
    A("s_barrier")
    STAMP(2)
    q_read()
    cur=[None]
    def pair_T(pi): return 2*((NB+1)*pi) if pi<NP0 else 2*((NB+1)*NP0+(pi-NP0))
    def kstep(c, dsbase):
        I=c+DK
        A(f"s_waitcnt vmcnt({min((cur[0] or N)-1,I-c-1)})")
        issue(I)
        pi=c//8
        k_consume(c, None if pi==0 else L_S+4*pair_T(pi-1)-dsbase)
    for c in range(0,2*R): kstep(c,0)
    nK=(NKS-DK-2*R)//R
    A(f"s_mov_b32 s46, {nK}")
    def loop_variants(tag, body, post, zr, cr, pr, lv):
        for v in (1,0,2):
            A(f"L_{tag}{v}:")
            rd=f"ds_read_b32 v{cr}, v{zr} offset:{L_CTL}"
            if not late: A(rd)
            m0=len(L)
            cur[0]=lv[v]; body(); cur[0]=None
            if late:
                w=[i for i in range(m0,len(L)) if L[i].startswith("s_waitcnt vmcnt")]
                assert len(w)==R
                L.insert(w[R-3],rd)
                if MS:
                    o=[x for x in range(len(lv)) if x!=v]
                    sw=["s_waitcnt lgkmcnt(0)", f"v_readfirstlane_b32 s48, v{cr}"]
                    for x in o: sw+=[f"s_cmp_eq_u32 s48, {x}", f"s_cbranch_scc1 L_{tag}m{x}"]
                    sw+=[f"L_{tag}m{v}:"]
                    L[w[MS]:w[MS]]=sw
                    L.insert(w[MS-3],rd)
            post()
            A("s_add_u32 s50, s50, 1"); A(f"v_mov_b32 v{pr}, s50")
            A("s_waitcnt lgkmcnt(0)")
            A(f"v_readfirstlane_b32 s48, v{cr}")
            A(f"ds_write_b32 v{zr}, v{pr} offset:{L_PRG}")
            A("s_sub_u32 s46, s46, 1"); A("s_cmp_eq_u32 s46, 0"); A(f"s_cbranch_scc1 L_{tag}x")
            o=[w for w in (0,1,2) if w!=v]
            A(f"s_cmp_eq_u32 s48, {v}"); A(f"s_cbranch_scc1 L_{tag}{v}")
            A(f"s_cmp_eq_u32 s48, {o[0]}"); A(f"s_cbranch_scc1 L_{tag}{o[0]}")
            A(f"s_branch L_{tag}{o[1]}")
        A(f"L_{tag}x:")
    def kbody():
        for c in range(2*R,3*R): kstep(c,0)
    loop_variants("kloop", kbody, lambda: A(f"v_add_u32 v{vSW}, {R}, v{vSW}"), vZ, vPC, vPP, ctlK or ctl)
    dsb=nK*R
    for c in range((2+nK)*R,NKS): kstep(c,dsb)
    k_flush(L_S+4*pair_T(NKS//8-1)-dsb)
    mx_publish(0, vR)
    vM=[12,13,14,15]; vNM=11; vT=9; vP=10; vACC=16; vBB=[32,36]; vSS=[40,44,48]; vTM=52
    masks(vM[0], vTM, vTM+1)
    A(f"v_mul_u32_u24 v{vSR}, {S_STR}, v2")
    A(f"v_mov_b32 v{vT}, 0")
    A("s_waitcnt lgkmcnt(0)")
    STAMP(3)
    A("s_barrier")
    for w in range(4): A(f"ds_read_b128 v[{16+4*w}:{16+4*w+3}], v{vT} offset:{L_MX+16*w}")
    A(f"ds_read_b128 v[{vSS[0]}:{vSS[0]+3}], v{vSR} offset:{L_S}")
    inext=[NKS+DK]
    A(f"s_waitcnt vmcnt({N-1})")
    issue(inext[0]); inext[0]+=1
    A("s_waitcnt lgkmcnt(0)")
    max16(vNM,16)
    A(f"v_mul_f32 v{vNM}, s34, v{vNM}"); A(f"v_sub_f32 v{vNM}, 0, v{vNM}")
    for r in range(16): A(f"v_mov_b32 v{vACC+r}, 0")
    def bfree(tile):
        return slot(NTOT+(tile-(256-TS))+BO)
    def bprep(tile, part, gi=None):
        s=vSS[(tile//4)%3]+tile%4; b=vBB[(tile if gi is None else gi)%2]
        if tile>=256-TS: b=bfree(tile)
        if part==0: A(f"v_fma_f32 v{vT}, v{s}, s34, v{vNM}")
        if part==1: A(f"v_exp_f32 v{vT}, v{vT}")
        if part==2: A(f"v_cvt_pk_bf16_f32 v{vP}, v{vT}, v{vT}"); A(f"v_and_b32 v{b}, v{vP}, v{vM[0]}")
        if part==3:
            for r in range(1,4): A(f"v_and_b32 v{b+r}, v{vP}, v{vM[r]}")
    bprep(0,0); bprep(0,1); A("s_nop 0"); bprep(0,2); bprep(0,3); A("s_nop 1")
    def o_write(q):
        a=vACC+4*q
        A(f"v_permlane32_swap_b32 v{a}, v{a+1}"); A(f"v_permlane32_swap_b32 v{a+2}, v{a+3}")
        A("s_nop 1")
        A(f"v_add_f32_dpp v{vTM}, v{a+1}, v{a} row_ror:8 row_mask:0xf bank_mask:0xf")
        A(f"v_add_f32_dpp v{vTM+1}, v{a+3}, v{a+2} row_ror:8 row_mask:0xf bank_mask:0xf")
        A(f"v_cvt_pk_bf16_f32 v{vTM}, v{vTM}, v{vTM+1}")
        A("s_mov_b64 exec, s[60:61]")
        A(f"ds_write_b32 v8, v{vTM} offset:{L_O+128*q}")
        A("s_mov_b64 exec, -1")
    def vstep(u, srbase, do_issue=True):
        c=NKS+u; I=inext[0]; mark=len(L)
        if do_issue and I<NTOT:
            A(f"s_waitcnt vmcnt({min((cur[0] or N)-1,I-c-1)})")
            assert I-R < c
            issue(I); inext[0]+=1
        else:
            k=I-c-1
            if k<max(N,NT): A(f"s_waitcnt vmcnt({k})")
        tile,q=vmap(u); gi,pos,n=vgrp(u); r=slot(c); b=vBB[gi%2]
        if tile>=256-TS:
            b=bfree(tile)
        if q==0 and tile%4==0 and tile+4<256:
            nb=vSS[(tile//4+1)%3]
            A(f"ds_read_b128 v[{nb}:{nb+3}], v{vSR} offset:{L_S+4*(tile+4)-srbase}")
        if q==0 and tile%4==3 and tile+1<256: A("s_waitcnt lgkmcnt(0)")
        a=vACC+4*q
        if pos==0 and len(L)-mark<2: A(f"s_nop {1-(len(L)-mark)}")
        A(f"v_mfma_f32_16x16x32_bf16 v[{a}:{a+3}], v[{r}:{r+3}], v[{b}:{b+3}], v[{a}:{a+3}]")
        un=u-pos+n
        if un<1024:
            if n==4: bprep(vmap(un)[0],pos,gi+1)
            elif vmap(un)[1]==0:
                for part in range(4):
                    bprep(vmap(un)[0],part,gi+1)
                    if part==1: A("s_nop 0")
        for qq in range(3):
            if u==U1+(qq+1)*TS-1+SD: o_write(qq)
            if u==U1+(qq+1)*TS+SD: A("s_waitcnt lgkmcnt(0)"); A("s_barrier")
    u=0; DV=max(max(ctl),NT)
    while True:
        D=inext[0]-(NKS+u)
        if D<=DV and u%R==0: break
        if D>DV:
            vstep(u,0,False); u+=1
            D=inext[0]-(NKS+u)
            if D>DV or u%R!=0: vstep(u,0,True); u+=1
        else:
            vstep(u,0,True); u+=1
    assert inext[0]-(NKS+u)==DV and (R//16)%3==0 and R%16==0
    u0=u; PKEND=2+nK; PV0=(inext[0]+R//2)//R-1
    nV=(1024-DV-u0)//R
    while u0+nV*R+16>1024: nV-=1
    PVEND=PV0+nV
    assert u0+DV+nV*R<=U1
    A(f"s_mov_b32 s46, {nV}"); A("v_mov_b32 v6, 0"); A(f"s_mov_b32 s50, {PV0}")
    i0=inext[0]
    def vbody():
        inext[0]=i0
        for uu in range(u0,u0+R): vstep(uu,0,True)
    loop_variants("vloop", vbody, lambda: A(f"v_add_u32 v{vSR}, {R}, v{vSR}"), 6, 4, 8, ctl)
    inext[0]=i0+nV*R
    cur[0]=NT
    C("addresses for the tail: v4 gather address, v6 output offset, v8 O' address")
    g_addr(4,6,8)
    A("v_bfe_u32 v8, v0, 4, 1"); A("v_lshlrev_b32 v8, 6, v8"); A("v_lshrrev_b32 v52, 5, v0"); A("v_lshl_add_u32 v8, v52, 5, v8"); A("v_lshl_add_u32 v8, v3, 2, v8")
    A("s_mov_b32 s47, 65536"); A("s_mov_b32 s49, 400000")
    for uu in range(u0+nV*R,1024): vstep(uu,nV*R,True)
    cur[0]=None
    STAMP(4)
    A("v_and_b32 v7, 15, v0"); A("v_lshlrev_b32 v7, 3, v7"); A("v_mov_b32 v5, 0")
    A("s_nop 4")
    o_write(3)
    A("s_waitcnt lgkmcnt(0)")
    A("s_barrier")
    STAMP(5)
    A("s_cmp_ge_u32 s32, 28"); A("s_cbranch_scc1 L_sdone")
    C("final: 16 output columns = sum over the 32 workgroups of this batch")
    A(f"ds_read_b32 v12, v5 offset:{L_TAG}")
    A(f"ds_read_b64 v[14:15], v7 offset:{L_XB}")
    if pb: A("s_barrier")
    g_issue(0,16,4,52)
    if dpoll: A(f"s_sleep {dps}"); g_issue(0,32,4,52)
    A("s_waitcnt lgkmcnt(0)")
    A("L_fp:")
    g_check(16,13,12,2 if dpoll else 0)
    A("s_sub_u32 s49, s49, 1"); A("s_cbranch_scc1 L_fa"); A("s_cbranch_vccz L_fa")
    g_issue(0,16,4,52)
    if dpoll:
        g_check(32,13,12,2)
        A("s_cbranch_vccz L_fb")
        g_issue(0,32,4,52)
    A("s_branch L_fp")
    def final(b):
        g_reduce(b,12)
        A(f"v_cvt_pk_bf16_f32 v{b}, 0, v{b}"); A(f"v_add_f32 v{b}, v14, v{b}"); A(f"v_cvt_pk_bf16_f32 v{b}, 0, v{b}"); A(f"v_add_f32 v{b}, v{b}, v15")
        A(f"v_cvt_pk_bf16_f32 v{b}, v{b}, v{b}")
        A("s_mov_b64 exec, 0xffff")
        A(f"buffer_store_short v{b}, v6, s[92:95], 0 offen {OF}")
    if dpoll:
        A("L_fb:"); final(32); A("s_branch L_sdone")
    A("L_fa:"); final(16)
    A("L_sdone:")
    STAMP(6)
    stamp_out(48)
    A("s_endpgm")

    hM=20; hACC=24; hAD=28; hLD=29
    WO=128
    def t_addr(vw, vr, natural):
        A("s_sub_u32 s47, s3, 1"); A(f"s_mul_i32 s47, s47, {T_SZ}"); A(f"s_add_u32 s47, s47, {L_T}")
        A(f"v_lshl_add_u32 v{vw}, v0, 4, s47")
        A(f"v_bfe_u32 v{vr}, v0, 2, 2")
        if natural:
            A(f"v_lshlrev_b32 v{vr}, 7, v{vr}"); A(f"v_lshrrev_b32 v31, 4, v0"); A(f"v_mul_u32_u24 v31, {T_STR}, v31")
        else:
            A(f"v_lshrrev_b32 v31, 1, v{vr}"); A(f"v_and_b32 v{vr}, 1, v{vr}"); A(f"v_lshlrev_b32 v{vr}, 1, v{vr}"); A(f"v_lshlrev_b32 v31, 7, v31")
            A("v_lshrrev_b32 v30, 5, v0"); A(f"v_add_u32 v{vr}, v{vr}, v30"); A(f"v_mul_u32_u24 v{vr}, {T_STR}, v{vr}")
            A("v_bfe_u32 v30, v0, 4, 1"); A("v_lshl_add_u32 v31, v30, 9, v31")
        A(f"v_add3_u32 v{vr}, v{vr}, v31, s47"); A("v_and_b32 v31, 3, v0"); A(f"v_lshl_add_u32 v{vr}, v31, 3, v{vr}")
    def wo_issue(nw, gs=(0,1,2,3)):
        C("wo rows of this head, column block c = wave-1; then transpose into MFMA B fragments")
        A("s_mul_i32 s47, s31, 229376"); A("s_sub_u32 s48, s3, 1"); A("s_lshl_b32 s48, s48, 7"); A("s_add_u32 s47, s47, s48")
        A(f"s_sub_u32 s48, {4096*896}, s47")
        srd(52,12,13,"s47","s48")
        A(f"v_mul_u32_u24 v{hAD}, 896, v2"); A(f"v_lshl_add_u32 v{hAD}, v3, 4, v{hAD}")
        n=0
        for g in gs:
            for hf in range(2):
                if not wrot: A(f"s_mov_b32 s47, {7168*(8*g+4*hf)}")
                elif hf==0: A(f"s_add_u32 s47, s99, {g}"); A("s_and_b32 s47, s47, 3"); A(f"s_mul_i32 s47, s47, {7168*8}")
                else: A("s_add_u32 s47, s47, 7168")
                for r in range(4):
                    if skipwo: continue
                    if n>=nw: A(f"s_waitcnt vmcnt({nw-1})")
                    rr=WO+32*g+16*hf+4*r
                    A(f"buffer_load_dwordx4 v[{rr}:{rr+3}], v{hAD}, s[52:55], s47 offen {HF}")
                    if r<3: A("s_add_u32 s47, s47, 7168")
                    n+=1
        t_addr(hAD,hLD,False)
        A("s_waitcnt vmcnt(0)")
        for g in gs:
            for k in range(8): A(f"ds_write_b128 v{hAD}, v[{WO+32*g+4*k}:{WO+32*g+4*k+3}] offset:{T_STR*k}")
            A("s_waitcnt lgkmcnt(0)")
            for kp in range(2):
                for nu in range(4):
                    for hf in range(2):
                        rr=WO+32*g+16*kp+4*nu+2*hf
                        A(f"ds_read_b64_tr_b16 v[{rr}:{rr+1}], v{hLD} offset:{4*T_STR*kp+256*hf+32*nu}")
            A("s_waitcnt lgkmcnt(0)")
    def combine(acc, dst):
        A(f"v_permlane32_swap_b32 v{acc}, v{acc+1}"); A(f"v_permlane32_swap_b32 v{acc+2}, v{acc+3}")
        A("s_nop 1")
        A(f"v_add_f32_dpp v{dst}, v{acc+1}, v{acc} row_ror:8 row_mask:0xf bank_mask:0xf")
        A(f"v_add_f32_dpp v{dst+1}, v{acc+3}, v{acc+2} row_ror:8 row_mask:0xf bank_mask:0xf")
    def rowsel(dst, srcs):
        for k in range(1,4): A(f"v_mov_b32_dpp v{dst}, v{srcs[k]} quad_perm:[0,1,2,3] row_mask:{1<<k:#x} bank_mask:0xf")

    A("L_buf:")
    A("s_setprio 3")
    A("v_mov_b32 v32, 0"); A("v_mov_b32 v33, 1"); A(f"ds_write_b32 v32, v33 offset:{L_CTL}")
    k_setup()
    A("s_waitcnt lgkmcnt(0)")
    srd(84,6,7,"s35",1<<20)
    A("s_sub_u32 s47, s3, 4"); A("s_lshl_b32 s44, s47, 13")
    A("s_lshl_b32 s47, s47, 3"); A(f"v_add_u32 v{vSW}, s47, v{vSW}")
    bar0(True)
    for i in range(R):
        if i==N0:
            srd_slots()
            A("s_cmp_lg_u32 s3, 5"); A("s_cbranch_scc1 L_notag"); A("s_cmp_lg_u32 s2, 0"); A("s_cbranch_scc1 L_notag")
            C("workgroup 0, wave 5: this launch's tag differs from the one left in d_ws; announced in d_debug[0]")
            srd(92,24,25,"0x100000",256)
            A("s_memrealtime s[62:63]")
            A(f"buffer_load_dword v32, off, s[92:95], 0 {SC}"); A("s_waitcnt vmcnt(0) lgkmcnt(0)")
            A("s_and_b32 s62, s62, 0x7ff"); A("s_add_u32 s62, s62, 1")
            A("v_add_u32 v32, s62, v32"); A("v_and_b32 v32, 0xfff, v32"); A("v_or_b32 v33, 0x1000, v32")
            A("s_mov_b64 exec, 1")
            A(f"buffer_store_dword v33, off, s[56:59], 0 {SC}")
            A(f"buffer_store_dword v32, off, s[92:95], 0 {SC}")
            A("s_mov_b64 exec, -1")
            A("L_notag:")
        if i>=N0: A(f"s_waitcnt vmcnt({N0-1})")
        r=slot(i)
        A(f"buffer_load_dwordx4 v[{r}:{r+3}], v{vK}, s[84:87], s44 offen offset:{128*(i%4)} {SF}")
        if st0 and i==0: STAMP(1)
        if i%4==3: A(f"s_add_u32 s44, s44, {4096 if i%8==3 else 4096+NB*8192}")
    bar0(False)
    if not st0: STAMP(1)
    A("s_barrier")
    STAMP(2)
    A("s_setprio 0")
    q_read()
    for c in range(R):
        A(f"s_waitcnt vmcnt({R-1-c})")
        pi=c//8
        k_consume(c, None if pi==0 else L_S+8*(NB+1)*(pi-1))
    k_flush(L_S+8*(NB+1)*(NP0-1))
    A("s_sub_u32 s47, s3, 4"); A("s_lshl_b32 s47, s47, 4")
    mx_publish("s47", vR)
    A("s_cmp_eq_u32 s3, 7"); A("s_cbranch_scc1 L_mon")
    A("L_wo:")
    wo_issue(NW,(0,1) if wsplit else (0,1,2,3))
    STAMP(3)
    A("s_barrier")
    A("s_cmp_eq_u32 s3, 5"); A("s_cbranch_scc1 L_w5")
    A("s_cmp_lg_u32 s3, 6"); A("s_cbranch_scc1 L_wo2")
    C("wave 6: softmax denominator, exchange (m,l) with the other half, scale")
    A("v_mov_b32 v4, 0")
    for w in range(4): A(f"ds_read_b128 v[{64+4*w}:{64+4*w+3}], v4 offset:{L_MX+16*w}")
    A(f"v_mul_u32_u24 v5, {S_STR}, v2"); A("v_lshl_add_u32 v5, v3, 7, v5")
    for n in range(8): A(f"ds_read_b128 v[{32+4*n}:{32+4*n+3}], v5 offset:{L_S+16*n}")
    A("s_waitcnt lgkmcnt(8)")
    max16(6,64)
    A("v_mul_f32 v7, s34, v6"); A("v_sub_f32 v7, 0, v7")
    A("s_waitcnt lgkmcnt(0)")
    for k in range(32): A(f"v_fma_f32 v{32+k}, v{32+k}, s34, v7")
    for k in range(32): A(f"v_exp_f32 v{32+k}, v{32+k}")
    for st in (16,8,4,2,1):
        for k in range(st): A(f"v_add_f32 v{32+k}, v{32+k}, v{32+k+st}")
    wave_sum(32,33)
    tag_wait(16)
    C("v6=M v32=l ; four words: 16-bit halves of M and l, each with a 16-bit tag")
    A("v_or_b32 v16, 0xa000, v16"); A("s_mov_b32 s47, 0xffff0000")
    A("v_and_or_b32 v8, v6, s47, v16"); A("v_lshl_or_b32 v9, v6, 16, v16"); A("v_and_or_b32 v10, v32, s47, v16"); A("v_lshl_or_b32 v11, v32, 16, v16")
    A("s_mov_b64 exec, 1")
    A(f"buffer_store_dwordx4 v[8:11], off, s[36:39], 0 offset:3840 {SC}")
    A("s_mov_b64 exec, -1")
    A("s_xor_b32 s48, s32, 1"); A("s_lshl_b32 s48, s48, 12"); A("s_mov_b32 s49, 400000")
    A("L_mlp:")
    A(f"buffer_load_dwordx4 v[12:15], off, s[40:43], s48 offset:3840 {SC}"); A("s_waitcnt vmcnt(0)")
    A("v_xor_b32 v17, v12, v16")
    for r in (13,14,15): A(f"v_bitop3_b32 v17, v{r}, v16, v17 bitop3:0xbe")
    A("v_and_b32 v17, 0xffff, v17")
    A("v_cmp_ne_u32 vcc, 0, v17"); A("s_sub_u32 s49, s49, 1"); A("s_cbranch_scc1 L_mlx")
    A("s_cbranch_vccz L_mlx"); A("s_sleep 8"); A("s_branch L_mlp")
    A("L_mlx:")
    A("v_lshrrev_b32 v13, 16, v13"); A("v_lshrrev_b32 v15, 16, v15"); A("v_and_or_b32 v10, v12, s47, v13"); A("v_and_or_b32 v11, v14, s47, v15")
    A("v_max_f32 v12, v6, v10")
    A("v_sub_f32 v13, v6, v12"); A("v_sub_f32 v14, v10, v12")
    A("v_mul_f32 v13, s34, v13"); A("v_mul_f32 v14, s34, v14")
    A("v_exp_f32 v13, v13"); A("v_exp_f32 v14, v14"); A("s_nop 0")
    A("v_mul_f32 v15, v13, v32"); A("v_fma_f32 v15, v14, v11, v15")
    A("v_rcp_f32 v15, v15"); A("s_nop 0"); A("v_mul_f32 v15, v15, v13")
    A(f"ds_write_b32 v4, v15 offset:{L_SC}")
    A("s_branch L_wo2")

    A("L_w5:")
    C("wave 5: tag for the other waves; x and the gathered FFN result for the final step")
    tag_wait(78)
    A("v_mov_b32 v4, 0"); A(f"ds_write_b32 v4, v78 offset:{L_TAG}")
    A("s_cmp_ge_u32 s32, 28"); A("s_cbranch_scc1 L_wo2")
    A("s_mul_i32 s47, s30, 896"); srd(88,4,5,"s47",896)
    g_addr(64,65,4)
    A("buffer_load_ushort v66, v65, s[88:91], 0 offen")
    A("s_mov_b32 s49, 400000"); A("s_mov_b32 s47, 65536")
    for r in range(8): A(f"v_mov_b32 v{68+r}, v78")
    A("L_bp:")
    if skipffn!=1:
        A("s_mov_b64 exec, 0xffff")
        A(f"buffer_load_dwordx4 v[68:71], v64, s[40:43], 0 offen offset:2048 {SC}")
        A("s_mov_b64 exec, -1"); A("s_waitcnt vmcnt(0)")
        g_check(68,76,78,0)
        A("s_sub_u32 s49, s49, 1"); A("s_cbranch_scc1 L_bx"); A("s_cbranch_vccz L_bx"); A("s_sleep 16"); A("s_branch L_bp")
    A("L_bx:")
    A("s_waitcnt vmcnt(0)")
    g_reduce(68,78)
    A("v_cvt_pk_bf16_f32 v67, 0, v68"); A("v_lshlrev_b32 v66, 16, v66")
    A("v_and_b32 v4, 15, v0"); A("v_lshlrev_b32 v4, 3, v4")
    A(f"ds_write_b64 v4, v[66:67] offset:{L_XB}")
    A("L_wo2:")
    if wsplit: wo_issue(NW,(2,3))
    A("s_branch L_tail")

    REFS=[0,6,10,12]
    A("L_mon:")
    C("wave 7: compare this workgroup's progress with four reference workgroups and pick the streamer's depth")
    wo_issue(NW7)
    srd(40,24,25,None,1<<20)
    for k in range(4):
        A(f"s_add_u32 s47, s30, {(2*k+(k>>1))%8 if xb else 0}"); A("s_and_b32 s47, s47, 7"); A("s_lshl_b32 s47, s47, 17"); A(f"s_add_u32 s{12+k}, s47, {4096*REFS[k]+3968}")
    A(f"s_mov_b32 s51, {(~sum(1<<r for r in REFS))&0xffffffff:#x}"); A("s_lshr_b32 s51, s51, s32"); A("s_and_b32 s51, s51, 1")
    tag_wait(5)
    A("v_lshlrev_b32 v5, 16, v5"); A("s_lshl_b32 s96, s96, 16"); A("v_mov_b32 v4, 0"); A("s_mov_b32 s50, 0"); A("s_mov_b32 s100, 0")
    if stag: A("s_bfe_u32 s16, s32, 0x10002"); A("s_bfe_u32 s17, s32, 0x10003"); A("s_xor_b32 s16, s16, s17")
    for ph,pend in (("k",PKEND),("v",PVEND)):
        A(f"L_mon{ph}:")
        A(f"ds_read_b32 v6, v4 offset:{L_PRG}"); A("s_waitcnt lgkmcnt(0)"); A("v_readfirstlane_b32 s47, v6")
        A(f"s_cmp_ge_u32 s47, {pend}"); A(f"s_cbranch_scc1 L_mon{ph}x")
        A("s_cmp_lg_u32 s47, s50"); A(f"s_cbranch_scc1 L_mon{ph}n")
        A(f"s_sleep {msleep}"); A(f"s_branch L_mon{ph}")
        A(f"L_mon{ph}n:")
        A("s_mov_b32 s50, s47")
        if PS:
            C("every fourth period up to PS, every second one after it")
            A(f"s_cmp_le_u32 s47, {PS}"); A("s_cselect_b32 s17, 3, 1"); A(f"s_cselect_b32 s18, {64-BIAS}, {32-BIAS}"); A(f"s_cselect_b32 s19, {TH4 or TH}, {TH}")
            A("s_and_b32 s48, s47, s17"); A(f"s_cbranch_scc1 L_mon{ph}")
        elif stag: A("s_add_u32 s48, s47, s16"); A(f"s_and_b32 s48, s48, {PD-1}")
        else: A(f"s_and_b32 s48, s47, {PD-1}")
        A("s_or_b32 s48, s48, s51"); A(f"s_cbranch_scc1 L_mon{ph}p")
        A("v_or_b32 v6, v5, v6")
        A("s_mov_b64 exec, 1")
        A(f"buffer_store_dword v6, off, s[36:39], 0 offset:3968 {SC}")
        A("s_mov_b64 exec, -1")
        A(f"L_mon{ph}p:")
        if RD>1 and not pulse and not PS:
            if RV and ph=="v": A(f"s_cmp_ge_u32 s47, {RV}"); A(f"s_cbranch_scc1 L_mon{ph}r")
            A(f"s_and_b32 s48, s47, {RD-1}"); A(f"s_cbranch_scc1 L_mon{ph}")
            if RV and ph=="v": A(f"L_mon{ph}r:")
        if RD>1 and pulse:
            A(f"s_and_b32 s48, s47, {RD-1}"); A(f"s_cbranch_scc0 L_mon{ph}r")
            A("s_abs_i32 s48, s100"); A(f"s_cmp_ge_i32 s48, {pulse}"); A(f"s_cbranch_scc1 L_mon{ph}")
            A("v_mov_b32 v7, 1"); A(f"ds_write_b32 v4, v7 offset:{L_CTL}"); A(f"s_branch L_mon{ph}")
            A(f"L_mon{ph}r:")
        for k in range(4): A(f"s_buffer_load_dword s{4+k}, s[40:43], s{12+k} glc")
        A("s_waitcnt lgkmcnt(0)")
        for k in range(4): A(f"s_sub_u32 s{4+k}, s{4+k}, s96")
        A("s_mov_b32 s48, s4"); A("s_mov_b32 s49, s4")
        for k in range(1,4): A(f"s_add_u32 s48, s48, s{4+k}"); A(f"s_max_u32 s49, s49, s{4+k}")
        A("s_cmp_gt_u32 s49, 63"); A(f"s_cbranch_scc1 L_mon{ph}")
        A("s_lshl_b32 s48, s48, 3")
        A("s_lshl_b32 s49, s47, 5"); A("s_sub_i32 s49, s49, s18" if PS else f"s_add_i32 s49, s49, {BIAS-32}"); A("s_sub_i32 s49, s49, s48")
        if pulse: A("s_mov_b32 s100, s49")
        if PS: A("s_cmp_gt_i32 s49, s19"); A("s_cselect_b32 s48, 0, 1"); A("s_add_i32 s49, s49, s19"); A("s_cmp_lt_i32 s49, 0"); A("s_cselect_b32 s48, 2, s48")
        else: A(f"s_cmp_gt_i32 s49, {TH}"); A("s_cselect_b32 s48, 0, 1"); A(f"s_cmp_lt_i32 s49, {-TH}"); A("s_cselect_b32 s48, 2, s48")
        A("v_mov_b32 v7, s48"); A(f"ds_write_b32 v4, v7 offset:{L_CTL}")
        A(f"s_branch L_mon{ph}")
        A(f"L_mon{ph}x:")
        if ph=="k": A("s_waitcnt lgkmcnt(0)"); STAMP(3); A("s_barrier")

    A("L_tail:")
    A(f"v_lshrrev_b32 v{hLD}, 4, v0"); A(f"v_lshlrev_b32 v{hLD}, 4, v{hLD}"); A("v_mov_b32 v30, 0")
    A(f"v_lshlrev_b32 v{hAD}, 2, v0")
    A("s_sub_u32 s48, s3, 1"); A("s_lshl_b32 s48, s48, 8")
    A("s_waitcnt vmcnt(0) lgkmcnt(0)")
    STAMP(4)
    for q in range(4):
        A("s_barrier")
        if q==3: STAMP(5)
        for ka in range(2): A(f"ds_read_b128 v[{32+8*q+4*ka}:{32+8*q+4*ka+3}], v{hLD} offset:{L_O+128*q+64*ka}")
        if q==0: A(f"ds_read_b64 v[10:11], v30 offset:{L_SC}")
        for ka in range(2):
            A(f"s_waitcnt lgkmcnt({(2 if q==0 else 1)-ka})")
            for nu in range(4):
                a=12+4*nu; w=WO+32*q+16*ka+4*nu; x=32+8*q+4*ka
                A(f"v_mfma_f32_16x16x32_bf16 v[{a}:{a+3}], v[{x}:{x+3}], v[{w}:{w+3}], {'0' if (q==0 and ka==0) else f'v[{a}:{a+3}]'}")
    A("s_nop 5")
    rowsel(12,[12,16,20,24])
    A("v_mul_f32 v12, v10, v12"); A("v_add_u32 v12, 0x800, v12"); A("v_and_or_b32 v12, v12, s97, v11")
    A(f"buffer_store_dword v12, v{hAD}, s[36:39], s48 offen {YF or SC}")
    STAMP(6)
    if pb: A("s_cmp_ge_u32 s32, 28"); A("s_cbranch_scc1 L_tend"); A("s_barrier"); A("L_tend:")
    stamp_out()
    A("s_endpgm")

    A("L_help:")
    D0=32
    def layernorm(xr, dup):
        for k in range(4):
            A(f"v_lshlrev_b32 v{8+2*k}, 16, v{xr+k}"); A(f"v_and_b32 v{9+2*k}, 0xffff0000, v{xr+k}")
        A("v_add_f32 v16, v8, v9"); A("v_add_f32 v17, v10, v11"); A("v_add_f32 v18, v12, v13"); A("v_add_f32 v19, v14, v15")
        A("v_add_f32 v16, v16, v17"); A("v_add_f32 v18, v18, v19"); A("v_add_f32 v16, v16, v18")
        wave_sum(16,17)
        A(f"v_mul_f32 v16, {f2u(1.0/448):#x}, v16")
        A("v_cmp_gt_u32 vcc, 56, v0"); A("v_cvt_pk_bf16_f32 v17, 0, v16"); A("s_nop 0")
        A("v_cndmask_b32 v16, 0, v16, vcc")
        A("v_sub_f32 v4, v8, v16"); A("v_mul_f32 v18, v4, v4")
        for k in range(1,8): A(f"v_sub_f32 v4, v{8+k}, v16"); A("v_fmac_f32 v18, v4, v4")
        wave_sum(18,19)
        A(f"v_mul_f32 v18, {f2u(1.0/448):#x}, v18")
        A("v_cvt_pk_bf16_f32 v18, 0, v18")
        A(f"v_add_f32 v18, {f2u(1e-5):#x}, v18")
        A("v_cvt_pk_bf16_f32 v18, 0, v18")
        A("v_sqrt_f32 v18, v18"); A("s_nop 0")
        A("v_cvt_pk_bf16_f32 v18, 0, v18")
        A("v_rcp_f32 v19, v18")
        for k in range(8):
            A(f"v_sub_f32 v{8+k}, v{8+k}, v17"); A(f"v_cvt_pk_bf16_f32 v{8+k}, 0, v{8+k}")
            A(f"v_mul_f32 v4, v{8+k}, v19"); A(f"v_fma_f32 v6, -v4, v18, v{8+k}")
            if dup: A("v_fma_f32 v4, v6, v19, v4"); A(f"v_cvt_pk_bf16_f32 v{8+k}, v4, v4")
            else: A(f"v_fma_f32 v{8+k}, v6, v19, v4")
        if not dup:
            for k in range(4): A(f"v_cvt_pk_bf16_f32 v{8+k}, v{8+2*k}, v{9+2*k}")
    def wq_load(t):
        A(f"buffer_load_dwordx4 v[{D0+4*t}:{D0+4*t+3}], v{hAD}, s[52:55], s48 offen {QF}")
        A("s_add_u32 s48, s48, 65536")
        if rot and t%4==3 and t<55: A(f"s_cmp_ge_u32 s48, {56*65536}"); A("s_cselect_b32 s48, 0, s48")
    def gemv56(bar_at):
        XX=[4,8]; BB=[12,16]
        A("s_waitcnt lgkmcnt(0)")
        A(f"ds_read_b128 v[4:7], v{hLD}"); A(f"ds_read_b128 v[8:11], v{hLD} offset:16")
        def bp(t):
            if t%4==0: A(f"s_waitcnt lgkmcnt({1 if t//4+1<14 else 0})")
            for r in range(4): A(f"v_and_b32 v{BB[t%2]+r}, v{XX[(t//4)%2]+t%4}, v{hM+r}")
            if t%4==3 and t//4+2<14:
                x=XX[(t//4)%2]; A(f"ds_read_b128 v[{x}:{x+3}], v{hLD} offset:{16*(t//4+2)}")
        bp(0)
        for t in range(56):
            if t+1<56: bp(t+1)
            else: A("s_nop 0")
            if t+QD<56: wq_load(t+QD)
            if t+QD==bar_at: A("s_barrier")
            A(f"s_waitcnt vmcnt({min(QD,55-t)})")
            A(f"v_mfma_f32_16x16x32_bf16 v[{hACC}:{hACC+3}], v[{D0+4*t}:{D0+4*t+3}], v[{BB[t%2]}:{BB[t%2]+3}], {'0' if t==0 else f'v[{hACC}:{hACC+3}]'}")
        A("s_nop 7")
        combine(hACC,12)
    def ln_part(wait):
        masks(hM,12,13)
        A(f"s_waitcnt vmcnt({wait})")
        layernorm(4,True)
        C("X'[e][(t - 4*rot) mod 56]")
        A("s_sub_u32 s47, s3, 1"); A(f"s_mul_i32 s47, s47, {X_SZ}"); A(f"s_add_u32 s47, s47, {L_X}")
        A("s_lshl_b32 s50, s51, 2"); A("v_subrev_u32 v5, s50, v0"); A("v_add_u32 v6, 56, v5"); A("v_min_u32 v5, v5, v6")
        A("v_cmp_lt_u32 vcc, 55, v0"); A("s_nop 1"); A("v_cndmask_b32 v5, v5, v0, vcc")
        A("v_lshl_add_u32 v5, v5, 2, s47")
        for k in range(8): A(f"ds_write_b32 v5, v{8+k} offset:{k*X_STR}")
        A(f"v_mul_u32_u24 v{hLD}, {X_STR}, v2"); A(f"v_add_u32 v{hLD}, s47, v{hLD}")
    C("q column block w-1 over all 448 rows of wq, tile order rotated by 4*s51 tiles")
    A("v_lshlrev_b32 v1, 4, v0")
    A(f"v_lshlrev_b32 v{hAD}, 13, v2"); A(f"v_lshl_add_u32 v{hAD}, v3, 4, v{hAD}")
    A("s_mul_i32 s47, s30, 896")
    A("s_lshl_b32 s48, s31, 9"); A("s_sub_u32 s49, s3, 1"); A("s_lshl_b32 s49, s49, 7"); A("s_add_u32 s48, s48, s49"); A(f"s_sub_u32 s49, {448*8192}, s48")
    if rot: A("s_mul_i32 s51, s30, 7"); A("s_lshr_b32 s51, s51, 2")
    else: A("s_mov_b32 s51, 0")
    A("s_waitcnt lgkmcnt(0)")
    srd(88,4,5,"s47",896)
    srd(52,10,11,"s48","s49")
    A("buffer_load_dwordx4 v[4:7], v1, s[88:91], 0 offen")
    if st0: STAMP(1)
    A("s_lshl_b32 s48, s51, 18")
    A("s_cmp_eq_u32 s28, 1"); A("s_cbranch_scc1 L_q1")
    for t in range(QD): wq_load(t)
    ln_part(QD); gemv56(55); A("s_branch L_q2")
    A("L_q1:")
    ln_part(0); A("s_barrier")
    for t in range(QD): wq_load(t)
    gemv56(None)
    A("L_q2:")
    C("q -> bf16 -> LDS: addr = m*128 + (4*rowq+hi)*16 + j*2 (+32 for the second register)")
    A("v_cvt_pk_bf16_f32 v12, v12, v13")
    A("v_bfe_u32 v4, v0, 4, 1"); A("v_lshrrev_b32 v5, 5, v0"); A("v_lshl_add_u32 v4, v4, 2, v5"); A("v_lshlrev_b32 v4, 4, v4"); A("v_lshl_add_u32 v4, v3, 1, v4")
    A("s_sub_u32 s47, s3, 1"); A("s_lshl_b32 s47, s47, 7"); A("v_add_u32 v4, s47, v4")
    A("s_mov_b64 exec, s[60:61]")
    A(f"ds_write_b16 v4, v12 offset:{L_Q}"); A(f"ds_write_b16_d16_hi v4, v12 offset:{L_Q+32}")
    A("s_mov_b64 exec, -1")
    A("s_waitcnt lgkmcnt(0)")
    if not st0: STAMP(1)
    A("s_barrier")
    STAMP(2)
    srd_slots()
    C("FFN, wave 1 of 2 x 28 workgroups, all 8 batches at once. Stage 0 (s50=0): h = silu(xn . w1[:, 64f..64f+63])")
    C("stage 1 (s50=1): partial result h[448r..448r+447] . w2[448r.., 64c..64c+63], f = 7r + c")
    A("s_cmp_lg_u32 s3, 1"); A("s_cbranch_scc1 L_wo")
    if skipffn==1: A("s_branch L_wo")
    A("s_cmp_lg_u32 s28, 1"); A("s_cbranch_scc1 L_wo")
    A("s_xor_b32 s47, s30, s26"); A("s_and_b32 s48, s47, 1"); A("s_cbranch_scc1 L_wo")
    A("s_bfe_u32 s50, s47, 0x10001"); A("s_lshr_b32 s47, s47, 2"); A("s_lshl_b32 s47, s47, 4"); A("s_add_u32 s51, s31, s47")
    A("s_cmp_ge_u32 s51, 28"); A("s_cbranch_scc1 L_wo")
    A("s_mul_i32 s62, s51, 37"); A("s_lshr_b32 s62, s62, 8"); A("s_mul_i32 s63, s62, 7"); A("s_sub_u32 s63, s51, s63")
    C("s62 = r, s63 = c")
    A("s_cmp_eq_u32 s50, 1"); A("s_cbranch_scc1 L_f1a")
    A("s_lshl_b32 s48, s51, 7"); A(f"s_sub_u32 s49, {448*3584}, s48"); srd(52,16,17,"s48","s49")
    A("s_mov_b32 s46, 3584")
    C("raw x of the 8 batches -> XN, then layernorm in place while the first tiles are in flight")
    srd(88,4,5,None,8*896)
    A(f"v_add_u32 v5, {L_XN}, v1"); A("v_cmp_gt_u32 vcc, 56, v0"); A("v_mov_b32 v6, 0x10000"); A("s_nop 0"); A("v_cndmask_b32 v6, v6, v1, vcc")
    for b in range(8): A(f"buffer_load_dwordx4 v[{224+4*b}:{227+4*b}], v6, s[88:91], 0 offen offset:{896*b}" if 896*b<4096 else f"buffer_load_dwordx4 v[{224+4*b}:{227+4*b}], v6, s[88:91], s46 offen offset:{896*b-3584}")
    A("s_branch L_f1b")
    A("L_f1a:")
    A(f"s_mul_i32 s48, s62, {448*896}"); A("s_lshl_b32 s49, s63, 7"); A("s_add_u32 s48, s48, s49"); A(f"s_sub_u32 s49, {1792*896}, s48"); srd(52,18,19,"s48","s49")
    A("s_mov_b32 s46, 896")
    A("L_f1b:")
    A(f"v_mul_u32_u24 v{hAD}, s46, v2"); A(f"v_lshl_add_u32 v{hAD}, v3, 4, v{hAD}")
    A("s_lshl_b32 s46, s46, 3"); A("s_mov_b32 s48, 0")
    def w_load(t):
        A(f"buffer_load_dwordx4 v[{D0+4*t}:{D0+4*t+3}], v{hAD}, s[52:55], s48 offen {WF}")
        A("s_add_u32 s48, s48, s46")
    for t in range(NF): w_load(t)
    A("s_cmp_eq_u32 s50, 1"); A("s_cbranch_scc1 L_f2")
    A(f"s_waitcnt vmcnt({NF})")
    for b in range(8): A(f"ds_write_b128 v5, v[{224+4*b}:{227+4*b}] offset:{XN_STR*b}")
    A("s_mov_b32 s49, 8")
    A("L_ln8:")
    A("s_waitcnt lgkmcnt(0)")
    A("ds_read_b128 v[20:23], v5"); A("s_waitcnt lgkmcnt(0)")
    layernorm(20,False)
    A("ds_write_b128 v5, v[8:11]")
    A(f"v_add_u32 v5, {XN_STR}, v5"); A("s_sub_u32 s49, s49, 1"); A("s_cmp_lg_u32 s49, 0"); A("s_cbranch_scc1 L_ln8")
    A("L_f2:")
    for t in range(NF,56):
        A(f"s_waitcnt vmcnt({NF-1})"); w_load(t)
    A("s_waitcnt vmcnt(0)")
    def transpose4(regs):
        for k in range(4): A(f"ds_write_b128 v{hAD}, v[{regs[k]}:{regs[k]+3}] offset:{T_STR*k}")
        A("s_waitcnt lgkmcnt(0)")
        for nu in range(4):
            for hf in range(2): A(f"ds_read_b64_tr_b16 v[{regs[nu]+2*hf}:{regs[nu]+2*hf+1}], v{hLD} offset:{512*hf+32*nu}")
        A("s_waitcnt lgkmcnt(0)")
    t_addr(hAD,hLD,True)
    for ka in range(14): transpose4([D0+16*ka+4*k for k in range(4)])
    tag_wait(1)
    A("v_or_b32 v7, 0xa000, v1")
    srd(52,24,25,None,1<<20)
    A("s_lshl_b32 s47, s51, 12"); A("s_add_u32 s47, s47, 1792")
    A("s_cmp_eq_u32 s50, 0"); A("s_cbranch_scc1 L_f3")
    C("gather h: 7 slices x 8 batches, one bf16 and a 16-bit tag per word")
    A("v_lshrrev_b32 v5, 4, v0"); A("v_and_b32 v6, 15, v0"); A("v_lshlrev_b32 v4, 17, v5"); A("v_lshl_add_u32 v4, v6, 4, v4")
    A(f"s_mul_i32 s47, s62, {7*4096}"); A("s_add_u32 s47, s47, 1792"); A("v_add_u32 v4, s47, v4")
    A(f"v_mul_u32_u24 v5, {XN_STR}, v5"); A("v_lshl_add_u32 v5, v6, 3, v5")
    A("s_mov_b32 s63, 0x07060302")
    items=[(ps,sl) for ps in range(2) for sl in range(7)]
    for rd,grp in enumerate((items[0:5],items[5:10],items[10:14])):
        A("s_mov_b32 s49, 400000")
        A(f"L_hg{rd}:")
        for k,(ps,sl) in enumerate(grp):
            A(f"s_mov_b32 s47, {ps*4*131072+sl*4096}")
            A(f"buffer_load_dwordx4 v[{8+4*k}:{11+4*k}], v4, s[52:55], s47 offen {SC}")
        A("s_waitcnt vmcnt(0)")
        A("v_xor_b32 v6, v8, v7")
        for r in range(1,4*len(grp)): A(f"v_bitop3_b32 v6, v{8+r}, v7, v6 bitop3:0xbe")
        A("v_and_b32 v6, 0xffff, v6"); A("v_cmp_ne_u32 vcc, 0, v6")
        A("s_sub_u32 s49, s49, 1"); A(f"s_cbranch_scc1 L_hx{rd}"); A(f"s_cbranch_vccz L_hx{rd}"); A("s_sleep 16"); A(f"s_branch L_hg{rd}")
        A(f"L_hx{rd}:")
        for k,(ps,sl) in enumerate(grp):
            A(f"v_perm_b32 v{8+4*k}, v{9+4*k}, v{8+4*k}, s63"); A(f"v_perm_b32 v{9+4*k}, v{11+4*k}, v{10+4*k}, s63")
            A(f"ds_write_b64 v5, v[{8+4*k}:{9+4*k}] offset:{L_XN+4*XN_STR*ps+128*sl}")
        A("s_waitcnt lgkmcnt(0)")
    A("s_mul_i32 s63, s62, 7"); A("s_sub_u32 s63, s51, s63")
    A("s_lshl_b32 s47, s62, 12"); A("s_lshl_b32 s48, s63, 8"); A("s_add_u32 s47, s47, s48"); A("s_add_u32 s47, s47, 2048")
    A("L_f3:")
    C("A fragments: row i of the MFMA is batch (i&3) (+4 in the second pass)")
    A("v_and_b32 v30, 3, v0"); A(f"v_mul_u32_u24 v30, {XN_STR}, v30"); A("v_lshrrev_b32 v31, 4, v0"); A("v_lshl_add_u32 v30, v31, 4, v30")
    A("v_lshl_add_u32 v31, v0, 2, s47")
    for ps in range(2):
        for ka in range(14):
            A(f"ds_read_b128 v[{20+4*(ka%2)}:{23+4*(ka%2)}], v30 offset:{L_XN+4*XN_STR*ps+64*ka}"); A("s_waitcnt lgkmcnt(0)")
            for nu in range(4):
                a=4+4*nu; w=D0+16*ka+4*nu
                A(f"v_mfma_f32_16x16x32_bf16 v[{a}:{a+3}], v[{20+4*(ka%2)}:{23+4*(ka%2)}], v[{w}:{w+3}], {'0' if ka==0 else f'v[{a}:{a+3}]'}")
        for r in range(4): A(f"s_mov_b32 s{44+r}, {(4*ps+r)<<17}")
        A("s_nop 7")
        for r in range(4):
            rowsel(4+r,[4+r,8+r,12+r,16+r])
        A("s_cmp_eq_u32 s50, 1"); A(f"s_cbranch_scc1 L_f4{ps}")
        A("v_or_b32 v21, 0xa000, v1")
        for r in range(4):
            k=4+r
            A(f"v_cvt_pk_bf16_f32 v{k}, 0, v{k}")
            A(f"v_mul_f32 v20, {f2u(-math.log2(math.e)):#x}, v{k}"); A("v_exp_f32 v20, v20"); A("s_nop 0")
            A("v_add_f32 v20, 1.0, v20"); A("v_rcp_f32 v20, v20"); A("s_nop 0")
            A(f"v_mul_f32 v{k}, v{k}, v20"); A(f"v_cvt_pk_bf16_f32 v{k}, 0, v{k}"); A(f"v_or_b32 v{k}, v{k}, v21")
        A(f"s_branch L_f5{ps}")
        A(f"L_f4{ps}:")
        for r in range(4): A(f"v_add_u32 v{4+r}, 0x800, v{4+r}"); A(f"v_and_or_b32 v{4+r}, v{4+r}, s97, v1")
        A(f"L_f5{ps}:")
        for r in range(4): A(f"buffer_store_dword v{4+r}, v31, s[52:55], s{44+r} offen {SC}")
        A("s_nop 1")
    STAMP(3)
    A("s_barrier")
    wo_issue(NW7)
    A("s_branch L_tail")
    A("L_end:")
    A("s_endpgm")
    body="\n".join(("" if (l.endswith(":") or l.startswith(".")) else "    ")+l for l in L)+"\n"
    head=HEADER+f"; @launch grid=(256,1,1) block=(512,1,1) lds={L_END}\n"
    return head+body+kd(NAME,256,102,256), L_END

if __name__=="__main__":
    kw=eval("dict(%s)"%(sys.argv[2] if len(sys.argv)>2 else ""))
    t,ldsz=gen(**kw)
    out=sys.argv[1]
    if out.endswith(".s"): open(out,"w").write(t)
    else:
        assemble(t+meta([(NAME,256,102,512)]), out); print(f"work/{out}:{NAME},256,512,{ldsz}")
```

```python
import sys, math, struct
from common import *

NAME="parallel_sum__mha_block_cached__dense_activation_silu__decode_kernel"
HEADER=open("parallel_sum__mha_block_cached__dense_activation_silu__decode.s.ref").read().split("; Override launch")[0]

L_Q=0; L_MX=512; L_SC=576; L_TAG=580; L_PRG=584; L_CTL=588; L_XB=640
L_O=768
L_S=1280; S_STR=1040
L_X=L_S+8*S_STR; X_STR=272; X_SZ=8*X_STR
L_XN=L_X+4*X_SZ; XN_STR=1040
L_HP=L_XN+8*XN_STR; HP_STR=144
L_T=L_HP+8*HP_STR; T_STR=1056; T_SZ=8*T_STR
L_END=L_T+7*T_SZ
CEXP=math.log2(math.e)/16.0
def f2u(f): return struct.unpack("<I",struct.pack("<f",f))[0]

def gen(N=24, N0=10, R=48, NF=8, NW=1, NW7=4, QD=12, stamp=False, SC="sc1", HF="", QF="", SF="nt",
        rot=1, ctl=(18,24,32), ctlK=None, TH=6, BIAS=0, PD=2, RD=2, msleep=4, xb=1, dpoll=1, skipwo=0, skipffn=0, NT=None, late=1, pulse=0, st0=0, OF='', dual=0, dry=0, TS=8, SD=3, PF=None, YF=None, dps=4, pb=1, BO=0, BF=None, WF='nt', wrot=0, wsplit=1, stag=0, RV=0, PS=24, TH4=None, MS=32, mlate=1, ltag=1, hsl=32, mpoll=1, psl=0):
    L=[]; A=L.append
    def C(s): A("    ; "+s)
    lbl=[0]
    def newl(): lbl[0]+=1; return lbl[0]
    def STAMP(i):
        if stamp: A(f"s_memrealtime s[{70+2*i}:{71+2*i}]")
    def srd(d, lo, hi, off, size):
        if off is None: A(f"s_mov_b32 s{d}, s{lo}"); A(f"s_mov_b32 s{d+1}, s{hi}")
        else: A(f"s_add_u32 s{d}, s{lo}, {off}"); A(f"s_addc_u32 s{d+1}, s{hi}, 0")
        A(f"s_mov_b32 s{d+2}, {size}"); A(f"s_mov_b32 s{d+3}, 0x20000")
    def masks(base,t0,t1):
        A(f"v_and_b32 v{t0}, 1, v3"); A(f"v_lshlrev_b32 v{t0}, 4, v{t0}"); A(f"v_mov_b32 v{t1}, 0xffff"); A(f"v_lshlrev_b32 v{t0}, v{t0}, v{t1}")
        A(f"v_lshrrev_b32 v{t1}, 1, v3")
        for r in range(4):
            A(f"v_cmp_eq_u32 vcc, {r}, v{t1}"); A("s_nop 1"); A(f"v_cndmask_b32 v{base+r}, 0, v{t0}, vcc")
    def stamp_out(tmp=4):
        if not stamp: return
        A("s_waitcnt lgkmcnt(0)")
        A("s_mov_b64 exec, 1")
        srd(64,24,25,None,0x40000000)
        A("s_lshl_b32 s68, s2, 3"); A("s_add_u32 s68, s68, s3"); A("s_lshl_b32 s68, s68, 5"); A("s_add_u32 s68, s68, 0x20000000")
        A("s_getreg_b32 s69, hwreg(HW_REG_XCC_ID)")
        for i in range(7): A(f"v_mov_b32 v{tmp+i}, s{70+2*i}")
        A(f"v_mov_b32 v{tmp+7}, s69")
        A(f"buffer_store_dwordx4 v[{tmp}:{tmp+3}], off, s[64:67], s68")
        A(f"buffer_store_dwordx4 v[{tmp+4}:{tmp+7}], off, s[64:67], s68 offset:16")
        A("s_waitcnt vmcnt(0)")
    def srd_slots():
        A("s_lshl_b32 s47, s33, 12"); srd(36,24,25,"s47",4096)
        A("s_lshl_b32 s47, s30, 17"); srd(40,24,25,"s47",131072)
        srd(56,22,23,None,256)
    def tag_wait(t):
        n=newl()
        A("s_mov_b32 s49, 400000")
        A(f"L_cw{n}:")
        A(f"buffer_load_dword v{t}, off, s[56:59], 0 {SC}"); A("s_waitcnt vmcnt(0)")
        A(f"v_cmp_eq_u32 vcc, 0, v{t}"); A("s_sub_u32 s49, s49, 1"); A(f"s_cbranch_scc1 L_cwx{n}")
        A(f"s_cbranch_vccz L_cwx{n}"); A("s_sleep 8"); A(f"s_branch L_cw{n}")
        A(f"L_cwx{n}:")
        A(f"v_and_b32 v{t}, 0xfff, v{t}"); A("s_nop 0"); A(f"v_readfirstlane_b32 s96, v{t}")
    def g_issue(off,b,vad,srdn,only28=False):
        SC=(PF or "sc1") if not only28 else "sc1"
        A(f"buffer_load_dwordx4 v[{b}:{b+3}], v{vad}, s[{srdn}:{srdn+3}], 0 offen offset:{off} {SC}")
        if only28: A("s_mov_b64 exec, s[62:63]")
        A(f"buffer_load_dwordx4 v[{b+4}:{b+7}], v{vad}, s[{srdn}:{srdn+3}], s47 offen offset:{off} {SC}")
        if only28: A("s_mov_b64 exec, -1")
    def g_check(b,t,vtag,younger):
        A(f"s_waitcnt vmcnt({younger+1})")
        A(f"v_xor_b32 v{t}, v{b}, v{vtag}")
        for r in range(1,4): A(f"v_bitop3_b32 v{t}, v{b+r}, v{vtag}, v{t} bitop3:0xbe")
        A(f"s_waitcnt vmcnt({younger})")
        for r in range(4,8): A(f"v_bitop3_b32 v{t}, v{b+r}, v{vtag}, v{t} bitop3:0xbe")
        A(f"v_and_b32 v{t}, 0xfff, v{t}")
        A(f"v_cmp_ne_u32 vcc, 0, v{t}")
    def g_reduce(b,vtag):
        for r in range(8): A(f"v_xor_b32 v{b+r}, v{b+r}, v{vtag}")
        for r in range(4): A(f"v_add_f32 v{b+r}, v{b+r}, v{b+4+r}")
        for pat in ["row_ror:4","row_ror:8"]:
            for r in range(4): A(f"v_add_f32_dpp v{b+r}, v{b+r}, v{b+r} {pat} row_mask:0xf bank_mask:0xf")
        for r in range(1,4): A(f"v_mov_b32_dpp v{b}, v{b+r} quad_perm:[0,1,2,3] row_mask:0xf bank_mask:{1<<r:#x}")
        for sw in ["16","32"]:
            A(f"v_mov_b32 v{b+1}, v{b}"); A("s_nop 1"); A(f"v_permlane{sw}_swap_b32 v{b}, v{b+1}"); A(f"v_add_f32 v{b}, v{b}, v{b+1}")
    def g_addr(vad,vcol,t):
        A(f"v_lshrrev_b32 v{vad}, 2, v0"); A(f"v_and_b32 v{t}, 3, v0"); A(f"v_and_b32 v{vcol}, 3, v{vad}")
        A(f"v_lshlrev_b32 v{vad}, 12, v{vad}"); A(f"v_lshl_add_u32 v{vad}, v{t}, 4, v{vad}")
        A("s_lshl_b32 s47, s32, 6"); A(f"v_add_u32 v{vad}, s47, v{vad}")
        A(f"v_lshl_add_u32 v{vcol}, v{t}, 2, v{vcol}"); A("s_lshl_b32 s47, s32, 5"); A(f"v_lshl_add_u32 v{vcol}, v{vcol}, 1, s47")
    def wave_sum(v,t):
        for pat in ["quad_perm:[1,0,3,2]","quad_perm:[2,3,0,1]","row_half_mirror","row_mirror"]:
            A("s_nop 1"); A(f"v_add_f32_dpp v{v}, v{v}, v{v} {pat} row_mask:0xf bank_mask:0xf")
        for sw in ["16","32"]:
            A(f"v_mov_b32 v{t}, v{v}"); A("s_nop 1"); A(f"v_permlane{sw}_swap_b32 v{v}, v{t}"); A(f"v_add_f32 v{v}, v{v}, v{t}")
    def max16(dst,b):
        A(f"v_max3_f32 v{dst}, v{b}, v{b+1}, v{b+2}")
        for k in range(3,15,2): A(f"v_max3_f32 v{dst}, v{dst}, v{b+k}, v{b+k+1}")
        A(f"v_max_f32 v{dst}, v{dst}, v{b+15}")

    A('.amdgcn_target "amdgcn-amd-amdhsa--gfx950"'); A(".text"); A(f".globl {NAME}"); A(".p2align 8"); A(f".type {NAME},@function"); A(f"{NAME}:")
    A("s_cmp_ge_u32 s2, 256"); A("s_cbranch_scc1 L_end")
    STAMP(0)
    A("s_load_dwordx16 s[4:19], s[0:1], 0")
    A("s_load_dwordx4 s[20:23], s[0:1], 64")
    A("s_load_dwordx2 s[24:25], s[0:1], 80")
    A("v_lshrrev_b32 v1, 6, v0"); A("v_and_b32 v0, 63, v0"); A("v_readfirstlane_b32 s3, v1")
    A("s_and_b32 s26, s2, 7"); A("s_lshr_b32 s27, s2, 3"); A("s_and_b32 s28, s27, 1")
    A("s_bfe_u32 s29, s27, 0x10001"); A("s_lshr_b32 s30, s27, 2")
    A("s_lshl_b32 s29, s29, 3"); A("s_add_u32 s31, s26, s29")
    A("s_lshl_b32 s32, s31, 1"); A("s_add_u32 s32, s32, s28")
    A("s_lshl_b32 s33, s30, 5"); A("s_add_u32 s33, s33, s32")
    C("s28=half s30=batch s31=head s32=2*head+half s33=32*batch+s32 ; v2=lane>>3 v3=lane&7")
    A("v_lshrrev_b32 v2, 3, v0"); A("v_and_b32 v3, 7, v0")
    A(f"s_mov_b32 s34, {f2u(CEXP):#x}")
    A("s_mov_b32 s60, 0x00ff00ff"); A("s_mov_b32 s61, 0x00ff00ff"); A("s_mov_b32 s97, 0xfffff000")
    if wrot==1: A("s_and_b32 s99, s30, 3")
    if wrot==2: A("s_lshr_b32 s99, s30, 1")
    if wrot==3: A("s_lshl_b32 s99, s28, 1"); A("s_add_u32 s99, s99, s30"); A("s_and_b32 s99, s99, 3")
    A("s_cmp_eq_u32 s3, 0"); A("s_cbranch_scc1 L_stream")
    A("s_cmp_ge_u32 s3, 5"); A("s_cbranch_scc1 L_buf")
    A("s_branch L_help")

    RING=256-4*R
    vK=4; vV=5; vSW=6; vSR=7; vMX=8; vR=9; vR2=10; vA=[11,12]; vB=[13,14]; vQ=16
    def slot(i): return RING+4*(i%R)
    def k_consume(c, dsoff):
        p=c%8; m=p%4; acc=vA if p<4 else vB; r=slot(c)
        for k in range(4):
            src2 = "0" if (m==0 and k<2) else f"v{acc[k%2]}"
            A(f"v_dot2_f32_bf16 v{acc[k%2]}, v{r+k}, v{vQ+4*m+k}, {src2}")
        prev = dsoff is not None
        if p==0 and prev: A(f"v_add_f32 v{vB[0]}, v{vB[0]}, v{vB[1]}")
        if p==1 and prev: A(f"v_add_f32_dpp v{vR}, v{vB[0]}, v{vB[0]} row_half_mirror row_mask:0xf bank_mask:0xa")
        if p==2 and prev: A(f"v_add_f32_dpp v{vR}, v{vR}, v{vR} quad_perm:[1,0,3,2] row_mask:0xf bank_mask:0xf")
        if p==3 and prev: A(f"v_add_f32_dpp v{vR}, v{vR}, v{vR} quad_perm:[2,3,0,1] row_mask:0xf bank_mask:0xf")
        if p==4:
            if prev: A(f"v_cvt_pk_bf16_f32 v{vR2}, 0, v{vR}")
            A(f"v_add_f32 v{vA[0]}, v{vA[0]}, v{vA[1]}")
        if p==5:
            if prev: A(f"v_max_f32 v{vMX}, v{vMX}, v{vR2}"); A(f"ds_write_b32 v{vSW}, v{vR2} offset:{dsoff}")
            A(f"v_add_f32_dpp v{vR}, v{vA[0]}, v{vA[0]} row_half_mirror row_mask:0xf bank_mask:0x5")
    def k_flush(dsoff):
        A("s_nop 2"); A(f"v_add_f32 v{vB[0]}, v{vB[0]}, v{vB[1]}"); A("s_nop 1")
        A(f"v_add_f32_dpp v{vR}, v{vB[0]}, v{vB[0]} row_half_mirror row_mask:0xf bank_mask:0xa"); A("s_nop 1")
        A(f"v_add_f32_dpp v{vR}, v{vR}, v{vR} quad_perm:[1,0,3,2] row_mask:0xf bank_mask:0xf"); A("s_nop 1")
        A(f"v_add_f32_dpp v{vR}, v{vR}, v{vR} quad_perm:[2,3,0,1] row_mask:0xf bank_mask:0xf")
        A(f"v_cvt_pk_bf16_f32 v{vR2}, 0, v{vR}")
        A(f"v_max_f32 v{vMX}, v{vMX}, v{vR2}"); A(f"ds_write_b32 v{vSW}, v{vR2} offset:{dsoff}")
    def mx_publish(w, tmp):
        A("s_nop 1")
        A(f"v_max_f32_dpp v{vMX}, v{vMX}, v{vMX} row_ror:4 row_mask:0xf bank_mask:0xf"); A("s_nop 1")
        A(f"v_max_f32_dpp v{vMX}, v{vMX}, v{vMX} row_ror:8 row_mask:0xf bank_mask:0xf")
        A(f"v_lshrrev_b32 v{tmp}, 4, v0"); A(f"v_lshlrev_b32 v{tmp}, 2, v{tmp}")
        if isinstance(w,int): A(f"ds_write_b32 v{tmp}, v{vMX} offset:{L_MX+16*w}")
        else: A(f"v_add_u32 v{tmp}, {w}, v{tmp}"); A(f"ds_write_b32 v{tmp}, v{vMX} offset:{L_MX}")
    def k_setup():
        A(f"v_lshlrev_b32 v{vK}, 9, v2"); A(f"v_lshl_add_u32 v{vK}, v3, 4, v{vK}")
        A(f"v_mul_u32_u24 v{vSW}, {S_STR}, v2"); A(f"v_lshrrev_b32 v{vSR}, 2, v3"); A(f"v_lshl_add_u32 v{vSW}, v{vSR}, 2, v{vSW}")
        A(f"v_mov_b32 v{vMX}, 0xff800000")
        A("s_lshl_b32 s35, s33, 20")
    def q_read():
        A(f"v_lshlrev_b32 v{vR}, 4, v3")
        for m in range(4): A(f"ds_read_b128 v[{vQ+4*m}:{vQ+4*m+3}], v{vR} offset:{L_Q+128*m}")
        A("s_waitcnt lgkmcnt(0)")
    def bar0(first):
        n=newl()
        A(f"s_cmp_eq_u32 s28, {1 if first else 0}"); A(f"s_cbranch_scc1 L_b0_{n}"); A("s_barrier"); A(f"L_b0_{n}:")
    NP0=R//8; NB=3
    NKS=1024-NB*R
    NTOT=NKS+1024
    NT=NT or N

    A("L_stream:")
    A("s_setprio 3")
    k_setup()
    A(f"v_mov_b32 v{vV}, v{vK}")
    vVq=[60,61,62,63]
    if wrot:
        C("logical quarter g of d is physical quarter (g + s99) & 3")
        for q in range(4):
            A(f"s_add_u32 s47, s99, {q}"); A("s_and_b32 s47, s47, 3"); A("s_lshl_b32 s47, s47, 7"); A(f"v_add_u32 v{vVq[q]}, s47, v{vK}")
    vZ=36; vPC=37; vPP=38
    A(f"v_mov_b32 v{vZ}, 0"); A(f"ds_write_b32 v{vZ}, v{vZ} offset:{L_PRG}")
    A("s_waitcnt lgkmcnt(0)")
    srd(36,6,7,"s35",1<<20); srd(40,8,9,"s35",1<<20)
    A("s_mov_b32 s44, 0"); A("s_mov_b32 s45, 0"); A("s_mov_b32 s50, 2")
    U1=1024-4*TS
    def vmap(u):
        if u<U1: return u//4, u%4
        v=u-U1
        return 256-TS+v%TS, v//TS
    def vgrp(u): return (u//4, u%4, 4) if u<U1 else (U1//4+(u-U1), 0, 1)
    def issue(i):
        r=slot(i)
        if i<NKS:
            A(f"buffer_load_dwordx4 v[{r}:{r+3}], v{vK}, s[36:39], s44 offen offset:{128*(i%4)} {SF}")
            if i%4==3: A(f"s_add_u32 s44, s44, {4096+NB*8192 if (i<R and i%8==7) else 4096}")
        elif i<NTOT:
            u=i-NKS; tile,q=vmap(u)
            if wrot: A(f"buffer_load_dwordx4 v[{r}:{r+3}], v{vVq[q]}, s[40:43], s45 offen {SF}")
            else: A(f"buffer_load_dwordx4 v[{r}:{r+3}], v{vV}, s[40:43], s45 offen offset:{128*q} {SF}")
            if u+1<1024:
                d=vmap(u+1)[0]-tile
                if d>0: A(f"s_add_u32 s45, s45, {4096*d}")
                if d<0: A(f"s_sub_u32 s45, s45, {-4096*d}")
    DK=R-1
    bar0(True)
    for i in range(DK):
        if i>=N0: A(f"s_waitcnt vmcnt({N0-1})")
        issue(i)
        if st0 and i==0: STAMP(1)
        if i==N0-1:
            A("s_lshl_b32 s47, s30, 17"); srd(52,24,25,"s47",131072)
            A("s_mul_i32 s47, s30, 896"); srd(92,20,21,"s47",896)
    bar0(False)
    if not st0: STAMP(1)
    A("s_barrier")
    STAMP(2)
    q_read()
    cur=[None]
    def pair_T(pi): return 2*((NB+1)*pi) if pi<NP0 else 2*((NB+1)*NP0+(pi-NP0))
    def kstep(c, dsbase):
        I=c+DK
        A(f"s_waitcnt vmcnt({min((cur[0] or N)-1,I-c-1)})")
        issue(I)
        pi=c//8
        k_consume(c, None if pi==0 else L_S+4*pair_T(pi-1)-dsbase)
    for c in range(0,2*R): kstep(c,0)
    nK=(NKS-DK-2*R)//R
    A(f"s_mov_b32 s46, {nK}")
    def loop_variants(tag, body, post, zr, cr, pr, lv):
        for v in (1,0,2):
            A(f"L_{tag}{v}:")
            rd=f"ds_read_b32 v{cr}, v{zr} offset:{L_CTL}"
            if not late: A(rd)
            m0=len(L)
            cur[0]=lv[v]; body(); cur[0]=None
            if late:
                w=[i for i in range(m0,len(L)) if L[i].startswith("s_waitcnt vmcnt")]
                assert len(w)==R
                L.insert(w[R-3],rd)
                if MS:
                    o=[x for x in range(len(lv)) if x!=v]
                    sw=["s_waitcnt lgkmcnt(0)", f"v_readfirstlane_b32 s48, v{cr}"]
                    for x in o: sw+=[f"s_cmp_eq_u32 s48, {x}", f"s_cbranch_scc1 L_{tag}m{x}"]
                    sw+=[f"L_{tag}m{v}:"]
                    L[w[MS]:w[MS]]=sw
                    L.insert(w[MS-3],rd)
            post()
            A("s_add_u32 s50, s50, 1"); A(f"v_mov_b32 v{pr}, s50")
            A("s_waitcnt lgkmcnt(0)")
            A(f"v_readfirstlane_b32 s48, v{cr}")
            A(f"ds_write_b32 v{zr}, v{pr} offset:{L_PRG}")
            A("s_sub_u32 s46, s46, 1"); A("s_cmp_eq_u32 s46, 0"); A(f"s_cbranch_scc1 L_{tag}x")
            o=[w for w in (0,1,2) if w!=v]
            A(f"s_cmp_eq_u32 s48, {v}"); A(f"s_cbranch_scc1 L_{tag}{v}")
            A(f"s_cmp_eq_u32 s48, {o[0]}"); A(f"s_cbranch_scc1 L_{tag}{o[0]}")
            A(f"s_branch L_{tag}{o[1]}")
        A(f"L_{tag}x:")
    def kbody():
        for c in range(2*R,3*R): kstep(c,0)
    loop_variants("kloop", kbody, lambda: A(f"v_add_u32 v{vSW}, {R}, v{vSW}"), vZ, vPC, vPP, ctlK or ctl)
    dsb=nK*R
    for c in range((2+nK)*R,NKS): kstep(c,dsb)
    k_flush(L_S+4*pair_T(NKS//8-1)-dsb)
    mx_publish(0, vR)
    vM=[12,13,14,15]; vNM=11; vT=9; vP=10; vACC=16; vBB=[32,36]; vSS=[40,44,48]; vTM=52
    masks(vM[0], vTM, vTM+1)
    A(f"v_mul_u32_u24 v{vSR}, {S_STR}, v2")
    A(f"v_mov_b32 v{vT}, 0")
    A("s_waitcnt lgkmcnt(0)")
    STAMP(3)
    A("s_barrier")
    for w in range(4): A(f"ds_read_b128 v[{16+4*w}:{16+4*w+3}], v{vT} offset:{L_MX+16*w}")
    A(f"ds_read_b128 v[{vSS[0]}:{vSS[0]+3}], v{vSR} offset:{L_S}")
    inext=[NKS+DK]
    A(f"s_waitcnt vmcnt({N-1})")
    issue(inext[0]); inext[0]+=1
    A("s_waitcnt lgkmcnt(0)")
    max16(vNM,16)
    A(f"v_mul_f32 v{vNM}, s34, v{vNM}"); A(f"v_sub_f32 v{vNM}, 0, v{vNM}")
    for r in range(16): A(f"v_mov_b32 v{vACC+r}, 0")
    def bfree(tile):
        return slot(NTOT+(tile-(256-TS))+BO)
    def bprep(tile, part, gi=None):
        s=vSS[(tile//4)%3]+tile%4; b=vBB[(tile if gi is None else gi)%2]
        if tile>=256-TS: b=bfree(tile)
        if part==0: A(f"v_fma_f32 v{vT}, v{s}, s34, v{vNM}")
        if part==1: A(f"v_exp_f32 v{vT}, v{vT}")
        if part==2: A(f"v_cvt_pk_bf16_f32 v{vP}, v{vT}, v{vT}"); A(f"v_and_b32 v{b}, v{vP}, v{vM[0]}")
        if part==3:
            for r in range(1,4): A(f"v_and_b32 v{b+r}, v{vP}, v{vM[r]}")
    bprep(0,0); bprep(0,1); A("s_nop 0"); bprep(0,2); bprep(0,3); A("s_nop 1")
    def o_write(q):
        a=vACC+4*q
        A(f"v_permlane32_swap_b32 v{a}, v{a+1}"); A(f"v_permlane32_swap_b32 v{a+2}, v{a+3}")
        A("s_nop 1")
        A(f"v_add_f32_dpp v{vTM}, v{a+1}, v{a} row_ror:8 row_mask:0xf bank_mask:0xf")
        A(f"v_add_f32_dpp v{vTM+1}, v{a+3}, v{a+2} row_ror:8 row_mask:0xf bank_mask:0xf")
        A(f"v_cvt_pk_bf16_f32 v{vTM}, v{vTM}, v{vTM+1}")
        A("s_mov_b64 exec, s[60:61]")
        A(f"ds_write_b32 v8, v{vTM} offset:{L_O+128*q}")
        A("s_mov_b64 exec, -1")
    def vstep(u, srbase, do_issue=True):
        c=NKS+u; I=inext[0]; mark=len(L)
        if do_issue and I<NTOT:
            A(f"s_waitcnt vmcnt({min((cur[0] or N)-1,I-c-1)})")
            assert I-R < c
            issue(I); inext[0]+=1
        else:
            k=I-c-1
            if k<max(N,NT): A(f"s_waitcnt vmcnt({k})")
        tile,q=vmap(u); gi,pos,n=vgrp(u); r=slot(c); b=vBB[gi%2]
        if tile>=256-TS:
            b=bfree(tile)
        if q==0 and tile%4==0 and tile+4<256:
            nb=vSS[(tile//4+1)%3]
            A(f"ds_read_b128 v[{nb}:{nb+3}], v{vSR} offset:{L_S+4*(tile+4)-srbase}")
        if q==0 and tile%4==3 and tile+1<256: A("s_waitcnt lgkmcnt(0)")
        a=vACC+4*q
        if pos==0 and len(L)-mark<2: A(f"s_nop {1-(len(L)-mark)}")
        A(f"v_mfma_f32_16x16x32_bf16 v[{a}:{a+3}], v[{r}:{r+3}], v[{b}:{b+3}], v[{a}:{a+3}]")
        un=u-pos+n
        if un<1024:
            if n==4: bprep(vmap(un)[0],pos,gi+1)
            elif vmap(un)[1]==0:
                for part in range(4):
                    bprep(vmap(un)[0],part,gi+1)
                    if part==1: A("s_nop 0")
        for qq in range(3):
            if u==U1+(qq+1)*TS-1+SD: o_write(qq)
            if u==U1+(qq+1)*TS+SD: A("s_waitcnt lgkmcnt(0)"); A("s_barrier")
    u=0; DV=max(max(ctl),NT)
    while True:
        D=inext[0]-(NKS+u)
        if D<=DV and u%R==0: break
        if D>DV:
            vstep(u,0,False); u+=1
            D=inext[0]-(NKS+u)
            if D>DV or u%R!=0: vstep(u,0,True); u+=1
        else:
            vstep(u,0,True); u+=1
    assert inext[0]-(NKS+u)==DV and (R//16)%3==0 and R%16==0
    u0=u; PKEND=2+nK; PV0=(inext[0]+R//2)//R-1
    nV=(1024-DV-u0)//R
    while u0+nV*R+16>1024: nV-=1
    PVEND=PV0+nV
    assert u0+DV+nV*R<=U1
    A(f"s_mov_b32 s46, {nV}"); A("v_mov_b32 v6, 0"); A(f"s_mov_b32 s50, {PV0}")
    i0=inext[0]
    def vbody():
        inext[0]=i0
        for uu in range(u0,u0+R): vstep(uu,0,True)
    loop_variants("vloop", vbody, lambda: A(f"v_add_u32 v{vSR}, {R}, v{vSR}"), 6, 4, 8, ctl)
    inext[0]=i0+nV*R
    cur[0]=NT
    C("addresses for the tail: v4 gather address, v6 output offset, v8 O' address")
    g_addr(4,6,8)
    A("v_bfe_u32 v8, v0, 4, 1"); A("v_lshlrev_b32 v8, 6, v8"); A("v_lshrrev_b32 v52, 5, v0"); A("v_lshl_add_u32 v8, v52, 5, v8"); A("v_lshl_add_u32 v8, v3, 2, v8")
    A("s_mov_b32 s47, 65536"); A("s_mov_b32 s49, 400000")
    for uu in range(u0+nV*R,1024): vstep(uu,nV*R,True)
    cur[0]=None
    STAMP(4)
    A("v_and_b32 v7, 15, v0"); A("v_lshlrev_b32 v7, 3, v7"); A("v_mov_b32 v5, 0")
    A("s_nop 4")
    o_write(3)
    A("s_waitcnt lgkmcnt(0)")
    A("s_barrier")
    STAMP(5)
    A("s_cmp_ge_u32 s32, 28"); A("s_cbranch_scc1 L_sdone")
    C("final: 16 output columns = sum over the 32 workgroups of this batch")
    A(f"ds_read_b32 v12, v5 offset:{L_TAG}")
    A(f"ds_read_b64 v[14:15], v7 offset:{L_XB}")
    if pb: A("s_barrier")
    if mpoll:
        C("only the lanes whose words do not carry the tag yet are loaded again")
        g_issue(0,16,4,52)
        A("s_waitcnt lgkmcnt(0)")
        A("L_fp:")
        for k,(b0,dst) in enumerate(((16,"s[62:63]"),(20,"vcc"))):
            A(f"s_waitcnt vmcnt({1-k if False else 0})") if k==0 else None
            A(f"v_xor_b32 v13, v{b0}, v12")
            for r in range(1,4): A(f"v_bitop3_b32 v13, v{b0+r}, v12, v13 bitop3:0xbe")
            A("v_and_b32 v13, 0xfff, v13"); A(f"v_cmp_ne_u32 {dst}, 0, v13")
        A("s_sub_u32 s49, s49, 1"); A("s_cbranch_scc1 L_fa")
        A("s_or_b64 s[64:65], s[62:63], vcc"); A("s_cbranch_scc0 L_fa")
        if psl: A(f"s_sleep {psl}")
        A("s_mov_b64 exec, s[62:63]"); A("s_cbranch_execz L_fq")
        A(f"buffer_load_dwordx4 v[16:19], v4, s[52:55], 0 offen {SC}")
        A("L_fq:")
        A("s_mov_b64 exec, vcc"); A("s_cbranch_execz L_fr")
        A(f"buffer_load_dwordx4 v[20:23], v4, s[52:55], s47 offen {SC}")
        A("L_fr:")
        A("s_mov_b64 exec, -1")
        A("s_branch L_fp")
        dpoll=0
    else:
        g_issue(0,16,4,52)
        if dpoll: A(f"s_sleep {dps}"); g_issue(0,32,4,52)
        A("s_waitcnt lgkmcnt(0)")
        A("L_fp:")
        g_check(16,13,12,2 if dpoll else 0)
        A("s_sub_u32 s49, s49, 1"); A("s_cbranch_scc1 L_fa"); A("s_cbranch_vccz L_fa")
        g_issue(0,16,4,52)
        if dpoll:
            g_check(32,13,12,2)
            A("s_cbranch_vccz L_fb")
            g_issue(0,32,4,52)
        A("s_branch L_fp")
    def final(b):
        g_reduce(b,12)
        A(f"v_cvt_pk_bf16_f32 v{b}, 0, v{b}"); A(f"v_add_f32 v{b}, v14, v{b}"); A(f"v_cvt_pk_bf16_f32 v{b}, 0, v{b}"); A(f"v_add_f32 v{b}, v{b}, v15")
        A(f"v_cvt_pk_bf16_f32 v{b}, v{b}, v{b}")
        A("s_mov_b64 exec, 0xffff")
        A(f"buffer_store_short v{b}, v6, s[92:95], 0 offen {OF}")
    if dpoll:
        A("L_fb:"); final(32); A("s_branch L_sdone")
    A("L_fa:"); final(16)
    A("L_sdone:")
    STAMP(6)
    stamp_out(48)
    A("s_endpgm")

    hM=20; hACC=24; hAD=28; hLD=29
    WO=128
    def t_addr(vw, vr, natural):
        A("s_sub_u32 s47, s3, 1"); A(f"s_mul_i32 s47, s47, {T_SZ}"); A(f"s_add_u32 s47, s47, {L_T}")
        A(f"v_lshl_add_u32 v{vw}, v0, 4, s47")
        A(f"v_bfe_u32 v{vr}, v0, 2, 2")
        if natural:
            A(f"v_lshlrev_b32 v{vr}, 7, v{vr}"); A(f"v_lshrrev_b32 v31, 4, v0"); A(f"v_mul_u32_u24 v31, {T_STR}, v31")
        else:
            A(f"v_lshrrev_b32 v31, 1, v{vr}"); A(f"v_and_b32 v{vr}, 1, v{vr}"); A(f"v_lshlrev_b32 v{vr}, 1, v{vr}"); A(f"v_lshlrev_b32 v31, 7, v31")
            A("v_lshrrev_b32 v30, 5, v0"); A(f"v_add_u32 v{vr}, v{vr}, v30"); A(f"v_mul_u32_u24 v{vr}, {T_STR}, v{vr}")
            A("v_bfe_u32 v30, v0, 4, 1"); A("v_lshl_add_u32 v31, v30, 9, v31")
        A(f"v_add3_u32 v{vr}, v{vr}, v31, s47"); A("v_and_b32 v31, 3, v0"); A(f"v_lshl_add_u32 v{vr}, v31, 3, v{vr}")
    def wo_issue(nw, gs=(0,1,2,3)):
        C("wo rows of this head, column block c = wave-1; then transpose into MFMA B fragments")
        A("s_mul_i32 s47, s31, 229376"); A("s_sub_u32 s48, s3, 1"); A("s_lshl_b32 s48, s48, 7"); A("s_add_u32 s47, s47, s48")
        A(f"s_sub_u32 s48, {4096*896}, s47")
        srd(52,12,13,"s47","s48")
        A(f"v_mul_u32_u24 v{hAD}, 896, v2"); A(f"v_lshl_add_u32 v{hAD}, v3, 4, v{hAD}")
        n=0
        for g in gs:
            for hf in range(2):
                if not wrot: A(f"s_mov_b32 s47, {7168*(8*g+4*hf)}")
                elif hf==0: A(f"s_add_u32 s47, s99, {g}"); A("s_and_b32 s47, s47, 3"); A(f"s_mul_i32 s47, s47, {7168*8}")
                else: A("s_add_u32 s47, s47, 7168")
                for r in range(4):
                    if skipwo: continue
                    if n>=nw: A(f"s_waitcnt vmcnt({nw-1})")
                    rr=WO+32*g+16*hf+4*r
                    A(f"buffer_load_dwordx4 v[{rr}:{rr+3}], v{hAD}, s[52:55], s47 offen {HF}")
                    if r<3: A("s_add_u32 s47, s47, 7168")
                    n+=1
        t_addr(hAD,hLD,False)
        A("s_waitcnt vmcnt(0)")
        for g in gs:
            for k in range(8): A(f"ds_write_b128 v{hAD}, v[{WO+32*g+4*k}:{WO+32*g+4*k+3}] offset:{T_STR*k}")
            A("s_waitcnt lgkmcnt(0)")
            for kp in range(2):
                for nu in range(4):
                    for hf in range(2):
                        rr=WO+32*g+16*kp+4*nu+2*hf
                        A(f"ds_read_b64_tr_b16 v[{rr}:{rr+1}], v{hLD} offset:{4*T_STR*kp+256*hf+32*nu}")
            A("s_waitcnt lgkmcnt(0)")
    def combine(acc, dst):
        A(f"v_permlane32_swap_b32 v{acc}, v{acc+1}"); A(f"v_permlane32_swap_b32 v{acc+2}, v{acc+3}")
        A("s_nop 1")
        A(f"v_add_f32_dpp v{dst}, v{acc+1}, v{acc} row_ror:8 row_mask:0xf bank_mask:0xf")
        A(f"v_add_f32_dpp v{dst+1}, v{acc+3}, v{acc+2} row_ror:8 row_mask:0xf bank_mask:0xf")
    def rowsel(dst, srcs):
        for k in range(1,4): A(f"v_mov_b32_dpp v{dst}, v{srcs[k]} quad_perm:[0,1,2,3] row_mask:{1<<k:#x} bank_mask:0xf")

    A("L_buf:")
    A("s_setprio 3")
    A("v_mov_b32 v32, 0"); A("v_mov_b32 v33, 1"); A(f"ds_write_b32 v32, v33 offset:{L_CTL}")
    k_setup()
    A("s_waitcnt lgkmcnt(0)")
    srd(84,6,7,"s35",1<<20)
    A("s_sub_u32 s47, s3, 4"); A("s_lshl_b32 s44, s47, 13")
    A("s_lshl_b32 s47, s47, 3"); A(f"v_add_u32 v{vSW}, s47, v{vSW}")
    bar0(True)
    for i in range(R):
        if i==N0:
            srd_slots()
            A("s_cmp_lg_u32 s3, 5"); A("s_cbranch_scc1 L_notag"); A("s_cmp_lg_u32 s2, 0"); A("s_cbranch_scc1 L_notag")
            C("workgroup 0, wave 5: this launch's tag differs from the one left in d_ws; announced in d_debug[0]")
            srd(92,24,25,"0x100000",256)
            A("s_memrealtime s[62:63]")
            A(f"buffer_load_dword v32, off, s[92:95], 0 {SC}"); A("s_waitcnt vmcnt(0) lgkmcnt(0)")
            A("s_and_b32 s62, s62, 0x7ff"); A("s_add_u32 s62, s62, 1")
            A("v_add_u32 v32, s62, v32"); A("v_and_b32 v32, 0xfff, v32"); A("v_or_b32 v33, 0x1000, v32")
            A("s_mov_b64 exec, 1")
            A(f"buffer_store_dword v33, off, s[56:59], 0 {SC}")
            A(f"buffer_store_dword v32, off, s[92:95], 0 {SC}")
            A("s_mov_b64 exec, -1")
            A("L_notag:")
        if i>=N0: A(f"s_waitcnt vmcnt({N0-1})")
        r=slot(i)
        A(f"buffer_load_dwordx4 v[{r}:{r+3}], v{vK}, s[84:87], s44 offen offset:{128*(i%4)} {SF}")
        if st0 and i==0: STAMP(1)
        if i%4==3: A(f"s_add_u32 s44, s44, {4096 if i%8==3 else 4096+NB*8192}")
    bar0(False)
    if not st0: STAMP(1)
    A("s_barrier")
    STAMP(2)
    A("s_setprio 0")
    q_read()
    for c in range(R):
        A(f"s_waitcnt vmcnt({R-1-c})")
        pi=c//8
        k_consume(c, None if pi==0 else L_S+8*(NB+1)*(pi-1))
    k_flush(L_S+8*(NB+1)*(NP0-1))
    A("s_sub_u32 s47, s3, 4"); A("s_lshl_b32 s47, s47, 4")
    mx_publish("s47", vR)
    A("s_cmp_eq_u32 s3, 7"); A("s_cbranch_scc1 L_mon")
    A("L_wo:")
    wo_issue(NW,(0,1) if wsplit else (0,1,2,3))
    STAMP(3)
    A("s_barrier")
    A("s_cmp_eq_u32 s3, 5"); A("s_cbranch_scc1 L_w5")
    A("s_cmp_lg_u32 s3, 6"); A("s_cbranch_scc1 L_wo2")
    C("wave 6: softmax denominator, exchange (m,l) with the other half, scale")
    A("v_mov_b32 v4, 0")
    for w in range(4): A(f"ds_read_b128 v[{64+4*w}:{64+4*w+3}], v4 offset:{L_MX+16*w}")
    A(f"v_mul_u32_u24 v5, {S_STR}, v2"); A("v_lshl_add_u32 v5, v3, 7, v5")
    for n in range(8): A(f"ds_read_b128 v[{32+4*n}:{32+4*n+3}], v5 offset:{L_S+16*n}")
    A("s_waitcnt lgkmcnt(8)")
    max16(6,64)
    A("v_mul_f32 v7, s34, v6"); A("v_sub_f32 v7, 0, v7")
    A("s_waitcnt lgkmcnt(0)")
    for k in range(32): A(f"v_fma_f32 v{32+k}, v{32+k}, s34, v7")
    for k in range(32): A(f"v_exp_f32 v{32+k}, v{32+k}")
    for st in (16,8,4,2,1):
        for k in range(st): A(f"v_add_f32 v{32+k}, v{32+k}, v{32+k+st}")
    wave_sum(32,33)
    if ltag: A(f"ds_read_b32 v16, v4 offset:{L_TAG}"); A("s_waitcnt lgkmcnt(0)")
    else: tag_wait(16)
    C("v6=M v32=l ; four words: 16-bit halves of M and l, each with a 16-bit tag")
    A("v_or_b32 v16, 0xa000, v16"); A("s_mov_b32 s47, 0xffff0000")
    A("v_and_or_b32 v8, v6, s47, v16"); A("v_lshl_or_b32 v9, v6, 16, v16"); A("v_and_or_b32 v10, v32, s47, v16"); A("v_lshl_or_b32 v11, v32, 16, v16")
    A("s_mov_b64 exec, 1")
    A(f"buffer_store_dwordx4 v[8:11], off, s[36:39], 0 offset:3840 {SC}")
    A("s_mov_b64 exec, -1")
    if mlate: A("s_branch L_wo2"); A("L_w6b:"); A("s_mov_b32 s47, 0xffff0000")
    A("s_xor_b32 s48, s32, 1"); A("s_lshl_b32 s48, s48, 12"); A("s_mov_b32 s49, 400000")
    A("L_mlp:")
    A(f"buffer_load_dwordx4 v[12:15], off, s[40:43], s48 offset:3840 {SC}"); A("s_waitcnt vmcnt(0)")
    A("v_xor_b32 v17, v12, v16")
    for r in (13,14,15): A(f"v_bitop3_b32 v17, v{r}, v16, v17 bitop3:0xbe")
    A("v_and_b32 v17, 0xffff, v17")
    A("v_cmp_ne_u32 vcc, 0, v17"); A("s_sub_u32 s49, s49, 1"); A("s_cbranch_scc1 L_mlx")
    A("s_cbranch_vccz L_mlx"); A("s_sleep 8"); A("s_branch L_mlp")
    A("L_mlx:")
    A("v_lshrrev_b32 v13, 16, v13"); A("v_lshrrev_b32 v15, 16, v15"); A("v_and_or_b32 v10, v12, s47, v13"); A("v_and_or_b32 v11, v14, s47, v15")
    A("v_max_f32 v12, v6, v10")
    A("v_sub_f32 v13, v6, v12"); A("v_sub_f32 v14, v10, v12")
    A("v_mul_f32 v13, s34, v13"); A("v_mul_f32 v14, s34, v14")
    A("v_exp_f32 v13, v13"); A("v_exp_f32 v14, v14"); A("s_nop 0")
    A("v_mul_f32 v15, v13, v32"); A("v_fma_f32 v15, v14, v11, v15")
    A("v_rcp_f32 v15, v15"); A("s_nop 0"); A("v_mul_f32 v15, v15, v13")
    A(f"ds_write_b32 v4, v15 offset:{L_SC}")
    A("s_branch L_tail" if mlate else "s_branch L_wo2")

    A("L_w5:")
    C("wave 5: tag for the other waves; x and the gathered FFN result for the final step")
    if ltag:
        A("s_cmp_ge_u32 s32, 28"); A("s_cbranch_scc1 L_wo2")
        A("v_mov_b32 v4, 0"); A(f"ds_read_b32 v78, v4 offset:{L_TAG}"); A("s_waitcnt lgkmcnt(0)")
    else:
        tag_wait(78)
        A("v_mov_b32 v4, 0"); A(f"ds_write_b32 v4, v78 offset:{L_TAG}")
        A("s_cmp_ge_u32 s32, 28"); A("s_cbranch_scc1 L_wo2")
    A("s_mul_i32 s47, s30, 896"); srd(88,4,5,"s47",896)
    g_addr(64,65,4)
    A("buffer_load_ushort v66, v65, s[88:91], 0 offen")
    A("s_mov_b32 s49, 400000"); A("s_mov_b32 s47, 65536")
    for r in range(8): A(f"v_mov_b32 v{68+r}, v78")
    A("L_bp:")
    if skipffn!=1:
        A("s_mov_b64 exec, 0xffff")
        A(f"buffer_load_dwordx4 v[68:71], v64, s[40:43], 0 offen offset:2048 {SC}")
        A("s_mov_b64 exec, -1"); A("s_waitcnt vmcnt(0)")
        g_check(68,76,78,0)
        A("s_sub_u32 s49, s49, 1"); A("s_cbranch_scc1 L_bx"); A("s_cbranch_vccz L_bx"); A("s_sleep 16"); A("s_branch L_bp")
    A("L_bx:")
    A("s_waitcnt vmcnt(0)")
    g_reduce(68,78)
    A("v_cvt_pk_bf16_f32 v67, 0, v68"); A("v_lshlrev_b32 v66, 16, v66")
    A("v_and_b32 v4, 15, v0"); A("v_lshlrev_b32 v4, 3, v4")
    A(f"ds_write_b64 v4, v[66:67] offset:{L_XB}")
    A("L_wo2:")
    if wsplit: wo_issue(NW,(2,3))
    if mlate: A("s_cmp_eq_u32 s3, 6"); A("s_cbranch_scc1 L_w6b")
    A("s_branch L_tail")

    REFS=[0,6,10,12]
    A("L_mon:")
    C("wave 7: compare this workgroup's progress with four reference workgroups and pick the streamer's depth")
    wo_issue(NW7)
    srd(40,24,25,None,1<<20)
    for k in range(4):
        A(f"s_add_u32 s47, s30, {(2*k+(k>>1))%8 if xb else 0}"); A("s_and_b32 s47, s47, 7"); A("s_lshl_b32 s47, s47, 17"); A(f"s_add_u32 s{12+k}, s47, {4096*REFS[k]+3968}")
    A(f"s_mov_b32 s51, {(~sum(1<<r for r in REFS))&0xffffffff:#x}"); A("s_lshr_b32 s51, s51, s32"); A("s_and_b32 s51, s51, 1")
    tag_wait(5)
    if ltag: A("v_mov_b32 v4, 0"); A(f"ds_write_b32 v4, v5 offset:{L_TAG}")
    A("v_lshlrev_b32 v5, 16, v5"); A("s_lshl_b32 s96, s96, 16"); A("v_mov_b32 v4, 0"); A("s_mov_b32 s50, 0"); A("s_mov_b32 s100, 0")
    if stag: A("s_bfe_u32 s16, s32, 0x10002"); A("s_bfe_u32 s17, s32, 0x10003"); A("s_xor_b32 s16, s16, s17")
    for ph,pend in (("k",PKEND),("v",PVEND)):
        A(f"L_mon{ph}:")
        A(f"ds_read_b32 v6, v4 offset:{L_PRG}"); A("s_waitcnt lgkmcnt(0)"); A("v_readfirstlane_b32 s47, v6")
        A(f"s_cmp_ge_u32 s47, {pend}"); A(f"s_cbranch_scc1 L_mon{ph}x")
        A("s_cmp_lg_u32 s47, s50"); A(f"s_cbranch_scc1 L_mon{ph}n")
        A(f"s_sleep {msleep}"); A(f"s_branch L_mon{ph}")
        A(f"L_mon{ph}n:")
        A("s_mov_b32 s50, s47")
        if PS:
            C("every fourth period up to PS, every second one after it")
            A(f"s_cmp_le_u32 s47, {PS}"); A("s_cselect_b32 s17, 3, 1"); A(f"s_cselect_b32 s18, {64-BIAS}, {32-BIAS}"); A(f"s_cselect_b32 s19, {TH4 or TH}, {TH}")
            A("s_and_b32 s48, s47, s17"); A(f"s_cbranch_scc1 L_mon{ph}")
        elif stag: A("s_add_u32 s48, s47, s16"); A(f"s_and_b32 s48, s48, {PD-1}")
        else: A(f"s_and_b32 s48, s47, {PD-1}")
        A("s_or_b32 s48, s48, s51"); A(f"s_cbranch_scc1 L_mon{ph}p")
        A("v_or_b32 v6, v5, v6")
        A("s_mov_b64 exec, 1")
        A(f"buffer_store_dword v6, off, s[36:39], 0 offset:3968 {SC}")
        A("s_mov_b64 exec, -1")
        A(f"L_mon{ph}p:")
        if RD>1 and not pulse and not PS:
            if RV and ph=="v": A(f"s_cmp_ge_u32 s47, {RV}"); A(f"s_cbranch_scc1 L_mon{ph}r")
            A(f"s_and_b32 s48, s47, {RD-1}"); A(f"s_cbranch_scc1 L_mon{ph}")
            if RV and ph=="v": A(f"L_mon{ph}r:")
        if RD>1 and pulse:
            A(f"s_and_b32 s48, s47, {RD-1}"); A(f"s_cbranch_scc0 L_mon{ph}r")
            A("s_abs_i32 s48, s100"); A(f"s_cmp_ge_i32 s48, {pulse}"); A(f"s_cbranch_scc1 L_mon{ph}")
            A("v_mov_b32 v7, 1"); A(f"ds_write_b32 v4, v7 offset:{L_CTL}"); A(f"s_branch L_mon{ph}")
            A(f"L_mon{ph}r:")
        for k in range(4): A(f"s_buffer_load_dword s{4+k}, s[40:43], s{12+k} glc")
        A("s_waitcnt lgkmcnt(0)")
        for k in range(4): A(f"s_sub_u32 s{4+k}, s{4+k}, s96")
        A("s_mov_b32 s48, s4"); A("s_mov_b32 s49, s4")
        for k in range(1,4): A(f"s_add_u32 s48, s48, s{4+k}"); A(f"s_max_u32 s49, s49, s{4+k}")
        A("s_cmp_gt_u32 s49, 63"); A(f"s_cbranch_scc1 L_mon{ph}")
        A("s_lshl_b32 s48, s48, 3")
        A("s_lshl_b32 s49, s47, 5"); A("s_sub_i32 s49, s49, s18" if PS else f"s_add_i32 s49, s49, {BIAS-32}"); A("s_sub_i32 s49, s49, s48")
        if pulse: A("s_mov_b32 s100, s49")
        if PS: A("s_cmp_gt_i32 s49, s19"); A("s_cselect_b32 s48, 0, 1"); A("s_add_i32 s49, s49, s19"); A("s_cmp_lt_i32 s49, 0"); A("s_cselect_b32 s48, 2, s48")
        else: A(f"s_cmp_gt_i32 s49, {TH}"); A("s_cselect_b32 s48, 0, 1"); A(f"s_cmp_lt_i32 s49, {-TH}"); A("s_cselect_b32 s48, 2, s48")
        A("v_mov_b32 v7, s48"); A(f"ds_write_b32 v4, v7 offset:{L_CTL}")
        A(f"s_branch L_mon{ph}")
        A(f"L_mon{ph}x:")
        if ph=="k": A("s_waitcnt lgkmcnt(0)"); STAMP(3); A("s_barrier")

    A("L_tail:")
    A(f"v_lshrrev_b32 v{hLD}, 4, v0"); A(f"v_lshlrev_b32 v{hLD}, 4, v{hLD}"); A("v_mov_b32 v30, 0")
    A(f"v_lshlrev_b32 v{hAD}, 2, v0")
    A("s_sub_u32 s48, s3, 1"); A("s_lshl_b32 s48, s48, 8")
    A("s_waitcnt vmcnt(0) lgkmcnt(0)")
    STAMP(4)
    for q in range(4):
        A("s_barrier")
        if q==3: STAMP(5)
        for ka in range(2): A(f"ds_read_b128 v[{32+8*q+4*ka}:{32+8*q+4*ka+3}], v{hLD} offset:{L_O+128*q+64*ka}")
        if q==0: A(f"ds_read_b64 v[10:11], v30 offset:{L_SC}")
        for ka in range(2):
            A(f"s_waitcnt lgkmcnt({(2 if q==0 else 1)-ka})")
            for nu in range(4):
                a=12+4*nu; w=WO+32*q+16*ka+4*nu; x=32+8*q+4*ka
                A(f"v_mfma_f32_16x16x32_bf16 v[{a}:{a+3}], v[{x}:{x+3}], v[{w}:{w+3}], {'0' if (q==0 and ka==0) else f'v[{a}:{a+3}]'}")
    A("s_nop 5")
    rowsel(12,[12,16,20,24])
    A("v_mul_f32 v12, v10, v12"); A("v_add_u32 v12, 0x800, v12"); A("v_and_or_b32 v12, v12, s97, v11")
    A(f"buffer_store_dword v12, v{hAD}, s[36:39], s48 offen {YF or SC}")
    STAMP(6)
    if pb: A("s_cmp_ge_u32 s32, 28"); A("s_cbranch_scc1 L_tend"); A("s_barrier"); A("L_tend:")
    stamp_out()
    A("s_endpgm")

    A("L_help:")
    D0=32
    def layernorm(xr, dup):
        for k in range(4):
            A(f"v_lshlrev_b32 v{8+2*k}, 16, v{xr+k}"); A(f"v_and_b32 v{9+2*k}, 0xffff0000, v{xr+k}")
        A("v_add_f32 v16, v8, v9"); A("v_add_f32 v17, v10, v11"); A("v_add_f32 v18, v12, v13"); A("v_add_f32 v19, v14, v15")
        A("v_add_f32 v16, v16, v17"); A("v_add_f32 v18, v18, v19"); A("v_add_f32 v16, v16, v18")
        wave_sum(16,17)
        A(f"v_mul_f32 v16, {f2u(1.0/448):#x}, v16")
        A("v_cmp_gt_u32 vcc, 56, v0"); A("v_cvt_pk_bf16_f32 v17, 0, v16"); A("s_nop 0")
        A("v_cndmask_b32 v16, 0, v16, vcc")
        A("v_sub_f32 v4, v8, v16"); A("v_mul_f32 v18, v4, v4")
        for k in range(1,8): A(f"v_sub_f32 v4, v{8+k}, v16"); A("v_fmac_f32 v18, v4, v4")
        wave_sum(18,19)
        A(f"v_mul_f32 v18, {f2u(1.0/448):#x}, v18")
        A("v_cvt_pk_bf16_f32 v18, 0, v18")
        A(f"v_add_f32 v18, {f2u(1e-5):#x}, v18")
        A("v_cvt_pk_bf16_f32 v18, 0, v18")
        A("v_sqrt_f32 v18, v18"); A("s_nop 0")
        A("v_cvt_pk_bf16_f32 v18, 0, v18")
        A("v_rcp_f32 v19, v18")
        for k in range(8):
            A(f"v_sub_f32 v{8+k}, v{8+k}, v17"); A(f"v_cvt_pk_bf16_f32 v{8+k}, 0, v{8+k}")
            A(f"v_mul_f32 v4, v{8+k}, v19"); A(f"v_fma_f32 v6, -v4, v18, v{8+k}")
            if dup: A("v_fma_f32 v4, v6, v19, v4"); A(f"v_cvt_pk_bf16_f32 v{8+k}, v4, v4")
            else: A(f"v_fma_f32 v{8+k}, v6, v19, v4")
        if not dup:
            for k in range(4): A(f"v_cvt_pk_bf16_f32 v{8+k}, v{8+2*k}, v{9+2*k}")
    def wq_load(t):
        A(f"buffer_load_dwordx4 v[{D0+4*t}:{D0+4*t+3}], v{hAD}, s[52:55], s48 offen {QF}")
        A("s_add_u32 s48, s48, 65536")
        if rot and t%4==3 and t<55: A(f"s_cmp_ge_u32 s48, {56*65536}"); A("s_cselect_b32 s48, 0, s48")
    def gemv56(bar_at):
        XX=[4,8]; BB=[12,16]
        A("s_waitcnt lgkmcnt(0)")
        A(f"ds_read_b128 v[4:7], v{hLD}"); A(f"ds_read_b128 v[8:11], v{hLD} offset:16")
        def bp(t):
            if t%4==0: A(f"s_waitcnt lgkmcnt({1 if t//4+1<14 else 0})")
            for r in range(4): A(f"v_and_b32 v{BB[t%2]+r}, v{XX[(t//4)%2]+t%4}, v{hM+r}")
            if t%4==3 and t//4+2<14:
                x=XX[(t//4)%2]; A(f"ds_read_b128 v[{x}:{x+3}], v{hLD} offset:{16*(t//4+2)}")
        bp(0)
        for t in range(56):
            if t+1<56: bp(t+1)
            else: A("s_nop 0")
            if t+QD<56: wq_load(t+QD)
            if t+QD==bar_at: A("s_barrier")
            A(f"s_waitcnt vmcnt({min(QD,55-t)})")
            A(f"v_mfma_f32_16x16x32_bf16 v[{hACC}:{hACC+3}], v[{D0+4*t}:{D0+4*t+3}], v[{BB[t%2]}:{BB[t%2]+3}], {'0' if t==0 else f'v[{hACC}:{hACC+3}]'}")
        A("s_nop 7")
        combine(hACC,12)
    def ln_part(wait):
        masks(hM,12,13)
        A(f"s_waitcnt vmcnt({wait})")
        layernorm(4,True)
        C("X'[e][(t - 4*rot) mod 56]")
        A("s_sub_u32 s47, s3, 1"); A(f"s_mul_i32 s47, s47, {X_SZ}"); A(f"s_add_u32 s47, s47, {L_X}")
        A("s_lshl_b32 s50, s51, 2"); A("v_subrev_u32 v5, s50, v0"); A("v_add_u32 v6, 56, v5"); A("v_min_u32 v5, v5, v6")
        A("v_cmp_lt_u32 vcc, 55, v0"); A("s_nop 1"); A("v_cndmask_b32 v5, v5, v0, vcc")
        A("v_lshl_add_u32 v5, v5, 2, s47")
        for k in range(8): A(f"ds_write_b32 v5, v{8+k} offset:{k*X_STR}")
        A(f"v_mul_u32_u24 v{hLD}, {X_STR}, v2"); A(f"v_add_u32 v{hLD}, s47, v{hLD}")
    C("q column block w-1 over all 448 rows of wq, tile order rotated by 4*s51 tiles")
    A("v_lshlrev_b32 v1, 4, v0")
    A(f"v_lshlrev_b32 v{hAD}, 13, v2"); A(f"v_lshl_add_u32 v{hAD}, v3, 4, v{hAD}")
    A("s_mul_i32 s47, s30, 896")
    A("s_lshl_b32 s48, s31, 9"); A("s_sub_u32 s49, s3, 1"); A("s_lshl_b32 s49, s49, 7"); A("s_add_u32 s48, s48, s49"); A(f"s_sub_u32 s49, {448*8192}, s48")
    if rot: A("s_mul_i32 s51, s30, 7"); A("s_lshr_b32 s51, s51, 2")
    else: A("s_mov_b32 s51, 0")
    A("s_waitcnt lgkmcnt(0)")
    srd(88,4,5,"s47",896)
    srd(52,10,11,"s48","s49")
    A("buffer_load_dwordx4 v[4:7], v1, s[88:91], 0 offen")
    if st0: STAMP(1)
    A("s_lshl_b32 s48, s51, 18")
    A("s_cmp_eq_u32 s28, 1"); A("s_cbranch_scc1 L_q1")
    for t in range(QD): wq_load(t)
    ln_part(QD); gemv56(55); A("s_branch L_q2")
    A("L_q1:")
    ln_part(0); A("s_barrier")
    for t in range(QD): wq_load(t)
    gemv56(None)
    A("L_q2:")
    C("q -> bf16 -> LDS: addr = m*128 + (4*rowq+hi)*16 + j*2 (+32 for the second register)")
    A("v_cvt_pk_bf16_f32 v12, v12, v13")
    A("v_bfe_u32 v4, v0, 4, 1"); A("v_lshrrev_b32 v5, 5, v0"); A("v_lshl_add_u32 v4, v4, 2, v5"); A("v_lshlrev_b32 v4, 4, v4"); A("v_lshl_add_u32 v4, v3, 1, v4")
    A("s_sub_u32 s47, s3, 1"); A("s_lshl_b32 s47, s47, 7"); A("v_add_u32 v4, s47, v4")
    A("s_mov_b64 exec, s[60:61]")
    A(f"ds_write_b16 v4, v12 offset:{L_Q}"); A(f"ds_write_b16_d16_hi v4, v12 offset:{L_Q+32}")
    A("s_mov_b64 exec, -1")
    A("s_waitcnt lgkmcnt(0)")
    if not st0: STAMP(1)
    A("s_barrier")
    STAMP(2)
    srd_slots()
    C("FFN, wave 1 of 2 x 28 workgroups, all 8 batches at once. Stage 0 (s50=0): h = silu(xn . w1[:, 64f..64f+63])")
    C("stage 1 (s50=1): partial result h[448r..448r+447] . w2[448r.., 64c..64c+63], f = 7r + c")
    A("s_cmp_lg_u32 s3, 1"); A("s_cbranch_scc1 L_wo")
    if skipffn==1: A("s_branch L_wo")
    A("s_cmp_lg_u32 s28, 1"); A("s_cbranch_scc1 L_wo")
    A("s_xor_b32 s47, s30, s26"); A("s_and_b32 s48, s47, 1"); A("s_cbranch_scc1 L_wo")
    A("s_bfe_u32 s50, s47, 0x10001"); A("s_lshr_b32 s47, s47, 2"); A("s_lshl_b32 s47, s47, 4"); A("s_add_u32 s51, s31, s47")
    A("s_cmp_ge_u32 s51, 28"); A("s_cbranch_scc1 L_wo")
    A("s_mul_i32 s62, s51, 37"); A("s_lshr_b32 s62, s62, 8"); A("s_mul_i32 s63, s62, 7"); A("s_sub_u32 s63, s51, s63")
    C("s62 = r, s63 = c")
    A("s_cmp_eq_u32 s50, 1"); A("s_cbranch_scc1 L_f1a")
    A("s_lshl_b32 s48, s51, 7"); A(f"s_sub_u32 s49, {448*3584}, s48"); srd(52,16,17,"s48","s49")
    A("s_mov_b32 s46, 3584")
    C("raw x of the 8 batches -> XN, then layernorm in place while the first tiles are in flight")
    srd(88,4,5,None,8*896)
    A(f"v_add_u32 v5, {L_XN}, v1"); A("v_cmp_gt_u32 vcc, 56, v0"); A("v_mov_b32 v6, 0x10000"); A("s_nop 0"); A("v_cndmask_b32 v6, v6, v1, vcc")
    for b in range(8): A(f"buffer_load_dwordx4 v[{224+4*b}:{227+4*b}], v6, s[88:91], 0 offen offset:{896*b}" if 896*b<4096 else f"buffer_load_dwordx4 v[{224+4*b}:{227+4*b}], v6, s[88:91], s46 offen offset:{896*b-3584}")
    A("s_branch L_f1b")
    A("L_f1a:")
    A(f"s_mul_i32 s48, s62, {448*896}"); A("s_lshl_b32 s49, s63, 7"); A("s_add_u32 s48, s48, s49"); A(f"s_sub_u32 s49, {1792*896}, s48"); srd(52,18,19,"s48","s49")
    A("s_mov_b32 s46, 896")
    A("L_f1b:")
    A(f"v_mul_u32_u24 v{hAD}, s46, v2"); A(f"v_lshl_add_u32 v{hAD}, v3, 4, v{hAD}")
    A("s_lshl_b32 s46, s46, 3"); A("s_mov_b32 s48, 0")
    def w_load(t):
        A(f"buffer_load_dwordx4 v[{D0+4*t}:{D0+4*t+3}], v{hAD}, s[52:55], s48 offen {WF}")
        A("s_add_u32 s48, s48, s46")
    for t in range(NF): w_load(t)
    A("s_cmp_eq_u32 s50, 1"); A("s_cbranch_scc1 L_f2")
    A(f"s_waitcnt vmcnt({NF})")
    for b in range(8): A(f"ds_write_b128 v5, v[{224+4*b}:{227+4*b}] offset:{XN_STR*b}")
    A("s_mov_b32 s49, 8")
    A("L_ln8:")
    A("s_waitcnt lgkmcnt(0)")
    A("ds_read_b128 v[20:23], v5"); A("s_waitcnt lgkmcnt(0)")
    layernorm(20,False)
    A("ds_write_b128 v5, v[8:11]")
    A(f"v_add_u32 v5, {XN_STR}, v5"); A("s_sub_u32 s49, s49, 1"); A("s_cmp_lg_u32 s49, 0"); A("s_cbranch_scc1 L_ln8")
    A("L_f2:")
    for t in range(NF,56):
        A(f"s_waitcnt vmcnt({NF-1})"); w_load(t)
    A("s_waitcnt vmcnt(0)")
    def transpose4(regs):
        for k in range(4): A(f"ds_write_b128 v{hAD}, v[{regs[k]}:{regs[k]+3}] offset:{T_STR*k}")
        A("s_waitcnt lgkmcnt(0)")
        for nu in range(4):
            for hf in range(2): A(f"ds_read_b64_tr_b16 v[{regs[nu]+2*hf}:{regs[nu]+2*hf+1}], v{hLD} offset:{512*hf+32*nu}")
        A("s_waitcnt lgkmcnt(0)")
    t_addr(hAD,hLD,True)
    for ka in range(14): transpose4([D0+16*ka+4*k for k in range(4)])
    tag_wait(1)
    A("v_or_b32 v7, 0xa000, v1")
    srd(52,24,25,None,1<<20)
    A("s_lshl_b32 s47, s51, 12"); A("s_add_u32 s47, s47, 1792")
    A("s_cmp_eq_u32 s50, 0"); A("s_cbranch_scc1 L_f3")
    C("gather h: 7 slices x 8 batches, one bf16 and a 16-bit tag per word")
    A("v_lshrrev_b32 v5, 4, v0"); A("v_and_b32 v6, 15, v0"); A("v_lshlrev_b32 v4, 17, v5"); A("v_lshl_add_u32 v4, v6, 4, v4")
    A(f"s_mul_i32 s47, s62, {7*4096}"); A("s_add_u32 s47, s47, 1792"); A("v_add_u32 v4, s47, v4")
    A(f"v_mul_u32_u24 v5, {XN_STR}, v5"); A("v_lshl_add_u32 v5, v6, 3, v5")
    A("s_mov_b32 s63, 0x07060302")
    items=[(ps,sl) for ps in range(2) for sl in range(7)]
    for rd,grp in enumerate((items[0:5],items[5:10],items[10:14])):
        A("s_mov_b32 s49, 400000")
        A(f"L_hg{rd}:")
        for k,(ps,sl) in enumerate(grp):
            A(f"s_mov_b32 s47, {ps*4*131072+sl*4096}")
            A(f"buffer_load_dwordx4 v[{8+4*k}:{11+4*k}], v4, s[52:55], s47 offen {SC}")
        A("s_waitcnt vmcnt(0)")
        A("v_xor_b32 v6, v8, v7")
        for r in range(1,4*len(grp)): A(f"v_bitop3_b32 v6, v{8+r}, v7, v6 bitop3:0xbe")
        A("v_and_b32 v6, 0xffff, v6"); A("v_cmp_ne_u32 vcc, 0, v6")
        A("s_sub_u32 s49, s49, 1"); A(f"s_cbranch_scc1 L_hx{rd}"); A(f"s_cbranch_vccz L_hx{rd}"); A(f"s_sleep {hsl}"); A(f"s_branch L_hg{rd}")
        A(f"L_hx{rd}:")
        for k,(ps,sl) in enumerate(grp):
            A(f"v_perm_b32 v{8+4*k}, v{9+4*k}, v{8+4*k}, s63"); A(f"v_perm_b32 v{9+4*k}, v{11+4*k}, v{10+4*k}, s63")
            A(f"ds_write_b64 v5, v[{8+4*k}:{9+4*k}] offset:{L_XN+4*XN_STR*ps+128*sl}")
        A("s_waitcnt lgkmcnt(0)")
    A("s_mul_i32 s63, s62, 7"); A("s_sub_u32 s63, s51, s63")
    A("s_lshl_b32 s47, s62, 12"); A("s_lshl_b32 s48, s63, 8"); A("s_add_u32 s47, s47, s48"); A("s_add_u32 s47, s47, 2048")
    A("L_f3:")
    C("A fragments: row i of the MFMA is batch (i&3) (+4 in the second pass)")
    A("v_and_b32 v30, 3, v0"); A(f"v_mul_u32_u24 v30, {XN_STR}, v30"); A("v_lshrrev_b32 v31, 4, v0"); A("v_lshl_add_u32 v30, v31, 4, v30")
    A("v_lshl_add_u32 v31, v0, 2, s47")
    for ps in range(2):
        for ka in range(14):
            A(f"ds_read_b128 v[{20+4*(ka%2)}:{23+4*(ka%2)}], v30 offset:{L_XN+4*XN_STR*ps+64*ka}"); A("s_waitcnt lgkmcnt(0)")
            for nu in range(4):
                a=4+4*nu; w=D0+16*ka+4*nu
                A(f"v_mfma_f32_16x16x32_bf16 v[{a}:{a+3}], v[{20+4*(ka%2)}:{23+4*(ka%2)}], v[{w}:{w+3}], {'0' if ka==0 else f'v[{a}:{a+3}]'}")
        for r in range(4): A(f"s_mov_b32 s{44+r}, {(4*ps+r)<<17}")
        A("s_nop 7")
        for r in range(4):
            rowsel(4+r,[4+r,8+r,12+r,16+r])
        A("s_cmp_eq_u32 s50, 1"); A(f"s_cbranch_scc1 L_f4{ps}")
        A("v_or_b32 v21, 0xa000, v1")
        for r in range(4):
            k=4+r
            A(f"v_cvt_pk_bf16_f32 v{k}, 0, v{k}")
            A(f"v_mul_f32 v20, {f2u(-math.log2(math.e)):#x}, v{k}"); A("v_exp_f32 v20, v20"); A("s_nop 0")
            A("v_add_f32 v20, 1.0, v20"); A("v_rcp_f32 v20, v20"); A("s_nop 0")
            A(f"v_mul_f32 v{k}, v{k}, v20"); A(f"v_cvt_pk_bf16_f32 v{k}, 0, v{k}"); A(f"v_or_b32 v{k}, v{k}, v21")
        A(f"s_branch L_f5{ps}")
        A(f"L_f4{ps}:")
        for r in range(4): A(f"v_add_u32 v{4+r}, 0x800, v{4+r}"); A(f"v_and_or_b32 v{4+r}, v{4+r}, s97, v1")
        A(f"L_f5{ps}:")
        for r in range(4): A(f"buffer_store_dword v{4+r}, v31, s[52:55], s{44+r} offen {SC}")
        A("s_nop 1")
    STAMP(3)
    A("s_barrier")
    wo_issue(NW7)
    A("s_branch L_tail")
    A("L_end:")
    A("s_endpgm")
    body="\n".join(("" if (l.endswith(":") or l.startswith(".")) else "    ")+l for l in L)+"\n"
    head=HEADER+f"; @launch grid=(256,1,1) block=(512,1,1) lds={L_END}\n"
    return head+body+kd(NAME,256,102,256), L_END

if __name__=="__main__":
    kw=eval("dict(%s)"%(sys.argv[2] if len(sys.argv)>2 else ""))
    t,ldsz=gen(**kw)
    out=sys.argv[1]
    if out.endswith(".s"): open(out,"w").write(t)
    else:
        assemble(t+meta([(NAME,256,102,512)]), out); print(f"work/{out}:{NAME},256,512,{ldsz}")
```

```python
import sys, math, struct
from common import *

NAME="parallel_sum__mha_block_cached__dense_activation_silu__decode_kernel"
HEADER=open("parallel_sum__mha_block_cached__dense_activation_silu__decode.s.ref").read().split("; Override launch")[0]

L_Q=0; L_MX=512; L_SC=576; L_TAG=580; L_PRG=584; L_CTL=588; L_XB=640
L_O=768
L_S=1280; S_STR=1040
L_X=L_S+8*S_STR; X_STR=272; X_SZ=8*X_STR
L_XN=L_X+4*X_SZ; XN_STR=1040
L_HP=L_XN+8*XN_STR; HP_STR=144
L_T=L_HP+8*HP_STR; T_STR=1056; T_SZ=8*T_STR
L_END=L_T+7*T_SZ
CEXP=math.log2(math.e)/16.0
def f2u(f): return struct.unpack("<I",struct.pack("<f",f))[0]

def gen(N=24, N0=10, R=48, NF=8, NW=1, NW7=4, QD=12, stamp=False, SC="sc1", HF="", QF="", SF="nt",
        rot=1, ctl=(18,24,32), ctlK=None, TH=6, BIAS=0, PD=2, RD=2, msleep=4, xb=1, dpoll=1, skipwo=0, skipffn=0, NT=None, late=1, pulse=0, st0=0, OF='', dual=0, dry=0, TS=8, SD=3, PF=None, YF=None, dps=0, pb=1, BO=0, BF=None, WF='nt', wrot=0, wsplit=1, stag=0, RV=0, PS=24, TH4=None, MS=32, mlate=1, ltag=1, hsl=32, mpoll=0, psl=0, krot=(5,1), G=0):
    L=[]; A=L.append
    def C(s): A("    ; "+s)
    lbl=[0]
    def newl(): lbl[0]+=1; return lbl[0]
    def STAMP(i):
        if stamp: A(f"s_memrealtime s[{70+2*i}:{71+2*i}]")
    def srd(d, lo, hi, off, size):
        if off is None: A(f"s_mov_b32 s{d}, s{lo}"); A(f"s_mov_b32 s{d+1}, s{hi}")
        else: A(f"s_add_u32 s{d}, s{lo}, {off}"); A(f"s_addc_u32 s{d+1}, s{hi}, 0")
        A(f"s_mov_b32 s{d+2}, {size}"); A(f"s_mov_b32 s{d+3}, 0x20000")
    def masks(base,t0,t1):
        A(f"v_and_b32 v{t0}, 1, v3"); A(f"v_lshlrev_b32 v{t0}, 4, v{t0}"); A(f"v_mov_b32 v{t1}, 0xffff"); A(f"v_lshlrev_b32 v{t0}, v{t0}, v{t1}")
        A(f"v_lshrrev_b32 v{t1}, 1, v3")
        for r in range(4):
            A(f"v_cmp_eq_u32 vcc, {r}, v{t1}"); A("s_nop 1"); A(f"v_cndmask_b32 v{base+r}, 0, v{t0}, vcc")
    def stamp_out(tmp=4):
        if not stamp: return
        A("s_waitcnt lgkmcnt(0)")
        A("s_mov_b64 exec, 1")
        srd(64,24,25,None,0x40000000)
        A("s_lshl_b32 s68, s2, 3"); A("s_add_u32 s68, s68, s3"); A("s_lshl_b32 s68, s68, 5"); A("s_add_u32 s68, s68, 0x20000000")
        A("s_getreg_b32 s69, hwreg(HW_REG_XCC_ID)")
        for i in range(7): A(f"v_mov_b32 v{tmp+i}, s{70+2*i}")
        A(f"v_mov_b32 v{tmp+7}, s69")
        A(f"buffer_store_dwordx4 v[{tmp}:{tmp+3}], off, s[64:67], s68")
        A(f"buffer_store_dwordx4 v[{tmp+4}:{tmp+7}], off, s[64:67], s68 offset:16")
        A("s_waitcnt vmcnt(0)")
    def srd_slots():
        A("s_lshl_b32 s47, s33, 12"); srd(36,24,25,"s47",4096)
        A("s_lshl_b32 s47, s30, 17"); srd(40,24,25,"s47",131072)
        srd(56,22,23,None,256)
    def tag_wait(t):
        n=newl()
        A("s_mov_b32 s49, 400000")
        A(f"L_cw{n}:")
        A(f"buffer_load_dword v{t}, off, s[56:59], 0 {SC}"); A("s_waitcnt vmcnt(0)")
        A(f"v_cmp_eq_u32 vcc, 0, v{t}"); A("s_sub_u32 s49, s49, 1"); A(f"s_cbranch_scc1 L_cwx{n}")
        A(f"s_cbranch_vccz L_cwx{n}"); A("s_sleep 8"); A(f"s_branch L_cw{n}")
        A(f"L_cwx{n}:")
        A(f"v_and_b32 v{t}, 0xfff, v{t}"); A("s_nop 0"); A(f"v_readfirstlane_b32 s96, v{t}")
    def g_issue(off,b,vad,srdn,only28=False):
        SC=(PF or "sc1") if not only28 else "sc1"
        A(f"buffer_load_dwordx4 v[{b}:{b+3}], v{vad}, s[{srdn}:{srdn+3}], 0 offen offset:{off} {SC}")
        if only28: A("s_mov_b64 exec, s[62:63]")
        A(f"buffer_load_dwordx4 v[{b+4}:{b+7}], v{vad}, s[{srdn}:{srdn+3}], s47 offen offset:{off} {SC}")
        if only28: A("s_mov_b64 exec, -1")
    def g_check(b,t,vtag,younger):
        A(f"s_waitcnt vmcnt({younger+1})")
        A(f"v_xor_b32 v{t}, v{b}, v{vtag}")
        for r in range(1,4): A(f"v_bitop3_b32 v{t}, v{b+r}, v{vtag}, v{t} bitop3:0xbe")
        A(f"s_waitcnt vmcnt({younger})")
        for r in range(4,8): A(f"v_bitop3_b32 v{t}, v{b+r}, v{vtag}, v{t} bitop3:0xbe")
        A(f"v_and_b32 v{t}, 0xfff, v{t}")
        A(f"v_cmp_ne_u32 vcc, 0, v{t}")
    def g_reduce(b,vtag):
        for r in range(8): A(f"v_xor_b32 v{b+r}, v{b+r}, v{vtag}")
        for r in range(4): A(f"v_add_f32 v{b+r}, v{b+r}, v{b+4+r}")
        for pat in ["row_ror:4","row_ror:8"]:
            for r in range(4): A(f"v_add_f32_dpp v{b+r}, v{b+r}, v{b+r} {pat} row_mask:0xf bank_mask:0xf")
        for r in range(1,4): A(f"v_mov_b32_dpp v{b}, v{b+r} quad_perm:[0,1,2,3] row_mask:0xf bank_mask:{1<<r:#x}")
        for sw in ["16","32"]:
            A(f"v_mov_b32 v{b+1}, v{b}"); A("s_nop 1"); A(f"v_permlane{sw}_swap_b32 v{b}, v{b+1}"); A(f"v_add_f32 v{b}, v{b}, v{b+1}")
    def g_addr(vad,vcol,t):
        A(f"v_lshrrev_b32 v{vad}, 2, v0"); A(f"v_and_b32 v{t}, 3, v0"); A(f"v_and_b32 v{vcol}, 3, v{vad}")
        A(f"v_lshlrev_b32 v{vad}, 12, v{vad}"); A(f"v_lshl_add_u32 v{vad}, v{t}, 4, v{vad}")
        A("s_lshl_b32 s47, s32, 6"); A(f"v_add_u32 v{vad}, s47, v{vad}")
        A(f"v_lshl_add_u32 v{vcol}, v{t}, 2, v{vcol}"); A("s_lshl_b32 s47, s32, 5"); A(f"v_lshl_add_u32 v{vcol}, v{vcol}, 1, s47")
    def wave_sum(v,t):
        for pat in ["quad_perm:[1,0,3,2]","quad_perm:[2,3,0,1]","row_half_mirror","row_mirror"]:
            A("s_nop 1"); A(f"v_add_f32_dpp v{v}, v{v}, v{v} {pat} row_mask:0xf bank_mask:0xf")
        for sw in ["16","32"]:
            A(f"v_mov_b32 v{t}, v{v}"); A("s_nop 1"); A(f"v_permlane{sw}_swap_b32 v{v}, v{t}"); A(f"v_add_f32 v{v}, v{v}, v{t}")
    def max16(dst,b):
        A(f"v_max3_f32 v{dst}, v{b}, v{b+1}, v{b+2}")
        for k in range(3,15,2): A(f"v_max3_f32 v{dst}, v{dst}, v{b+k}, v{b+k+1}")
        A(f"v_max_f32 v{dst}, v{dst}, v{b+15}")

    A('.amdgcn_target "amdgcn-amd-amdhsa--gfx950"'); A(".text"); A(f".globl {NAME}"); A(".p2align 8"); A(f".type {NAME},@function"); A(f"{NAME}:")
    A("s_cmp_ge_u32 s2, 256"); A("s_cbranch_scc1 L_end")
    STAMP(0)
    A("s_load_dwordx16 s[4:19], s[0:1], 0")
    A("s_load_dwordx4 s[20:23], s[0:1], 64")
    A("s_load_dwordx2 s[24:25], s[0:1], 80")
    A("v_lshrrev_b32 v1, 6, v0"); A("v_and_b32 v0, 63, v0"); A("v_readfirstlane_b32 s3, v1")
    A("s_and_b32 s26, s2, 7"); A("s_lshr_b32 s27, s2, 3"); A("s_and_b32 s28, s27, 1")
    A("s_bfe_u32 s29, s27, 0x10001"); A("s_lshr_b32 s30, s27, 2")
    A("s_lshl_b32 s29, s29, 3"); A("s_add_u32 s31, s26, s29")
    A("s_lshl_b32 s32, s31, 1"); A("s_add_u32 s32, s32, s28")
    A("s_lshl_b32 s33, s30, 5"); A("s_add_u32 s33, s33, s32")
    C("s28=half s30=batch s31=head s32=2*head+half s33=32*batch+s32 ; v2=lane>>3 v3=lane&7")
    A("v_lshrrev_b32 v2, 3, v0"); A("v_and_b32 v3, 7, v0")
    A(f"s_mov_b32 s34, {f2u(CEXP):#x}")
    A("s_mov_b32 s60, 0x00ff00ff"); A("s_mov_b32 s61, 0x00ff00ff"); A("s_mov_b32 s97, 0xfffff000")
    if wrot==1: A("s_and_b32 s99, s30, 3")
    if wrot==2: A("s_lshr_b32 s99, s30, 1")
    if wrot==3: A("s_lshl_b32 s99, s28, 1"); A("s_add_u32 s99, s99, s30"); A("s_and_b32 s99, s99, 3")
    if krot:
        C("the keys are visited in rotated order: tile t is tile (t + s98/4096) mod 256 of this workgroup's range")
        sh,ml=krot if isinstance(krot,tuple) else (0,krot)
        A(f"s_lshr_b32 s98, s33, {sh}"); A(f"s_mul_i32 s98, s98, {ml}"); A("s_and_b32 s98, s98, 0xff"); A("s_lshl_b32 s98, s98, 12")
    A("s_cmp_eq_u32 s3, 0"); A("s_cbranch_scc1 L_stream")
    A("s_cmp_ge_u32 s3, 5"); A("s_cbranch_scc1 L_buf")
    A("s_branch L_help")

    RING=256-4*R
    vK=4; vV=5; vSW=6; vSR=7; vMX=8; vR=9; vR2=10; vA=[11,12]; vB=[13,14]; vQ=16
    def slot(i): return RING+4*(i%R)
    def k_consume(c, dsoff):
        p=c%8; m=p%4; acc=vA if p<4 else vB; r=slot(c)
        for k in range(4):
            src2 = "0" if (m==0 and k<2) else f"v{acc[k%2]}"
            A(f"v_dot2_f32_bf16 v{acc[k%2]}, v{r+k}, v{vQ+4*m+k}, {src2}")
        prev = dsoff is not None
        if p==0 and prev: A(f"v_add_f32 v{vB[0]}, v{vB[0]}, v{vB[1]}")
        if p==1 and prev: A(f"v_add_f32_dpp v{vR}, v{vB[0]}, v{vB[0]} row_half_mirror row_mask:0xf bank_mask:0xa")
        if p==2 and prev: A(f"v_add_f32_dpp v{vR}, v{vR}, v{vR} quad_perm:[1,0,3,2] row_mask:0xf bank_mask:0xf")
        if p==3 and prev: A(f"v_add_f32_dpp v{vR}, v{vR}, v{vR} quad_perm:[2,3,0,1] row_mask:0xf bank_mask:0xf")
        if p==4:
            if prev: A(f"v_cvt_pk_bf16_f32 v{vR2}, 0, v{vR}")
            A(f"v_add_f32 v{vA[0]}, v{vA[0]}, v{vA[1]}")
        if p==5:
            if prev: A(f"v_max_f32 v{vMX}, v{vMX}, v{vR2}"); A(f"ds_write_b32 v{vSW}, v{vR2} offset:{dsoff}")
            A(f"v_add_f32_dpp v{vR}, v{vA[0]}, v{vA[0]} row_half_mirror row_mask:0xf bank_mask:0x5")
    def k_flush(dsoff):
        A("s_nop 2"); A(f"v_add_f32 v{vB[0]}, v{vB[0]}, v{vB[1]}"); A("s_nop 1")
        A(f"v_add_f32_dpp v{vR}, v{vB[0]}, v{vB[0]} row_half_mirror row_mask:0xf bank_mask:0xa"); A("s_nop 1")
        A(f"v_add_f32_dpp v{vR}, v{vR}, v{vR} quad_perm:[1,0,3,2] row_mask:0xf bank_mask:0xf"); A("s_nop 1")
        A(f"v_add_f32_dpp v{vR}, v{vR}, v{vR} quad_perm:[2,3,0,1] row_mask:0xf bank_mask:0xf")
        A(f"v_cvt_pk_bf16_f32 v{vR2}, 0, v{vR}")
        A(f"v_max_f32 v{vMX}, v{vMX}, v{vR2}"); A(f"ds_write_b32 v{vSW}, v{vR2} offset:{dsoff}")
    def mx_publish(w, tmp):
        A("s_nop 1")
        A(f"v_max_f32_dpp v{vMX}, v{vMX}, v{vMX} row_ror:4 row_mask:0xf bank_mask:0xf"); A("s_nop 1")
        A(f"v_max_f32_dpp v{vMX}, v{vMX}, v{vMX} row_ror:8 row_mask:0xf bank_mask:0xf")
        A(f"v_lshrrev_b32 v{tmp}, 4, v0"); A(f"v_lshlrev_b32 v{tmp}, 2, v{tmp}")
        if isinstance(w,int): A(f"ds_write_b32 v{tmp}, v{vMX} offset:{L_MX+16*w}")
        else: A(f"v_add_u32 v{tmp}, {w}, v{tmp}"); A(f"ds_write_b32 v{tmp}, v{vMX} offset:{L_MX}")
    def k_setup():
        A(f"v_lshlrev_b32 v{vK}, 9, v2"); A(f"v_lshl_add_u32 v{vK}, v3, 4, v{vK}")
        A(f"v_mul_u32_u24 v{vSW}, {S_STR}, v2"); A(f"v_lshrrev_b32 v{vSR}, 2, v3"); A(f"v_lshl_add_u32 v{vSW}, v{vSR}, 2, v{vSW}")
        A(f"v_mov_b32 v{vMX}, 0xff800000")
        A("s_lshl_b32 s35, s33, 20")
    def q_read():
        A(f"v_lshlrev_b32 v{vR}, 4, v3")
        for m in range(4): A(f"ds_read_b128 v[{vQ+4*m}:{vQ+4*m+3}], v{vR} offset:{L_Q+128*m}")
        A("s_waitcnt lgkmcnt(0)")
    def bar0(first):
        n=newl()
        A(f"s_cmp_eq_u32 s28, {1 if first else 0}"); A(f"s_cbranch_scc1 L_b0_{n}"); A("s_barrier"); A(f"L_b0_{n}:")
    NP0=R//8; NB=3
    NKS=1024-NB*R
    NTOT=NKS+1024
    NT=NT or N

    A("L_stream:")
    A("s_setprio 3")
    k_setup()
    A(f"v_mov_b32 v{vV}, v{vK}")
    vVq=[60,61,62,63]
    if wrot:
        C("logical quarter g of d is physical quarter (g + s99) & 3")
        for q in range(4):
            A(f"s_add_u32 s47, s99, {q}"); A("s_and_b32 s47, s47, 3"); A("s_lshl_b32 s47, s47, 7"); A(f"v_add_u32 v{vVq[q]}, s47, v{vK}")
    vZ=36; vPC=37; vPP=38
    A(f"v_mov_b32 v{vZ}, 0"); A(f"ds_write_b32 v{vZ}, v{vZ} offset:{L_PRG}")
    A("s_waitcnt lgkmcnt(0)")
    srd(36,6,7,"s35",1<<20); srd(40,8,9,"s35",1<<20)
    A(f"s_mov_b32 s44, {'s98' if krot else 0}"); A(f"s_mov_b32 s45, {'s98' if krot else 0}"); A("s_mov_b32 s50, 2")
    def wrap(r):
        if krot: A(f"s_and_b32 s{r}, s{r}, 0xfffff")
    U1=1024-4*TS
    def vmap(u):
        if u<U1: return u//4, u%4
        v=u-U1
        return 256-TS+v%TS, v//TS
    def vgrp(u): return (u//4, u%4, 4) if u<U1 else (U1//4+(u-U1), 0, 1)
    def phys(T):
        if not G or T>=(256//G)*G: return T
        g,l=divmod(T,G); h=G//2
        return g*G+(2*l if l<h else 2*(l-h)+1)
    def issue(i):
        r=slot(i)
        if i<NKS:
            A(f"buffer_load_dwordx4 v[{r}:{r+3}], v{vK}, s[36:39], s44 offen offset:{128*(i%4)} {SF}")
            if i%4==3 and i<R: A(f"s_add_u32 s44, s44, {4096+NB*8192 if i%8==7 else 4096}"); wrap(44)
            elif i%4==3:
                T=i//4+NB*R//4; d=phys(T+1)-phys(T)
                A(f"s_add_u32 s44, s44, {4096*d}" if d>0 else f"s_sub_u32 s44, s44, {-4096*d}"); wrap(44)
        elif i<NTOT:
            u=i-NKS; tile,q=vmap(u)
            if wrot: A(f"buffer_load_dwordx4 v[{r}:{r+3}], v{vVq[q]}, s[40:43], s45 offen {SF}")
            else: A(f"buffer_load_dwordx4 v[{r}:{r+3}], v{vV}, s[40:43], s45 offen offset:{128*q} {SF}")
            if u+1<1024:
                d=phys(vmap(u+1)[0])-phys(tile)
                if d>0: A(f"s_add_u32 s45, s45, {4096*d}"); wrap(45)
                if d<0: A(f"s_sub_u32 s45, s45, {-4096*d}"); wrap(45)
    DK=R-1
    bar0(True)
    for i in range(DK):
        if i>=N0: A(f"s_waitcnt vmcnt({N0-1})")
        issue(i)
        if st0 and i==0: STAMP(1)
        if i==N0-1:
            A("s_lshl_b32 s47, s30, 17"); srd(52,24,25,"s47",131072)
            A("s_mul_i32 s47, s30, 896"); srd(92,20,21,"s47",896)
    bar0(False)
    if not st0: STAMP(1)
    A("s_barrier")
    STAMP(2)
    q_read()
    cur=[None]
    def pair_T(pi): return 2*((NB+1)*pi) if pi<NP0 else 2*((NB+1)*NP0+(pi-NP0))
    def kstep(c, dsbase):
        I=c+DK
        A(f"s_waitcnt vmcnt({min((cur[0] or N)-1,I-c-1)})")
        issue(I)
        pi=c//8
        k_consume(c, None if pi==0 else L_S+4*pair_T(pi-1)-dsbase)
    for c in range(0,2*R): kstep(c,0)
    nK=(NKS-DK-2*R)//R
    A(f"s_mov_b32 s46, {nK}")
    def loop_variants(tag, body, post, zr, cr, pr, lv):
        for v in (1,0,2):
            A(f"L_{tag}{v}:")
            rd=f"ds_read_b32 v{cr}, v{zr} offset:{L_CTL}"
            if not late: A(rd)
            m0=len(L)
            cur[0]=lv[v]; body(); cur[0]=None
            if late:
                w=[i for i in range(m0,len(L)) if L[i].startswith("s_waitcnt vmcnt")]
                assert len(w)==R
                L.insert(w[R-3],rd)
                if MS:
                    o=[x for x in range(len(lv)) if x!=v]
                    sw=["s_waitcnt lgkmcnt(0)", f"v_readfirstlane_b32 s48, v{cr}"]
                    for x in o: sw+=[f"s_cmp_eq_u32 s48, {x}", f"s_cbranch_scc1 L_{tag}m{x}"]
                    sw+=[f"L_{tag}m{v}:"]
                    L[w[MS]:w[MS]]=sw
                    L.insert(w[MS-3],rd)
            post()
            A("s_add_u32 s50, s50, 1"); A(f"v_mov_b32 v{pr}, s50")
            A("s_waitcnt lgkmcnt(0)")
            A(f"v_readfirstlane_b32 s48, v{cr}")
            A(f"ds_write_b32 v{zr}, v{pr} offset:{L_PRG}")
            A("s_sub_u32 s46, s46, 1"); A("s_cmp_eq_u32 s46, 0"); A(f"s_cbranch_scc1 L_{tag}x")
            o=[w for w in (0,1,2) if w!=v]
            A(f"s_cmp_eq_u32 s48, {v}"); A(f"s_cbranch_scc1 L_{tag}{v}")
            A(f"s_cmp_eq_u32 s48, {o[0]}"); A(f"s_cbranch_scc1 L_{tag}{o[0]}")
            A(f"s_branch L_{tag}{o[1]}")
        A(f"L_{tag}x:")
    def kbody():
        for c in range(2*R,3*R): kstep(c,0)
    loop_variants("kloop", kbody, lambda: A(f"v_add_u32 v{vSW}, {R}, v{vSW}"), vZ, vPC, vPP, ctlK or ctl)
    dsb=nK*R
    for c in range((2+nK)*R,NKS): kstep(c,dsb)
    k_flush(L_S+4*pair_T(NKS//8-1)-dsb)
    mx_publish(0, vR)
    vM=[12,13,14,15]; vNM=11; vT=9; vP=10; vACC=16; vBB=[32,36]; vSS=[40,44,48]; vTM=52
    masks(vM[0], vTM, vTM+1)
    A(f"v_mul_u32_u24 v{vSR}, {S_STR}, v2")
    A(f"v_mov_b32 v{vT}, 0")
    A("s_waitcnt lgkmcnt(0)")
    STAMP(3)
    A("s_barrier")
    for w in range(4): A(f"ds_read_b128 v[{16+4*w}:{16+4*w+3}], v{vT} offset:{L_MX+16*w}")
    A(f"ds_read_b128 v[{vSS[0]}:{vSS[0]+3}], v{vSR} offset:{L_S}")
    inext=[NKS+DK]
    A(f"s_waitcnt vmcnt({N-1})")
    issue(inext[0]); inext[0]+=1
    A("s_waitcnt lgkmcnt(0)")
    max16(vNM,16)
    A(f"v_mul_f32 v{vNM}, s34, v{vNM}"); A(f"v_sub_f32 v{vNM}, 0, v{vNM}")
    for r in range(16): A(f"v_mov_b32 v{vACC+r}, 0")
    def bfree(tile):
        return slot(NTOT+(tile-(256-TS))+BO)
    def bprep(tile, part, gi=None):
        s=vSS[(tile//4)%3]+tile%4; b=vBB[(tile if gi is None else gi)%2]
        if tile>=256-TS: b=bfree(tile)
        if part==0: A(f"v_fma_f32 v{vT}, v{s}, s34, v{vNM}")
        if part==1: A(f"v_exp_f32 v{vT}, v{vT}")
        if part==2: A(f"v_cvt_pk_bf16_f32 v{vP}, v{vT}, v{vT}"); A(f"v_and_b32 v{b}, v{vP}, v{vM[0]}")
        if part==3:
            for r in range(1,4): A(f"v_and_b32 v{b+r}, v{vP}, v{vM[r]}")
    bprep(0,0); bprep(0,1); A("s_nop 0"); bprep(0,2); bprep(0,3); A("s_nop 1")
    def o_write(q):
        a=vACC+4*q
        A(f"v_permlane32_swap_b32 v{a}, v{a+1}"); A(f"v_permlane32_swap_b32 v{a+2}, v{a+3}")
        A("s_nop 1")
        A(f"v_add_f32_dpp v{vTM}, v{a+1}, v{a} row_ror:8 row_mask:0xf bank_mask:0xf")
        A(f"v_add_f32_dpp v{vTM+1}, v{a+3}, v{a+2} row_ror:8 row_mask:0xf bank_mask:0xf")
        A(f"v_cvt_pk_bf16_f32 v{vTM}, v{vTM}, v{vTM+1}")
        A("s_mov_b64 exec, s[60:61]")
        A(f"ds_write_b32 v8, v{vTM} offset:{L_O+128*q}")
        A("s_mov_b64 exec, -1")
    def vstep(u, srbase, do_issue=True):
        c=NKS+u; I=inext[0]; mark=len(L)
        if do_issue and I<NTOT:
            A(f"s_waitcnt vmcnt({min((cur[0] or N)-1,I-c-1)})")
            assert I-R < c
            issue(I); inext[0]+=1
        else:
            k=I-c-1
            if k<max(N,NT): A(f"s_waitcnt vmcnt({k})")
        tile,q=vmap(u); gi,pos,n=vgrp(u); r=slot(c); b=vBB[gi%2]
        if tile>=256-TS:
            b=bfree(tile)
        if q==0 and tile%4==0 and tile+4<256:
            nb=vSS[(tile//4+1)%3]
            A(f"ds_read_b128 v[{nb}:{nb+3}], v{vSR} offset:{L_S+4*(tile+4)-srbase}")
        if q==0 and tile%4==3 and tile+1<256: A("s_waitcnt lgkmcnt(0)")
        a=vACC+4*q
        if pos==0 and len(L)-mark<2: A(f"s_nop {1-(len(L)-mark)}")
        A(f"v_mfma_f32_16x16x32_bf16 v[{a}:{a+3}], v[{r}:{r+3}], v[{b}:{b+3}], v[{a}:{a+3}]")
        un=u-pos+n
        if un<1024:
            if n==4: bprep(vmap(un)[0],pos,gi+1)
            elif vmap(un)[1]==0:
                for part in range(4):
                    bprep(vmap(un)[0],part,gi+1)
                    if part==1: A("s_nop 0")
        for qq in range(3):
            if u==U1+(qq+1)*TS-1+SD: o_write(qq)
            if u==U1+(qq+1)*TS+SD: A("s_waitcnt lgkmcnt(0)"); A("s_barrier")
    u=0; DV=max(max(ctl),NT)
    while True:
        D=inext[0]-(NKS+u)
        if D<=DV and u%R==0: break
        if D>DV:
            vstep(u,0,False); u+=1
            D=inext[0]-(NKS+u)
            if D>DV or u%R!=0: vstep(u,0,True); u+=1
        else:
            vstep(u,0,True); u+=1
    assert inext[0]-(NKS+u)==DV and (R//16)%3==0 and R%16==0
    u0=u; PKEND=2+nK; PV0=(inext[0]+R//2)//R-1
    nV=(1024-DV-u0)//R
    while u0+nV*R+16>1024: nV-=1
    PVEND=PV0+nV
    assert u0+DV+nV*R<=U1
    A(f"s_mov_b32 s46, {nV}"); A("v_mov_b32 v6, 0"); A(f"s_mov_b32 s50, {PV0}")
    i0=inext[0]
    def vbody():
        inext[0]=i0
        for uu in range(u0,u0+R): vstep(uu,0,True)
    loop_variants("vloop", vbody, lambda: A(f"v_add_u32 v{vSR}, {R}, v{vSR}"), 6, 4, 8, ctl)
    inext[0]=i0+nV*R
    cur[0]=NT
    C("addresses for the tail: v4 gather address, v6 output offset, v8 O' address")
    g_addr(4,6,8)
    A("v_bfe_u32 v8, v0, 4, 1"); A("v_lshlrev_b32 v8, 6, v8"); A("v_lshrrev_b32 v52, 5, v0"); A("v_lshl_add_u32 v8, v52, 5, v8"); A("v_lshl_add_u32 v8, v3, 2, v8")
    A("s_mov_b32 s47, 65536"); A("s_mov_b32 s49, 400000")
    for uu in range(u0+nV*R,1024): vstep(uu,nV*R,True)
    cur[0]=None
    STAMP(4)
    A("v_and_b32 v7, 15, v0"); A("v_lshlrev_b32 v7, 3, v7"); A("v_mov_b32 v5, 0")
    A("s_nop 4")
    o_write(3)
    A("s_waitcnt lgkmcnt(0)")
    A("s_barrier")
    STAMP(5)
    A("s_cmp_ge_u32 s32, 28"); A("s_cbranch_scc1 L_sdone")
    C("final: 16 output columns = sum over the 32 workgroups of this batch")
    A(f"ds_read_b32 v12, v5 offset:{L_TAG}")
    A(f"ds_read_b64 v[14:15], v7 offset:{L_XB}")
    if pb: A("s_barrier")
    if mpoll:
        C("only the lanes whose words do not carry the tag yet are loaded again")
        g_issue(0,16,4,52)
        A("s_waitcnt lgkmcnt(0)")
        A("L_fp:")
        for k,(b0,dst) in enumerate(((16,"s[62:63]"),(20,"vcc"))):
            A(f"s_waitcnt vmcnt({1-k if False else 0})") if k==0 else None
            A(f"v_xor_b32 v13, v{b0}, v12")
            for r in range(1,4): A(f"v_bitop3_b32 v13, v{b0+r}, v12, v13 bitop3:0xbe")
            A("v_and_b32 v13, 0xfff, v13"); A(f"v_cmp_ne_u32 {dst}, 0, v13")
        A("s_sub_u32 s49, s49, 1"); A("s_cbranch_scc1 L_fa")
        A("s_or_b64 s[64:65], s[62:63], vcc"); A("s_cbranch_scc0 L_fa")
        if psl: A(f"s_sleep {psl}")
        A("s_mov_b64 exec, s[62:63]"); A("s_cbranch_execz L_fq")
        A(f"buffer_load_dwordx4 v[16:19], v4, s[52:55], 0 offen {SC}")
        A("L_fq:")
        A("s_mov_b64 exec, vcc"); A("s_cbranch_execz L_fr")
        A(f"buffer_load_dwordx4 v[20:23], v4, s[52:55], s47 offen {SC}")
        A("L_fr:")
        A("s_mov_b64 exec, -1")
        A("s_branch L_fp")
        dpoll=0
    else:
        g_issue(0,16,4,52)
        if dpoll:
            if dps: A(f"s_sleep {dps}")
            g_issue(0,32,4,52)
        A("s_waitcnt lgkmcnt(0)")
        A("L_fp:")
        g_check(16,13,12,2 if dpoll else 0)
        A("s_sub_u32 s49, s49, 1"); A("s_cbranch_scc1 L_fa"); A("s_cbranch_vccz L_fa")
        g_issue(0,16,4,52)
        if dpoll:
            g_check(32,13,12,2)
            A("s_cbranch_vccz L_fb")
            g_issue(0,32,4,52)
        A("s_branch L_fp")
    def final(b):
        g_reduce(b,12)
        A(f"v_cvt_pk_bf16_f32 v{b}, 0, v{b}"); A(f"v_add_f32 v{b}, v14, v{b}"); A(f"v_cvt_pk_bf16_f32 v{b}, 0, v{b}"); A(f"v_add_f32 v{b}, v{b}, v15")
        A(f"v_cvt_pk_bf16_f32 v{b}, v{b}, v{b}")
        A("s_mov_b64 exec, 0xffff")
        A(f"buffer_store_short v{b}, v6, s[92:95], 0 offen {OF}")
    if dpoll:
        A("L_fb:"); final(32); A("s_branch L_sdone")
    A("L_fa:"); final(16)
    A("L_sdone:")
    STAMP(6)
    stamp_out(48)
    A("s_endpgm")

    hM=20; hACC=24; hAD=28; hLD=29
    WO=128
    def t_addr(vw, vr, natural):
        A("s_sub_u32 s47, s3, 1"); A(f"s_mul_i32 s47, s47, {T_SZ}"); A(f"s_add_u32 s47, s47, {L_T}")
        A(f"v_lshl_add_u32 v{vw}, v0, 4, s47")
        A(f"v_bfe_u32 v{vr}, v0, 2, 2")
        if natural:
            A(f"v_lshlrev_b32 v{vr}, 7, v{vr}"); A(f"v_lshrrev_b32 v31, 4, v0"); A(f"v_mul_u32_u24 v31, {T_STR}, v31")
        else:
            A(f"v_lshrrev_b32 v31, 1, v{vr}"); A(f"v_and_b32 v{vr}, 1, v{vr}"); A(f"v_lshlrev_b32 v{vr}, 1, v{vr}"); A(f"v_lshlrev_b32 v31, 7, v31")
            A("v_lshrrev_b32 v30, 5, v0"); A(f"v_add_u32 v{vr}, v{vr}, v30"); A(f"v_mul_u32_u24 v{vr}, {T_STR}, v{vr}")
            A("v_bfe_u32 v30, v0, 4, 1"); A("v_lshl_add_u32 v31, v30, 9, v31")
        A(f"v_add3_u32 v{vr}, v{vr}, v31, s47"); A("v_and_b32 v31, 3, v0"); A(f"v_lshl_add_u32 v{vr}, v31, 3, v{vr}")
    def wo_issue(nw, gs=(0,1,2,3)):
        C("wo rows of this head, column block c = wave-1; then transpose into MFMA B fragments")
        A("s_mul_i32 s47, s31, 229376"); A("s_sub_u32 s48, s3, 1"); A("s_lshl_b32 s48, s48, 7"); A("s_add_u32 s47, s47, s48")
        A(f"s_sub_u32 s48, {4096*896}, s47")
        srd(52,12,13,"s47","s48")
        A(f"v_mul_u32_u24 v{hAD}, 896, v2"); A(f"v_lshl_add_u32 v{hAD}, v3, 4, v{hAD}")
        n=0
        for g in gs:
            for hf in range(2):
                if not wrot: A(f"s_mov_b32 s47, {7168*(8*g+4*hf)}")
                elif hf==0: A(f"s_add_u32 s47, s99, {g}"); A("s_and_b32 s47, s47, 3"); A(f"s_mul_i32 s47, s47, {7168*8}")
                else: A("s_add_u32 s47, s47, 7168")
                for r in range(4):
                    if skipwo: continue
                    if n>=nw: A(f"s_waitcnt vmcnt({nw-1})")
                    rr=WO+32*g+16*hf+4*r
                    A(f"buffer_load_dwordx4 v[{rr}:{rr+3}], v{hAD}, s[52:55], s47 offen {HF}")
                    if r<3: A("s_add_u32 s47, s47, 7168")
                    n+=1
        t_addr(hAD,hLD,False)
        A("s_waitcnt vmcnt(0)")
        for g in gs:
            for k in range(8): A(f"ds_write_b128 v{hAD}, v[{WO+32*g+4*k}:{WO+32*g+4*k+3}] offset:{T_STR*k}")
            A("s_waitcnt lgkmcnt(0)")
            for kp in range(2):
                for nu in range(4):
                    for hf in range(2):
                        rr=WO+32*g+16*kp+4*nu+2*hf
                        A(f"ds_read_b64_tr_b16 v[{rr}:{rr+1}], v{hLD} offset:{4*T_STR*kp+256*hf+32*nu}")
            A("s_waitcnt lgkmcnt(0)")
    def combine(acc, dst):
        A(f"v_permlane32_swap_b32 v{acc}, v{acc+1}"); A(f"v_permlane32_swap_b32 v{acc+2}, v{acc+3}")
        A("s_nop 1")
        A(f"v_add_f32_dpp v{dst}, v{acc+1}, v{acc} row_ror:8 row_mask:0xf bank_mask:0xf")
        A(f"v_add_f32_dpp v{dst+1}, v{acc+3}, v{acc+2} row_ror:8 row_mask:0xf bank_mask:0xf")
    def rowsel(dst, srcs):
        for k in range(1,4): A(f"v_mov_b32_dpp v{dst}, v{srcs[k]} quad_perm:[0,1,2,3] row_mask:{1<<k:#x} bank_mask:0xf")

    A("L_buf:")
    A("s_setprio 3")
    A("v_mov_b32 v32, 0"); A("v_mov_b32 v33, 1"); A(f"ds_write_b32 v32, v33 offset:{L_CTL}")
    k_setup()
    A("s_waitcnt lgkmcnt(0)")
    srd(84,6,7,"s35",1<<20)
    A("s_sub_u32 s47, s3, 4"); A("s_lshl_b32 s44, s47, 13")
    if krot: A("s_add_u32 s44, s44, s98"); wrap(44)
    A("s_lshl_b32 s47, s47, 3"); A(f"v_add_u32 v{vSW}, s47, v{vSW}")
    bar0(True)
    for i in range(R):
        if i==N0:
            srd_slots()
            A("s_cmp_lg_u32 s3, 5"); A("s_cbranch_scc1 L_notag"); A("s_cmp_lg_u32 s2, 0"); A("s_cbranch_scc1 L_notag")
            C("workgroup 0, wave 5: this launch's tag differs from the one left in d_ws; announced in d_debug[0]")
            srd(92,24,25,"0x100000",256)
            A("s_memrealtime s[62:63]")
            A(f"buffer_load_dword v32, off, s[92:95], 0 {SC}"); A("s_waitcnt vmcnt(0) lgkmcnt(0)")
            A("s_and_b32 s62, s62, 0x7ff"); A("s_add_u32 s62, s62, 1")
            A("v_add_u32 v32, s62, v32"); A("v_and_b32 v32, 0xfff, v32"); A("v_or_b32 v33, 0x1000, v32")
            A("s_mov_b64 exec, 1")
            A(f"buffer_store_dword v33, off, s[56:59], 0 {SC}")
            A(f"buffer_store_dword v32, off, s[92:95], 0 {SC}")
            A("s_mov_b64 exec, -1")
            A("L_notag:")
        if i>=N0: A(f"s_waitcnt vmcnt({N0-1})")
        r=slot(i)
        A(f"buffer_load_dwordx4 v[{r}:{r+3}], v{vK}, s[84:87], s44 offen offset:{128*(i%4)} {SF}")
        if st0 and i==0: STAMP(1)
        if i%4==3: A(f"s_add_u32 s44, s44, {4096 if i%8==3 else 4096+NB*8192}"); wrap(44)
    bar0(False)
    if not st0: STAMP(1)
    A("s_barrier")
    STAMP(2)
    A("s_setprio 0")
    q_read()
    for c in range(R):
        A(f"s_waitcnt vmcnt({R-1-c})")
        pi=c//8
        k_consume(c, None if pi==0 else L_S+8*(NB+1)*(pi-1))
    k_flush(L_S+8*(NB+1)*(NP0-1))
    A("s_sub_u32 s47, s3, 4"); A("s_lshl_b32 s47, s47, 4")
    mx_publish("s47", vR)
    A("s_cmp_eq_u32 s3, 7"); A("s_cbranch_scc1 L_mon")
    A("L_wo:")
    wo_issue(NW,(0,1) if wsplit else (0,1,2,3))
    STAMP(3)
    A("s_barrier")
    A("s_cmp_eq_u32 s3, 5"); A("s_cbranch_scc1 L_w5")
    A("s_cmp_lg_u32 s3, 6"); A("s_cbranch_scc1 L_wo2")
    C("wave 6: softmax denominator, exchange (m,l) with the other half, scale")
    A("v_mov_b32 v4, 0")
    for w in range(4): A(f"ds_read_b128 v[{64+4*w}:{64+4*w+3}], v4 offset:{L_MX+16*w}")
    A(f"v_mul_u32_u24 v5, {S_STR}, v2"); A("v_lshl_add_u32 v5, v3, 7, v5")
    for n in range(8): A(f"ds_read_b128 v[{32+4*n}:{32+4*n+3}], v5 offset:{L_S+16*n}")
    A("s_waitcnt lgkmcnt(8)")
    max16(6,64)
    A("v_mul_f32 v7, s34, v6"); A("v_sub_f32 v7, 0, v7")
    A("s_waitcnt lgkmcnt(0)")
    for k in range(32): A(f"v_fma_f32 v{32+k}, v{32+k}, s34, v7")
    for k in range(32): A(f"v_exp_f32 v{32+k}, v{32+k}")
    for st in (16,8,4,2,1):
        for k in range(st): A(f"v_add_f32 v{32+k}, v{32+k}, v{32+k+st}")
    wave_sum(32,33)
    if ltag: A(f"ds_read_b32 v16, v4 offset:{L_TAG}"); A("s_waitcnt lgkmcnt(0)")
    else: tag_wait(16)
    C("v6=M v32=l ; four words: 16-bit halves of M and l, each with a 16-bit tag")
    A("v_or_b32 v16, 0xa000, v16"); A("s_mov_b32 s47, 0xffff0000")
    A("v_and_or_b32 v8, v6, s47, v16"); A("v_lshl_or_b32 v9, v6, 16, v16"); A("v_and_or_b32 v10, v32, s47, v16"); A("v_lshl_or_b32 v11, v32, 16, v16")
    A("s_mov_b64 exec, 1")
    A(f"buffer_store_dwordx4 v[8:11], off, s[36:39], 0 offset:3840 {SC}")
    A("s_mov_b64 exec, -1")
    if mlate: A("s_branch L_wo2"); A("L_w6b:"); A("s_mov_b32 s47, 0xffff0000")
    A("s_xor_b32 s48, s32, 1"); A("s_lshl_b32 s48, s48, 12"); A("s_mov_b32 s49, 400000")
    A("L_mlp:")
    A(f"buffer_load_dwordx4 v[12:15], off, s[40:43], s48 offset:3840 {SC}"); A("s_waitcnt vmcnt(0)")
    A("v_xor_b32 v17, v12, v16")
    for r in (13,14,15): A(f"v_bitop3_b32 v17, v{r}, v16, v17 bitop3:0xbe")
    A("v_and_b32 v17, 0xffff, v17")
    A("v_cmp_ne_u32 vcc, 0, v17"); A("s_sub_u32 s49, s49, 1"); A("s_cbranch_scc1 L_mlx")
    A("s_cbranch_vccz L_mlx"); A("s_sleep 8"); A("s_branch L_mlp")
    A("L_mlx:")
    A("v_lshrrev_b32 v13, 16, v13"); A("v_lshrrev_b32 v15, 16, v15"); A("v_and_or_b32 v10, v12, s47, v13"); A("v_and_or_b32 v11, v14, s47, v15")
    A("v_max_f32 v12, v6, v10")
    A("v_sub_f32 v13, v6, v12"); A("v_sub_f32 v14, v10, v12")
    A("v_mul_f32 v13, s34, v13"); A("v_mul_f32 v14, s34, v14")
    A("v_exp_f32 v13, v13"); A("v_exp_f32 v14, v14"); A("s_nop 0")
    A("v_mul_f32 v15, v13, v32"); A("v_fma_f32 v15, v14, v11, v15")
    A("v_rcp_f32 v15, v15"); A("s_nop 0"); A("v_mul_f32 v15, v15, v13")
    A(f"ds_write_b32 v4, v15 offset:{L_SC}")
    A("s_branch L_tail" if mlate else "s_branch L_wo2")

    A("L_w5:")
    C("wave 5: tag for the other waves; x and the gathered FFN result for the final step")
    if ltag:
        A("s_cmp_ge_u32 s32, 28"); A("s_cbranch_scc1 L_wo2")
        A("v_mov_b32 v4, 0"); A(f"ds_read_b32 v78, v4 offset:{L_TAG}"); A("s_waitcnt lgkmcnt(0)")
    else:
        tag_wait(78)
        A("v_mov_b32 v4, 0"); A(f"ds_write_b32 v4, v78 offset:{L_TAG}")
        A("s_cmp_ge_u32 s32, 28"); A("s_cbranch_scc1 L_wo2")
    A("s_mul_i32 s47, s30, 896"); srd(88,4,5,"s47",896)
    g_addr(64,65,4)
    A("buffer_load_ushort v66, v65, s[88:91], 0 offen")
    A("s_mov_b32 s49, 400000"); A("s_mov_b32 s47, 65536")
    for r in range(8): A(f"v_mov_b32 v{68+r}, v78")
    A("L_bp:")
    if skipffn!=1:
        A("s_mov_b64 exec, 0xffff")
        A(f"buffer_load_dwordx4 v[68:71], v64, s[40:43], 0 offen offset:2048 {SC}")
        A("s_mov_b64 exec, -1"); A("s_waitcnt vmcnt(0)")
        g_check(68,76,78,0)
        A("s_sub_u32 s49, s49, 1"); A("s_cbranch_scc1 L_bx"); A("s_cbranch_vccz L_bx"); A("s_sleep 16"); A("s_branch L_bp")
    A("L_bx:")
    A("s_waitcnt vmcnt(0)")
    g_reduce(68,78)
    A("v_cvt_pk_bf16_f32 v67, 0, v68"); A("v_lshlrev_b32 v66, 16, v66")
    A("v_and_b32 v4, 15, v0"); A("v_lshlrev_b32 v4, 3, v4")
    A(f"ds_write_b64 v4, v[66:67] offset:{L_XB}")
    A("L_wo2:")
    if wsplit: wo_issue(NW,(2,3))
    if mlate: A("s_cmp_eq_u32 s3, 6"); A("s_cbranch_scc1 L_w6b")
    A("s_branch L_tail")

    REFS=[0,6,10,12]
    A("L_mon:")
    C("wave 7: compare this workgroup's progress with four reference workgroups and pick the streamer's depth")
    wo_issue(NW7)
    srd(40,24,25,None,1<<20)
    for k in range(4):
        A(f"s_add_u32 s47, s30, {(2*k+(k>>1))%8 if xb else 0}"); A("s_and_b32 s47, s47, 7"); A("s_lshl_b32 s47, s47, 17"); A(f"s_add_u32 s{12+k}, s47, {4096*REFS[k]+3968}")
    A(f"s_mov_b32 s51, {(~sum(1<<r for r in REFS))&0xffffffff:#x}"); A("s_lshr_b32 s51, s51, s32"); A("s_and_b32 s51, s51, 1")
    tag_wait(5)
    if ltag: A("v_mov_b32 v4, 0"); A(f"ds_write_b32 v4, v5 offset:{L_TAG}")
    A("v_lshlrev_b32 v5, 16, v5"); A("s_lshl_b32 s96, s96, 16"); A("v_mov_b32 v4, 0"); A("s_mov_b32 s50, 0"); A("s_mov_b32 s100, 0")
    if stag: A("s_bfe_u32 s16, s32, 0x10002"); A("s_bfe_u32 s17, s32, 0x10003"); A("s_xor_b32 s16, s16, s17")
    for ph,pend in (("k",PKEND),("v",PVEND)):
        A(f"L_mon{ph}:")
        A(f"ds_read_b32 v6, v4 offset:{L_PRG}"); A("s_waitcnt lgkmcnt(0)"); A("v_readfirstlane_b32 s47, v6")
        A(f"s_cmp_ge_u32 s47, {pend}"); A(f"s_cbranch_scc1 L_mon{ph}x")
        A("s_cmp_lg_u32 s47, s50"); A(f"s_cbranch_scc1 L_mon{ph}n")
        A(f"s_sleep {msleep}"); A(f"s_branch L_mon{ph}")
        A(f"L_mon{ph}n:")
        A("s_mov_b32 s50, s47")
        if PS:
            C("every fourth period up to PS, every second one after it")
            A(f"s_cmp_le_u32 s47, {PS}"); A("s_cselect_b32 s17, 3, 1"); A(f"s_cselect_b32 s18, {64-BIAS}, {32-BIAS}"); A(f"s_cselect_b32 s19, {TH4 or TH}, {TH}")
            A("s_and_b32 s48, s47, s17"); A(f"s_cbranch_scc1 L_mon{ph}")
        elif stag: A("s_add_u32 s48, s47, s16"); A(f"s_and_b32 s48, s48, {PD-1}")
        else: A(f"s_and_b32 s48, s47, {PD-1}")
        A("s_or_b32 s48, s48, s51"); A(f"s_cbranch_scc1 L_mon{ph}p")
        A("v_or_b32 v6, v5, v6")
        A("s_mov_b64 exec, 1")
        A(f"buffer_store_dword v6, off, s[36:39], 0 offset:3968 {SC}")
        A("s_mov_b64 exec, -1")
        A(f"L_mon{ph}p:")
        if RD>1 and not pulse and not PS:
            if RV and ph=="v": A(f"s_cmp_ge_u32 s47, {RV}"); A(f"s_cbranch_scc1 L_mon{ph}r")
            A(f"s_and_b32 s48, s47, {RD-1}"); A(f"s_cbranch_scc1 L_mon{ph}")
            if RV and ph=="v": A(f"L_mon{ph}r:")
        if RD>1 and pulse:
            A(f"s_and_b32 s48, s47, {RD-1}"); A(f"s_cbranch_scc0 L_mon{ph}r")
            A("s_abs_i32 s48, s100"); A(f"s_cmp_ge_i32 s48, {pulse}"); A(f"s_cbranch_scc1 L_mon{ph}")
            A("v_mov_b32 v7, 1"); A(f"ds_write_b32 v4, v7 offset:{L_CTL}"); A(f"s_branch L_mon{ph}")
            A(f"L_mon{ph}r:")
        for k in range(4): A(f"s_buffer_load_dword s{4+k}, s[40:43], s{12+k} glc")
        A("s_waitcnt lgkmcnt(0)")
        for k in range(4): A(f"s_sub_u32 s{4+k}, s{4+k}, s96")
        A("s_mov_b32 s48, s4"); A("s_mov_b32 s49, s4")
        for k in range(1,4): A(f"s_add_u32 s48, s48, s{4+k}"); A(f"s_max_u32 s49, s49, s{4+k}")
        A("s_cmp_gt_u32 s49, 63"); A(f"s_cbranch_scc1 L_mon{ph}")
        A("s_lshl_b32 s48, s48, 3")
        A("s_lshl_b32 s49, s47, 5"); A("s_sub_i32 s49, s49, s18" if PS else f"s_add_i32 s49, s49, {BIAS-32}"); A("s_sub_i32 s49, s49, s48")
        if pulse: A("s_mov_b32 s100, s49")
        if PS: A("s_cmp_gt_i32 s49, s19"); A("s_cselect_b32 s48, 0, 1"); A("s_add_i32 s49, s49, s19"); A("s_cmp_lt_i32 s49, 0"); A("s_cselect_b32 s48, 2, s48")
        else: A(f"s_cmp_gt_i32 s49, {TH}"); A("s_cselect_b32 s48, 0, 1"); A(f"s_cmp_lt_i32 s49, {-TH}"); A("s_cselect_b32 s48, 2, s48")
        A("v_mov_b32 v7, s48"); A(f"ds_write_b32 v4, v7 offset:{L_CTL}")
        A(f"s_branch L_mon{ph}")
        A(f"L_mon{ph}x:")
        if ph=="k": A("s_waitcnt lgkmcnt(0)"); STAMP(3); A("s_barrier")

    A("L_tail:")
    A(f"v_lshrrev_b32 v{hLD}, 4, v0"); A(f"v_lshlrev_b32 v{hLD}, 4, v{hLD}"); A("v_mov_b32 v30, 0")
    A(f"v_lshlrev_b32 v{hAD}, 2, v0")
    A("s_sub_u32 s48, s3, 1"); A("s_lshl_b32 s48, s48, 8")
    A("s_waitcnt vmcnt(0) lgkmcnt(0)")
    STAMP(4)
    for q in range(4):
        A("s_barrier")
        if q==3: STAMP(5)
        for ka in range(2): A(f"ds_read_b128 v[{32+8*q+4*ka}:{32+8*q+4*ka+3}], v{hLD} offset:{L_O+128*q+64*ka}")
        if q==0: A(f"ds_read_b64 v[10:11], v30 offset:{L_SC}")
        for ka in range(2):
            A(f"s_waitcnt lgkmcnt({(2 if q==0 else 1)-ka})")
            for nu in range(4):
                a=12+4*nu; w=WO+32*q+16*ka+4*nu; x=32+8*q+4*ka
                A(f"v_mfma_f32_16x16x32_bf16 v[{a}:{a+3}], v[{x}:{x+3}], v[{w}:{w+3}], {'0' if (q==0 and ka==0) else f'v[{a}:{a+3}]'}")
    A("s_nop 5")
    rowsel(12,[12,16,20,24])
    A("v_mul_f32 v12, v10, v12"); A("v_add_u32 v12, 0x800, v12"); A("v_and_or_b32 v12, v12, s97, v11")
    A(f"buffer_store_dword v12, v{hAD}, s[36:39], s48 offen {YF or SC}")
    STAMP(6)
    if pb: A("s_cmp_ge_u32 s32, 28"); A("s_cbranch_scc1 L_tend"); A("s_barrier"); A("L_tend:")
    stamp_out()
    A("s_endpgm")

    A("L_help:")
    D0=32
    def layernorm(xr, dup):
        for k in range(4):
            A(f"v_lshlrev_b32 v{8+2*k}, 16, v{xr+k}"); A(f"v_and_b32 v{9+2*k}, 0xffff0000, v{xr+k}")
        A("v_add_f32 v16, v8, v9"); A("v_add_f32 v17, v10, v11"); A("v_add_f32 v18, v12, v13"); A("v_add_f32 v19, v14, v15")
        A("v_add_f32 v16, v16, v17"); A("v_add_f32 v18, v18, v19"); A("v_add_f32 v16, v16, v18")
        wave_sum(16,17)
        A(f"v_mul_f32 v16, {f2u(1.0/448):#x}, v16")
        A("v_cmp_gt_u32 vcc, 56, v0"); A("v_cvt_pk_bf16_f32 v17, 0, v16"); A("s_nop 0")
        A("v_cndmask_b32 v16, 0, v16, vcc")
        A("v_sub_f32 v4, v8, v16"); A("v_mul_f32 v18, v4, v4")
        for k in range(1,8): A(f"v_sub_f32 v4, v{8+k}, v16"); A("v_fmac_f32 v18, v4, v4")
        wave_sum(18,19)
        A(f"v_mul_f32 v18, {f2u(1.0/448):#x}, v18")
        A("v_cvt_pk_bf16_f32 v18, 0, v18")
        A(f"v_add_f32 v18, {f2u(1e-5):#x}, v18")
        A("v_cvt_pk_bf16_f32 v18, 0, v18")
        A("v_sqrt_f32 v18, v18"); A("s_nop 0")
        A("v_cvt_pk_bf16_f32 v18, 0, v18")
        A("v_rcp_f32 v19, v18")
        for k in range(8):
            A(f"v_sub_f32 v{8+k}, v{8+k}, v17"); A(f"v_cvt_pk_bf16_f32 v{8+k}, 0, v{8+k}")
            A(f"v_mul_f32 v4, v{8+k}, v19"); A(f"v_fma_f32 v6, -v4, v18, v{8+k}")
            if dup: A("v_fma_f32 v4, v6, v19, v4"); A(f"v_cvt_pk_bf16_f32 v{8+k}, v4, v4")
            else: A(f"v_fma_f32 v{8+k}, v6, v19, v4")
        if not dup:
            for k in range(4): A(f"v_cvt_pk_bf16_f32 v{8+k}, v{8+2*k}, v{9+2*k}")
    def wq_load(t):
        A(f"buffer_load_dwordx4 v[{D0+4*t}:{D0+4*t+3}], v{hAD}, s[52:55], s48 offen {QF}")
        A("s_add_u32 s48, s48, 65536")
        if rot and t%4==3 and t<55: A(f"s_cmp_ge_u32 s48, {56*65536}"); A("s_cselect_b32 s48, 0, s48")
    def gemv56(bar_at):
        XX=[4,8]; BB=[12,16]
        A("s_waitcnt lgkmcnt(0)")
        A(f"ds_read_b128 v[4:7], v{hLD}"); A(f"ds_read_b128 v[8:11], v{hLD} offset:16")
        def bp(t):
            if t%4==0: A(f"s_waitcnt lgkmcnt({1 if t//4+1<14 else 0})")
            for r in range(4): A(f"v_and_b32 v{BB[t%2]+r}, v{XX[(t//4)%2]+t%4}, v{hM+r}")
            if t%4==3 and t//4+2<14:
                x=XX[(t//4)%2]; A(f"ds_read_b128 v[{x}:{x+3}], v{hLD} offset:{16*(t//4+2)}")
        bp(0)
        for t in range(56):
            if t+1<56: bp(t+1)
            else: A("s_nop 0")
            if t+QD<56: wq_load(t+QD)
            if t+QD==bar_at: A("s_barrier")
            A(f"s_waitcnt vmcnt({min(QD,55-t)})")
            A(f"v_mfma_f32_16x16x32_bf16 v[{hACC}:{hACC+3}], v[{D0+4*t}:{D0+4*t+3}], v[{BB[t%2]}:{BB[t%2]+3}], {'0' if t==0 else f'v[{hACC}:{hACC+3}]'}")
        A("s_nop 7")
        combine(hACC,12)
    def ln_part(wait):
        masks(hM,12,13)
        A(f"s_waitcnt vmcnt({wait})")
        layernorm(4,True)
        C("X'[e][(t - 4*rot) mod 56]")
        A("s_sub_u32 s47, s3, 1"); A(f"s_mul_i32 s47, s47, {X_SZ}"); A(f"s_add_u32 s47, s47, {L_X}")
        A("s_lshl_b32 s50, s51, 2"); A("v_subrev_u32 v5, s50, v0"); A("v_add_u32 v6, 56, v5"); A("v_min_u32 v5, v5, v6")
        A("v_cmp_lt_u32 vcc, 55, v0"); A("s_nop 1"); A("v_cndmask_b32 v5, v5, v0, vcc")
        A("v_lshl_add_u32 v5, v5, 2, s47")
        for k in range(8): A(f"ds_write_b32 v5, v{8+k} offset:{k*X_STR}")
        A(f"v_mul_u32_u24 v{hLD}, {X_STR}, v2"); A(f"v_add_u32 v{hLD}, s47, v{hLD}")
    C("q column block w-1 over all 448 rows of wq, tile order rotated by 4*s51 tiles")
    A("v_lshlrev_b32 v1, 4, v0")
    A(f"v_lshlrev_b32 v{hAD}, 13, v2"); A(f"v_lshl_add_u32 v{hAD}, v3, 4, v{hAD}")
    A("s_mul_i32 s47, s30, 896")
    A("s_lshl_b32 s48, s31, 9"); A("s_sub_u32 s49, s3, 1"); A("s_lshl_b32 s49, s49, 7"); A("s_add_u32 s48, s48, s49"); A(f"s_sub_u32 s49, {448*8192}, s48")
    if rot: A("s_mul_i32 s51, s30, 7"); A("s_lshr_b32 s51, s51, 2")
    else: A("s_mov_b32 s51, 0")
    A("s_waitcnt lgkmcnt(0)")
    srd(88,4,5,"s47",896)
    srd(52,10,11,"s48","s49")
    A("buffer_load_dwordx4 v[4:7], v1, s[88:91], 0 offen")
    if st0: STAMP(1)
    A("s_lshl_b32 s48, s51, 18")
    A("s_cmp_eq_u32 s28, 1"); A("s_cbranch_scc1 L_q1")
    for t in range(QD): wq_load(t)
    ln_part(QD); gemv56(55); A("s_branch L_q2")
    A("L_q1:")
    ln_part(0); A("s_barrier")
    for t in range(QD): wq_load(t)
    gemv56(None)
    A("L_q2:")
    C("q -> bf16 -> LDS: addr = m*128 + (4*rowq+hi)*16 + j*2 (+32 for the second register)")
    A("v_cvt_pk_bf16_f32 v12, v12, v13")
    A("v_bfe_u32 v4, v0, 4, 1"); A("v_lshrrev_b32 v5, 5, v0"); A("v_lshl_add_u32 v4, v4, 2, v5"); A("v_lshlrev_b32 v4, 4, v4"); A("v_lshl_add_u32 v4, v3, 1, v4")
    A("s_sub_u32 s47, s3, 1"); A("s_lshl_b32 s47, s47, 7"); A("v_add_u32 v4, s47, v4")
    A("s_mov_b64 exec, s[60:61]")
    A(f"ds_write_b16 v4, v12 offset:{L_Q}"); A(f"ds_write_b16_d16_hi v4, v12 offset:{L_Q+32}")
    A("s_mov_b64 exec, -1")
    A("s_waitcnt lgkmcnt(0)")
    if not st0: STAMP(1)
    A("s_barrier")
    STAMP(2)
    srd_slots()
    C("FFN, wave 1 of 2 x 28 workgroups, all 8 batches at once. Stage 0 (s50=0): h = silu(xn . w1[:, 64f..64f+63])")
    C("stage 1 (s50=1): partial result h[448r..448r+447] . w2[448r.., 64c..64c+63], f = 7r + c")
    A("s_cmp_lg_u32 s3, 1"); A("s_cbranch_scc1 L_wo")
    if skipffn==1: A("s_branch L_wo")
    A("s_cmp_lg_u32 s28, 1"); A("s_cbranch_scc1 L_wo")
    A("s_xor_b32 s47, s30, s26"); A("s_and_b32 s48, s47, 1"); A("s_cbranch_scc1 L_wo")
    A("s_bfe_u32 s50, s47, 0x10001"); A("s_lshr_b32 s47, s47, 2"); A("s_lshl_b32 s47, s47, 4"); A("s_add_u32 s51, s31, s47")
    A("s_cmp_ge_u32 s51, 28"); A("s_cbranch_scc1 L_wo")
    A("s_mul_i32 s62, s51, 37"); A("s_lshr_b32 s62, s62, 8"); A("s_mul_i32 s63, s62, 7"); A("s_sub_u32 s63, s51, s63")
    C("s62 = r, s63 = c")
    A("s_cmp_eq_u32 s50, 1"); A("s_cbranch_scc1 L_f1a")
    A("s_lshl_b32 s48, s51, 7"); A(f"s_sub_u32 s49, {448*3584}, s48"); srd(52,16,17,"s48","s49")
    A("s_mov_b32 s46, 3584")
    C("raw x of the 8 batches -> XN, then layernorm in place while the first tiles are in flight")
    srd(88,4,5,None,8*896)
    A(f"v_add_u32 v5, {L_XN}, v1"); A("v_cmp_gt_u32 vcc, 56, v0"); A("v_mov_b32 v6, 0x10000"); A("s_nop 0"); A("v_cndmask_b32 v6, v6, v1, vcc")
    for b in range(8): A(f"buffer_load_dwordx4 v[{224+4*b}:{227+4*b}], v6, s[88:91], 0 offen offset:{896*b}" if 896*b<4096 else f"buffer_load_dwordx4 v[{224+4*b}:{227+4*b}], v6, s[88:91], s46 offen offset:{896*b-3584}")
    A("s_branch L_f1b")
    A("L_f1a:")
    A(f"s_mul_i32 s48, s62, {448*896}"); A("s_lshl_b32 s49, s63, 7"); A("s_add_u32 s48, s48, s49"); A(f"s_sub_u32 s49, {1792*896}, s48"); srd(52,18,19,"s48","s49")
    A("s_mov_b32 s46, 896")
    A("L_f1b:")
    A(f"v_mul_u32_u24 v{hAD}, s46, v2"); A(f"v_lshl_add_u32 v{hAD}, v3, 4, v{hAD}")
    A("s_lshl_b32 s46, s46, 3"); A("s_mov_b32 s48, 0")
    def w_load(t):
        A(f"buffer_load_dwordx4 v[{D0+4*t}:{D0+4*t+3}], v{hAD}, s[52:55], s48 offen {WF}")
        A("s_add_u32 s48, s48, s46")
    for t in range(NF): w_load(t)
    A("s_cmp_eq_u32 s50, 1"); A("s_cbranch_scc1 L_f2")
    A(f"s_waitcnt vmcnt({NF})")
    for b in range(8): A(f"ds_write_b128 v5, v[{224+4*b}:{227+4*b}] offset:{XN_STR*b}")
    A("s_mov_b32 s49, 8")
    A("L_ln8:")
    A("s_waitcnt lgkmcnt(0)")
    A("ds_read_b128 v[20:23], v5"); A("s_waitcnt lgkmcnt(0)")
    layernorm(20,False)
    A("ds_write_b128 v5, v[8:11]")
    A(f"v_add_u32 v5, {XN_STR}, v5"); A("s_sub_u32 s49, s49, 1"); A("s_cmp_lg_u32 s49, 0"); A("s_cbranch_scc1 L_ln8")
    A("L_f2:")
    for t in range(NF,56):
        A(f"s_waitcnt vmcnt({NF-1})"); w_load(t)
    A("s_waitcnt vmcnt(0)")
    def transpose4(regs):
        for k in range(4): A(f"ds_write_b128 v{hAD}, v[{regs[k]}:{regs[k]+3}] offset:{T_STR*k}")
        A("s_waitcnt lgkmcnt(0)")
        for nu in range(4):
            for hf in range(2): A(f"ds_read_b64_tr_b16 v[{regs[nu]+2*hf}:{regs[nu]+2*hf+1}], v{hLD} offset:{512*hf+32*nu}")
        A("s_waitcnt lgkmcnt(0)")
    t_addr(hAD,hLD,True)
    for ka in range(14): transpose4([D0+16*ka+4*k for k in range(4)])
    tag_wait(1)
    A("v_or_b32 v7, 0xa000, v1")
    srd(52,24,25,None,1<<20)
    A("s_lshl_b32 s47, s51, 12"); A("s_add_u32 s47, s47, 1792")
    A("s_cmp_eq_u32 s50, 0"); A("s_cbranch_scc1 L_f3")
    C("gather h: 7 slices x 8 batches, one bf16 and a 16-bit tag per word")
    A("v_lshrrev_b32 v5, 4, v0"); A("v_and_b32 v6, 15, v0"); A("v_lshlrev_b32 v4, 17, v5"); A("v_lshl_add_u32 v4, v6, 4, v4")
    A(f"s_mul_i32 s47, s62, {7*4096}"); A("s_add_u32 s47, s47, 1792"); A("v_add_u32 v4, s47, v4")
    A(f"v_mul_u32_u24 v5, {XN_STR}, v5"); A("v_lshl_add_u32 v5, v6, 3, v5")
    A("s_mov_b32 s63, 0x07060302")
    items=[(ps,sl) for ps in range(2) for sl in range(7)]
    for rd,grp in enumerate((items[0:5],items[5:10],items[10:14])):
        A("s_mov_b32 s49, 400000")
        A(f"L_hg{rd}:")
        for k,(ps,sl) in enumerate(grp):
            A(f"s_mov_b32 s47, {ps*4*131072+sl*4096}")
            A(f"buffer_load_dwordx4 v[{8+4*k}:{11+4*k}], v4, s[52:55], s47 offen {SC}")
        A("s_waitcnt vmcnt(0)")
        A("v_xor_b32 v6, v8, v7")
        for r in range(1,4*len(grp)): A(f"v_bitop3_b32 v6, v{8+r}, v7, v6 bitop3:0xbe")
        A("v_and_b32 v6, 0xffff, v6"); A("v_cmp_ne_u32 vcc, 0, v6")
        A("s_sub_u32 s49, s49, 1"); A(f"s_cbranch_scc1 L_hx{rd}"); A(f"s_cbranch_vccz L_hx{rd}"); A(f"s_sleep {hsl}"); A(f"s_branch L_hg{rd}")
        A(f"L_hx{rd}:")
        for k,(ps,sl) in enumerate(grp):
            A(f"v_perm_b32 v{8+4*k}, v{9+4*k}, v{8+4*k}, s63"); A(f"v_perm_b32 v{9+4*k}, v{11+4*k}, v{10+4*k}, s63")
            A(f"ds_write_b64 v5, v[{8+4*k}:{9+4*k}] offset:{L_XN+4*XN_STR*ps+128*sl}")
        A("s_waitcnt lgkmcnt(0)")
    A("s_mul_i32 s63, s62, 7"); A("s_sub_u32 s63, s51, s63")
    A("s_lshl_b32 s47, s62, 12"); A("s_lshl_b32 s48, s63, 8"); A("s_add_u32 s47, s47, s48"); A("s_add_u32 s47, s47, 2048")
    A("L_f3:")
    C("A fragments: row i of the MFMA is batch (i&3) (+4 in the second pass)")
    A("v_and_b32 v30, 3, v0"); A(f"v_mul_u32_u24 v30, {XN_STR}, v30"); A("v_lshrrev_b32 v31, 4, v0"); A("v_lshl_add_u32 v30, v31, 4, v30")
    A("v_lshl_add_u32 v31, v0, 2, s47")
    for ps in range(2):
        for ka in range(14):
            A(f"ds_read_b128 v[{20+4*(ka%2)}:{23+4*(ka%2)}], v30 offset:{L_XN+4*XN_STR*ps+64*ka}"); A("s_waitcnt lgkmcnt(0)")
            for nu in range(4):
                a=4+4*nu; w=D0+16*ka+4*nu
                A(f"v_mfma_f32_16x16x32_bf16 v[{a}:{a+3}], v[{20+4*(ka%2)}:{23+4*(ka%2)}], v[{w}:{w+3}], {'0' if ka==0 else f'v[{a}:{a+3}]'}")
        for r in range(4): A(f"s_mov_b32 s{44+r}, {(4*ps+r)<<17}")
        A("s_nop 7")
        for r in range(4):
            rowsel(4+r,[4+r,8+r,12+r,16+r])
        A("s_cmp_eq_u32 s50, 1"); A(f"s_cbranch_scc1 L_f4{ps}")
        A("v_or_b32 v21, 0xa000, v1")
        for r in range(4):
            k=4+r
            A(f"v_cvt_pk_bf16_f32 v{k}, 0, v{k}")
            A(f"v_mul_f32 v20, {f2u(-math.log2(math.e)):#x}, v{k}"); A("v_exp_f32 v20, v20"); A("s_nop 0")
            A("v_add_f32 v20, 1.0, v20"); A("v_rcp_f32 v20, v20"); A("s_nop 0")
            A(f"v_mul_f32 v{k}, v{k}, v20"); A(f"v_cvt_pk_bf16_f32 v{k}, 0, v{k}"); A(f"v_or_b32 v{k}, v{k}, v21")
        A(f"s_branch L_f5{ps}")
        A(f"L_f4{ps}:")
        for r in range(4): A(f"v_add_u32 v{4+r}, 0x800, v{4+r}"); A(f"v_and_or_b32 v{4+r}, v{4+r}, s97, v1")
        A(f"L_f5{ps}:")
        for r in range(4): A(f"buffer_store_dword v{4+r}, v31, s[52:55], s{44+r} offen {SC}")
        A("s_nop 1")
    STAMP(3)
    A("s_barrier")
    wo_issue(NW7)
    A("s_branch L_tail")
    A("L_end:")
    A("s_endpgm")
    body="\n".join(("" if (l.endswith(":") or l.startswith(".")) else "    ")+l for l in L)+"\n"
    head=HEADER+f"; @launch grid=(256,1,1) block=(512,1,1) lds={L_END}\n"
    return head+body+kd(NAME,256,102,256), L_END

if __name__=="__main__":
    kw=eval("dict(%s)"%(sys.argv[2] if len(sys.argv)>2 else ""))
    t,ldsz=gen(**kw)
    out=sys.argv[1]
    if out.endswith(".s"): open(out,"w").write(t)
    else:
        assemble(t+meta([(NAME,256,102,512)]), out); print(f"work/{out}:{NAME},256,512,{ldsz}")
```

```python
import sys, math, struct
from common import *

NAME="parallel_sum__mha_block_cached__dense_activation_silu__decode_kernel"
HEADER=open("parallel_sum__mha_block_cached__dense_activation_silu__decode.s.ref").read().split("; Override launch")[0]

L_Q=0; L_MX=512; L_SC=576; L_TAG=580; L_PRG=584; L_CTL=588; L_XB=640
L_O=768
L_S=1280; S_STR=1040
L_X=L_S+8*S_STR; X_STR=272; X_SZ=8*X_STR
L_XN=L_X+4*X_SZ; XN_STR=1040
L_HP=L_XN+8*XN_STR; HP_STR=144
L_T=L_HP+8*HP_STR; T_STR=1056; T_SZ=8*T_STR
L_END=L_T+7*T_SZ
CEXP=math.log2(math.e)/16.0
def f2u(f): return struct.unpack("<I",struct.pack("<f",f))[0]

def gen(N=24, N0=10, R=48, NF=8, NW=1, NW7=4, QD=12, stamp=False, SC="sc1", HF="", QF="", SF="nt",
        rot=1, ctl=(18,24,32), ctlK=None, TH=6, BIAS=0, PD=2, RD=2, msleep=4, xb=1, dpoll=1, skipwo=0, skipffn=0, NT=None, late=1, pulse=0, st0=0, OF='', dual=0, dry=0, TS=8, SD=3, PF=None, YF=None, dps=0, pb=1, BO=0, BF=None, WF='nt', wrot=0, wsplit=1, stag=0, RV=0, PS=24, TH4=None, MS=32, mlate=1, ltag=1, hsl=32, mpoll=0, psl=0, krot=(5,1), G=0, spr=0):
    L=[]; A=L.append
    def C(s): A("    ; "+s)
    lbl=[0]
    def newl(): lbl[0]+=1; return lbl[0]
    def STAMP(i):
        if stamp: A(f"s_memrealtime s[{70+2*i}:{71+2*i}]")
    def srd(d, lo, hi, off, size):
        if off is None: A(f"s_mov_b32 s{d}, s{lo}"); A(f"s_mov_b32 s{d+1}, s{hi}")
        else: A(f"s_add_u32 s{d}, s{lo}, {off}"); A(f"s_addc_u32 s{d+1}, s{hi}, 0")
        A(f"s_mov_b32 s{d+2}, {size}"); A(f"s_mov_b32 s{d+3}, 0x20000")
    def masks(base,t0,t1):
        A(f"v_and_b32 v{t0}, 1, v3"); A(f"v_lshlrev_b32 v{t0}, 4, v{t0}"); A(f"v_mov_b32 v{t1}, 0xffff"); A(f"v_lshlrev_b32 v{t0}, v{t0}, v{t1}")
        A(f"v_lshrrev_b32 v{t1}, 1, v3")
        for r in range(4):
            A(f"v_cmp_eq_u32 vcc, {r}, v{t1}"); A("s_nop 1"); A(f"v_cndmask_b32 v{base+r}, 0, v{t0}, vcc")
    def stamp_out(tmp=4):
        if not stamp: return
        A("s_waitcnt lgkmcnt(0)")
        A("s_mov_b64 exec, 1")
        srd(64,24,25,None,0x40000000)
        A("s_lshl_b32 s68, s2, 3"); A("s_add_u32 s68, s68, s3"); A("s_lshl_b32 s68, s68, 5"); A("s_add_u32 s68, s68, 0x20000000")
        A("s_getreg_b32 s69, hwreg(HW_REG_XCC_ID)")
        for i in range(7): A(f"v_mov_b32 v{tmp+i}, s{70+2*i}")
        A(f"v_mov_b32 v{tmp+7}, s69")
        A(f"buffer_store_dwordx4 v[{tmp}:{tmp+3}], off, s[64:67], s68")
        A(f"buffer_store_dwordx4 v[{tmp+4}:{tmp+7}], off, s[64:67], s68 offset:16")
        A("s_waitcnt vmcnt(0)")
    def srd_slots():
        A("s_lshl_b32 s47, s33, 12"); srd(36,24,25,"s47",4096)
        A("s_lshl_b32 s47, s30, 17"); srd(40,24,25,"s47",131072)
        srd(56,22,23,None,256)
    def tag_wait(t):
        n=newl()
        A("s_mov_b32 s49, 400000")
        A(f"L_cw{n}:")
        A(f"buffer_load_dword v{t}, off, s[56:59], 0 {SC}"); A("s_waitcnt vmcnt(0)")
        A(f"v_cmp_eq_u32 vcc, 0, v{t}"); A("s_sub_u32 s49, s49, 1"); A(f"s_cbranch_scc1 L_cwx{n}")
        A(f"s_cbranch_vccz L_cwx{n}"); A("s_sleep 8"); A(f"s_branch L_cw{n}")
        A(f"L_cwx{n}:")
        A(f"v_and_b32 v{t}, 0xfff, v{t}"); A("s_nop 0"); A(f"v_readfirstlane_b32 s96, v{t}")
    def g_issue(off,b,vad,srdn,only28=False):
        SC=(PF or "sc1") if not only28 else "sc1"
        A(f"buffer_load_dwordx4 v[{b}:{b+3}], v{vad}, s[{srdn}:{srdn+3}], 0 offen offset:{off} {SC}")
        if only28: A("s_mov_b64 exec, s[62:63]")
        A(f"buffer_load_dwordx4 v[{b+4}:{b+7}], v{vad}, s[{srdn}:{srdn+3}], s47 offen offset:{off} {SC}")
        if only28: A("s_mov_b64 exec, -1")
    def g_check(b,t,vtag,younger):
        A(f"s_waitcnt vmcnt({younger+1})")
        A(f"v_xor_b32 v{t}, v{b}, v{vtag}")
        for r in range(1,4): A(f"v_bitop3_b32 v{t}, v{b+r}, v{vtag}, v{t} bitop3:0xbe")
        A(f"s_waitcnt vmcnt({younger})")
        for r in range(4,8): A(f"v_bitop3_b32 v{t}, v{b+r}, v{vtag}, v{t} bitop3:0xbe")
        A(f"v_and_b32 v{t}, 0xfff, v{t}")
        A(f"v_cmp_ne_u32 vcc, 0, v{t}")
    def g_reduce(b,vtag):
        for r in range(8): A(f"v_xor_b32 v{b+r}, v{b+r}, v{vtag}")
        for r in range(4): A(f"v_add_f32 v{b+r}, v{b+r}, v{b+4+r}")
        for pat in ["row_ror:4","row_ror:8"]:
            for r in range(4): A(f"v_add_f32_dpp v{b+r}, v{b+r}, v{b+r} {pat} row_mask:0xf bank_mask:0xf")
        for r in range(1,4): A(f"v_mov_b32_dpp v{b}, v{b+r} quad_perm:[0,1,2,3] row_mask:0xf bank_mask:{1<<r:#x}")
        for sw in ["16","32"]:
            A(f"v_mov_b32 v{b+1}, v{b}"); A("s_nop 1"); A(f"v_permlane{sw}_swap_b32 v{b}, v{b+1}"); A(f"v_add_f32 v{b}, v{b}, v{b+1}")
    def g_addr(vad,vcol,t):
        A(f"v_lshrrev_b32 v{vad}, 2, v0"); A(f"v_and_b32 v{t}, 3, v0"); A(f"v_and_b32 v{vcol}, 3, v{vad}")
        A(f"v_lshlrev_b32 v{vad}, 12, v{vad}"); A(f"v_lshl_add_u32 v{vad}, v{t}, 4, v{vad}")
        A("s_lshl_b32 s47, s32, 6"); A(f"v_add_u32 v{vad}, s47, v{vad}")
        A(f"v_lshl_add_u32 v{vcol}, v{t}, 2, v{vcol}"); A("s_lshl_b32 s47, s32, 5"); A(f"v_lshl_add_u32 v{vcol}, v{vcol}, 1, s47")
    def wave_sum(v,t):
        for pat in ["quad_perm:[1,0,3,2]","quad_perm:[2,3,0,1]","row_half_mirror","row_mirror"]:
            A("s_nop 1"); A(f"v_add_f32_dpp v{v}, v{v}, v{v} {pat} row_mask:0xf bank_mask:0xf")
        for sw in ["16","32"]:
            A(f"v_mov_b32 v{t}, v{v}"); A("s_nop 1"); A(f"v_permlane{sw}_swap_b32 v{v}, v{t}"); A(f"v_add_f32 v{v}, v{v}, v{t}")
    def max16(dst,b):
        A(f"v_max3_f32 v{dst}, v{b}, v{b+1}, v{b+2}")
        for k in range(3,15,2): A(f"v_max3_f32 v{dst}, v{dst}, v{b+k}, v{b+k+1}")
        A(f"v_max_f32 v{dst}, v{dst}, v{b+15}")

    A('.amdgcn_target "amdgcn-amd-amdhsa--gfx950"'); A(".text"); A(f".globl {NAME}"); A(".p2align 8"); A(f".type {NAME},@function"); A(f"{NAME}:")
    A("s_cmp_ge_u32 s2, 256"); A("s_cbranch_scc1 L_end")
    STAMP(0)
    A("s_load_dwordx16 s[4:19], s[0:1], 0")
    A("s_load_dwordx4 s[20:23], s[0:1], 64")
    A("s_load_dwordx2 s[24:25], s[0:1], 80")
    A("v_lshrrev_b32 v1, 6, v0"); A("v_and_b32 v0, 63, v0"); A("v_readfirstlane_b32 s3, v1")
    A("s_and_b32 s26, s2, 7"); A("s_lshr_b32 s27, s2, 3"); A("s_and_b32 s28, s27, 1")
    A("s_bfe_u32 s29, s27, 0x10001"); A("s_lshr_b32 s30, s27, 2")
    A("s_lshl_b32 s29, s29, 3"); A("s_add_u32 s31, s26, s29")
    A("s_lshl_b32 s32, s31, 1"); A("s_add_u32 s32, s32, s28")
    A("s_lshl_b32 s33, s30, 5"); A("s_add_u32 s33, s33, s32")
    C("s28=half s30=batch s31=head s32=2*head+half s33=32*batch+s32 ; v2=lane>>3 v3=lane&7")
    A("v_lshrrev_b32 v2, 3, v0"); A("v_and_b32 v3, 7, v0")
    A(f"s_mov_b32 s34, {f2u(CEXP):#x}")
    A("s_mov_b32 s60, 0x00ff00ff"); A("s_mov_b32 s61, 0x00ff00ff"); A("s_mov_b32 s97, 0xfffff000")
    if wrot==1: A("s_and_b32 s99, s30, 3")
    if wrot==2: A("s_lshr_b32 s99, s30, 1")
    if wrot==3: A("s_lshl_b32 s99, s28, 1"); A("s_add_u32 s99, s99, s30"); A("s_and_b32 s99, s99, 3")
    if krot:
        C("the keys are visited in rotated order: tile t is tile (t + s98/4096) mod 256 of this workgroup's range")
        sh,ml=krot if isinstance(krot,tuple) else (0,krot)
        A(f"s_lshr_b32 s98, s33, {sh}"); A(f"s_mul_i32 s98, s98, {ml}"); A("s_and_b32 s98, s98, 0xff"); A("s_lshl_b32 s98, s98, 12")
    A("s_cmp_eq_u32 s3, 0"); A("s_cbranch_scc1 L_stream")
    A("s_cmp_ge_u32 s3, 5"); A("s_cbranch_scc1 L_buf")
    A("s_branch L_help")

    RING=256-4*R
    vK=4; vV=5; vSW=6; vSR=7; vMX=8; vR=9; vR2=10; vA=[11,12]; vB=[13,14]; vQ=16
    def slot(i): return RING+4*(i%R)
    def k_consume(c, dsoff):
        p=c%8; m=p%4; acc=vA if p<4 else vB; r=slot(c)
        for k in range(4):
            src2 = "0" if (m==0 and k<2) else f"v{acc[k%2]}"
            A(f"v_dot2_f32_bf16 v{acc[k%2]}, v{r+k}, v{vQ+4*m+k}, {src2}")
        prev = dsoff is not None
        if p==0 and prev: A(f"v_add_f32 v{vB[0]}, v{vB[0]}, v{vB[1]}")
        if p==1 and prev: A(f"v_add_f32_dpp v{vR}, v{vB[0]}, v{vB[0]} row_half_mirror row_mask:0xf bank_mask:0xa")
        if p==2 and prev: A(f"v_add_f32_dpp v{vR}, v{vR}, v{vR} quad_perm:[1,0,3,2] row_mask:0xf bank_mask:0xf")
        if p==3 and prev: A(f"v_add_f32_dpp v{vR}, v{vR}, v{vR} quad_perm:[2,3,0,1] row_mask:0xf bank_mask:0xf")
        if p==4:
            if prev: A(f"v_cvt_pk_bf16_f32 v{vR2}, 0, v{vR}")
            A(f"v_add_f32 v{vA[0]}, v{vA[0]}, v{vA[1]}")
        if p==5:
            if prev: A(f"v_max_f32 v{vMX}, v{vMX}, v{vR2}"); A(f"ds_write_b32 v{vSW}, v{vR2} offset:{dsoff}")
            A(f"v_add_f32_dpp v{vR}, v{vA[0]}, v{vA[0]} row_half_mirror row_mask:0xf bank_mask:0x5")
    def k_flush(dsoff):
        A("s_nop 2"); A(f"v_add_f32 v{vB[0]}, v{vB[0]}, v{vB[1]}"); A("s_nop 1")
        A(f"v_add_f32_dpp v{vR}, v{vB[0]}, v{vB[0]} row_half_mirror row_mask:0xf bank_mask:0xa"); A("s_nop 1")
        A(f"v_add_f32_dpp v{vR}, v{vR}, v{vR} quad_perm:[1,0,3,2] row_mask:0xf bank_mask:0xf"); A("s_nop 1")
        A(f"v_add_f32_dpp v{vR}, v{vR}, v{vR} quad_perm:[2,3,0,1] row_mask:0xf bank_mask:0xf")
        A(f"v_cvt_pk_bf16_f32 v{vR2}, 0, v{vR}")
        A(f"v_max_f32 v{vMX}, v{vMX}, v{vR2}"); A(f"ds_write_b32 v{vSW}, v{vR2} offset:{dsoff}")
    def mx_publish(w, tmp):
        A("s_nop 1")
        A(f"v_max_f32_dpp v{vMX}, v{vMX}, v{vMX} row_ror:4 row_mask:0xf bank_mask:0xf"); A("s_nop 1")
        A(f"v_max_f32_dpp v{vMX}, v{vMX}, v{vMX} row_ror:8 row_mask:0xf bank_mask:0xf")
        A(f"v_lshrrev_b32 v{tmp}, 4, v0"); A(f"v_lshlrev_b32 v{tmp}, 2, v{tmp}")
        if isinstance(w,int): A(f"ds_write_b32 v{tmp}, v{vMX} offset:{L_MX+16*w}")
        else: A(f"v_add_u32 v{tmp}, {w}, v{tmp}"); A(f"ds_write_b32 v{tmp}, v{vMX} offset:{L_MX}")
    def k_setup():
        A(f"v_lshlrev_b32 v{vK}, 9, v2"); A(f"v_lshl_add_u32 v{vK}, v3, 4, v{vK}")
        A(f"v_mul_u32_u24 v{vSW}, {S_STR}, v2"); A(f"v_lshrrev_b32 v{vSR}, 2, v3"); A(f"v_lshl_add_u32 v{vSW}, v{vSR}, 2, v{vSW}")
        A(f"v_mov_b32 v{vMX}, 0xff800000")
        A("s_lshl_b32 s35, s33, 20")
    def q_read():
        A(f"v_lshlrev_b32 v{vR}, 4, v3")
        for m in range(4): A(f"ds_read_b128 v[{vQ+4*m}:{vQ+4*m+3}], v{vR} offset:{L_Q+128*m}")
        A("s_waitcnt lgkmcnt(0)")
    def bar0(first):
        n=newl()
        A(f"s_cmp_eq_u32 s28, {1 if first else 0}"); A(f"s_cbranch_scc1 L_b0_{n}"); A("s_barrier"); A(f"L_b0_{n}:")
    NP0=R//8; NB=3
    NKS=1024-NB*R
    NTOT=NKS+1024
    NT=NT or N

    A("L_stream:")
    A("s_setprio 3")
    k_setup()
    A(f"v_mov_b32 v{vV}, v{vK}")
    vVq=[60,61,62,63]
    if wrot:
        C("logical quarter g of d is physical quarter (g + s99) & 3")
        for q in range(4):
            A(f"s_add_u32 s47, s99, {q}"); A("s_and_b32 s47, s47, 3"); A("s_lshl_b32 s47, s47, 7"); A(f"v_add_u32 v{vVq[q]}, s47, v{vK}")
    vZ=36; vPC=37; vPP=38
    A(f"v_mov_b32 v{vZ}, 0"); A(f"ds_write_b32 v{vZ}, v{vZ} offset:{L_PRG}")
    A("s_waitcnt lgkmcnt(0)")
    srd(36,6,7,"s35",1<<20); srd(40,8,9,"s35",1<<20)
    A(f"s_mov_b32 s44, {'s98' if krot else 0}"); A(f"s_mov_b32 s45, {'s98' if krot else 0}"); A("s_mov_b32 s50, 2")
    def wrap(r):
        if krot: A(f"s_and_b32 s{r}, s{r}, 0xfffff")
    U1=1024-4*TS
    def vmap(u):
        if u<U1: return u//4, u%4
        v=u-U1
        return 256-TS+v%TS, v//TS
    def vgrp(u): return (u//4, u%4, 4) if u<U1 else (U1//4+(u-U1), 0, 1)
    def phys(T):
        if not G or T>=(256//G)*G: return T
        g,l=divmod(T,G); h=G//2
        return g*G+(2*l if l<h else 2*(l-h)+1)
    def issue(i):
        r=slot(i)
        if i<NKS:
            A(f"buffer_load_dwordx4 v[{r}:{r+3}], v{vK}, s[36:39], s44 offen offset:{128*(i%4)} {SF}")
            if i%4==3 and i<R: A(f"s_add_u32 s44, s44, {4096+NB*8192 if i%8==7 else 4096}"); wrap(44)
            elif i%4==3:
                T=i//4+NB*R//4; d=phys(T+1)-phys(T)
                A(f"s_add_u32 s44, s44, {4096*d}" if d>0 else f"s_sub_u32 s44, s44, {-4096*d}"); wrap(44)
        elif i<NTOT:
            u=i-NKS; tile,q=vmap(u)
            if wrot: A(f"buffer_load_dwordx4 v[{r}:{r+3}], v{vVq[q]}, s[40:43], s45 offen {SF}")
            else: A(f"buffer_load_dwordx4 v[{r}:{r+3}], v{vV}, s[40:43], s45 offen offset:{128*q} {SF}")
            if u+1<1024:
                d=phys(vmap(u+1)[0])-phys(tile)
                if d>0: A(f"s_add_u32 s45, s45, {4096*d}"); wrap(45)
                if d<0: A(f"s_sub_u32 s45, s45, {-4096*d}"); wrap(45)
    DK=R-1
    bar0(True)
    for i in range(DK):
        if i>=N0: A(f"s_waitcnt vmcnt({N0-1})")
        issue(i)
        if st0 and i==0: STAMP(1)
        if i==N0-1:
            A("s_lshl_b32 s47, s30, 17"); srd(52,24,25,"s47",131072)
            A("s_mul_i32 s47, s30, 896"); srd(92,20,21,"s47",896)
    bar0(False)
    if not st0: STAMP(1)
    A("s_barrier")
    STAMP(2)
    q_read()
    cur=[None]
    def pair_T(pi): return 2*((NB+1)*pi) if pi<NP0 else 2*((NB+1)*NP0+(pi-NP0))
    def kstep(c, dsbase):
        I=c+DK
        A(f"s_waitcnt vmcnt({min((cur[0] or N)-1,I-c-1)})")
        issue(I)
        pi=c//8
        k_consume(c, None if pi==0 else L_S+4*pair_T(pi-1)-dsbase)
    for c in range(0,2*R): kstep(c,0)
    nK=(NKS-DK-2*R)//R
    A(f"s_mov_b32 s46, {nK}")
    def loop_variants(tag, body, post, zr, cr, pr, lv):
        for v in (1,0,2):
            A(f"L_{tag}{v}:")
            rd=f"ds_read_b32 v{cr}, v{zr} offset:{L_CTL}"
            if not late: A(rd)
            m0=len(L)
            cur[0]=lv[v]; body(); cur[0]=None
            if late:
                w=[i for i in range(m0,len(L)) if L[i].startswith("s_waitcnt vmcnt")]
                assert len(w)==R
                L.insert(w[R-3],rd)
                if MS:
                    o=[x for x in range(len(lv)) if x!=v]
                    sw=["s_waitcnt lgkmcnt(0)", f"v_readfirstlane_b32 s48, v{cr}"]
                    for x in o: sw+=[f"s_cmp_eq_u32 s48, {x}", f"s_cbranch_scc1 L_{tag}m{x}"]
                    sw+=[f"L_{tag}m{v}:"]
                    L[w[MS]:w[MS]]=sw
                    L.insert(w[MS-3],rd)
            post()
            A("s_add_u32 s50, s50, 1"); A(f"v_mov_b32 v{pr}, s50")
            A("s_waitcnt lgkmcnt(0)")
            A(f"v_readfirstlane_b32 s48, v{cr}")
            A(f"ds_write_b32 v{zr}, v{pr} offset:{L_PRG}")
            A("s_sub_u32 s46, s46, 1"); A("s_cmp_eq_u32 s46, 0"); A(f"s_cbranch_scc1 L_{tag}x")
            o=[w for w in (0,1,2) if w!=v]
            A(f"s_cmp_eq_u32 s48, {v}"); A(f"s_cbranch_scc1 L_{tag}{v}")
            A(f"s_cmp_eq_u32 s48, {o[0]}"); A(f"s_cbranch_scc1 L_{tag}{o[0]}")
            A(f"s_branch L_{tag}{o[1]}")
        A(f"L_{tag}x:")
    def kbody():
        for c in range(2*R,3*R): kstep(c,0)
    loop_variants("kloop", kbody, lambda: A(f"v_add_u32 v{vSW}, {R}, v{vSW}"), vZ, vPC, vPP, ctlK or ctl)
    dsb=nK*R
    for c in range((2+nK)*R,NKS): kstep(c,dsb)
    k_flush(L_S+4*pair_T(NKS//8-1)-dsb)
    mx_publish(0, vR)
    vM=[12,13,14,15]; vNM=11; vT=9; vP=10; vACC=16; vBB=[32,36]; vSS=[40,44,48]; vTM=52
    masks(vM[0], vTM, vTM+1)
    A(f"v_mul_u32_u24 v{vSR}, {S_STR}, v2")
    A(f"v_mov_b32 v{vT}, 0")
    A("s_waitcnt lgkmcnt(0)")
    STAMP(3)
    A("s_barrier")
    for w in range(4): A(f"ds_read_b128 v[{16+4*w}:{16+4*w+3}], v{vT} offset:{L_MX+16*w}")
    A(f"ds_read_b128 v[{vSS[0]}:{vSS[0]+3}], v{vSR} offset:{L_S}")
    inext=[NKS+DK]
    A(f"s_waitcnt vmcnt({N-1})")
    issue(inext[0]); inext[0]+=1
    A("s_waitcnt lgkmcnt(0)")
    max16(vNM,16)
    A(f"v_mul_f32 v{vNM}, s34, v{vNM}"); A(f"v_sub_f32 v{vNM}, 0, v{vNM}")
    for r in range(16): A(f"v_mov_b32 v{vACC+r}, 0")
    def bfree(tile):
        return slot(NTOT+(tile-(256-TS))+BO)
    def bprep(tile, part, gi=None):
        s=vSS[(tile//4)%3]+tile%4; b=vBB[(tile if gi is None else gi)%2]
        if tile>=256-TS: b=bfree(tile)
        if part==0: A(f"v_fma_f32 v{vT}, v{s}, s34, v{vNM}")
        if part==1: A(f"v_exp_f32 v{vT}, v{vT}")
        if part==2: A(f"v_cvt_pk_bf16_f32 v{vP}, v{vT}, v{vT}"); A(f"v_and_b32 v{b}, v{vP}, v{vM[0]}")
        if part==3:
            for r in range(1,4): A(f"v_and_b32 v{b+r}, v{vP}, v{vM[r]}")
    bprep(0,0); bprep(0,1); A("s_nop 0"); bprep(0,2); bprep(0,3); A("s_nop 1")
    def o_write(q):
        a=vACC+4*q
        A(f"v_permlane32_swap_b32 v{a}, v{a+1}"); A(f"v_permlane32_swap_b32 v{a+2}, v{a+3}")
        A("s_nop 1")
        A(f"v_add_f32_dpp v{vTM}, v{a+1}, v{a} row_ror:8 row_mask:0xf bank_mask:0xf")
        A(f"v_add_f32_dpp v{vTM+1}, v{a+3}, v{a+2} row_ror:8 row_mask:0xf bank_mask:0xf")
        A(f"v_cvt_pk_bf16_f32 v{vTM}, v{vTM}, v{vTM+1}")
        A("s_mov_b64 exec, s[60:61]")
        A(f"ds_write_b32 v8, v{vTM} offset:{L_O+128*q}")
        A("s_mov_b64 exec, -1")
    def vstep(u, srbase, do_issue=True):
        c=NKS+u; I=inext[0]; mark=len(L)
        if do_issue and I<NTOT:
            A(f"s_waitcnt vmcnt({min((cur[0] or N)-1,I-c-1)})")
            assert I-R < c
            issue(I); inext[0]+=1
        else:
            k=I-c-1
            if k<max(N,NT): A(f"s_waitcnt vmcnt({k})")
        tile,q=vmap(u); gi,pos,n=vgrp(u); r=slot(c); b=vBB[gi%2]
        if tile>=256-TS:
            b=bfree(tile)
        if q==0 and tile%4==0 and tile+4<256:
            nb=vSS[(tile//4+1)%3]
            A(f"ds_read_b128 v[{nb}:{nb+3}], v{vSR} offset:{L_S+4*(tile+4)-srbase}")
        if q==0 and tile%4==3 and tile+1<256: A("s_waitcnt lgkmcnt(0)")
        a=vACC+4*q
        if pos==0 and len(L)-mark<2: A(f"s_nop {1-(len(L)-mark)}")
        A(f"v_mfma_f32_16x16x32_bf16 v[{a}:{a+3}], v[{r}:{r+3}], v[{b}:{b+3}], v[{a}:{a+3}]")
        un=u-pos+n
        if un<1024:
            if n==4: bprep(vmap(un)[0],pos,gi+1)
            elif vmap(un)[1]==0:
                for part in range(4):
                    bprep(vmap(un)[0],part,gi+1)
                    if part==1: A("s_nop 0")
        for qq in range(3):
            if u==U1+(qq+1)*TS-1+SD: o_write(qq)
            if u==U1+(qq+1)*TS+SD: A("s_waitcnt lgkmcnt(0)"); A("s_barrier")
    u=0; DV=max(max(ctl),NT)
    while True:
        D=inext[0]-(NKS+u)
        if D<=DV and u%R==0: break
        if D>DV:
            vstep(u,0,False); u+=1
            D=inext[0]-(NKS+u)
            if D>DV or u%R!=0: vstep(u,0,True); u+=1
        else:
            vstep(u,0,True); u+=1
    assert inext[0]-(NKS+u)==DV and (R//16)%3==0 and R%16==0
    u0=u; PKEND=2+nK; PV0=(inext[0]+R//2)//R-1
    nV=(1024-DV-u0)//R
    while u0+nV*R+16>1024: nV-=1
    PVEND=PV0+nV
    assert u0+DV+nV*R<=U1
    A(f"s_mov_b32 s46, {nV}"); A("v_mov_b32 v6, 0"); A(f"s_mov_b32 s50, {PV0}")
    i0=inext[0]
    def vbody():
        inext[0]=i0
        for uu in range(u0,u0+R): vstep(uu,0,True)
    loop_variants("vloop", vbody, lambda: A(f"v_add_u32 v{vSR}, {R}, v{vSR}"), 6, 4, 8, ctl)
    inext[0]=i0+nV*R
    cur[0]=NT
    C("addresses for the tail: v4 gather address, v6 output offset, v8 O' address")
    g_addr(4,6,8)
    A("v_bfe_u32 v8, v0, 4, 1"); A("v_lshlrev_b32 v8, 6, v8"); A("v_lshrrev_b32 v52, 5, v0"); A("v_lshl_add_u32 v8, v52, 5, v8"); A("v_lshl_add_u32 v8, v3, 2, v8")
    A("s_mov_b32 s47, 65536"); A("s_mov_b32 s49, 400000")
    for uu in range(u0+nV*R,1024): vstep(uu,nV*R,True)
    cur[0]=None
    STAMP(4)
    A("v_and_b32 v7, 15, v0"); A("v_lshlrev_b32 v7, 3, v7"); A("v_mov_b32 v5, 0")
    A("s_nop 4")
    o_write(3)
    A("s_waitcnt lgkmcnt(0)")
    A("s_barrier")
    STAMP(5)
    A("s_cmp_ge_u32 s32, 28"); A("s_cbranch_scc1 L_sdone")
    C("final: 16 output columns = sum over the 32 workgroups of this batch")
    A(f"ds_read_b32 v12, v5 offset:{L_TAG}")
    A(f"ds_read_b64 v[14:15], v7 offset:{L_XB}")
    if pb: A("s_barrier")
    if mpoll:
        C("only the lanes whose words do not carry the tag yet are loaded again")
        g_issue(0,16,4,52)
        A("s_waitcnt lgkmcnt(0)")
        A("L_fp:")
        for k,(b0,dst) in enumerate(((16,"s[62:63]"),(20,"vcc"))):
            A(f"s_waitcnt vmcnt({1-k if False else 0})") if k==0 else None
            A(f"v_xor_b32 v13, v{b0}, v12")
            for r in range(1,4): A(f"v_bitop3_b32 v13, v{b0+r}, v12, v13 bitop3:0xbe")
            A("v_and_b32 v13, 0xfff, v13"); A(f"v_cmp_ne_u32 {dst}, 0, v13")
        A("s_sub_u32 s49, s49, 1"); A("s_cbranch_scc1 L_fa")
        A("s_or_b64 s[64:65], s[62:63], vcc"); A("s_cbranch_scc0 L_fa")
        if psl: A(f"s_sleep {psl}")
        A("s_mov_b64 exec, s[62:63]"); A("s_cbranch_execz L_fq")
        A(f"buffer_load_dwordx4 v[16:19], v4, s[52:55], 0 offen {SC}")
        A("L_fq:")
        A("s_mov_b64 exec, vcc"); A("s_cbranch_execz L_fr")
        A(f"buffer_load_dwordx4 v[20:23], v4, s[52:55], s47 offen {SC}")
        A("L_fr:")
        A("s_mov_b64 exec, -1")
        A("s_branch L_fp")
        dpoll=0
    else:
        g_issue(0,16,4,52)
        if dpoll:
            if dps: A(f"s_sleep {dps}")
            g_issue(0,32,4,52)
        A("s_waitcnt lgkmcnt(0)")
        A("L_fp:")
        g_check(16,13,12,2 if dpoll else 0)
        A("s_sub_u32 s49, s49, 1"); A("s_cbranch_scc1 L_fa"); A("s_cbranch_vccz L_fa")
        g_issue(0,16,4,52)
        if dpoll:
            g_check(32,13,12,2)
            A("s_cbranch_vccz L_fb")
            g_issue(0,32,4,52)
        A("s_branch L_fp")
    def final(b):
        g_reduce(b,12)
        A(f"v_cvt_pk_bf16_f32 v{b}, 0, v{b}"); A(f"v_add_f32 v{b}, v14, v{b}"); A(f"v_cvt_pk_bf16_f32 v{b}, 0, v{b}"); A(f"v_add_f32 v{b}, v{b}, v15")
        A(f"v_cvt_pk_bf16_f32 v{b}, v{b}, v{b}")
        A("s_mov_b64 exec, 0xffff")
        A(f"buffer_store_short v{b}, v6, s[92:95], 0 offen {OF}")
    if dpoll:
        A("L_fb:"); final(32); A("s_branch L_sdone")
    A("L_fa:"); final(16)
    A("L_sdone:")
    STAMP(6)
    stamp_out(48)
    A("s_endpgm")

    hM=20; hACC=24; hAD=28; hLD=29
    WO=128
    def t_addr(vw, vr, natural):
        A("s_sub_u32 s47, s3, 1"); A(f"s_mul_i32 s47, s47, {T_SZ}"); A(f"s_add_u32 s47, s47, {L_T}")
        A(f"v_lshl_add_u32 v{vw}, v0, 4, s47")
        A(f"v_bfe_u32 v{vr}, v0, 2, 2")
        if natural:
            A(f"v_lshlrev_b32 v{vr}, 7, v{vr}"); A(f"v_lshrrev_b32 v31, 4, v0"); A(f"v_mul_u32_u24 v31, {T_STR}, v31")
        else:
            A(f"v_lshrrev_b32 v31, 1, v{vr}"); A(f"v_and_b32 v{vr}, 1, v{vr}"); A(f"v_lshlrev_b32 v{vr}, 1, v{vr}"); A(f"v_lshlrev_b32 v31, 7, v31")
            A("v_lshrrev_b32 v30, 5, v0"); A(f"v_add_u32 v{vr}, v{vr}, v30"); A(f"v_mul_u32_u24 v{vr}, {T_STR}, v{vr}")
            A("v_bfe_u32 v30, v0, 4, 1"); A("v_lshl_add_u32 v31, v30, 9, v31")
        A(f"v_add3_u32 v{vr}, v{vr}, v31, s47"); A("v_and_b32 v31, 3, v0"); A(f"v_lshl_add_u32 v{vr}, v31, 3, v{vr}")
    def wo_issue(nw, gs=(0,1,2,3)):
        C("wo rows of this head, column block c = wave-1; then transpose into MFMA B fragments")
        A("s_mul_i32 s47, s31, 229376"); A("s_sub_u32 s48, s3, 1"); A("s_lshl_b32 s48, s48, 7"); A("s_add_u32 s47, s47, s48")
        A(f"s_sub_u32 s48, {4096*896}, s47")
        srd(52,12,13,"s47","s48")
        A(f"v_mul_u32_u24 v{hAD}, 896, v2"); A(f"v_lshl_add_u32 v{hAD}, v3, 4, v{hAD}")
        n=0
        for g in gs:
            for hf in range(2):
                if not wrot: A(f"s_mov_b32 s47, {7168*(8*g+4*hf)}")
                elif hf==0: A(f"s_add_u32 s47, s99, {g}"); A("s_and_b32 s47, s47, 3"); A(f"s_mul_i32 s47, s47, {7168*8}")
                else: A("s_add_u32 s47, s47, 7168")
                for r in range(4):
                    if skipwo: continue
                    if n>=nw: A(f"s_waitcnt vmcnt({nw-1})")
                    rr=WO+32*g+16*hf+4*r
                    A(f"buffer_load_dwordx4 v[{rr}:{rr+3}], v{hAD}, s[52:55], s47 offen {HF}")
                    if r<3: A("s_add_u32 s47, s47, 7168")
                    n+=1
        t_addr(hAD,hLD,False)
        A("s_waitcnt vmcnt(0)")
        for g in gs:
            for k in range(8): A(f"ds_write_b128 v{hAD}, v[{WO+32*g+4*k}:{WO+32*g+4*k+3}] offset:{T_STR*k}")
            A("s_waitcnt lgkmcnt(0)")
            for kp in range(2):
                for nu in range(4):
                    for hf in range(2):
                        rr=WO+32*g+16*kp+4*nu+2*hf
                        A(f"ds_read_b64_tr_b16 v[{rr}:{rr+1}], v{hLD} offset:{4*T_STR*kp+256*hf+32*nu}")
            A("s_waitcnt lgkmcnt(0)")
    def combine(acc, dst):
        A(f"v_permlane32_swap_b32 v{acc}, v{acc+1}"); A(f"v_permlane32_swap_b32 v{acc+2}, v{acc+3}")
        A("s_nop 1")
        A(f"v_add_f32_dpp v{dst}, v{acc+1}, v{acc} row_ror:8 row_mask:0xf bank_mask:0xf")
        A(f"v_add_f32_dpp v{dst+1}, v{acc+3}, v{acc+2} row_ror:8 row_mask:0xf bank_mask:0xf")
    def rowsel(dst, srcs):
        for k in range(1,4): A(f"v_mov_b32_dpp v{dst}, v{srcs[k]} quad_perm:[0,1,2,3] row_mask:{1<<k:#x} bank_mask:0xf")

    A("L_buf:")
    A("s_setprio 3")
    A("v_mov_b32 v32, 0"); A("v_mov_b32 v33, 1"); A(f"ds_write_b32 v32, v33 offset:{L_CTL}")
    k_setup()
    A("s_waitcnt lgkmcnt(0)")
    srd(84,6,7,"s35",1<<20)
    A("s_sub_u32 s47, s3, 4"); A("s_lshl_b32 s44, s47, 13")
    if krot: A("s_add_u32 s44, s44, s98"); wrap(44)
    A("s_lshl_b32 s47, s47, 3"); A(f"v_add_u32 v{vSW}, s47, v{vSW}")
    bar0(True)
    for i in range(R):
        if i==N0:
            srd_slots()
            A("s_cmp_lg_u32 s3, 5"); A("s_cbranch_scc1 L_notag"); A("s_cmp_lg_u32 s2, 0"); A("s_cbranch_scc1 L_notag")
            C("workgroup 0, wave 5: this launch's tag differs from the one left in d_ws; announced in d_debug[0]")
            srd(92,24,25,"0x100000",256)
            A("s_memrealtime s[62:63]")
            A(f"buffer_load_dword v32, off, s[92:95], 0 {SC}"); A("s_waitcnt vmcnt(0) lgkmcnt(0)")
            A("s_and_b32 s62, s62, 0x7ff"); A("s_add_u32 s62, s62, 1")
            A("v_add_u32 v32, s62, v32"); A("v_and_b32 v32, 0xfff, v32"); A("v_or_b32 v33, 0x1000, v32")
            A("s_mov_b64 exec, 1")
            A(f"buffer_store_dword v33, off, s[56:59], 0 {SC}")
            A(f"buffer_store_dword v32, off, s[92:95], 0 {SC}")
            A("s_mov_b64 exec, -1")
            A("L_notag:")
        if i>=N0: A(f"s_waitcnt vmcnt({N0-1})")
        r=slot(i)
        A(f"buffer_load_dwordx4 v[{r}:{r+3}], v{vK}, s[84:87], s44 offen offset:{128*(i%4)} {SF}")
        if st0 and i==0: STAMP(1)
        if i%4==3: A(f"s_add_u32 s44, s44, {4096 if i%8==3 else 4096+NB*8192}"); wrap(44)
    bar0(False)
    if not st0: STAMP(1)
    A("s_barrier")
    STAMP(2)
    A("s_setprio 0")
    q_read()
    for c in range(R):
        A(f"s_waitcnt vmcnt({R-1-c})")
        pi=c//8
        k_consume(c, None if pi==0 else L_S+8*(NB+1)*(pi-1))
    k_flush(L_S+8*(NB+1)*(NP0-1))
    A("s_sub_u32 s47, s3, 4"); A("s_lshl_b32 s47, s47, 4")
    mx_publish("s47", vR)
    A("s_cmp_eq_u32 s3, 7"); A("s_cbranch_scc1 L_mon")
    A("L_wo:")
    wo_issue(NW,(0,1) if wsplit else (0,1,2,3))
    STAMP(3)
    A("s_barrier")
    A("s_cmp_eq_u32 s3, 5"); A("s_cbranch_scc1 L_w5")
    A("s_cmp_lg_u32 s3, 6"); A("s_cbranch_scc1 L_wo2")
    C("wave 6: softmax denominator, exchange (m,l) with the other half, scale")
    A("v_mov_b32 v4, 0")
    for w in range(4): A(f"ds_read_b128 v[{64+4*w}:{64+4*w+3}], v4 offset:{L_MX+16*w}")
    A(f"v_mul_u32_u24 v5, {S_STR}, v2"); A("v_lshl_add_u32 v5, v3, 7, v5")
    for n in range(8): A(f"ds_read_b128 v[{32+4*n}:{32+4*n+3}], v5 offset:{L_S+16*n}")
    A("s_waitcnt lgkmcnt(8)")
    max16(6,64)
    A("v_mul_f32 v7, s34, v6"); A("v_sub_f32 v7, 0, v7")
    A("s_waitcnt lgkmcnt(0)")
    for k in range(32): A(f"v_fma_f32 v{32+k}, v{32+k}, s34, v7")
    for k in range(32): A(f"v_exp_f32 v{32+k}, v{32+k}")
    for st in (16,8,4,2,1):
        for k in range(st): A(f"v_add_f32 v{32+k}, v{32+k}, v{32+k+st}")
    wave_sum(32,33)
    if ltag: A(f"ds_read_b32 v16, v4 offset:{L_TAG}"); A("s_waitcnt lgkmcnt(0)")
    else: tag_wait(16)
    C("v6=M v32=l ; four words: 16-bit halves of M and l, each with a 16-bit tag")
    A("v_or_b32 v16, 0xa000, v16"); A("s_mov_b32 s47, 0xffff0000")
    A("v_and_or_b32 v8, v6, s47, v16"); A("v_lshl_or_b32 v9, v6, 16, v16"); A("v_and_or_b32 v10, v32, s47, v16"); A("v_lshl_or_b32 v11, v32, 16, v16")
    A("s_mov_b64 exec, 1")
    if spr:
        C("position of the (m,l) words in the slots of this pair: spread over memory channels")
        A("s_lshr_b32 s62, s32, 1"); A("s_xor_b32 s62, s62, s30"); A("s_and_b32 s62, s62, 3"); A("s_lshl_b32 s62, s62, 8"); A("s_add_u32 s62, s62, 2048")
        A("s_cmp_lt_u32 s32, 4"); A("s_cselect_b32 s62, 3840, s62")
        A(f"buffer_store_dwordx4 v[8:11], off, s[36:39], s62 {SC}")
    else: A(f"buffer_store_dwordx4 v[8:11], off, s[36:39], 0 offset:3840 {SC}")
    A("s_mov_b64 exec, -1")
    if mlate: A("s_branch L_wo2"); A("L_w6b:"); A("s_mov_b32 s47, 0xffff0000")
    A("s_xor_b32 s48, s32, 1"); A("s_lshl_b32 s48, s48, 12"); A("s_mov_b32 s49, 400000")
    if spr: A("s_add_u32 s48, s48, s62")
    A("L_mlp:")
    A(f"buffer_load_dwordx4 v[12:15], off, s[40:43], s48 offset:{0 if spr else 3840} {SC}"); A("s_waitcnt vmcnt(0)")
    A("v_xor_b32 v17, v12, v16")
    for r in (13,14,15): A(f"v_bitop3_b32 v17, v{r}, v16, v17 bitop3:0xbe")
    A("v_and_b32 v17, 0xffff, v17")
    A("v_cmp_ne_u32 vcc, 0, v17"); A("s_sub_u32 s49, s49, 1"); A("s_cbranch_scc1 L_mlx")
    A("s_cbranch_vccz L_mlx"); A("s_sleep 8"); A("s_branch L_mlp")
    A("L_mlx:")
    A("v_lshrrev_b32 v13, 16, v13"); A("v_lshrrev_b32 v15, 16, v15"); A("v_and_or_b32 v10, v12, s47, v13"); A("v_and_or_b32 v11, v14, s47, v15")
    A("v_max_f32 v12, v6, v10")
    A("v_sub_f32 v13, v6, v12"); A("v_sub_f32 v14, v10, v12")
    A("v_mul_f32 v13, s34, v13"); A("v_mul_f32 v14, s34, v14")
    A("v_exp_f32 v13, v13"); A("v_exp_f32 v14, v14"); A("s_nop 0")
    A("v_mul_f32 v15, v13, v32"); A("v_fma_f32 v15, v14, v11, v15")
    A("v_rcp_f32 v15, v15"); A("s_nop 0"); A("v_mul_f32 v15, v15, v13")
    A(f"ds_write_b32 v4, v15 offset:{L_SC}")
    A("s_branch L_tail" if mlate else "s_branch L_wo2")

    A("L_w5:")
    C("wave 5: tag for the other waves; x and the gathered FFN result for the final step")
    if ltag:
        A("s_cmp_ge_u32 s32, 28"); A("s_cbranch_scc1 L_wo2")
        A("v_mov_b32 v4, 0"); A(f"ds_read_b32 v78, v4 offset:{L_TAG}"); A("s_waitcnt lgkmcnt(0)")
    else:
        tag_wait(78)
        A("v_mov_b32 v4, 0"); A(f"ds_write_b32 v4, v78 offset:{L_TAG}")
        A("s_cmp_ge_u32 s32, 28"); A("s_cbranch_scc1 L_wo2")
    A("s_mul_i32 s47, s30, 896"); srd(88,4,5,"s47",896)
    g_addr(64,65,4)
    A("buffer_load_ushort v66, v65, s[88:91], 0 offen")
    A("s_mov_b32 s49, 400000"); A("s_mov_b32 s47, 65536")
    for r in range(8): A(f"v_mov_b32 v{68+r}, v78")
    A("L_bp:")
    if skipffn!=1:
        A("s_mov_b64 exec, 0xffff")
        A(f"buffer_load_dwordx4 v[68:71], v64, s[40:43], 0 offen offset:2048 {SC}")
        A("s_mov_b64 exec, -1"); A("s_waitcnt vmcnt(0)")
        g_check(68,76,78,0)
        A("s_sub_u32 s49, s49, 1"); A("s_cbranch_scc1 L_bx"); A("s_cbranch_vccz L_bx"); A("s_sleep 16"); A("s_branch L_bp")
    A("L_bx:")
    A("s_waitcnt vmcnt(0)")
    g_reduce(68,78)
    A("v_cvt_pk_bf16_f32 v67, 0, v68"); A("v_lshlrev_b32 v66, 16, v66")
    A("v_and_b32 v4, 15, v0"); A("v_lshlrev_b32 v4, 3, v4")
    A(f"ds_write_b64 v4, v[66:67] offset:{L_XB}")
    A("L_wo2:")
    if wsplit: wo_issue(NW,(2,3))
    if mlate: A("s_cmp_eq_u32 s3, 6"); A("s_cbranch_scc1 L_w6b")
    A("s_branch L_tail")

    REFS=[0,6,10,12]
    ROFF=[3968,2432,2944,3456] if spr else [3968]*4
    A("L_mon:")
    C("wave 7: compare this workgroup's progress with four reference workgroups and pick the streamer's depth")
    wo_issue(NW7)
    srd(40,24,25,None,1<<20)
    for k in range(4):
        A(f"s_add_u32 s47, s30, {(2*k+(k>>1))%8 if xb else 0}"); A("s_and_b32 s47, s47, 7"); A("s_lshl_b32 s47, s47, 17"); A(f"s_add_u32 s{12+k}, s47, {4096*REFS[k]+ROFF[k]}")
    A(f"s_mov_b32 s51, {(~sum(1<<r for r in REFS))&0xffffffff:#x}"); A("s_lshr_b32 s51, s51, s32"); A("s_and_b32 s51, s51, 1")
    A("s_mov_b32 s101, 3968")
    for k in range(1,4): A(f"s_cmp_eq_u32 s32, {REFS[k]}"); A(f"s_cselect_b32 s101, {ROFF[k]}, s101")
    tag_wait(5)
    if ltag: A("v_mov_b32 v4, 0"); A(f"ds_write_b32 v4, v5 offset:{L_TAG}")
    A("v_lshlrev_b32 v5, 16, v5"); A("s_lshl_b32 s96, s96, 16"); A("v_mov_b32 v4, 0"); A("s_mov_b32 s50, 0"); A("s_mov_b32 s100, 0")
    if stag: A("s_bfe_u32 s16, s32, 0x10002"); A("s_bfe_u32 s17, s32, 0x10003"); A("s_xor_b32 s16, s16, s17")
    for ph,pend in (("k",PKEND),("v",PVEND)):
        A(f"L_mon{ph}:")
        A(f"ds_read_b32 v6, v4 offset:{L_PRG}"); A("s_waitcnt lgkmcnt(0)"); A("v_readfirstlane_b32 s47, v6")
        A(f"s_cmp_ge_u32 s47, {pend}"); A(f"s_cbranch_scc1 L_mon{ph}x")
        A("s_cmp_lg_u32 s47, s50"); A(f"s_cbranch_scc1 L_mon{ph}n")
        A(f"s_sleep {msleep}"); A(f"s_branch L_mon{ph}")
        A(f"L_mon{ph}n:")
        A("s_mov_b32 s50, s47")
        if PS:
            C("every fourth period up to PS, every second one after it")
            A(f"s_cmp_le_u32 s47, {PS}"); A("s_cselect_b32 s17, 3, 1"); A(f"s_cselect_b32 s18, {64-BIAS}, {32-BIAS}"); A(f"s_cselect_b32 s19, {TH4 or TH}, {TH}")
            A("s_and_b32 s48, s47, s17"); A(f"s_cbranch_scc1 L_mon{ph}")
        elif stag: A("s_add_u32 s48, s47, s16"); A(f"s_and_b32 s48, s48, {PD-1}")
        else: A(f"s_and_b32 s48, s47, {PD-1}")
        A("s_or_b32 s48, s48, s51"); A(f"s_cbranch_scc1 L_mon{ph}p")
        A("v_or_b32 v6, v5, v6")
        A("s_mov_b64 exec, 1")
        A(f"buffer_store_dword v6, off, s[36:39], s101 {SC}")
        A("s_mov_b64 exec, -1")
        A(f"L_mon{ph}p:")
        if RD>1 and not pulse and not PS:
            if RV and ph=="v": A(f"s_cmp_ge_u32 s47, {RV}"); A(f"s_cbranch_scc1 L_mon{ph}r")
            A(f"s_and_b32 s48, s47, {RD-1}"); A(f"s_cbranch_scc1 L_mon{ph}")
            if RV and ph=="v": A(f"L_mon{ph}r:")
        if RD>1 and pulse:
            A(f"s_and_b32 s48, s47, {RD-1}"); A(f"s_cbranch_scc0 L_mon{ph}r")
            A("s_abs_i32 s48, s100"); A(f"s_cmp_ge_i32 s48, {pulse}"); A(f"s_cbranch_scc1 L_mon{ph}")
            A("v_mov_b32 v7, 1"); A(f"ds_write_b32 v4, v7 offset:{L_CTL}"); A(f"s_branch L_mon{ph}")
            A(f"L_mon{ph}r:")
        for k in range(4): A(f"s_buffer_load_dword s{4+k}, s[40:43], s{12+k} glc")
        A("s_waitcnt lgkmcnt(0)")
        for k in range(4): A(f"s_sub_u32 s{4+k}, s{4+k}, s96")
        A("s_mov_b32 s48, s4"); A("s_mov_b32 s49, s4")
        for k in range(1,4): A(f"s_add_u32 s48, s48, s{4+k}"); A(f"s_max_u32 s49, s49, s{4+k}")
        A("s_cmp_gt_u32 s49, 63"); A(f"s_cbranch_scc1 L_mon{ph}")
        A("s_lshl_b32 s48, s48, 3")
        A("s_lshl_b32 s49, s47, 5"); A("s_sub_i32 s49, s49, s18" if PS else f"s_add_i32 s49, s49, {BIAS-32}"); A("s_sub_i32 s49, s49, s48")
        if pulse: A("s_mov_b32 s100, s49")
        if PS: A("s_cmp_gt_i32 s49, s19"); A("s_cselect_b32 s48, 0, 1"); A("s_add_i32 s49, s49, s19"); A("s_cmp_lt_i32 s49, 0"); A("s_cselect_b32 s48, 2, s48")
        else: A(f"s_cmp_gt_i32 s49, {TH}"); A("s_cselect_b32 s48, 0, 1"); A(f"s_cmp_lt_i32 s49, {-TH}"); A("s_cselect_b32 s48, 2, s48")
        A("v_mov_b32 v7, s48"); A(f"ds_write_b32 v4, v7 offset:{L_CTL}")
        A(f"s_branch L_mon{ph}")
        A(f"L_mon{ph}x:")
        if ph=="k": A("s_waitcnt lgkmcnt(0)"); STAMP(3); A("s_barrier")

    A("L_tail:")
    A(f"v_lshrrev_b32 v{hLD}, 4, v0"); A(f"v_lshlrev_b32 v{hLD}, 4, v{hLD}"); A("v_mov_b32 v30, 0")
    A(f"v_lshlrev_b32 v{hAD}, 2, v0")
    A("s_sub_u32 s48, s3, 1"); A("s_lshl_b32 s48, s48, 8")
    A("s_waitcnt vmcnt(0) lgkmcnt(0)")
    STAMP(4)
    for q in range(4):
        A("s_barrier")
        if q==3: STAMP(5)
        for ka in range(2): A(f"ds_read_b128 v[{32+8*q+4*ka}:{32+8*q+4*ka+3}], v{hLD} offset:{L_O+128*q+64*ka}")
        if q==0: A(f"ds_read_b64 v[10:11], v30 offset:{L_SC}")
        for ka in range(2):
            A(f"s_waitcnt lgkmcnt({(2 if q==0 else 1)-ka})")
            for nu in range(4):
                a=12+4*nu; w=WO+32*q+16*ka+4*nu; x=32+8*q+4*ka
                A(f"v_mfma_f32_16x16x32_bf16 v[{a}:{a+3}], v[{x}:{x+3}], v[{w}:{w+3}], {'0' if (q==0 and ka==0) else f'v[{a}:{a+3}]'}")
    A("s_nop 5")
    rowsel(12,[12,16,20,24])
    A("v_mul_f32 v12, v10, v12"); A("v_add_u32 v12, 0x800, v12"); A("v_and_or_b32 v12, v12, s97, v11")
    A(f"buffer_store_dword v12, v{hAD}, s[36:39], s48 offen {YF or SC}")
    STAMP(6)
    if pb: A("s_cmp_ge_u32 s32, 28"); A("s_cbranch_scc1 L_tend"); A("s_barrier"); A("L_tend:")
    stamp_out()
    A("s_endpgm")

    A("L_help:")
    D0=32
    def layernorm(xr, dup):
        for k in range(4):
            A(f"v_lshlrev_b32 v{8+2*k}, 16, v{xr+k}"); A(f"v_and_b32 v{9+2*k}, 0xffff0000, v{xr+k}")
        A("v_add_f32 v16, v8, v9"); A("v_add_f32 v17, v10, v11"); A("v_add_f32 v18, v12, v13"); A("v_add_f32 v19, v14, v15")
        A("v_add_f32 v16, v16, v17"); A("v_add_f32 v18, v18, v19"); A("v_add_f32 v16, v16, v18")
        wave_sum(16,17)
        A(f"v_mul_f32 v16, {f2u(1.0/448):#x}, v16")
        A("v_cmp_gt_u32 vcc, 56, v0"); A("v_cvt_pk_bf16_f32 v17, 0, v16"); A("s_nop 0")
        A("v_cndmask_b32 v16, 0, v16, vcc")
        A("v_sub_f32 v4, v8, v16"); A("v_mul_f32 v18, v4, v4")
        for k in range(1,8): A(f"v_sub_f32 v4, v{8+k}, v16"); A("v_fmac_f32 v18, v4, v4")
        wave_sum(18,19)
        A(f"v_mul_f32 v18, {f2u(1.0/448):#x}, v18")
        A("v_cvt_pk_bf16_f32 v18, 0, v18")
        A(f"v_add_f32 v18, {f2u(1e-5):#x}, v18")
        A("v_cvt_pk_bf16_f32 v18, 0, v18")
        A("v_sqrt_f32 v18, v18"); A("s_nop 0")
        A("v_cvt_pk_bf16_f32 v18, 0, v18")
        A("v_rcp_f32 v19, v18")
        for k in range(8):
            A(f"v_sub_f32 v{8+k}, v{8+k}, v17"); A(f"v_cvt_pk_bf16_f32 v{8+k}, 0, v{8+k}")
            A(f"v_mul_f32 v4, v{8+k}, v19"); A(f"v_fma_f32 v6, -v4, v18, v{8+k}")
            if dup: A("v_fma_f32 v4, v6, v19, v4"); A(f"v_cvt_pk_bf16_f32 v{8+k}, v4, v4")
            else: A(f"v_fma_f32 v{8+k}, v6, v19, v4")
        if not dup:
            for k in range(4): A(f"v_cvt_pk_bf16_f32 v{8+k}, v{8+2*k}, v{9+2*k}")
    def wq_load(t):
        A(f"buffer_load_dwordx4 v[{D0+4*t}:{D0+4*t+3}], v{hAD}, s[52:55], s48 offen {QF}")
        A("s_add_u32 s48, s48, 65536")
        if rot and t%4==3 and t<55: A(f"s_cmp_ge_u32 s48, {56*65536}"); A("s_cselect_b32 s48, 0, s48")
    def gemv56(bar_at):
        XX=[4,8]; BB=[12,16]
        A("s_waitcnt lgkmcnt(0)")
        A(f"ds_read_b128 v[4:7], v{hLD}"); A(f"ds_read_b128 v[8:11], v{hLD} offset:16")
        def bp(t):
            if t%4==0: A(f"s_waitcnt lgkmcnt({1 if t//4+1<14 else 0})")
            for r in range(4): A(f"v_and_b32 v{BB[t%2]+r}, v{XX[(t//4)%2]+t%4}, v{hM+r}")
            if t%4==3 and t//4+2<14:
                x=XX[(t//4)%2]; A(f"ds_read_b128 v[{x}:{x+3}], v{hLD} offset:{16*(t//4+2)}")
        bp(0)
        for t in range(56):
            if t+1<56: bp(t+1)
            else: A("s_nop 0")
            if t+QD<56: wq_load(t+QD)
            if t+QD==bar_at: A("s_barrier")
            A(f"s_waitcnt vmcnt({min(QD,55-t)})")
            A(f"v_mfma_f32_16x16x32_bf16 v[{hACC}:{hACC+3}], v[{D0+4*t}:{D0+4*t+3}], v[{BB[t%2]}:{BB[t%2]+3}], {'0' if t==0 else f'v[{hACC}:{hACC+3}]'}")
        A("s_nop 7")
        combine(hACC,12)
    def ln_part(wait):
        masks(hM,12,13)
        A(f"s_waitcnt vmcnt({wait})")
        layernorm(4,True)
        C("X'[e][(t - 4*rot) mod 56]")
        A("s_sub_u32 s47, s3, 1"); A(f"s_mul_i32 s47, s47, {X_SZ}"); A(f"s_add_u32 s47, s47, {L_X}")
        A("s_lshl_b32 s50, s51, 2"); A("v_subrev_u32 v5, s50, v0"); A("v_add_u32 v6, 56, v5"); A("v_min_u32 v5, v5, v6")
        A("v_cmp_lt_u32 vcc, 55, v0"); A("s_nop 1"); A("v_cndmask_b32 v5, v5, v0, vcc")
        A("v_lshl_add_u32 v5, v5, 2, s47")
        for k in range(8): A(f"ds_write_b32 v5, v{8+k} offset:{k*X_STR}")
        A(f"v_mul_u32_u24 v{hLD}, {X_STR}, v2"); A(f"v_add_u32 v{hLD}, s47, v{hLD}")
    C("q column block w-1 over all 448 rows of wq, tile order rotated by 4*s51 tiles")
    A("v_lshlrev_b32 v1, 4, v0")
    A(f"v_lshlrev_b32 v{hAD}, 13, v2"); A(f"v_lshl_add_u32 v{hAD}, v3, 4, v{hAD}")
    A("s_mul_i32 s47, s30, 896")
    A("s_lshl_b32 s48, s31, 9"); A("s_sub_u32 s49, s3, 1"); A("s_lshl_b32 s49, s49, 7"); A("s_add_u32 s48, s48, s49"); A(f"s_sub_u32 s49, {448*8192}, s48")
    if rot: A("s_mul_i32 s51, s30, 7"); A("s_lshr_b32 s51, s51, 2")
    else: A("s_mov_b32 s51, 0")
    A("s_waitcnt lgkmcnt(0)")
    srd(88,4,5,"s47",896)
    srd(52,10,11,"s48","s49")
    A("buffer_load_dwordx4 v[4:7], v1, s[88:91], 0 offen")
    if st0: STAMP(1)
    A("s_lshl_b32 s48, s51, 18")
    A("s_cmp_eq_u32 s28, 1"); A("s_cbranch_scc1 L_q1")
    for t in range(QD): wq_load(t)
    ln_part(QD); gemv56(55); A("s_branch L_q2")
    A("L_q1:")
    ln_part(0); A("s_barrier")
    for t in range(QD): wq_load(t)
    gemv56(None)
    A("L_q2:")
    C("q -> bf16 -> LDS: addr = m*128 + (4*rowq+hi)*16 + j*2 (+32 for the second register)")
    A("v_cvt_pk_bf16_f32 v12, v12, v13")
    A("v_bfe_u32 v4, v0, 4, 1"); A("v_lshrrev_b32 v5, 5, v0"); A("v_lshl_add_u32 v4, v4, 2, v5"); A("v_lshlrev_b32 v4, 4, v4"); A("v_lshl_add_u32 v4, v3, 1, v4")
    A("s_sub_u32 s47, s3, 1"); A("s_lshl_b32 s47, s47, 7"); A("v_add_u32 v4, s47, v4")
    A("s_mov_b64 exec, s[60:61]")
    A(f"ds_write_b16 v4, v12 offset:{L_Q}"); A(f"ds_write_b16_d16_hi v4, v12 offset:{L_Q+32}")
    A("s_mov_b64 exec, -1")
    A("s_waitcnt lgkmcnt(0)")
    if not st0: STAMP(1)
    A("s_barrier")
    STAMP(2)
    srd_slots()
    C("FFN, wave 1 of 2 x 28 workgroups, all 8 batches at once. Stage 0 (s50=0): h = silu(xn . w1[:, 64f..64f+63])")
    C("stage 1 (s50=1): partial result h[448r..448r+447] . w2[448r.., 64c..64c+63], f = 7r + c")
    A("s_cmp_lg_u32 s3, 1"); A("s_cbranch_scc1 L_wo")
    if skipffn==1: A("s_branch L_wo")
    A("s_cmp_lg_u32 s28, 1"); A("s_cbranch_scc1 L_wo")
    A("s_xor_b32 s47, s30, s26"); A("s_and_b32 s48, s47, 1"); A("s_cbranch_scc1 L_wo")
    A("s_bfe_u32 s50, s47, 0x10001"); A("s_lshr_b32 s47, s47, 2"); A("s_lshl_b32 s47, s47, 4"); A("s_add_u32 s51, s31, s47")
    A("s_cmp_ge_u32 s51, 28"); A("s_cbranch_scc1 L_wo")
    A("s_mul_i32 s62, s51, 37"); A("s_lshr_b32 s62, s62, 8"); A("s_mul_i32 s63, s62, 7"); A("s_sub_u32 s63, s51, s63")
    C("s62 = r, s63 = c")
    A("s_cmp_eq_u32 s50, 1"); A("s_cbranch_scc1 L_f1a")
    A("s_lshl_b32 s48, s51, 7"); A(f"s_sub_u32 s49, {448*3584}, s48"); srd(52,16,17,"s48","s49")
    A("s_mov_b32 s46, 3584")
    C("raw x of the 8 batches -> XN, then layernorm in place while the first tiles are in flight")
    srd(88,4,5,None,8*896)
    A(f"v_add_u32 v5, {L_XN}, v1"); A("v_cmp_gt_u32 vcc, 56, v0"); A("v_mov_b32 v6, 0x10000"); A("s_nop 0"); A("v_cndmask_b32 v6, v6, v1, vcc")
    for b in range(8): A(f"buffer_load_dwordx4 v[{224+4*b}:{227+4*b}], v6, s[88:91], 0 offen offset:{896*b}" if 896*b<4096 else f"buffer_load_dwordx4 v[{224+4*b}:{227+4*b}], v6, s[88:91], s46 offen offset:{896*b-3584}")
    A("s_branch L_f1b")
    A("L_f1a:")
    A(f"s_mul_i32 s48, s62, {448*896}"); A("s_lshl_b32 s49, s63, 7"); A("s_add_u32 s48, s48, s49"); A(f"s_sub_u32 s49, {1792*896}, s48"); srd(52,18,19,"s48","s49")
    A("s_mov_b32 s46, 896")
    A("L_f1b:")
    A(f"v_mul_u32_u24 v{hAD}, s46, v2"); A(f"v_lshl_add_u32 v{hAD}, v3, 4, v{hAD}")
    A("s_lshl_b32 s46, s46, 3"); A("s_mov_b32 s48, 0")
    def w_load(t):
        A(f"buffer_load_dwordx4 v[{D0+4*t}:{D0+4*t+3}], v{hAD}, s[52:55], s48 offen {WF}")
        A("s_add_u32 s48, s48, s46")
    for t in range(NF): w_load(t)
    A("s_cmp_eq_u32 s50, 1"); A("s_cbranch_scc1 L_f2")
    A(f"s_waitcnt vmcnt({NF})")
    for b in range(8): A(f"ds_write_b128 v5, v[{224+4*b}:{227+4*b}] offset:{XN_STR*b}")
    A("s_mov_b32 s49, 8")
    A("L_ln8:")
    A("s_waitcnt lgkmcnt(0)")
    A("ds_read_b128 v[20:23], v5"); A("s_waitcnt lgkmcnt(0)")
    layernorm(20,False)
    A("ds_write_b128 v5, v[8:11]")
    A(f"v_add_u32 v5, {XN_STR}, v5"); A("s_sub_u32 s49, s49, 1"); A("s_cmp_lg_u32 s49, 0"); A("s_cbranch_scc1 L_ln8")
    A("L_f2:")
    for t in range(NF,56):
        A(f"s_waitcnt vmcnt({NF-1})"); w_load(t)
    A("s_waitcnt vmcnt(0)")
    def transpose4(regs):
        for k in range(4): A(f"ds_write_b128 v{hAD}, v[{regs[k]}:{regs[k]+3}] offset:{T_STR*k}")
        A("s_waitcnt lgkmcnt(0)")
        for nu in range(4):
            for hf in range(2): A(f"ds_read_b64_tr_b16 v[{regs[nu]+2*hf}:{regs[nu]+2*hf+1}], v{hLD} offset:{512*hf+32*nu}")
        A("s_waitcnt lgkmcnt(0)")
    t_addr(hAD,hLD,True)
    for ka in range(14): transpose4([D0+16*ka+4*k for k in range(4)])
    tag_wait(1)
    A("v_or_b32 v7, 0xa000, v1")
    srd(52,24,25,None,1<<20)
    A("s_lshl_b32 s47, s51, 12"); A("s_add_u32 s47, s47, 1792")
    A("s_cmp_eq_u32 s50, 0"); A("s_cbranch_scc1 L_f3")
    C("gather h: 7 slices x 8 batches, one bf16 and a 16-bit tag per word")
    A("v_lshrrev_b32 v5, 4, v0"); A("v_and_b32 v6, 15, v0"); A("v_lshlrev_b32 v4, 17, v5"); A("v_lshl_add_u32 v4, v6, 4, v4")
    A(f"s_mul_i32 s47, s62, {7*4096}"); A("s_add_u32 s47, s47, 1792"); A("v_add_u32 v4, s47, v4")
    A(f"v_mul_u32_u24 v5, {XN_STR}, v5"); A("v_lshl_add_u32 v5, v6, 3, v5")
    A("s_mov_b32 s63, 0x07060302")
    items=[(ps,sl) for ps in range(2) for sl in range(7)]
    for rd,grp in enumerate((items[0:5],items[5:10],items[10:14])):
        A("s_mov_b32 s49, 400000")
        A(f"L_hg{rd}:")
        for k,(ps,sl) in enumerate(grp):
            A(f"s_mov_b32 s47, {ps*4*131072+sl*4096}")
            A(f"buffer_load_dwordx4 v[{8+4*k}:{11+4*k}], v4, s[52:55], s47 offen {SC}")
        A("s_waitcnt vmcnt(0)")
        A("v_xor_b32 v6, v8, v7")
        for r in range(1,4*len(grp)): A(f"v_bitop3_b32 v6, v{8+r}, v7, v6 bitop3:0xbe")
        A("v_and_b32 v6, 0xffff, v6"); A("v_cmp_ne_u32 vcc, 0, v6")
        A("s_sub_u32 s49, s49, 1"); A(f"s_cbranch_scc1 L_hx{rd}"); A(f"s_cbranch_vccz L_hx{rd}"); A(f"s_sleep {hsl}"); A(f"s_branch L_hg{rd}")
        A(f"L_hx{rd}:")
        for k,(ps,sl) in enumerate(grp):
            A(f"v_perm_b32 v{8+4*k}, v{9+4*k}, v{8+4*k}, s63"); A(f"v_perm_b32 v{9+4*k}, v{11+4*k}, v{10+4*k}, s63")
            A(f"ds_write_b64 v5, v[{8+4*k}:{9+4*k}] offset:{L_XN+4*XN_STR*ps+128*sl}")
        A("s_waitcnt lgkmcnt(0)")
    A("s_mul_i32 s63, s62, 7"); A("s_sub_u32 s63, s51, s63")
    A("s_lshl_b32 s47, s62, 12"); A("s_lshl_b32 s48, s63, 8"); A("s_add_u32 s47, s47, s48"); A("s_add_u32 s47, s47, 2048")
    A("L_f3:")
    C("A fragments: row i of the MFMA is batch (i&3) (+4 in the second pass)")
    A("v_and_b32 v30, 3, v0"); A(f"v_mul_u32_u24 v30, {XN_STR}, v30"); A("v_lshrrev_b32 v31, 4, v0"); A("v_lshl_add_u32 v30, v31, 4, v30")
    A("v_lshl_add_u32 v31, v0, 2, s47")
    for ps in range(2):
        for ka in range(14):
            A(f"ds_read_b128 v[{20+4*(ka%2)}:{23+4*(ka%2)}], v30 offset:{L_XN+4*XN_STR*ps+64*ka}"); A("s_waitcnt lgkmcnt(0)")
            for nu in range(4):
                a=4+4*nu; w=D0+16*ka+4*nu
                A(f"v_mfma_f32_16x16x32_bf16 v[{a}:{a+3}], v[{20+4*(ka%2)}:{23+4*(ka%2)}], v[{w}:{w+3}], {'0' if ka==0 else f'v[{a}:{a+3}]'}")
        for r in range(4): A(f"s_mov_b32 s{44+r}, {(4*ps+r)<<17}")
        A("s_nop 7")
        for r in range(4):
            rowsel(4+r,[4+r,8+r,12+r,16+r])
        A("s_cmp_eq_u32 s50, 1"); A(f"s_cbranch_scc1 L_f4{ps}")
        A("v_or_b32 v21, 0xa000, v1")
        for r in range(4):
            k=4+r
            A(f"v_cvt_pk_bf16_f32 v{k}, 0, v{k}")
            A(f"v_mul_f32 v20, {f2u(-math.log2(math.e)):#x}, v{k}"); A("v_exp_f32 v20, v20"); A("s_nop 0")
            A("v_add_f32 v20, 1.0, v20"); A("v_rcp_f32 v20, v20"); A("s_nop 0")
            A(f"v_mul_f32 v{k}, v{k}, v20"); A(f"v_cvt_pk_bf16_f32 v{k}, 0, v{k}"); A(f"v_or_b32 v{k}, v{k}, v21")
        A(f"s_branch L_f5{ps}")
        A(f"L_f4{ps}:")
        for r in range(4): A(f"v_add_u32 v{4+r}, 0x800, v{4+r}"); A(f"v_and_or_b32 v{4+r}, v{4+r}, s97, v1")
        A(f"L_f5{ps}:")
        for r in range(4): A(f"buffer_store_dword v{4+r}, v31, s[52:55], s{44+r} offen {SC}")
        A("s_nop 1")
    STAMP(3)
    A("s_barrier")
    wo_issue(NW7)
    A("s_branch L_tail")
    A("L_end:")
    A("s_endpgm")
    body="\n".join(("" if (l.endswith(":") or l.startswith(".")) else "    ")+l for l in L)+"\n"
    head=HEADER+f"; @launch grid=(256,1,1) block=(512,1,1) lds={L_END}\n"
    return head+body+kd(NAME,256,102,256), L_END

if __name__=="__main__":
    kw=eval("dict(%s)"%(sys.argv[2] if len(sys.argv)>2 else ""))
    t,ldsz=gen(**kw)
    out=sys.argv[1]
    if out.endswith(".s"): open(out,"w").write(t)
    else:
        assemble(t+meta([(NAME,256,102,512)]), out); print(f"work/{out}:{NAME},256,512,{ldsz}")
```
